```python
import torch

def _softmax(x, axis=-1):
    return torch.softmax(x, dim=axis)
def _gelu(x):
    return torch.nn.functional.gelu(x, approximate="tanh")
def _silu(x):
    return torch.nn.functional.silu(x)
def _sigmoid(x):
    return torch.sigmoid(x)
def _layernorm(x, axis=-1, eps=1e-5):
    m = x.mean(dim=axis, keepdim=True)
    v = x.var(dim=axis, keepdim=True, unbiased=False)
    return (x - m) / torch.sqrt(v + eps)
def _scatter_add(tgt, idx, src, axis=0):
    return tgt.clone().index_add_(axis, idx, src)
def _segment_sum(src, seg, n):
    out = torch.zeros((n,) + src.shape[1:], dtype=src.dtype)
    return out.index_add_(0, seg, src)
def _pad(x, pw):
    flat = tuple(v for pair in reversed(pw) for v in pair)
    return torch.nn.functional.pad(x, flat)

kernel_name = 'parallel_sum__mha_block_cached__geglu_ffn__decode'

def setup_inputs():

    _w = (lambda a: (lambda t: t.to(torch.bfloat16) if t.is_floating_point() else t)(torch.as_tensor(a)))
    def _A_setup():
        B, Sq, D = 1, 1, 640
        H, Sk, Dh = 32, 32768, 192
        return {
            "x": _w((lambda *s: torch.randn(*s, dtype=torch.bfloat16) * 0.05)(B, Sq, D)),
            "k_cache": _w((lambda *s: torch.randn(*s, dtype=torch.bfloat16) * 3.2)(B, H, Sk, Dh)),
            "v_cache": _w((lambda *s: torch.randn(*s, dtype=torch.bfloat16) * 1.6)(B, H, Sk, Dh)),
            "wq": _w((lambda *s: torch.randn(*s, dtype=torch.bfloat16) * 3.2)(D, H * Dh) * (D ** -0.5)),
            "wo": _w((lambda *s: torch.randn(*s, dtype=torch.bfloat16) * 1.6)(H * Dh, D) * ((H * Dh) ** -0.5)),
        }
    _A_in = _A_setup()

    def _B_setup():
        B, S, D, F = 1, 1, 640, 1536
        return {
            "x": _w((lambda *s: torch.randn(*s, dtype=torch.bfloat16) * 0.05)(B, S, D)),
            "w_gate": _w((lambda *s: torch.randn(*s, dtype=torch.bfloat16) * 0.05)(D, F)),
            "w_up": _w((lambda *s: torch.randn(*s, dtype=torch.bfloat16) * 0.05)(D, F)),
            "w_down": _w((lambda *s: torch.randn(*s, dtype=torch.bfloat16) * 0.05)(F, D)),
        }
    _B_in = _B_setup()

    return {
        "A_x": _A_in["x"],
        "A_k_cache": _A_in["k_cache"],
        "A_v_cache": _A_in["v_cache"],
        "A_wq": _A_in["wq"],
        "A_wo": _A_in["wo"],
        "B_x": _B_in["x"],
        "B_w_gate": _B_in["w_gate"],
        "B_w_up": _B_in["w_up"],
        "B_w_down": _B_in["w_down"],
    }

def reference(A_x, A_k_cache, A_v_cache, A_wq, A_wo, B_x, B_w_gate, B_w_up, B_w_down):
    def _A_ref(x, k_cache, v_cache, wq, wo):
        B, Sq, D = x.shape
        H, Dh = 32, 192
        q = (lambda x, *d: x.permute(*d))((x @ wq).reshape(B, Sq, H, Dh), 0, 2, 1, 3)
        scores = torch.einsum("bhqd,bhkd->bhqk", q, k_cache) * (Dh ** -0.5)
        p = _softmax(scores, axis=-1)
        o = torch.einsum("bhqk,bhkd->bhqd", p, v_cache)
        return (lambda x, *d: x.permute(*d))(o, 0, 2, 1, 3).reshape(B, Sq, H * Dh) @ wo

    def _B_ref(x, w_gate, w_up, w_down):
        return (_gelu(x @ w_gate) * (x @ w_up)) @ w_down

    x = A_x
    xn = _layernorm(x, axis=-1)
    return x + _A_ref(xn, A_k_cache, A_v_cache, A_wq, A_wo) + _B_ref(xn, B_w_gate, B_w_up, B_w_down)
```

```python
import struct
import sys

NAME = "parallel_sum__mha_block_cached__geglu_ffn__decode"
HEAD = 32768 * 384
KV_BYTES = 32 * HEAD
SENT = 0xFFFFFFFF

WS_PA = 0x000000
WS_ST = 0x060000
WS_OP = 0x070000
WS_YA = 0x140000
WS_YB = 0x150000
WS_PROF = 0x200000
WS_SIZE = 0x400000

L_FLS = 0
L_FLQ = 16
L_FLP = 20
L_Q = 64
L_SC = 2048
L_DUMP = L_SC + 8192


def f2u(x):
    return struct.unpack("<I", struct.pack("<f", x))[0]


LOG2E = f2u(1.4426950408889634)
SCALE = f2u(192 ** -0.5)

HEADER = """; Kernarg layout for this problem (96 bytes, ptrs only, base s[0:1]):
; @launch grid=(256,1,1) block=({block},1,1) lds={lds}
.amdgcn_target "amdgcn-amd-amdhsa--gfx950"
.text
.globl {name}_kernel
.p2align 8
.type {name}_kernel,@function
{name}_kernel:
"""
FOOTER = """
.section .rodata,"a"
.p2align 6
.amdhsa_kernel {name}_kernel
  .amdhsa_next_free_vgpr {vgpr}
  .amdhsa_next_free_sgpr 96
  .amdhsa_accum_offset {acc}
  .amdhsa_group_segment_fixed_size 0
  .amdhsa_kernarg_size 96
  .amdhsa_user_sgpr_count 2
  .amdhsa_user_sgpr_kernarg_segment_ptr 1
  .amdhsa_system_sgpr_workgroup_id_x 1
.end_amdhsa_kernel
"""

DPP_ALL = "row_mask:0xf bank_mask:0xf"
X1 = "quad_perm:[1,0,3,2] " + DPP_ALL
X2 = "quad_perm:[2,3,0,1] " + DPP_ALL
HM = "row_half_mirror " + DPP_ALL
RM = "row_mirror " + DPP_ALL
R8 = "row_ror:8 " + DPP_ALL

S_WAVE, S_X, S_C = 3, 4, 5
P_X, P_K, P_V, P_WQ, P_WO, P_G, P_U, P_D, P_OUT, P_DBG, P_WS = 16, 18, 20, 22, 24, 28, 30, 32, 34, 36, 38
SPIN_G = 400000
SPIN_L = 4000000


class Gen:
    def __init__(self, NS=2, R=24, L=23, cap=11, cap0=4, capH=14, cap_tail=None, tail_iters=1, prof=False):
        self.NS, self.R, self.L = NS, R, L
        self.cap, self.cap0, self.capH = cap, cap0, capH
        self.cap_tail = cap_tail or cap
        self.tail_iters = tail_iters
        self.prof = prof
        self.o = []
        self.uid = 0
        self.steps = 32768 // (32 * NS * 16)
        self.tpi = R // 6
        assert R % 24 == 0 and self.steps % self.tpi == 0 and L < R
        assert max(cap, cap0, self.cap_tail) <= L
        self.ipr = self.steps // self.tpi
        self.step_bytes = 32 * NS * 6144
        self.dump_bytes = 8 * NS * 768
        self.lds = L_DUMP + 4 * self.dump_bytes

    def e(self, s):
        self.o.append(s)

    def c(self, s):
        self.o.append("; " + s)

    def label(self, base):
        self.uid += 1
        return f"L_{base}_{self.uid}"

    def srd(self, d, p, size):
        self.e(f"s_mov_b32 s{d}, s{p}")
        self.e(f"s_mov_b32 s{d+1}, s{p+1}")
        self.e(f"s_mov_b32 s{d+2}, {size}")
        self.e(f"s_mov_b32 s{d+3}, 0x20000")

    def stamp(self, k):
        if self.prof:
            self.e(f"s_memrealtime s[{64 + 2 * k}:{65 + 2 * k}]")
            self.e("s_waitcnt lgkmcnt(0)")

    def prof_store(self, n):
        if not self.prof:
            return
        e = self.e
        e("s_mov_b64 exec, -1")
        e("s_waitcnt vmcnt(0) lgkmcnt(0)")
        self.srd(12, P_WS, WS_SIZE)
        e("s_lshl_b32 s6, s2, 2")
        e(f"s_add_u32 s6, s6, s{S_WAVE}")
        e("s_lshl_b32 s6, s6, 6")
        e(f"s_add_u32 s6, s6, {WS_PROF}")
        e("v_mov_b32 v1, 0")
        e("s_getreg_b32 s7, hwreg(HW_REG_XCC_ID)")
        e("v_mov_b32 v2, s7")
        e("s_mov_b64 exec, 1")
        e("buffer_store_dword v2, v1, s[12:15], s6 offen offset:60")
        for k in range(n):
            e(f"v_mov_b32 v{4 + k}, s{64 + 2 * k}")
            e(f"buffer_store_dword v{4 + k}, v1, s[12:15], s6 offen offset:{4 * k}")
        e("s_waitcnt vmcnt(0)")

    def allreduce(self, op, v, t):
        e = self.e
        for pat in (X1, X2, HM, RM):
            e("s_nop 1")
            e(f"{op}_dpp v{v}, v{v}, v{v} {pat}")
        for sw in ("v_permlane16_swap_b32", "v_permlane32_swap_b32"):
            e(f"v_mov_b32 v{t}, v{v}")
            e("s_nop 1")
            e(f"{sw} v{v}, v{t}")
            e("s_nop 1")
            e(f"{op} v{v}, v{v}, v{t}")

    def round_bf16(self, v):
        self.e(f"v_cvt_pk_bf16_f32 v{v}, v{v}, v{v}")
        self.e(f"v_and_b32 v{v}, 0xffff0000, v{v}")

    def expand(self, src, dst):
        e = self.e
        for k in range(4):
            e(f"v_and_b32 v{dst + 4 * k}, 0xffff, v{src + k}")
            e(f"v_lshlrev_b32 v{dst + 4 * k + 1}, 16, v{src + k}")
            e(f"v_lshrrev_b32 v{dst + 4 * k + 2}, 16, v{src + k}")
            e(f"v_and_b32 v{dst + 4 * k + 3}, 0xffff0000, v{src + k}")

    def gemv_row(self, w, xop, acc):
        for k in range(4):
            self.e(f"v_dot2c_f32_bf16 v{acc + 2 * k}, v{w + k}, v{xop}")
            self.e(f"v_dot2c_f32_bf16 v{acc + 2 * k + 1}, v{w + k}, v{xop + 1}")

    def reduce_g(self, acc, res, t):
        e = self.e
        e("s_nop 2")
        for k in range(4):
            e(f"v_permlane32_swap_b32 v{acc + k}, v{acc + k + 4}")
        e("s_nop 0")
        for k in range(4):
            e(f"v_add_f32 v{res + k}, v{acc + k}, v{acc + k + 4}")
        for k in range(4):
            e(f"v_mov_b32 v{t + k}, v{res + k}")
        e("s_nop 0")
        for k in range(4):
            e(f"v_permlane16_swap_b32 v{res + k}, v{t + k}")
        e("s_nop 0")
        for k in range(4):
            e(f"v_add_f32 v{res + k}, v{res + k}, v{t + k}")
        e("s_nop 0")
        for k in range(4):
            e(f"v_add_f32_dpp v{res + k}, v{res + k}, v{res + k} {R8}")

    def reduce_sub(self, v, n):
        for pat in (X1, X2, HM):
            self.e("s_nop 1")
            for k in range(n):
                self.e(f"v_add_f32_dpp v{v + k}, v{v + k}, v{v + k} {pat}")

    def wait_lds(self, addr, val, vt, n=1, sleep=2, val_is_sreg=False):
        e = self.e
        lp, ok = self.label("wl"), self.label("wlok")
        e(f"s_mov_b32 s62, {SPIN_L}")
        e(f"v_mov_b32 v{vt + 4}, 0")
        e(f"{lp}:")
        if n == 1:
            e(f"ds_read_b32 v{vt}, v{vt + 4} offset:{addr}")
            e("s_waitcnt lgkmcnt(0)")
        elif n == 2:
            e(f"ds_read_b64 v[{vt}:{vt + 1}], v{vt + 4} offset:{addr}")
            e("s_waitcnt lgkmcnt(0)")
            e(f"v_min_u32 v{vt}, v{vt}, v{vt + 1}")
        else:
            e(f"ds_read_b128 v[{vt}:{vt + 3}], v{vt + 4} offset:{addr}")
            e("s_waitcnt lgkmcnt(0)")
            e(f"v_min_u32 v{vt}, v{vt}, v{vt + 1}")
            e(f"v_min3_u32 v{vt}, v{vt}, v{vt + 2}, v{vt + 3}")
        e("s_nop 0")
        e(f"v_readfirstlane_b32 s63, v{vt}")
        e(f"s_cmp_ge_u32 s63, {val}")
        e(f"s_cbranch_scc1 {ok}")
        if sleep:
            e(f"s_sleep {sleep}")
        e("s_sub_u32 s62, s62, 1")
        e("s_cmp_lg_u32 s62, 0")
        e(f"s_cbranch_scc1 {lp}")
        e("s_endpgm")
        e(f"{ok}:")

    def set_lds(self, addr, val, vt):
        e = self.e
        e("s_waitcnt lgkmcnt(0)")
        e(f"v_mov_b32 v{vt}, {addr}")
        e(f"v_mov_b32 v{vt + 1}, {val}")
        e(f"ds_write_b32 v{vt}, v{vt + 1}")

    def wait_flags(self, srd, voff, stage, vt, sleep=1):
        e = self.e
        lp, ok = self.label("wf"), self.label("wfok")
        e(f"s_mov_b32 s62, {SPIN_G}")
        e(f"{lp}:")
        e(f"buffer_load_dword v{vt}, v{voff}, s[{srd}:{srd + 3}], 0 offen sc1")
        e("s_waitcnt vmcnt(0)")
        if stage == 1:
            e(f"v_lshrrev_b32 v{vt + 1}, 1, v{vt}")
            e(f"v_or_b32 v{vt}, v{vt}, v{vt + 1}")
            e(f"v_and_b32 v{vt}, 0x01010101, v{vt}")
            e(f"v_cmp_ne_u32 vcc, 0x01010101, v{vt}")
        else:
            e(f"v_cmp_ne_u32 vcc, 0x02020202, v{vt}")
        e("s_nop 4")
        e(f"s_cbranch_vccz {ok}")
        if sleep:
            e(f"s_sleep {sleep}")
        e("s_sub_u32 s62, s62, 1")
        e("s_cmp_lg_u32 s62, 0")
        e(f"s_cbranch_scc1 {lp}")
        e("s_endpgm")
        e(f"{ok}:")

    def gather_valid(self, loads, first, nregs, vt, sleep=1):
        e = self.e
        lp, ok = self.label("gv"), self.label("gvok")
        e(f"s_mov_b32 s62, {SPIN_G}")
        e(f"{lp}:")
        for s in loads:
            e(s)
        e("s_waitcnt vmcnt(0)")
        e(f"v_max_u32 v{vt}, v{first}, v{first + 1}")
        for k in range(2, nregs, 2):
            e(f"v_max3_u32 v{vt}, v{vt}, v{first + k}, v{first + k + 1}")
        e(f"v_cmp_eq_u32 vcc, -1, v{vt}")
        e("s_nop 4")
        e(f"s_cbranch_vccz {ok}")
        if sleep:
            e(f"s_sleep {sleep}")
        e("s_sub_u32 s62, s62, 1")
        e("s_cmp_lg_u32 s62, 0")
        e(f"s_cbranch_scc1 {lp}")
        e("s_endpgm")
        e(f"{ok}:")

    def sanitize(self, v, n):
        for k in range(n):
            self.e(f"v_min_u32 v{v + k}, -2, v{v + k}")

    def ln_loads(self, srd, vlane, vg, xa, xb, xc, t, s_rb):
        e = self.e
        e(f"v_lshlrev_b32 v{t}, 4, v{vlane}")
        e(f"v_lshlrev_b32 v{t + 1}, 2, v{vlane}")
        e(f"v_lshlrev_b32 v{t + 2}, 4, v{vg}")
        e(f"s_lshl_b32 s6, s{s_rb}, 7")
        e(f"buffer_load_dwordx4 v[{xa}:{xa + 3}], v{t}, s[{srd}:{srd + 3}], 0 offen")
        e(f"buffer_load_dword v{xb}, v{t + 1}, s[{srd}:{srd + 3}], 0 offen offset:1024")
        e(f"buffer_load_dwordx4 v[{xc}:{xc + 3}], v{t + 2}, s[{srd}:{srd + 3}], s6 offen")

    def ln_compute(self, xa, xb, xc, f, xop):
        e = self.e
        src = [xa, xa + 1, xa + 2, xa + 3, xb]
        for k, s in enumerate(src):
            e(f"v_lshlrev_b32 v{f + 2 * k}, 16, v{s}")
            e(f"v_and_b32 v{f + 2 * k + 1}, 0xffff0000, v{s}")
        m, t, var = f + 10, f + 11, f + 12
        e(f"v_add_f32 v{m}, v{f}, v{f + 1}")
        for k in range(2, 10):
            e(f"v_add_f32 v{m}, v{m}, v{f + k}")
        self.allreduce("v_add_f32", m, t)
        e(f"v_mul_f32 v{m}, {hex(f2u(1.0 / 640))}, v{m}")
        for k in range(10):
            e(f"v_sub_f32 v{f + k}, v{f + k}, v{m}")
        e(f"v_mul_f32 v{var}, v{f}, v{f}")
        for k in range(1, 10):
            e(f"v_fmac_f32 v{var}, v{f + k}, v{f + k}")
        self.allreduce("v_add_f32", var, t)
        e(f"v_mul_f32 v{var}, {hex(f2u(1.0 / 640))}, v{var}")
        self.round_bf16(var)
        self.round_bf16(m)
        e(f"v_add_f32 v{var}, {hex(f2u(1e-5))}, v{var}")
        self.round_bf16(var)
        e(f"v_sqrt_f32 v{var}, v{var}")
        e("s_nop 0")
        self.round_bf16(var)
        e(f"v_rcp_f32 v{var}, v{var}")
        for k in range(4):
            e(f"v_lshlrev_b32 v{f + 2 * k}, 16, v{xc + k}")
            e(f"v_and_b32 v{f + 2 * k + 1}, 0xffff0000, v{xc + k}")
        for k in range(8):
            e(f"v_sub_f32 v{f + k}, v{f + k}, v{m}")
        for k in range(4):
            e(f"v_cvt_pk_bf16_f32 v{xc + k}, v{f + 2 * k}, v{f + 2 * k + 1}")
        for k in range(4):
            e(f"v_lshlrev_b32 v{f + 2 * k}, 16, v{xc + k}")
            e(f"v_and_b32 v{f + 2 * k + 1}, 0xffff0000, v{xc + k}")
        for k in range(8):
            e(f"v_mul_f32 v{f + k}, v{f + k}, v{var}")
        for k in range(4):
            e(f"v_cvt_pk_bf16_f32 v{xc + k}, v{f + 2 * k}, v{f + 2 * k + 1}")
        self.expand(xc, xop)

    def entry(self):
        e = self.e
        self.c("roles: waves 0..NS-1 stream K then V; wave NS does q/softmax exchanges; wave NS+1 does weight GEMVs")
        if self.prof:
            e("s_memrealtime s[64:65]")
        e("s_cmp_ge_u32 s2, 256")
        e("s_cbranch_scc1 L_exit")
        e("s_load_dwordx16 s[16:31], s[0:1], 0")
        e("s_load_dwordx8 s[32:39], s[0:1], 64")
        e("v_lshrrev_b32 v1, 6, v0")
        e("v_and_b32 v0, 63, v0")
        e(f"v_readfirstlane_b32 s{S_WAVE}, v1")
        e(f"s_and_b32 s{S_X}, s2, 7")
        e(f"s_lshr_b32 s{S_C}, s2, 3")
        e("v_lshrrev_b32 v1, 3, v0")
        e("v_and_b32 v2, 7, v0")
        e(f"s_mul_i32 s40, s{S_C}, 43691")
        e("s_lshr_b32 s40, s40, 17")
        e("s_mul_i32 s41, s40, 3")
        e(f"s_sub_u32 s41, s{S_C}, s41")
        e(f"s_cmp_eq_u32 s{S_WAVE}, {self.NS}")
        e("s_cbranch_scc1 L_helperA")
        e(f"s_cmp_eq_u32 s{S_WAVE}, {self.NS + 1}")
        e("s_cbranch_scc1 L_helperB")

    def streamer(self):
        e = self.e
        NS, R, L = self.NS, self.R, self.L
        VOFF, VSC, VQ, VDUMP, VT = 3, 4, 5, 6, 8
        A = 14
        SC = 20
        Q = 20 + 8
        PN, PX = 52, 60
        RING = 64
        S_OFF, S_DELTA, S_B0, S_B1, S_IT, S_R = 44, 45, 46, 47, 48, 49
        offs = [(i // 3) * 3072 + (i % 3) * 128 for i in range(6)]
        cand = [j for j in range(R) if (j + L) % 6 == 5 and ((j + L + 1) // 6) % self.tpi == 0]
        assert len(cand) == 1
        self.c("streamer")
        e(f"v_mul_u32_u24 v{VOFF}, 384, v1")
        e(f"v_lshl_add_u32 v{VOFF}, v2, 4, v{VOFF}")
        tb = 4 * self.tpi
        e(f"s_mul_i32 s6, s{S_WAVE}, {8 * tb}")
        e(f"s_add_u32 s6, s6, {L_SC}")
        e(f"v_mul_u32_u24 v{VSC}, {tb}, v1")
        e(f"v_add_u32 v{VSC}, s6, v{VSC}")
        e(f"v_lshlrev_b32 v{VQ}, 4, v2")
        e(f"s_mul_i32 s6, s{S_WAVE}, {8 * 768}")
        e(f"s_add_u32 s6, s6, {L_DUMP}")
        e(f"v_mul_u32_u24 v{VDUMP}, 768, v1")
        e(f"v_lshl_add_u32 v{VDUMP}, v2, 5, v{VDUMP}")
        e(f"v_add_u32 v{VDUMP}, s6, v{VDUMP}")
        e(f"s_mul_i32 s{S_OFF}, s{S_X}, {HEAD}")
        e(f"s_mul_i32 s6, s{S_C}, {NS}")
        e(f"s_add_u32 s6, s6, s{S_WAVE}")
        e("s_mul_i32 s6, s6, 6144")
        e(f"s_add_u32 s{S_OFF}, s{S_OFF}, s6")
        e(f"s_lshl_b32 s7, s{S_WAVE}, 2")
        e(f"v_mov_b32 v7, s7")
        e(f"v_mov_b32 v{VT}, 0")
        e(f"ds_write_b32 v7, v{VT} offset:{L_FLS}")
        e("s_waitcnt lgkmcnt(0)")
        self.srd(8, P_K, KV_BYTES)
        e("s_barrier")

        def issue(p, boundary=False):
            r = RING + (p % R) * 4
            e(f"buffer_load_dwordx4 v[{r}:{r + 3}], v{VOFF}, s[8:11], s{S_OFF} offen offset:{offs[p % 6]} nt")
            if p % 6 == 5:
                if boundary:
                    e(f"s_add_u32 s{S_OFF}, s{S_OFF}, s{S_DELTA}")
                    e(f"s_mov_b32 s8, s{S_B0}")
                    e(f"s_mov_b32 s9, s{S_B1}")
                else:
                    e(f"s_add_u32 s{S_OFF}, s{S_OFF}, {self.step_bytes}")

        for p in range(L):
            if p >= self.cap0:
                e(f"s_waitcnt vmcnt({self.cap0 - 1})")
            issue(p)
        self.stamp(1)
        e(f"s_mov_b32 s{S_R}, 0")
        e(f"s_mov_b32 s{S_B0}, s{P_K}")
        e(f"s_mov_b32 s{S_B1}, s{P_K + 1}")
        e(f"s_mov_b32 s56, {self.step_bytes + 7 * HEAD}")

        e("L_kround:")
        e(f"s_add_u32 s50, s{S_R}, 1")
        self.wait_lds(L_FLQ, "s50", VT, sleep=0)
        for s in range(3):
            e(f"ds_read_b128 v[{Q + 4 * s}:{Q + 4 * s + 3}], v{VQ} offset:{L_Q + 128 * s}")
        e(f"v_add_u32 v{VQ}, 384, v{VQ}")
        if self.prof:
            e(f"s_cmp_lg_u32 s{S_R}, 0")
            e("s_cbranch_scc1 L_nostamp2")
            self.stamp(2)
            e("L_nostamp2:")
        e(f"s_mov_b32 s{S_IT}, {self.ipr}")
        e("s_waitcnt lgkmcnt(0)")
        e("L_kloop:")
        e(f"s_cmp_eq_u32 s{S_R}, 3")
        e(f"s_cselect_b32 s50, {hex((self.step_bytes - 25 * HEAD) & 0xffffffff)}, s56")
        e(f"s_cselect_b32 s51, 1, 0")
        e(f"s_cmp_eq_u32 s{S_IT}, 1")
        e(f"s_cselect_b32 s{S_DELTA}, s50, {self.step_bytes}")
        e(f"s_cmp_eq_u32 s{S_IT}, s51")
        e(f"s_cselect_b32 s{S_B0}, s{P_V}, s{S_B0}")
        e(f"s_cselect_b32 s{S_B1}, s{P_V + 1}, s{S_B1}")
        pend = []
        pos = [0]

        def main(s):
            e(s)
            pos[0] += 1
            if pend and pend[0][0] <= pos[0]:
                _, ins, gap = pend.pop(0)
                e(ins)
                pos[0] += 1
                if pend:
                    pend[0] = (max(pend[0][0], pos[0] + gap), pend[0][1], pend[0][2])

        for j in range(R):
            tile, jj = divmod(j, 6)
            kg, s = divmod(jj, 3)
            a = A + 2 * (tile % 2) + kg
            main(f"s_waitcnt vmcnt({self.cap - 1})")
            n0 = len(self.o)
            issue(j + L, boundary=(j == cand[0]))
            pos[0] += len(self.o) - n0
            if s == 0:
                main(f"v_mov_b32 v{a}, 0")
            r = RING + j * 4
            for k in range(4):
                main(f"v_dot2c_f32_bf16 v{a}, v{r + k}, v{Q + 4 * s + k}")
            if s == 2:
                first = pos[0] + 3
                pend.append((first, f"v_add_f32_dpp v{a}, v{a}, v{a} {X1}", 2))
                pend.append((0, f"v_add_f32_dpp v{a}, v{a}, v{a} {X2}", 2))
                pend.append((0, f"v_add_f32_dpp v{a}, v{a}, v{a} {HM}", 0))
                if kg == 1:
                    pend.append((0, f"v_cvt_pk_bf16_f32 v{SC + tile}, v{a - 1}, v{a}", 0))
        while pend:
            main("s_nop 0")
        for q4 in range(self.tpi // 4):
            e(f"ds_write_b128 v{VSC}, v[{SC + 4 * q4}:{SC + 4 * q4 + 3}] offset:{16 * q4}")
        e(f"v_add_u32 v{VSC}, {NS * 8 * tb}, v{VSC}")
        e(f"s_sub_u32 s{S_IT}, s{S_IT}, 1")
        e(f"s_cmp_lg_u32 s{S_IT}, 0")
        e("s_cbranch_scc1 L_kloop")
        e(f"s_add_u32 s{S_R}, s{S_R}, 1")
        e("s_waitcnt lgkmcnt(0)")
        e(f"v_mov_b32 v{VT}, s{S_R}")
        e(f"ds_write_b32 v7, v{VT} offset:{L_FLS}")
        e(f"s_cmp_lt_u32 s{S_R}, 4")
        e("s_cbranch_scc1 L_kround")
        self.stamp(3)

        e(f"v_subrev_u32 v{VSC}, 8192, v{VSC}")
        self.wait_lds(L_FLP, 1, VT, sleep=0)
        for q4 in range(self.tpi // 4):
            e(f"ds_read_b128 v[{PN + 4 * q4}:{PN + 4 * q4 + 3}], v{VSC} offset:{16 * q4}")
        e(f"v_add_u32 v{VSC}, {NS * 8 * tb}, v{VSC}")
        e(f"s_mov_b32 s{S_R}, 0")

        def vbody(cap, last=False):
            e("s_waitcnt lgkmcnt(0)")
            for j in range(R):
                tile, jj = divmod(j, 6)
                kg, s = divmod(jj, 3)
                if last and j + L >= R:
                    e(f"s_waitcnt vmcnt({R - 1 - j})")
                else:
                    e(f"s_waitcnt vmcnt({cap - 1})")
                    issue(j + L, boundary=(j == cand[0]))
                if jj == 0:
                    e(f"v_and_b32 v{PX}, 0xffff, v{PN + tile}")
                    e(f"v_lshlrev_b32 v{PX + 1}, 16, v{PN + tile}")
                    e(f"v_lshrrev_b32 v{PX + 2}, 16, v{PN + tile}")
                    e(f"v_and_b32 v{PX + 3}, 0xffff0000, v{PN + tile}")
                    if tile == self.tpi - 1 and not last:
                        for q4 in range(self.tpi // 4):
                            e(f"ds_read_b128 v[{PN + 4 * q4}:{PN + 4 * q4 + 3}], v{VSC} offset:{16 * q4}")
                        e(f"v_add_u32 v{VSC}, {NS * 8 * tb}, v{VSC}")
                self.gemv_row(RING + 4 * j, PX + 2 * kg, Q + 8 * s)

        def dump():
            e("s_nop 2")
            for s in range(3):
                for hlf in range(2):
                    r = Q + 8 * s + 4 * hlf
                    e(f"ds_write_b128 v{VDUMP}, v[{r}:{r + 3}] offset:{256 * s + 16 * hlf}")
            e(f"v_add_u32 v{VDUMP}, {self.dump_bytes}, v{VDUMP}")
            e(f"s_add_u32 s50, s{S_R}, 5")
            e("s_waitcnt lgkmcnt(0)")
            e(f"v_mov_b32 v{VT}, s50")
            e(f"ds_write_b32 v7, v{VT} offset:{L_FLS}")

        e("L_vround:")
        e(f"s_add_u32 s50, s{S_R}, 2")
        e("s_min_u32 s50, s50, 4")
        self.wait_lds(L_FLP, "s50", VT, sleep=0)
        for k in range(24):
            e(f"v_mov_b32 v{Q + k}, 0")
        e(f"s_cmp_eq_u32 s{S_R}, 3")
        e(f"s_cselect_b32 s52, {self.tail_iters}, 0")
        e(f"s_mov_b32 s{S_IT}, {self.ipr}")
        e("L_vloop:")
        e(f"s_cmp_eq_u32 s{S_IT}, 1")
        e(f"s_cselect_b32 s{S_DELTA}, s56, {self.step_bytes}")
        vbody(self.cap)
        e(f"s_sub_u32 s{S_IT}, s{S_IT}, 1")
        e(f"s_cmp_lg_u32 s{S_IT}, s52")
        e("s_cbranch_scc1 L_vloop")
        e(f"s_cmp_eq_u32 s{S_R}, 3")
        e("s_cbranch_scc1 L_vtail")
        dump()
        e(f"s_add_u32 s{S_R}, s{S_R}, 1")
        e("s_branch L_vround")
        e("L_vtail:")
        e(f"s_mov_b32 s{S_DELTA}, {self.step_bytes}")
        if self.tail_iters > 1:
            e("L_vtloop:")
            vbody(self.cap_tail)
            e(f"s_sub_u32 s{S_IT}, s{S_IT}, 1")
            e(f"s_cmp_lg_u32 s{S_IT}, 1")
            e("s_cbranch_scc1 L_vtloop")
        vbody(self.cap_tail, last=True)
        self.stamp(4)
        dump()
        self.prof_store(5)
        e("s_endpgm")
        return RING + 4 * R

    def helperA(self):
        e = self.e
        NS = self.NS
        S_RB, S_CB = 40, 41
        SX, SW, SWS, SDB = 8, 12, 44, 48
        XA, XB, XC, F, XOP = 8, 12, 16, 20, 36
        W, ACC, RES, T = 52, 84, 92, 96
        VT = 100
        VFL, VP, VL16, VOP = 3, 4, 5, 6
        SCR = 108
        e("L_helperA:")
        e("s_setprio 3")
        e("v_mul_u32_u24 v7, 0x18000, v1")
        e("v_lshl_add_u32 v7, v2, 4, v7")
        e(f"s_mul_i32 s42, s{S_RB}, {64 * 12288}")
        e(f"s_mul_i32 s43, s{S_X}, 384")
        e("s_add_u32 s42, s42, s43")
        e(f"s_lshl_b32 s43, s{S_CB}, 7")
        e("s_add_u32 s42, s42, s43")
        e("s_waitcnt lgkmcnt(0)")
        self.srd(SX, P_X, 1280)
        self.srd(SW, P_WQ, 640 * 12288)
        self.ln_loads(SX, 0, 1, XA, XB, XC, F, S_RB)
        for i in range(8):
            e(f"buffer_load_dwordx4 v[{W + 4 * i}:{W + 4 * i + 3}], v7, s[{SW}:{SW + 3}], s42 offen nt")
            if i < 7:
                e("s_add_u32 s42, s42, 12288")
        e(f"v_mov_b32 v{VT}, 0")
        e(f"v_mov_b32 v{VT + 1}, 0")
        e(f"ds_write_b64 v{VT}, v[{VT}:{VT + 1}] offset:{L_FLQ}")
        e("s_waitcnt lgkmcnt(0)")
        e("s_barrier")
        self.srd(SWS, P_WS, WS_SIZE)
        self.srd(SDB, P_DBG, 256)
        e(f"s_lshl_b32 s6, s{S_X}, 5")
        e(f"v_lshl_add_u32 v{VFL}, v2, 2, s6")
        e(f"s_add_u32 s52, s6, s{S_C}")
        e(f"v_lshrrev_b32 v{VP}, 5, v0")
        e(f"v_lshlrev_b32 v{VP}, 4, v{VP}")
        e(f"v_lshl_add_u32 v{VP}, v2, 5, v{VP}")
        e(f"v_lshlrev_b32 v{VL16}, 4, v0")
        e(f"v_lshrrev_b32 v{VOP}, 4, v0")
        e(f"v_lshlrev_b32 v{VOP}, 13, v{VOP}")
        e(f"v_and_b32 v{T}, 15, v0")
        e(f"v_lshl_add_u32 v{VOP}, v{T}, 4, v{VOP}")
        e(f"s_mul_i32 s53, s{S_X}, {60 * 768}")
        e(f"s_cmp_ge_u32 s{S_C}, 30")
        e("s_cbranch_scc1 L_ha_flag1")
        for k in range(8):
            e(f"v_mov_b32 v{ACC + k}, 0")
        e("s_waitcnt vmcnt(8)")
        self.stamp(1)
        self.ln_compute(XA, XB, XC, F, XOP)
        for i in range(8):
            e(f"s_waitcnt vmcnt({7 - i})")
            self.gemv_row(W + 4 * i, XOP + 2 * i, ACC)
        self.reduce_g(ACC, RES, T)
        e(f"s_mul_i32 s6, s{S_RB}, 768")
        e("s_add_u32 s6, s6, s53")
        e(f"s_lshl_b32 s7, s{S_CB}, 8")
        e("s_add_u32 s6, s6, s7")
        e("s_mov_b32 exec_lo, 0xff")
        e("s_mov_b32 exec_hi, 0xff")
        e(f"buffer_store_dwordx4 v[{RES}:{RES + 3}], v{VP}, s[{SWS}:{SWS + 3}], s6 offen sc1")
        e("s_mov_b64 exec, -1")
        self.stamp(2)
        e("L_ha_flag1:")
        e(f"v_mov_b32 v{VT}, 1")
        e(f"v_mov_b32 v{VT + 1}, 0")
        e("s_waitcnt vmcnt(0)")
        e("s_mov_b64 exec, 1")
        e(f"buffer_store_byte v{VT}, v{VT + 1}, s[{SDB}:{SDB + 3}], s52 offen sc1")
        e("s_mov_b64 exec, -1")
        self.stamp(3)
        self.wait_flags(SDB, VFL, 1, VT, sleep=0)
        self.stamp(4)

        def gather_q(r):
            e("s_mov_b32 exec_lo, -1")
            e("s_mov_b32 exec_hi, 0xffff")
            e(f"s_add_u32 s6, s53, {r * 7680}")
            e("s_add_u32 s7, s6, 3840")
            for rb in range(10):
                e(f"buffer_load_dwordx4 v[{W + 4 * rb}:{W + 4 * rb + 3}], v{VL16}, s[{SWS}:{SWS + 3}], "
                  f"s{6 + rb // 5} offen offset:{768 * (rb % 5)} sc1")
            e(f"v_lshlrev_b32 v{T}, 3, v0")
            for rb in range(1, 10):
                e(f"s_waitcnt vmcnt({9 - rb})")
                for k in range(4):
                    e(f"v_add_f32 v{W + k}, v{W + k}, v{W + 4 * rb + k}")
            e(f"v_cvt_pk_bf16_f32 v{W}, v{W}, v{W + 1}")
            e(f"v_cvt_pk_bf16_f32 v{W + 1}, v{W + 2}, v{W + 3}")
            e(f"ds_write_b64 v{T}, v[{W}:{W + 1}] offset:{L_Q + 384 * r}")
            e("s_mov_b64 exec, -1")
            self.set_lds(L_FLQ, r + 1, VT)

        gather_q(0)
        self.stamp(5)
        e("s_setprio 0")
        self.wait_flags(SDB, VFL, 2, VT, sleep=16)
        for r in (1, 2, 3):
            gather_q(r)
        self.stamp(6)

        M, LS = 8, 9
        U = 12
        VS32 = 10

        def unpack(r):
            for k in range(8):
                e(f"v_lshlrev_b32 v{U + 2 * k}, 16, v{SCR + 8 * r + k}")
                e(f"v_and_b32 v{U + 2 * k + 1}, 0xffff0000, v{SCR + 8 * r + k}")

        def local_stats(r):
            self.wait_lds(L_FLS, r + 1, VT, n=NS, sleep=8)
            e(f"v_lshlrev_b32 v{VS32}, 5, v0")
            b = SCR + 8 * r
            e(f"ds_read_b128 v[{b}:{b + 3}], v{VS32} offset:{L_SC + 2048 * r}")
            e(f"ds_read_b128 v[{b + 4}:{b + 7}], v{VS32} offset:{L_SC + 2048 * r + 16}")
            e("s_waitcnt lgkmcnt(0)")
            unpack(r)
            for k in range(16):
                e(f"v_mul_f32 v{U + k}, {hex(SCALE)}, v{U + k}")
            for k in range(8):
                e(f"v_cvt_pk_bf16_f32 v{b + k}, v{U + 2 * k}, v{U + 2 * k + 1}")
            unpack(r)
            e(f"v_max_f32 v{M}, v{U}, v{U + 1}")
            for k in range(2, 16, 2):
                e(f"v_max3_f32 v{M}, v{M}, v{U + k}, v{U + k + 1}")
            self.allreduce("v_max_f32", M, T)
            for k in range(16):
                e(f"v_sub_f32 v{U + k}, v{U + k}, v{M}")
            for k in range(16):
                e(f"v_mul_f32 v{U + k}, {hex(LOG2E)}, v{U + k}")
            for k in range(16):
                e(f"v_exp_f32 v{U + k}, v{U + k}")
            e("s_nop 0")
            e(f"v_add_f32 v{LS}, v{U}, v{U + 1}")
            for k in range(2, 16):
                e(f"v_add_f32 v{LS}, v{LS}, v{U + k}")
            self.allreduce("v_add_f32", LS, T)
            self.sanitize(M, 2)
            e(f"s_lshl_b32 s6, s{S_X}, 10")
            e(f"s_lshl_b32 s7, s{S_C}, 3")
            e("s_add_u32 s6, s6, s7")
            e(f"s_add_u32 s6, s6, {WS_ST + 256 * r}")
            e(f"v_mov_b32 v{T}, 0")
            e("s_mov_b64 exec, 1")
            e(f"buffer_store_dwordx2 v[{M}:{M + 1}], v{T}, s[{SWS}:{SWS + 3}], s6 offen sc1")
            e("s_mov_b64 exec, -1")

        def finalize_p(r):
            G = 30
            e(f"v_and_b32 v{T}, 31, v0")
            e(f"v_lshlrev_b32 v{T}, 3, v{T}")
            e(f"s_lshl_b32 s6, s{S_X}, 10")
            e(f"s_add_u32 s6, s6, {WS_ST + 256 * r}")
            self.gather_valid([f"buffer_load_dwordx2 v[{G}:{G + 1}], v{T}, s[{SWS}:{SWS + 3}], s6 offen sc1"],
                              G, 2, VT, sleep=8)
            e(f"v_mov_b32 v{M}, v{G}")
            self.allreduce("v_max_f32", M, T)
            e(f"v_sub_f32 v{G}, v{G}, v{M}")
            e(f"v_mul_f32 v{G}, {hex(LOG2E)}, v{G}")
            e(f"v_exp_f32 v{G}, v{G}")
            e("s_nop 0")
            e(f"v_mul_f32 v{LS}, v{G}, v{G + 1}")
            self.allreduce("v_add_f32", LS, T)
            e(f"v_mul_f32 v{LS}, 0.5, v{LS}")
            e(f"v_rcp_f32 v{LS}, v{LS}")
            unpack(r)
            for k in range(16):
                e(f"v_sub_f32 v{U + k}, v{U + k}, v{M}")
            for k in range(16):
                e(f"v_mul_f32 v{U + k}, {hex(LOG2E)}, v{U + k}")
            for k in range(16):
                e(f"v_exp_f32 v{U + k}, v{U + k}")
            e("s_nop 0")
            for k in range(16):
                e(f"v_mul_f32 v{U + k}, v{U + k}, v{LS}")
            b = SCR + 8 * r
            for k in range(8):
                e(f"v_cvt_pk_bf16_f32 v{b + k}, v{U + 2 * k}, v{U + 2 * k + 1}")
            e(f"ds_write_b128 v{VS32}, v[{b}:{b + 3}] offset:{L_SC + 2048 * r}")
            e(f"ds_write_b128 v{VS32}, v[{b + 4}:{b + 7}] offset:{L_SC + 2048 * r + 16}")
            self.set_lds(L_FLP, r + 1, VT)

        def publish_op(r):
            self.wait_lds(L_FLS, r + 5, VT, n=NS, sleep=(1 if r == 3 else 8))
            if r == 3:
                self.stamp(7)
            e("s_mov_b32 exec_lo, -1")
            e("s_mov_b32 exec_hi, 0xffff")
            D = 32
            rows = 8 * NS
            for blk in range(0, rows, 16):
                for i in range(16):
                    d = D + 4 * (i + 1)
                    e(f"ds_read_b128 v[{d}:{d + 3}], v{VL16} offset:{L_DUMP + r * self.dump_bytes + 768 * (blk + i)}")
                    if i == 7:
                        e("s_waitcnt lgkmcnt(7)")
                for i in range(16):
                    d = D + 4 * (i + 1)
                    e(f"s_waitcnt lgkmcnt({min(15 - i, 15)})")
                    for k in range(4):
                        if blk == 0 and i == 0:
                            e(f"v_mov_b32 v{D + k}, v{d + k}")
                        else:
                            e(f"v_add_f32 v{D + k}, v{D + k}, v{d + k}")
            self.sanitize(D, 4)
            e(f"s_mul_i32 s6, s{S_X}, {4 * 24576}")
            e(f"s_lshl_b32 s7, s{S_C}, 8")
            e("s_add_u32 s6, s6, s7")
            e(f"s_add_u32 s6, s6, {WS_OP + 24576 * r}")
            e(f"buffer_store_dwordx4 v[{D}:{D + 3}], v{VOP}, s[{SWS}:{SWS + 3}], s6 offen sc1")
            e("s_mov_b64 exec, -1")

        assert NS == 2
        for r in range(4):
            local_stats(r)
            if r >= 1:
                finalize_p(r - 1)
        publish_op(0)
        finalize_p(3)
        for r in (1, 2, 3):
            publish_op(r)
        self.stamp(8)
        self.prof_store(9)
        e("s_endpgm")
        return SCR + 32

    def helperB(self):
        e = self.e
        NS = self.NS
        S_RB, S_CB = 40, 41
        SX, SA, SWS, SDB = 8, 12, 44, 48
        VT = 4
        XA, XB, XC, F, XOP = 12, 16, 20, 24, 40
        ACC, T = 56, 64
        RESP = 68
        VA = [88, 89, 90, 91]
        VP, VG, YACC = 92, 93, 94
        W = 96
        e("L_helperB:")
        e(f"v_mul_u32_u24 v{VA[0]}, 0x18000, v1")
        e(f"v_lshl_add_u32 v{VA[0]}, v2, 4, v{VA[0]}")
        e(f"v_mul_u32_u24 v{VA[1]}, 0x6000, v1")
        e(f"v_lshl_add_u32 v{VA[1]}, v2, 4, v{VA[1]}")
        e(f"v_mul_u32_u24 v{VA[2]}, 0x2800, v1")
        e(f"v_lshl_add_u32 v{VA[2]}, v2, 4, v{VA[2]}")
        e(f"v_lshrrev_b32 v{VP}, 5, v0")
        e(f"v_lshlrev_b32 v{VP}, 4, v{VP}")
        e(f"v_lshl_add_u32 v{VP}, v2, 5, v{VP}")
        e("s_waitcnt lgkmcnt(0)")
        self.srd(SX, P_X, 1280)
        self.srd(SWS, P_WS, WS_SIZE)
        self.srd(SDB, P_DBG, 256)
        self.srd(SA, P_WQ, 640 * 12288)
        e("s_barrier")
        e(f"s_mul_i32 s53, s{S_X}, {60 * 768}")
        e(f"s_cmp_ge_u32 s{S_C}, 30")
        e("s_cbranch_scc1 L_hb_clear")
        self.ln_loads(SX, 0, 1, XA, XB, XC, F, S_RB)

        def setup_job(n):
            if n < 3:
                e(f"s_mul_i32 s42, s{S_RB}, {64 * 12288}")
                e(f"s_mul_i32 s43, s{S_X}, 384")
                e("s_add_u32 s42, s42, s43")
                e(f"s_lshl_b32 s43, s{S_CB}, 7")
                e("s_add_u32 s42, s42, s43")
                e(f"s_add_u32 s42, s42, {8 * 384 * (n + 1)}")
                return VA[0], 12288
            if n < 5:
                self.srd(SA, P_G if n == 3 else P_U, 640 * 3072)
                e(f"s_mul_i32 s42, s{S_RB}, {64 * 3072}")
                e(f"s_mul_i32 s43, s{S_X}, 384")
                e("s_add_u32 s42, s42, s43")
                e(f"s_lshl_b32 s43, s{S_CB}, 7")
                e("s_add_u32 s42, s42, s43")
                return VA[1], 3072
            if n == 5:
                self.srd(SA, P_WO, 6144 * 1280)
            if n == 9:
                self.srd(SA, P_D, 1536 * 1280)
            e(f"s_mul_i32 s42, s{S_X}, {192 * 1280}")
            e(f"s_mul_i32 s43, s{S_CB}, {64 * 1280}")
            e("s_add_u32 s42, s42, s43")
            e(f"s_lshl_b32 s43, s{S_RB}, 7")
            e("s_add_u32 s42, s42, s43")
            if 5 < n < 9:
                e(f"s_add_u32 s42, s42, {8 * 192 * 1280 * (n - 5)}")
            return VA[2], 1280

        cap = self.capH
        LH = max(cap, 16)
        for i in range(80):
            if i % 8 == 0:
                va, stride = setup_job(i // 8)
            if i >= cap - 3:
                e(f"s_waitcnt vmcnt({cap - 1})")
            r = W + 4 * (i % 40)
            e(f"buffer_load_dwordx4 v[{r}:{r + 3}], v{va}, s[{SA}:{SA + 3}], s42 offen nt")
            if i % 8 < 7:
                e(f"s_add_u32 s42, s42, {stride}")
            if i == LH - 1:
                self.ln_compute(XA, XB, XC, F, XOP)
            j = i - LH
            if 0 <= j < 40:
                if j % 8 == 0:
                    for k in range(8):
                        e(f"v_mov_b32 v{ACC + k}, 0")
                self.gemv_row(W + 4 * j, XOP + 2 * (j % 8), ACC)
                if j % 8 == 7:
                    self.reduce_g(ACC, RESP + 4 * (j // 8), T)
        self.stamp(1)
        e(f"s_mul_i32 s6, s{S_RB}, 768")
        e("s_add_u32 s6, s6, s53")
        e(f"s_lshl_b32 s7, s{S_CB}, 8")
        e("s_add_u32 s6, s6, s7")
        e("s_mov_b32 exec_lo, 0xff")
        e("s_mov_b32 exec_hi, 0xff")
        for n in range(5):
            e("s_add_u32 s6, s6, 7680")
            e(f"buffer_store_dwordx4 v[{RESP + 4 * n}:{RESP + 4 * n + 3}], v{VP}, s[{SWS}:{SWS + 3}], s6 offen sc1")
        for k in range(4):
            e(f"v_mov_b32 v{T + k}, -1")
        e(f"s_mul_i32 s54, s{S_RB}, 24")
        e(f"s_mul_i32 s7, s{S_X}, 3")
        e("s_add_u32 s54, s54, s7")
        e(f"s_add_u32 s54, s54, s{S_CB}")
        e("s_lshl_b32 s54, s54, 8")
        e(f"s_add_u32 s55, s54, {WS_YB}")
        e(f"s_add_u32 s54, s54, {WS_YA}")
        e(f"buffer_store_dwordx4 v[{T}:{T + 3}], v{VP}, s[{SWS}:{SWS + 3}], s54 offen sc1")
        e(f"buffer_store_dwordx4 v[{T}:{T + 3}], v{VP}, s[{SWS}:{SWS + 3}], s55 offen sc1")
        e("s_mov_b64 exec, -1")
        e("L_hb_clear:")
        self.c("mark this workgroup's later hand-off slots empty")
        e("s_nop 1")
        for k in range(4):
            e(f"v_mov_b32 v{T + k}, -1")
        e(f"v_lshrrev_b32 v{VG}, 4, v0")
        e(f"v_lshlrev_b32 v{VG}, 13, v{VG}")
        e(f"v_and_b32 v{VT}, 15, v0")
        e(f"v_lshl_add_u32 v{VG}, v{VT}, 4, v{VG}")
        e(f"v_lshlrev_b32 v{VT}, 8, v0")
        e(f"s_mul_i32 s6, s{S_X}, {4 * 24576}")
        e(f"s_lshl_b32 s7, s{S_C}, 8")
        e("s_add_u32 s6, s6, s7")
        e(f"s_add_u32 s6, s6, {WS_OP}")
        e("s_mov_b32 exec_lo, -1")
        e("s_mov_b32 exec_hi, 0xffff")
        for r in range(4):
            e(f"buffer_store_dwordx4 v[{T}:{T + 3}], v{VG}, s[{SWS}:{SWS + 3}], s6 offen sc1")
            if r < 3:
                e("s_add_u32 s6, s6, 24576")
        e(f"s_lshl_b32 s6, s{S_X}, 10")
        e(f"s_lshl_b32 s7, s{S_C}, 3")
        e("s_add_u32 s6, s6, s7")
        e(f"s_add_u32 s6, s6, {WS_ST}")
        e("s_mov_b64 exec, 15")
        e(f"buffer_store_dwordx2 v[{T}:{T + 1}], v{VT}, s[{SWS}:{SWS + 3}], s6 offen sc1")
        e("s_mov_b64 exec, -1")
        e("s_nop 1")
        self.wait_lds(L_FLQ, 1, VT, sleep=2)
        e(f"s_lshl_b32 s6, s{S_X}, 5")
        e(f"s_add_u32 s52, s6, s{S_C}")
        e(f"v_mov_b32 v{VT}, 2")
        e(f"v_mov_b32 v{VT + 1}, 0")
        e("s_waitcnt vmcnt(0)")
        e("s_mov_b64 exec, 1")
        e(f"buffer_store_byte v{VT}, v{VT + 1}, s[{SDB}:{SDB + 3}], s52 offen sc1")
        e("s_mov_b64 exec, -1")
        self.stamp(2)
        e(f"s_cmp_ge_u32 s{S_C}, 30")
        e("s_cbranch_scc1 L_finisher")

        self.c("ffn hidden slice and down projection")
        self.wait_lds(L_FLQ, 2, VT, sleep=8)
        G0 = 12
        e(f"v_mul_u32_u24 v{VA[0]}, 768, v2")
        e(f"v_lshl_add_u32 v{VA[0]}, v1, 5, v{VA[0]}")
        e(f"v_add_u32 v{VA[1]}, {8 * 768}, v{VA[0]}")
        e(f"v_mov_b32 v{VA[2]}, 0x40000000")
        e("v_cmp_gt_u32 vcc, 2, v2")
        e("s_nop 1")
        e(f"v_cndmask_b32 v{VA[1]}, v{VA[2]}, v{VA[1]}, vcc")
        e(f"s_lshl_b32 s7, s{S_CB}, 8")
        e("s_add_u32 s6, s53, s7")
        e(f"s_add_u32 s6, s6, {4 * 7680}")
        e("s_add_u32 s7, s6, 7680")
        for m in range(2):
            for h in range(2):
                for q in range(2):
                    d = G0 + 16 * m + 8 * h + 4 * q
                    e(f"buffer_load_dwordx4 v[{d}:{d + 3}], v{VA[h]}, s[{SWS}:{SWS + 3}], s{6 + m} offen offset:{16 * q} sc1")
        e("s_waitcnt vmcnt(0)")
        GA, UA = G0, G0 + 8
        for k in range(8):
            e(f"v_add_f32 v{GA + k}, v{G0 + k}, v{G0 + 8 + k}")
        for k in range(8):
            e(f"v_add_f32 v{UA + k}, v{G0 + 16 + k}, v{G0 + 24 + k}")
        self.reduce_sub(GA, 16)
        for k in range(16):
            self.round_bf16(GA + k)
        Z = G0 + 16
        c2 = -2.0 * 0.7978845608028654 * 1.4426950408889634
        e(f"s_mov_b32 s6, {hex(f2u(0.044715))}")
        for k in range(8):
            e(f"v_mul_f32 v{Z + k}, v{GA + k}, v{GA + k}")
        for k in range(8):
            e(f"v_mul_f32 v{Z + k}, v{Z + k}, v{GA + k}")
        for k in range(8):
            e(f"v_fma_f32 v{Z + k}, v{Z + k}, s6, v{GA + k}")
        for k in range(8):
            e(f"v_mul_f32 v{Z + k}, {hex(f2u(c2))}, v{Z + k}")
        for k in range(8):
            e(f"v_exp_f32 v{Z + k}, v{Z + k}")
        for k in range(8):
            e(f"v_add_f32 v{Z + k}, 1.0, v{Z + k}")
        for k in range(8):
            e(f"v_rcp_f32 v{Z + k}, v{Z + k}")
        for k in range(8):
            e(f"v_mul_f32 v{Z + k}, v{Z + k}, v{GA + k}")
        for k in range(8):
            self.round_bf16(Z + k)
        for k in range(8):
            e(f"v_mul_f32 v{Z + k}, v{Z + k}, v{UA + k}")
        for k in range(4):
            e(f"v_cvt_pk_bf16_f32 v{G0 + k}, v{Z + 2 * k}, v{Z + 2 * k + 1}")
        XO = 44
        self.expand(G0, XO)
        A2 = 60
        for k in range(8):
            e(f"v_mov_b32 v{A2 + k}, 0")
        for i in range(8):
            self.gemv_row(W + 4 * (32 + i), XO + 2 * i, A2)
        self.reduce_g(A2, RESP, RESP + 4)
        self.sanitize(RESP, 4)
        e("s_mov_b32 exec_lo, 0xff")
        e("s_mov_b32 exec_hi, 0xff")
        e(f"buffer_store_dwordx4 v[{RESP}:{RESP + 3}], v{VP}, s[{SWS}:{SWS + 3}], s55 offen sc1")
        e("s_mov_b64 exec, -1")
        self.stamp(3)

        self.c("attention output slices times wo")
        YA = 76
        for k in range(8):
            e(f"v_mov_b32 v{YA + k}, 0")
        e(f"v_lshlrev_b32 v{VG}, 8, v2")
        e(f"v_lshl_add_u32 v{VG}, v1, 5, v{VG}")
        for r in range(4):
            if r < 2:
                self.wait_lds(L_FLS, r + 6, VT, n=NS, sleep=8)
            elif r == 3:
                self.wait_lds(L_FLS, 8, VT, n=NS, sleep=1)
                self.stamp(4)
            e(f"s_mul_i32 s6, s{S_X}, {4 * 24576}")
            e(f"s_lshl_b32 s7, s{S_CB}, 13")
            e("s_add_u32 s6, s6, s7")
            e(f"s_add_u32 s6, s6, {WS_OP + 24576 * r}")
            e("s_add_u32 s7, s6, 4096")
            loads = []
            for j in range(4):
                for q in range(2):
                    d = G0 + 8 * j + 4 * q
                    loads.append(f"buffer_load_dwordx4 v[{d}:{d + 3}], v{VG}, s[{SWS}:{SWS + 3}], s{6 + j // 2} "
                                 f"offen offset:{2048 * (j % 2) + 16 * q} sc1")
            self.gather_valid(loads, G0, 32, VT, sleep=(0 if r == 3 else 32))
            if r == 3:
                self.stamp(5)
            for j in range(1, 4):
                for k in range(8):
                    e(f"v_add_f32 v{G0 + k}, v{G0 + k}, v{G0 + 8 * j + k}")
            self.reduce_sub(G0, 8)
            for k in range(4):
                e(f"v_cvt_pk_bf16_f32 v{G0 + 8 + k}, v{G0 + 2 * k}, v{G0 + 2 * k + 1}")
            self.expand(G0 + 8, XO)
            for i in range(8):
                self.gemv_row(W + 4 * (8 * r + i), XO + 2 * i, YA)
        self.reduce_g(YA, RESP, RESP + 4)
        self.sanitize(RESP, 4)
        e("s_mov_b32 exec_lo, 0xff")
        e("s_mov_b32 exec_hi, 0xff")
        e(f"buffer_store_dwordx4 v[{RESP}:{RESP + 3}], v{VP}, s[{SWS}:{SWS + 3}], s54 offen sc1")
        self.stamp(6)
        self.prof_store(7)
        e("s_endpgm")

        self.c("finisher: sums the projection partials of one 64-column block and writes the output")
        e("L_finisher:")
        e(f"s_sub_u32 s56, s{S_C}, 30")
        e("s_lshl_b32 s56, s56, 3")
        e(f"s_add_u32 s56, s56, s{S_X}")
        e("s_cmp_ge_u32 s56, 10")
        e("s_cbranch_scc1 L_exit")
        self.wait_lds(L_FLS, 2, VT, n=NS, sleep=8)
        e(f"v_lshlrev_b32 v{VA[0]}, 2, v0")
        self.wait_flags(SDB, VA[0], 2, VT, sleep=16)
        e(f"v_lshlrev_b32 v{VA[1]}, 4, v0")
        e(f"v_and_b32 v{VA[2]}, 15, v0")
        e(f"v_lshlrev_b32 v{VA[2]}, 3, v{VA[2]}")
        XV, BV = 40, 48
        e("s_lshl_b32 s57, s56, 7")
        e(f"buffer_load_dwordx2 v[{XV}:{XV + 1}], v{VA[2]}, s[{SX}:{SX + 3}], s57 offen")

        def gather_y(base, sleep):
            e("s_mul_i32 s6, s56, 6144")
            e(f"s_add_u32 s6, s6, {base}")
            e("s_add_u32 s7, s6, 4096")
            loads = [f"buffer_load_dwordx4 v[{G0 + 4 * i}:{G0 + 4 * i + 3}], v{VA[1]}, s[{SWS}:{SWS + 3}], "
                     f"s{6 + i // 4} offen offset:{1024 * (i % 4)} sc1" for i in range(6)]
            self.gather_valid(loads, G0, 24, VT, sleep=sleep)
            for i in range(1, 6):
                for k in range(4):
                    e(f"v_add_f32 v{G0 + k}, v{G0 + k}, v{G0 + 4 * i + k}")
            for sw in ("v_permlane16_swap_b32", "v_permlane32_swap_b32"):
                for k in range(4):
                    e(f"v_mov_b32 v{G0 + 4 + k}, v{G0 + k}")
                e("s_nop 0")
                for k in range(4):
                    e(f"{sw} v{G0 + k}, v{G0 + 4 + k}")
                e("s_nop 0")
                for k in range(4):
                    e(f"v_add_f32 v{G0 + k}, v{G0 + k}, v{G0 + 4 + k}")
            for k in range(4):
                self.round_bf16(G0 + k)

        gather_y(WS_YB, 16)
        for k in range(4):
            e(f"v_mov_b32 v{BV + k}, v{G0 + k}")
        e(f"v_lshlrev_b32 v{XV + 2}, 16, v{XV}")
        e(f"v_and_b32 v{XV + 3}, 0xffff0000, v{XV}")
        e(f"v_lshlrev_b32 v{XV + 4}, 16, v{XV + 1}")
        e(f"v_and_b32 v{XV + 5}, 0xffff0000, v{XV + 1}")
        self.srd(SA, P_OUT, 1280)
        self.stamp(3)
        self.wait_lds(L_FLS, 8, VT, n=NS, sleep=1)
        self.stamp(4)
        gather_y(WS_YA, 0)
        self.stamp(5)
        for k in range(4):
            e(f"v_add_f32 v{G0 + k}, v{G0 + k}, v{XV + 2 + k}")
        for k in range(4):
            self.round_bf16(G0 + k)
        for k in range(4):
            e(f"v_add_f32 v{G0 + k}, v{G0 + k}, v{BV + k}")
        e(f"v_cvt_pk_bf16_f32 v{G0}, v{G0}, v{G0 + 1}")
        e(f"v_cvt_pk_bf16_f32 v{G0 + 1}, v{G0 + 2}, v{G0 + 3}")
        e("s_mov_b64 exec, 0xffff")
        e(f"buffer_store_dwordx2 v[{G0}:{G0 + 1}], v{VA[2]}, s[{SA}:{SA + 3}], s57 offen")
        self.stamp(6)
        self.prof_store(7)
        e("L_exit:")
        e("s_endpgm")
        return W + 160

    def build(self):
        self.entry()
        nv = max(self.streamer(), self.helperA(), self.helperB())
        assert nv <= 256
        body = "\n".join(l if l.endswith(":") or l.startswith(";") else "    " + l for l in self.o)
        return (HEADER.format(block=64 * (self.NS + 2), lds=self.lds, name=NAME) + body
                + FOOTER.format(name=NAME, vgpr=nv, acc=(nv + 3) // 4 * 4))


def gen(**kw):
    return Gen(**kw).build()


if __name__ == "__main__":
    out = sys.argv[1] if len(sys.argv) > 1 else f"cdna_kernels/{NAME}.s"
    kw = eval("dict(" + (sys.argv[2] if len(sys.argv) > 2 else "") + ")")
    open(out, "w").write(gen(**kw))
```

```python
import struct
import sys

NAME = "parallel_sum__mha_block_cached__geglu_ffn__decode"
HEAD = 32768 * 384
KV_BYTES = 32 * HEAD
SENT = 0xFFFFFFFF

WS_PA = 0x000000
PA_ROW, PA_JOB, PA_X = 1536, 15360, 92160
WS_ST = 0x0C0000
WS_OP = 0x0D0000
WS_YA = 0x190000
WS_YB = 0x1A0000
WS_EPOCH = 0x1F0000
WS_PROF = 0x200000
WS_SIZE = 0x400000
NONCE_STEP = 0x9E3779B9

L_FLS = 0
L_FLQ = 16
L_FLP = 20
L_FLN = 24
L_FLC = 28
L_TAG = 32
L_Q = 64
L_SC = 2048
L_DUMP = L_SC + 8192
S_TAG = 60


def f2u(x):
    return struct.unpack("<I", struct.pack("<f", x))[0]


LOG2E = f2u(1.4426950408889634)
SCALE = f2u(192 ** -0.5)

HEADER = """; Kernarg layout for this problem (96 bytes, ptrs only, base s[0:1]):
; @launch grid=(256,1,1) block=({block},1,1) lds={lds}
.amdgcn_target "amdgcn-amd-amdhsa--gfx950"
.text
.globl {name}_kernel
.p2align 8
.type {name}_kernel,@function
{name}_kernel:
"""
FOOTER = """
.section .rodata,"a"
.p2align 6
.amdhsa_kernel {name}_kernel
  .amdhsa_next_free_vgpr {vgpr}
  .amdhsa_next_free_sgpr 96
  .amdhsa_accum_offset {acc}
  .amdhsa_group_segment_fixed_size 0
  .amdhsa_kernarg_size 96
  .amdhsa_user_sgpr_count 2
  .amdhsa_user_sgpr_kernarg_segment_ptr 1
  .amdhsa_system_sgpr_workgroup_id_x 1
.end_amdhsa_kernel
"""

DPP_ALL = "row_mask:0xf bank_mask:0xf"
X1 = "quad_perm:[1,0,3,2] " + DPP_ALL
X2 = "quad_perm:[2,3,0,1] " + DPP_ALL
HM = "row_half_mirror " + DPP_ALL
RM = "row_mirror " + DPP_ALL
R8 = "row_ror:8 " + DPP_ALL

S_WAVE, S_X, S_C = 3, 4, 5
P_X, P_K, P_V, P_WQ, P_WO, P_G, P_U, P_D, P_OUT, P_DBG, P_WS = 16, 18, 20, 22, 24, 28, 30, 32, 34, 36, 38
SPIN_G = 400000
SPIN_L = 4000000


class Gen:
    def __init__(self, NS=2, R=24, L=23, cap=11, cap0=4, capH=14, cap_tail=None, tail_iters=1, prof=False):
        self.NS, self.R, self.L = NS, R, L
        self.cap, self.cap0, self.capH = cap, cap0, capH
        self.cap_tail = cap_tail or cap
        self.tail_iters = tail_iters
        self.prof = prof
        self.o = []
        self.uid = 0
        self.steps = 32768 // (32 * NS * 16)
        self.tpi = R // 6
        assert R % 24 == 0 and self.steps % self.tpi == 0 and L < R
        assert max(cap, cap0, self.cap_tail) <= L
        self.ipr = self.steps // self.tpi
        self.step_bytes = 32 * NS * 6144
        self.dump_bytes = 8 * NS * 768
        self.lds = L_DUMP + 4 * self.dump_bytes

    def e(self, s):
        self.o.append(s)

    def c(self, s):
        self.o.append("; " + s)

    def label(self, base):
        self.uid += 1
        return f"L_{base}_{self.uid}"

    def srd(self, d, p, size):
        self.e(f"s_mov_b32 s{d}, s{p}")
        self.e(f"s_mov_b32 s{d+1}, s{p+1}")
        self.e(f"s_mov_b32 s{d+2}, {size}")
        self.e(f"s_mov_b32 s{d+3}, 0x20000")

    def stamp(self, k):
        if self.prof:
            self.e(f"s_memrealtime s[{64 + 2 * k}:{65 + 2 * k}]")
            self.e("s_waitcnt lgkmcnt(0)")

    def prof_store(self, n):
        if not self.prof:
            return
        e = self.e
        e("s_mov_b64 exec, -1")
        e("s_waitcnt vmcnt(0) lgkmcnt(0)")
        self.srd(12, P_WS, WS_SIZE)
        e("s_lshl_b32 s6, s2, 2")
        e(f"s_add_u32 s6, s6, s{S_WAVE}")
        e("s_lshl_b32 s6, s6, 6")
        e(f"s_add_u32 s6, s6, {WS_PROF}")
        e("v_mov_b32 v1, 0")
        e("s_getreg_b32 s7, hwreg(HW_REG_XCC_ID)")
        e("v_mov_b32 v2, s7")
        e("s_mov_b64 exec, 1")
        e("buffer_store_dword v2, v1, s[12:15], s6 offen offset:60")
        for k in range(n):
            e(f"v_mov_b32 v{4 + k}, s{64 + 2 * k}")
            e(f"buffer_store_dword v{4 + k}, v1, s[12:15], s6 offen offset:{4 * k}")
        e("s_waitcnt vmcnt(0)")

    def allreduce(self, op, v, t):
        e = self.e
        for pat in (X1, X2, HM, RM):
            e("s_nop 1")
            e(f"{op}_dpp v{v}, v{v}, v{v} {pat}")
        for sw in ("v_permlane16_swap_b32", "v_permlane32_swap_b32"):
            e(f"v_mov_b32 v{t}, v{v}")
            e("s_nop 1")
            e(f"{sw} v{v}, v{t}")
            e("s_nop 1")
            e(f"{op} v{v}, v{v}, v{t}")

    def round_bf16(self, v):
        self.e(f"v_cvt_pk_bf16_f32 v{v}, v{v}, v{v}")
        self.e(f"v_and_b32 v{v}, 0xffff0000, v{v}")

    def expand(self, src, dst):
        e = self.e
        for k in range(4):
            e(f"v_and_b32 v{dst + 4 * k}, 0xffff, v{src + k}")
            e(f"v_lshlrev_b32 v{dst + 4 * k + 1}, 16, v{src + k}")
            e(f"v_lshrrev_b32 v{dst + 4 * k + 2}, 16, v{src + k}")
            e(f"v_and_b32 v{dst + 4 * k + 3}, 0xffff0000, v{src + k}")

    def gemv_row(self, w, xop, acc):
        for k in range(4):
            self.e(f"v_dot2c_f32_bf16 v{acc + 2 * k}, v{w + k}, v{xop}")
            self.e(f"v_dot2c_f32_bf16 v{acc + 2 * k + 1}, v{w + k}, v{xop + 1}")

    def reduce_g(self, acc, res, t):
        e = self.e
        e("s_nop 2")
        for k in range(4):
            e(f"v_permlane32_swap_b32 v{acc + k}, v{acc + k + 4}")
        e("s_nop 0")
        for k in range(4):
            e(f"v_add_f32 v{res + k}, v{acc + k}, v{acc + k + 4}")
        for k in range(4):
            e(f"v_mov_b32 v{t + k}, v{res + k}")
        e("s_nop 0")
        for k in range(4):
            e(f"v_permlane16_swap_b32 v{res + k}, v{t + k}")
        e("s_nop 0")
        for k in range(4):
            e(f"v_add_f32 v{res + k}, v{res + k}, v{t + k}")
        e("s_nop 0")
        for k in range(4):
            e(f"v_add_f32_dpp v{res + k}, v{res + k}, v{res + k} {R8}")

    def reduce_g2(self, acc, res):
        e = self.e
        e("s_nop 2")
        for k in range(4):
            e(f"v_permlane32_swap_b32 v{acc + k}, v{acc + k + 4}")
        e("s_nop 0")
        for k in range(4):
            e(f"v_add_f32 v{acc + k}, v{acc + k}, v{acc + k + 4}")
        e("s_nop 1")
        for k in range(2):
            e(f"v_permlane16_swap_b32 v{acc + k}, v{acc + k + 2}")
        e("s_nop 0")
        for k in range(2):
            e(f"v_add_f32 v{acc + k}, v{acc + k}, v{acc + k + 2}")
        e("s_nop 1")
        for k in range(2):
            e(f"v_add_f32_dpp v{res + 2 * k}, v{acc + k}, v{acc + k} {R8}")

    def tag_regs(self, res):
        self.e(f"v_mov_b32 v{res + 1}, s{S_TAG}")
        self.e(f"v_mov_b32 v{res + 3}, s{S_TAG}")

    def exec_tagged(self):
        self.e("s_mov_b32 exec_lo, 0x00ff00ff")
        self.e("s_mov_b32 exec_hi, 0x00ff00ff")

    def gather_tagged(self, loads, first, nrec, vt, sleep=1, skip=None):
        e = self.e
        lp, ok = self.label("gt"), self.label("gtok")
        e(f"s_mov_b32 s62, {SPIN_G}")
        e(f"{lp}:")
        for s_ in loads:
            e(s_)
        e(f"v_mov_b32 v{vt}, 0")
        e(f"v_mov_b32 v{vt + 1}, 0")
        e("s_waitcnt vmcnt(0)")
        for k in range(nrec):
            t = vt + 1 if skip and k in skip[0] else vt
            e(f"v_bitop3_b32 v{t}, v{t}, v{first + 4 * k + 1}, s{S_TAG} bitop3:0xf6")
            e(f"v_bitop3_b32 v{t}, v{t}, v{first + 4 * k + 3}, s{S_TAG} bitop3:0xf6")
        if skip:
            e(f"v_cndmask_b32 v{vt + 1}, 0, v{vt + 1}, s[{skip[1]}:{skip[1] + 1}]")
            e(f"v_or_b32 v{vt}, v{vt}, v{vt + 1}")
        e(f"v_cmp_ne_u32 vcc, 0, v{vt}")
        e("s_nop 4")
        e(f"s_cbranch_vccz {ok}")
        if sleep:
            e(f"s_sleep {sleep}")
        e("s_sub_u32 s62, s62, 1")
        e("s_cmp_lg_u32 s62, 0")
        e(f"s_cbranch_scc1 {lp}")
        e("s_endpgm")
        e(f"{ok}:")

    def reduce_sub(self, v, n):
        for pat in (X1, X2, HM):
            self.e("s_nop 1")
            for k in range(n):
                self.e(f"v_add_f32_dpp v{v + k}, v{v + k}, v{v + k} {pat}")

    def wait_lds(self, addr, val, vt, n=1, sleep=2, val_is_sreg=False):
        e = self.e
        lp, ok = self.label("wl"), self.label("wlok")
        e(f"s_mov_b32 s62, {SPIN_L}")
        e(f"v_mov_b32 v{vt + 4}, 0")
        e(f"{lp}:")
        if n == 1:
            e(f"ds_read_b32 v{vt}, v{vt + 4} offset:{addr}")
            e("s_waitcnt lgkmcnt(0)")
        elif n == 2:
            e(f"ds_read_b64 v[{vt}:{vt + 1}], v{vt + 4} offset:{addr}")
            e("s_waitcnt lgkmcnt(0)")
            e(f"v_min_u32 v{vt}, v{vt}, v{vt + 1}")
        else:
            e(f"ds_read_b128 v[{vt}:{vt + 3}], v{vt + 4} offset:{addr}")
            e("s_waitcnt lgkmcnt(0)")
            e(f"v_min_u32 v{vt}, v{vt}, v{vt + 1}")
            e(f"v_min3_u32 v{vt}, v{vt}, v{vt + 2}, v{vt + 3}")
        e("s_nop 0")
        e(f"v_readfirstlane_b32 s63, v{vt}")
        e(f"s_cmp_ge_u32 s63, {val}")
        e(f"s_cbranch_scc1 {ok}")
        if sleep:
            e(f"s_sleep {sleep}")
        e("s_sub_u32 s62, s62, 1")
        e("s_cmp_lg_u32 s62, 0")
        e(f"s_cbranch_scc1 {lp}")
        e("s_endpgm")
        e(f"{ok}:")

    def set_lds(self, addr, val, vt):
        e = self.e
        e("s_waitcnt lgkmcnt(0)")
        e(f"v_mov_b32 v{vt}, {addr}")
        e(f"v_mov_b32 v{vt + 1}, {val}")
        e(f"ds_write_b32 v{vt}, v{vt + 1}")

    def gather_valid(self, loads, first, nregs, vt, sleep=1):
        e = self.e
        lp, ok = self.label("gv"), self.label("gvok")
        e(f"s_mov_b32 s62, {SPIN_G}")
        e(f"{lp}:")
        for s in loads:
            e(s)
        e("s_waitcnt vmcnt(0)")
        e(f"v_max_u32 v{vt}, v{first}, v{first + 1}")
        for k in range(2, nregs, 2):
            e(f"v_max3_u32 v{vt}, v{vt}, v{first + k}, v{first + k + 1}")
        e(f"v_cmp_eq_u32 vcc, -1, v{vt}")
        e("s_nop 4")
        e(f"s_cbranch_vccz {ok}")
        if sleep:
            e(f"s_sleep {sleep}")
        e("s_sub_u32 s62, s62, 1")
        e("s_cmp_lg_u32 s62, 0")
        e(f"s_cbranch_scc1 {lp}")
        e("s_endpgm")
        e(f"{ok}:")

    def sanitize(self, v, n):
        for k in range(n):
            self.e(f"v_min_u32 v{v + k}, -2, v{v + k}")

    def ln_loads(self, srd, vlane, vg, xa, xb, xc, t, s_rb):
        e = self.e
        e(f"v_lshlrev_b32 v{t}, 4, v{vlane}")
        e(f"v_lshlrev_b32 v{t + 1}, 2, v{vlane}")
        e(f"v_lshlrev_b32 v{t + 2}, 4, v{vg}")
        e(f"s_lshl_b32 s6, s{s_rb}, 7")
        e(f"buffer_load_dwordx4 v[{xa}:{xa + 3}], v{t}, s[{srd}:{srd + 3}], 0 offen")
        e(f"buffer_load_dword v{xb}, v{t + 1}, s[{srd}:{srd + 3}], 0 offen offset:1024")
        e(f"buffer_load_dwordx4 v[{xc}:{xc + 3}], v{t + 2}, s[{srd}:{srd + 3}], s6 offen")

    def ln_compute(self, xa, xb, xc, f, xop):
        e = self.e
        src = [xa, xa + 1, xa + 2, xa + 3, xb]
        for k, s in enumerate(src):
            e(f"v_lshlrev_b32 v{f + 2 * k}, 16, v{s}")
            e(f"v_and_b32 v{f + 2 * k + 1}, 0xffff0000, v{s}")
        m, t, var = f + 10, f + 11, f + 12
        e(f"v_add_f32 v{m}, v{f}, v{f + 1}")
        for k in range(2, 10):
            e(f"v_add_f32 v{m}, v{m}, v{f + k}")
        self.allreduce("v_add_f32", m, t)
        e(f"v_mul_f32 v{m}, {hex(f2u(1.0 / 640))}, v{m}")
        for k in range(10):
            e(f"v_sub_f32 v{f + k}, v{f + k}, v{m}")
        e(f"v_mul_f32 v{var}, v{f}, v{f}")
        for k in range(1, 10):
            e(f"v_fmac_f32 v{var}, v{f + k}, v{f + k}")
        self.allreduce("v_add_f32", var, t)
        e(f"v_mul_f32 v{var}, {hex(f2u(1.0 / 640))}, v{var}")
        self.round_bf16(var)
        self.round_bf16(m)
        e(f"v_add_f32 v{var}, {hex(f2u(1e-5))}, v{var}")
        self.round_bf16(var)
        e(f"v_sqrt_f32 v{var}, v{var}")
        e("s_nop 0")
        self.round_bf16(var)
        e(f"v_rcp_f32 v{var}, v{var}")
        for k in range(4):
            e(f"v_lshlrev_b32 v{f + 2 * k}, 16, v{xc + k}")
            e(f"v_and_b32 v{f + 2 * k + 1}, 0xffff0000, v{xc + k}")
        for k in range(8):
            e(f"v_sub_f32 v{f + k}, v{f + k}, v{m}")
        for k in range(4):
            e(f"v_cvt_pk_bf16_f32 v{xc + k}, v{f + 2 * k}, v{f + 2 * k + 1}")
        for k in range(4):
            e(f"v_lshlrev_b32 v{f + 2 * k}, 16, v{xc + k}")
            e(f"v_and_b32 v{f + 2 * k + 1}, 0xffff0000, v{xc + k}")
        for k in range(8):
            e(f"v_mul_f32 v{f + k}, v{f + k}, v{var}")
        for k in range(4):
            e(f"v_cvt_pk_bf16_f32 v{xc + k}, v{f + 2 * k}, v{f + 2 * k + 1}")
        self.expand(xc, xop)

    def entry(self):
        e = self.e
        self.c("roles: waves 0..NS-1 stream K then V; wave NS does q/softmax exchanges; wave NS+1 does weight GEMVs")
        if self.prof:
            e("s_memrealtime s[64:65]")
        e("s_cmp_ge_u32 s2, 256")
        e("s_cbranch_scc1 L_exit")
        e("s_load_dwordx16 s[16:31], s[0:1], 0")
        e("s_load_dwordx8 s[32:39], s[0:1], 64")
        e("v_lshrrev_b32 v1, 6, v0")
        e("v_and_b32 v0, 63, v0")
        e(f"v_readfirstlane_b32 s{S_WAVE}, v1")
        e(f"s_and_b32 s{S_X}, s2, 7")
        e(f"s_lshr_b32 s{S_C}, s2, 3")
        e("v_lshrrev_b32 v1, 3, v0")
        e("v_and_b32 v2, 7, v0")
        e(f"s_mul_i32 s40, s{S_C}, 43691")
        e("s_lshr_b32 s40, s40, 17")
        e("s_mul_i32 s41, s40, 3")
        e(f"s_sub_u32 s41, s{S_C}, s41")
        e(f"s_cmp_eq_u32 s{S_WAVE}, {self.NS}")
        e("s_cbranch_scc1 L_helperA")
        e(f"s_cmp_eq_u32 s{S_WAVE}, {self.NS + 1}")
        e("s_cbranch_scc1 L_helperB")

    def streamer(self):
        e = self.e
        NS, R, L = self.NS, self.R, self.L
        VOFF, VSC, VQ, VDUMP, VT = 3, 4, 5, 6, 8
        A = 14
        SC = 20
        Q = 20 + 8
        PN, PX = 52, 60
        RING = 64
        S_OFF, S_DELTA, S_B0, S_B1, S_IT, S_R = 44, 45, 46, 47, 48, 49
        offs = [(i // 3) * 3072 + (i % 3) * 128 for i in range(6)]
        cand = [j for j in range(R) if (j + L) % 6 == 5 and ((j + L + 1) // 6) % self.tpi == 0]
        assert len(cand) == 1
        self.c("streamer")
        e(f"v_mul_u32_u24 v{VOFF}, 384, v1")
        e(f"v_lshl_add_u32 v{VOFF}, v2, 4, v{VOFF}")
        tb = 4 * self.tpi
        e(f"s_mul_i32 s6, s{S_WAVE}, {8 * tb}")
        e(f"s_add_u32 s6, s6, {L_SC}")
        e(f"v_mul_u32_u24 v{VSC}, {tb}, v1")
        e(f"v_add_u32 v{VSC}, s6, v{VSC}")
        e(f"v_lshlrev_b32 v{VQ}, 4, v2")
        e(f"s_mul_i32 s6, s{S_WAVE}, {8 * 768}")
        e(f"s_add_u32 s6, s6, {L_DUMP}")
        e(f"v_mul_u32_u24 v{VDUMP}, 768, v1")
        e(f"v_lshl_add_u32 v{VDUMP}, v2, 5, v{VDUMP}")
        e(f"v_add_u32 v{VDUMP}, s6, v{VDUMP}")
        e(f"s_mul_i32 s{S_OFF}, s{S_X}, {HEAD}")
        e(f"s_mul_i32 s6, s{S_C}, {NS}")
        e(f"s_add_u32 s6, s6, s{S_WAVE}")
        e("s_mul_i32 s6, s6, 6144")
        e(f"s_add_u32 s{S_OFF}, s{S_OFF}, s6")
        e(f"s_lshl_b32 s7, s{S_WAVE}, 2")
        e(f"v_mov_b32 v7, s7")
        e(f"v_mov_b32 v{VT}, 0")
        e(f"ds_write_b32 v7, v{VT} offset:{L_FLS}")
        e("s_waitcnt lgkmcnt(0)")
        self.srd(8, P_K, KV_BYTES)
        e("s_barrier")

        def issue(p, boundary=False):
            r = RING + (p % R) * 4
            e(f"buffer_load_dwordx4 v[{r}:{r + 3}], v{VOFF}, s[8:11], s{S_OFF} offen offset:{offs[p % 6]} nt")
            if p % 6 == 5:
                if boundary:
                    e(f"s_add_u32 s{S_OFF}, s{S_OFF}, s{S_DELTA}")
                    e(f"s_mov_b32 s8, s{S_B0}")
                    e(f"s_mov_b32 s9, s{S_B1}")
                else:
                    e(f"s_add_u32 s{S_OFF}, s{S_OFF}, {self.step_bytes}")

        for p in range(L):
            if p >= self.cap0:
                e(f"s_waitcnt vmcnt({self.cap0 - 1})")
            issue(p)
        self.stamp(1)
        e(f"s_mov_b32 s{S_R}, 0")
        e(f"s_mov_b32 s{S_B0}, s{P_K}")
        e(f"s_mov_b32 s{S_B1}, s{P_K + 1}")
        e(f"s_mov_b32 s56, {self.step_bytes + 7 * HEAD}")

        e("L_kround:")
        e(f"s_add_u32 s50, s{S_R}, 1")
        self.wait_lds(L_FLQ, "s50", VT, sleep=0)
        for s in range(3):
            e(f"ds_read_b128 v[{Q + 4 * s}:{Q + 4 * s + 3}], v{VQ} offset:{L_Q + 128 * s}")
        e(f"v_add_u32 v{VQ}, 384, v{VQ}")
        if self.prof:
            e(f"s_cmp_lg_u32 s{S_R}, 0")
            e("s_cbranch_scc1 L_nostamp2")
            self.stamp(2)
            e("L_nostamp2:")
        e(f"s_mov_b32 s{S_IT}, {self.ipr}")
        e("s_waitcnt lgkmcnt(0)")
        e("L_kloop:")
        e(f"s_cmp_eq_u32 s{S_R}, 3")
        e(f"s_cselect_b32 s50, {hex((self.step_bytes - 25 * HEAD) & 0xffffffff)}, s56")
        e(f"s_cselect_b32 s51, 1, 0")
        e(f"s_cmp_eq_u32 s{S_IT}, 1")
        e(f"s_cselect_b32 s{S_DELTA}, s50, {self.step_bytes}")
        e(f"s_cmp_eq_u32 s{S_IT}, s51")
        e(f"s_cselect_b32 s{S_B0}, s{P_V}, s{S_B0}")
        e(f"s_cselect_b32 s{S_B1}, s{P_V + 1}, s{S_B1}")
        pend = []
        pos = [0]

        def main(s):
            e(s)
            pos[0] += 1
            if pend and pend[0][0] <= pos[0]:
                _, ins, gap = pend.pop(0)
                e(ins)
                pos[0] += 1
                if pend:
                    pend[0] = (max(pend[0][0], pos[0] + gap), pend[0][1], pend[0][2])

        for j in range(R):
            tile, jj = divmod(j, 6)
            kg, s = divmod(jj, 3)
            a = A + 2 * (tile % 2) + kg
            main(f"s_waitcnt vmcnt({self.cap - 1})")
            n0 = len(self.o)
            issue(j + L, boundary=(j == cand[0]))
            pos[0] += len(self.o) - n0
            if s == 0:
                main(f"v_mov_b32 v{a}, 0")
            r = RING + j * 4
            for k in range(4):
                main(f"v_dot2c_f32_bf16 v{a}, v{r + k}, v{Q + 4 * s + k}")
            if s == 2:
                first = pos[0] + 3
                pend.append((first, f"v_add_f32_dpp v{a}, v{a}, v{a} {X1}", 2))
                pend.append((0, f"v_add_f32_dpp v{a}, v{a}, v{a} {X2}", 2))
                pend.append((0, f"v_add_f32_dpp v{a}, v{a}, v{a} {HM}", 0))
                if kg == 1:
                    pend.append((0, f"v_cvt_pk_bf16_f32 v{SC + tile}, v{a - 1}, v{a}", 0))
        while pend:
            main("s_nop 0")
        for q4 in range(self.tpi // 4):
            e(f"ds_write_b128 v{VSC}, v[{SC + 4 * q4}:{SC + 4 * q4 + 3}] offset:{16 * q4}")
        e(f"v_add_u32 v{VSC}, {NS * 8 * tb}, v{VSC}")
        e(f"s_sub_u32 s{S_IT}, s{S_IT}, 1")
        e(f"s_cmp_lg_u32 s{S_IT}, 0")
        e("s_cbranch_scc1 L_kloop")
        e(f"s_add_u32 s{S_R}, s{S_R}, 1")
        e("s_waitcnt lgkmcnt(0)")
        e(f"v_mov_b32 v{VT}, s{S_R}")
        e(f"ds_write_b32 v7, v{VT} offset:{L_FLS}")
        e(f"s_cmp_lt_u32 s{S_R}, 4")
        e("s_cbranch_scc1 L_kround")
        self.stamp(3)

        e(f"v_subrev_u32 v{VSC}, 8192, v{VSC}")
        self.wait_lds(L_FLP, 1, VT, sleep=0)
        for q4 in range(self.tpi // 4):
            e(f"ds_read_b128 v[{PN + 4 * q4}:{PN + 4 * q4 + 3}], v{VSC} offset:{16 * q4}")
        e(f"v_add_u32 v{VSC}, {NS * 8 * tb}, v{VSC}")
        e(f"s_mov_b32 s{S_R}, 0")

        def vbody(cap, last=False):
            e("s_waitcnt lgkmcnt(0)")
            for j in range(R):
                tile, jj = divmod(j, 6)
                kg, s = divmod(jj, 3)
                if last and j + L >= R:
                    e(f"s_waitcnt vmcnt({R - 1 - j})")
                else:
                    e(f"s_waitcnt vmcnt({cap - 1})")
                    issue(j + L, boundary=(j == cand[0]))
                if jj == 0:
                    e(f"v_and_b32 v{PX}, 0xffff, v{PN + tile}")
                    e(f"v_lshlrev_b32 v{PX + 1}, 16, v{PN + tile}")
                    e(f"v_lshrrev_b32 v{PX + 2}, 16, v{PN + tile}")
                    e(f"v_and_b32 v{PX + 3}, 0xffff0000, v{PN + tile}")
                    if tile == self.tpi - 1 and not last:
                        for q4 in range(self.tpi // 4):
                            e(f"ds_read_b128 v[{PN + 4 * q4}:{PN + 4 * q4 + 3}], v{VSC} offset:{16 * q4}")
                        e(f"v_add_u32 v{VSC}, {NS * 8 * tb}, v{VSC}")
                self.gemv_row(RING + 4 * j, PX + 2 * kg, Q + 8 * s)

        def dump():
            e("s_nop 2")
            for s in range(3):
                for hlf in range(2):
                    r = Q + 8 * s + 4 * hlf
                    e(f"ds_write_b128 v{VDUMP}, v[{r}:{r + 3}] offset:{256 * s + 16 * hlf}")
            e(f"v_add_u32 v{VDUMP}, {self.dump_bytes}, v{VDUMP}")
            e(f"s_add_u32 s50, s{S_R}, 5")
            e("s_waitcnt lgkmcnt(0)")
            e(f"v_mov_b32 v{VT}, s50")
            e(f"ds_write_b32 v7, v{VT} offset:{L_FLS}")

        e("L_vround:")
        e(f"s_add_u32 s50, s{S_R}, 2")
        e("s_min_u32 s50, s50, 4")
        self.wait_lds(L_FLP, "s50", VT, sleep=0)
        for k in range(24):
            e(f"v_mov_b32 v{Q + k}, 0")
        e(f"s_cmp_eq_u32 s{S_R}, 3")
        e(f"s_cselect_b32 s52, {self.tail_iters}, 0")
        e(f"s_mov_b32 s{S_IT}, {self.ipr}")
        e("L_vloop:")
        e(f"s_cmp_eq_u32 s{S_IT}, 1")
        e(f"s_cselect_b32 s{S_DELTA}, s56, {self.step_bytes}")
        vbody(self.cap)
        e(f"s_sub_u32 s{S_IT}, s{S_IT}, 1")
        e(f"s_cmp_lg_u32 s{S_IT}, s52")
        e("s_cbranch_scc1 L_vloop")
        e(f"s_cmp_eq_u32 s{S_R}, 3")
        e("s_cbranch_scc1 L_vtail")
        dump()
        e(f"s_add_u32 s{S_R}, s{S_R}, 1")
        e("s_branch L_vround")
        e("L_vtail:")
        e(f"s_mov_b32 s{S_DELTA}, {self.step_bytes}")
        if self.tail_iters > 1:
            e("L_vtloop:")
            vbody(self.cap_tail)
            e(f"s_sub_u32 s{S_IT}, s{S_IT}, 1")
            e(f"s_cmp_lg_u32 s{S_IT}, 1")
            e("s_cbranch_scc1 L_vtloop")
        vbody(self.cap_tail, last=True)
        self.stamp(4)
        dump()
        self.prof_store(5)
        e("s_endpgm")
        return RING + 4 * R

    def helperA(self):
        e = self.e
        NS = self.NS
        S_RB, S_CB = 40, 41
        SX, SW, SWS, SDB = 8, 12, 44, 48
        XA, XB, XC, F, XOP = 8, 12, 16, 20, 36
        W, ACC, RES, T = 52, 84, 92, 96
        VT = 98
        VP, VL16, VOP = 4, 5, 6
        SCR = 108
        e("L_helperA:")
        e("s_setprio 3")
        e("v_mul_u32_u24 v7, 0x18000, v1")
        e("v_lshl_add_u32 v7, v2, 4, v7")
        e(f"s_mul_i32 s42, s{S_RB}, {64 * 12288}")
        e(f"s_mul_i32 s43, s{S_X}, 384")
        e("s_add_u32 s42, s42, s43")
        e(f"s_lshl_b32 s43, s{S_CB}, 7")
        e("s_add_u32 s42, s42, s43")
        e("s_waitcnt lgkmcnt(0)")
        self.srd(SX, P_X, 1280)
        self.srd(SW, P_WQ, 640 * 12288)
        self.ln_loads(SX, 0, 1, XA, XB, XC, F, S_RB)
        for i in range(8):
            e(f"buffer_load_dwordx4 v[{W + 4 * i}:{W + 4 * i + 3}], v7, s[{SW}:{SW + 3}], s42 offen nt")
            if i < 7:
                e("s_add_u32 s42, s42, 12288")
        e(f"s_mov_b32 s6, {WS_EPOCH}")
        e(f"s_load_dword s{S_TAG}, s[{P_WS}:{P_WS + 1}], s6")
        e("s_barrier")
        self.srd(SWS, P_WS, WS_SIZE)
        e(f"v_lshrrev_b32 v{VP}, 4, v0")
        e(f"v_lshlrev_b32 v{VP}, 7, v{VP}")
        e(f"v_lshl_add_u32 v{VP}, v2, 4, v{VP}")
        e(f"v_lshlrev_b32 v{VL16}, 4, v0")
        e(f"v_lshrrev_b32 v{VOP}, 4, v0")
        e(f"v_lshlrev_b32 v{VOP}, 13, v{VOP}")
        e(f"v_and_b32 v{T}, 15, v0")
        e(f"v_lshl_add_u32 v{VOP}, v{T}, 4, v{VOP}")
        VQ2, VQL = 104, 105
        e(f"v_and_b32 v{VQ2}, 31, v0")
        e(f"v_lshlrev_b32 v{VQ2}, 4, v{VQ2}")
        e(f"v_lshrrev_b32 v{T}, 5, v0")
        e(f"v_mul_u32_u24 v{T + 1}, {PA_ROW}, v{T}")
        e(f"v_add_u32 v{VQ2}, v{VQ2}, v{T + 1}")
        e(f"v_lshlrev_b32 v{VQL}, 7, v{T}")
        e(f"v_lshl_add_u32 v{VQL}, v2, 4, v{VQL}")
        e(f"v_and_b32 v{T}, 3, v1")
        e(f"v_lshl_add_u32 v{VQL}, v{T}, 2, v{VQL}")
        e(f"s_mul_i32 s53, s{S_X}, {PA_X}")
        for k in range(8):
            e(f"v_mov_b32 v{ACC + k}, 0")
        e("s_waitcnt vmcnt(8)")
        self.stamp(1)
        self.ln_compute(XA, XB, XC, F, XOP)
        for i in range(8):
            e(f"s_waitcnt vmcnt({7 - i})")
            self.gemv_row(W + 4 * i, XOP + 2 * i, ACC)
        self.reduce_g2(ACC, RES)
        e(f"s_mul_i32 s6, s{S_RB}, {PA_ROW}")
        e("s_add_u32 s6, s6, s53")
        e(f"s_lshl_b32 s7, s{S_CB}, 9")
        e("s_add_u32 s6, s6, s7")
        e("s_waitcnt lgkmcnt(0)")
        e(f"s_add_u32 s{S_TAG}, s{S_TAG}, {hex(NONCE_STEP)}")
        self.tag_regs(RES)
        e(f"s_cmp_ge_u32 s{S_C}, 30")
        e("s_cbranch_scc1 L_ha_noq")
        self.exec_tagged()
        e(f"buffer_store_dwordx4 v[{RES}:{RES + 3}], v{VP}, s[{SWS}:{SWS + 3}], s6 offen sc1")
        e("s_mov_b64 exec, -1")
        e("L_ha_noq:")
        self.stamp(2)
        self.set_lds(L_TAG, f"s{S_TAG}", VT)
        self.set_lds(L_FLN, 1, VT)
        e("s_waitcnt vmcnt(0)")
        self.stamp(3)
        GQ = 8

        def gather_q(r, sleep):
            e(f"s_add_u32 s6, s53, {r * PA_JOB}")
            for k in range(1, 5):
                e(f"s_add_u32 s{53 + k}, s6, {2 * PA_ROW * k}")
            sreg = lambda rb: "s6" if rb < 2 else f"s{53 + rb // 2}"
            loads = [f"buffer_load_dwordx4 v[{GQ + 4 * rb}:{GQ + 4 * rb + 3}], v{VL16}, s[{SWS}:{SWS + 3}], "
                     f"{sreg(rb)} offen offset:{PA_ROW * (rb % 2)} sc1" for rb in range(10)]
            loads += [f"buffer_load_dwordx4 v[{GQ + 40 + 4 * k}:{GQ + 43 + 4 * k}], v{VQ2}, s[{SWS}:{SWS + 3}], "
                      f"{sreg(2 * k)} offen offset:1024 sc1" for k in range(5)]
            self.gather_tagged(loads, GQ, 15, VT, sleep=sleep)
            if r == 0:
                self.stamp(4)
            for k in range(1, 5):
                for j in (0, 2):
                    e(f"v_add_f32 v{GQ + 40 + j}, v{GQ + 40 + j}, v{GQ + 40 + 4 * k + j}")
            for j in (0, 2):
                e(f"v_mov_b32 v{GQ + 41 + j}, v{GQ + 40 + j}")
            for rb in range(1, 10):
                for j in (0, 2):
                    e(f"v_add_f32 v{GQ + j}, v{GQ + j}, v{GQ + 4 * rb + j}")
            for j in (0, 2):
                e(f"v_permlane32_swap_b32 v{GQ + 40 + j}, v{GQ + 41 + j}")
            e(f"v_cvt_pk_bf16_f32 v{GQ}, v{GQ}, v{GQ + 2}")
            for j in (0, 2):
                e(f"v_add_f32 v{GQ + 40 + j}, v{GQ + 40 + j}, v{GQ + 41 + j}")
            e(f"ds_write_b32 v{VQL}, v{GQ} offset:{L_Q + 384 * r}")
            e(f"v_cvt_pk_bf16_f32 v{GQ + 40}, v{GQ + 40}, v{GQ + 42}")
            e("s_mov_b32 exec_hi, 0")
            e(f"ds_write_b32 v{VQL}, v{GQ + 40} offset:{L_Q + 384 * r + 256}")
            e("s_mov_b64 exec, -1")
            self.set_lds(L_FLQ, r + 1, VT)

        gather_q(0, 2)
        self.stamp(5)
        e("s_setprio 0")
        self.wait_lds(L_FLC, 1, VT, sleep=8)
        for r in (1, 2, 3):
            gather_q(r, 32)
        self.stamp(6)

        M, LS = 8, 9
        U = 12
        VS32 = 10

        def unpack(r):
            for k in range(8):
                e(f"v_lshlrev_b32 v{U + 2 * k}, 16, v{SCR + 8 * r + k}")
                e(f"v_and_b32 v{U + 2 * k + 1}, 0xffff0000, v{SCR + 8 * r + k}")

        def local_stats(r):
            self.wait_lds(L_FLS, r + 1, VT, n=NS, sleep=8)
            e(f"v_lshlrev_b32 v{VS32}, 5, v0")
            b = SCR + 8 * r
            e(f"ds_read_b128 v[{b}:{b + 3}], v{VS32} offset:{L_SC + 2048 * r}")
            e(f"ds_read_b128 v[{b + 4}:{b + 7}], v{VS32} offset:{L_SC + 2048 * r + 16}")
            e("s_waitcnt lgkmcnt(0)")
            unpack(r)
            for k in range(16):
                e(f"v_mul_f32 v{U + k}, {hex(SCALE)}, v{U + k}")
            for k in range(8):
                e(f"v_cvt_pk_bf16_f32 v{b + k}, v{U + 2 * k}, v{U + 2 * k + 1}")
            unpack(r)
            e(f"v_max_f32 v{M}, v{U}, v{U + 1}")
            for k in range(2, 16, 2):
                e(f"v_max3_f32 v{M}, v{M}, v{U + k}, v{U + k + 1}")
            self.allreduce("v_max_f32", M, T)
            for k in range(16):
                e(f"v_sub_f32 v{U + k}, v{U + k}, v{M}")
            for k in range(16):
                e(f"v_mul_f32 v{U + k}, {hex(LOG2E)}, v{U + k}")
            for k in range(16):
                e(f"v_exp_f32 v{U + k}, v{U + k}")
            e("s_nop 0")
            e(f"v_add_f32 v{LS}, v{U}, v{U + 1}")
            for k in range(2, 16):
                e(f"v_add_f32 v{LS}, v{LS}, v{U + k}")
            self.allreduce("v_add_f32", LS, T)
            e(f"v_mov_b32 v{U}, v{M}")
            e(f"v_mov_b32 v{U + 2}, v{LS}")
            self.tag_regs(U)
            e(f"s_lshl_b32 s6, s{S_X}, 11")
            e(f"s_lshl_b32 s7, s{S_C}, 4")
            e("s_add_u32 s6, s6, s7")
            e(f"s_add_u32 s6, s6, {WS_ST + 512 * r}")
            e(f"v_mov_b32 v{T}, 0")
            e("s_mov_b64 exec, 1")
            e(f"buffer_store_dwordx4 v[{U}:{U + 3}], v{T}, s[{SWS}:{SWS + 3}], s6 offen sc1")
            e("s_mov_b64 exec, -1")
            e("s_nop 1")

        def finalize_p(r):
            G = 28
            e(f"v_and_b32 v{T}, 31, v0")
            e(f"v_lshlrev_b32 v{T}, 4, v{T}")
            e(f"s_lshl_b32 s6, s{S_X}, 11")
            e(f"s_add_u32 s6, s6, {WS_ST + 512 * r}")
            self.gather_tagged([f"buffer_load_dwordx4 v[{G}:{G + 3}], v{T}, s[{SWS}:{SWS + 3}], s6 offen sc1"],
                               G, 1, VT, sleep=32)
            e(f"v_mov_b32 v{M}, v{G}")
            self.allreduce("v_max_f32", M, T)
            e(f"v_sub_f32 v{G}, v{G}, v{M}")
            e(f"v_mul_f32 v{G}, {hex(LOG2E)}, v{G}")
            e(f"v_exp_f32 v{G}, v{G}")
            e("s_nop 0")
            e(f"v_mul_f32 v{LS}, v{G}, v{G + 2}")
            self.allreduce("v_add_f32", LS, T)
            e(f"v_mul_f32 v{LS}, 0.5, v{LS}")
            e(f"v_rcp_f32 v{LS}, v{LS}")
            unpack(r)
            for k in range(16):
                e(f"v_sub_f32 v{U + k}, v{U + k}, v{M}")
            for k in range(16):
                e(f"v_mul_f32 v{U + k}, {hex(LOG2E)}, v{U + k}")
            for k in range(16):
                e(f"v_exp_f32 v{U + k}, v{U + k}")
            e("s_nop 0")
            for k in range(16):
                e(f"v_mul_f32 v{U + k}, v{U + k}, v{LS}")
            b = SCR + 8 * r
            for k in range(8):
                e(f"v_cvt_pk_bf16_f32 v{b + k}, v{U + 2 * k}, v{U + 2 * k + 1}")
            e(f"ds_write_b128 v{VS32}, v[{b}:{b + 3}] offset:{L_SC + 2048 * r}")
            e(f"ds_write_b128 v{VS32}, v[{b + 4}:{b + 7}] offset:{L_SC + 2048 * r + 16}")
            self.set_lds(L_FLP, r + 1, VT)

        def publish_op(r):
            self.wait_lds(L_FLS, r + 5, VT, n=NS, sleep=(1 if r == 3 else 8))
            if r == 3:
                self.stamp(7)
            e("s_mov_b32 exec_lo, -1")
            e("s_mov_b32 exec_hi, 0xffff")
            D = 28
            rows = 8 * NS
            for blk in range(0, rows, 16):
                for i in range(16):
                    d = D + 4 * (i + 1)
                    e(f"ds_read_b128 v[{d}:{d + 3}], v{VL16} offset:{L_DUMP + r * self.dump_bytes + 768 * (blk + i)}")
                    if i == 7:
                        e("s_waitcnt lgkmcnt(7)")
                for i in range(16):
                    d = D + 4 * (i + 1)
                    e(f"s_waitcnt lgkmcnt({min(15 - i, 15)})")
                    for k in range(4):
                        if blk == 0 and i == 0:
                            e(f"v_mov_b32 v{D + k}, v{d + k}")
                        else:
                            e(f"v_add_f32 v{D + k}, v{D + k}, v{d + k}")
            self.sanitize(D, 4)
            e(f"s_mul_i32 s6, s{S_X}, {4 * 24576}")
            e(f"s_lshl_b32 s7, s{S_C}, 8")
            e("s_add_u32 s6, s6, s7")
            e(f"s_add_u32 s6, s6, {WS_OP + 24576 * r}")
            e(f"buffer_store_dwordx4 v[{D}:{D + 3}], v{VOP}, s[{SWS}:{SWS + 3}], s6 offen sc1")
            e("s_mov_b64 exec, -1")

        assert NS == 2
        for r in range(4):
            local_stats(r)
            if r >= 1:
                finalize_p(r - 1)
        publish_op(0)
        finalize_p(3)
        for r in (1, 2, 3):
            publish_op(r)
        self.stamp(8)
        self.prof_store(9)
        e("s_endpgm")
        return SCR + 32

    def helperB(self):
        e = self.e
        NS = self.NS
        S_RB, S_CB = 40, 41
        SX, SA, SWS, SDB = 8, 12, 44, 48
        VT = 4
        XA, XB, XC, F, XOP = 12, 16, 20, 24, 40
        ACC, T = 56, 64
        RESP = 68
        VA = [88, 89, 90, 91]
        VP, VG, VPT = 92, 93, 94
        W = 96
        e("L_helperB:")
        e(f"v_mul_u32_u24 v{VA[0]}, 0x18000, v1")
        e(f"v_lshl_add_u32 v{VA[0]}, v2, 4, v{VA[0]}")
        e(f"v_mul_u32_u24 v{VA[1]}, 0x6000, v1")
        e(f"v_lshl_add_u32 v{VA[1]}, v2, 4, v{VA[1]}")
        e(f"v_mul_u32_u24 v{VA[2]}, 0x2800, v1")
        e(f"v_lshl_add_u32 v{VA[2]}, v2, 4, v{VA[2]}")
        e(f"v_lshrrev_b32 v{VP}, 5, v0")
        e(f"v_lshlrev_b32 v{VP}, 7, v{VP}")
        e(f"v_lshl_add_u32 v{VP}, v2, 4, v{VP}")
        e(f"v_lshrrev_b32 v{VPT}, 4, v0")
        e(f"v_lshlrev_b32 v{VPT}, 7, v{VPT}")
        e(f"v_lshl_add_u32 v{VPT}, v2, 4, v{VPT}")
        for k in range(4):
            e(f"v_mov_b32 v{VT + k}, 0")
        e(f"ds_write_b128 v{VT}, v[{VT}:{VT + 3}] offset:{L_FLQ}")
        e("s_waitcnt lgkmcnt(0)")
        self.srd(SX, P_X, 1280)
        self.srd(SWS, P_WS, WS_SIZE)
        self.srd(SA, P_WQ, 640 * 12288)
        e("s_barrier")
        e(f"s_mul_i32 s53, s{S_X}, {PA_X}")
        e(f"s_cmp_ge_u32 s{S_C}, 30")
        e("s_cbranch_scc1 L_hb_clear")
        self.ln_loads(SX, 0, 1, XA, XB, XC, F, S_RB)

        def setup_job(n):
            if n < 3:
                e(f"s_mul_i32 s42, s{S_RB}, {64 * 12288}")
                e(f"s_mul_i32 s43, s{S_X}, 384")
                e("s_add_u32 s42, s42, s43")
                e(f"s_lshl_b32 s43, s{S_CB}, 7")
                e("s_add_u32 s42, s42, s43")
                e(f"s_add_u32 s42, s42, {8 * 384 * (n + 1)}")
                return VA[0], 12288
            if n < 5:
                self.srd(SA, P_G if n == 3 else P_U, 640 * 3072)
                e(f"s_mul_i32 s42, s{S_RB}, {64 * 3072}")
                e(f"s_mul_i32 s43, s{S_X}, 384")
                e("s_add_u32 s42, s42, s43")
                e(f"s_lshl_b32 s43, s{S_CB}, 7")
                e("s_add_u32 s42, s42, s43")
                return VA[1], 3072
            if n == 5:
                self.srd(SA, P_WO, 6144 * 1280)
            if n == 9:
                self.srd(SA, P_D, 1536 * 1280)
            e(f"s_mul_i32 s42, s{S_X}, {192 * 1280}")
            e(f"s_mul_i32 s43, s{S_CB}, {64 * 1280}")
            e("s_add_u32 s42, s42, s43")
            e(f"s_lshl_b32 s43, s{S_RB}, 7")
            e("s_add_u32 s42, s42, s43")
            if 5 < n < 9:
                e(f"s_add_u32 s42, s42, {8 * 192 * 1280 * (n - 5)}")
            return VA[2], 1280

        cap = self.capH
        LH = max(cap, 16)
        for i in range(80):
            if i % 8 == 0:
                va, stride = setup_job(i // 8)
            if i >= cap - 3:
                e(f"s_waitcnt vmcnt({cap - 1})")
            r = W + 4 * (i % 40)
            e(f"buffer_load_dwordx4 v[{r}:{r + 3}], v{va}, s[{SA}:{SA + 3}], s42 offen nt")
            if i % 8 < 7:
                e(f"s_add_u32 s42, s42, {stride}")
            if i == LH - 1:
                self.ln_compute(XA, XB, XC, F, XOP)
            j = i - LH
            if 0 <= j < 40:
                if j % 8 == 0:
                    for k in range(8):
                        e(f"v_mov_b32 v{ACC + k}, 0")
                self.gemv_row(W + 4 * j, XOP + 2 * (j % 8), ACC)
                if j % 8 == 7:
                    self.reduce_g2(ACC, RESP + 4 * (j // 8))
        self.stamp(1)
        e("L_hb_clear:")
        self.wait_lds(L_FLN, 1, VT, sleep=2)
        e(f"ds_read_b32 v{VT}, v{VT + 4} offset:{L_TAG}")
        e("s_waitcnt lgkmcnt(0)")
        e(f"v_readfirstlane_b32 s{S_TAG}, v{VT}")
        for k in range(4):
            e(f"v_mov_b32 v{T + k}, -1")
        e(f"s_cmp_ge_u32 s{S_C}, 30")
        e("s_cbranch_scc1 L_hb_clear2")
        for n in range(5):
            self.tag_regs(RESP + 4 * n)
        e(f"s_mul_i32 s6, s{S_RB}, {PA_ROW}")
        e("s_add_u32 s6, s6, s53")
        e(f"s_lshl_b32 s7, s{S_CB}, 9")
        e("s_add_u32 s6, s6, s7")
        self.exec_tagged()
        for n in range(5):
            e(f"s_add_u32 s6, s6, {PA_JOB}")
            e(f"buffer_store_dwordx4 v[{RESP + 4 * n}:{RESP + 4 * n + 3}], v{VPT}, s[{SWS}:{SWS + 3}], s6 offen sc1")
        e(f"s_mul_i32 s54, s{S_RB}, 24")
        e(f"s_mul_i32 s7, s{S_X}, 3")
        e("s_add_u32 s54, s54, s7")
        e(f"s_add_u32 s54, s54, s{S_CB}")
        e("s_lshl_b32 s55, s54, 9")
        e("s_lshl_b32 s54, s54, 8")
        e(f"s_add_u32 s55, s55, {WS_YB}")
        e(f"s_add_u32 s54, s54, {WS_YA}")
        e("s_mov_b32 exec_lo, 0xff")
        e("s_mov_b32 exec_hi, 0xff")
        e(f"buffer_store_dwordx4 v[{T}:{T + 3}], v{VP}, s[{SWS}:{SWS + 3}], s54 offen sc1")
        e("s_mov_b64 exec, -1")
        e("L_hb_clear2:")
        self.c("mark this workgroup's later hand-off slots empty")
        e(f"v_lshrrev_b32 v{VG}, 4, v0")
        e(f"v_lshlrev_b32 v{VG}, 13, v{VG}")
        e(f"v_and_b32 v{VT}, 15, v0")
        e(f"v_lshl_add_u32 v{VG}, v{VT}, 4, v{VG}")
        e(f"s_mul_i32 s6, s{S_X}, {4 * 24576}")
        e(f"s_lshl_b32 s7, s{S_C}, 8")
        e("s_add_u32 s6, s6, s7")
        e(f"s_add_u32 s6, s6, {WS_OP}")
        e("s_mov_b32 exec_lo, -1")
        e("s_mov_b32 exec_hi, 0xffff")
        for r in range(4):
            e(f"buffer_store_dwordx4 v[{T}:{T + 3}], v{VG}, s[{SWS}:{SWS + 3}], s6 offen sc1")
            if r < 3:
                e("s_add_u32 s6, s6, 24576")
        e("s_mov_b64 exec, -1")
        e("s_waitcnt vmcnt(0)")
        self.set_lds(L_FLC, 1, VT)
        self.stamp(2)
        e(f"s_cmp_ge_u32 s{S_C}, 30")
        e("s_cbranch_scc1 L_finisher")

        self.c("ffn hidden slice and down projection")
        self.wait_lds(L_FLQ, 4, VT, sleep=8)
        G0 = 12
        GA, UA = 44, 52
        e(f"v_mul_u32_u24 v{VA[0]}, {PA_ROW}, v2")
        e(f"v_lshl_add_u32 v{VA[0]}, v1, 4, v{VA[0]}")
        e(f"v_add_u32 v{VA[1]}, {8 * PA_ROW}, v{VA[0]}")
        e(f"v_mov_b32 v{VA[2]}, 0x40000000")
        e("v_cmp_gt_u32 s[58:59], 2, v2")
        e("s_nop 1")
        e(f"v_cndmask_b32 v{VA[1]}, v{VA[2]}, v{VA[1]}, s[58:59]")
        for m in range(2):
            e(f"s_lshl_b32 s7, s{S_CB}, 9")
            e("s_add_u32 s6, s53, s7")
            e(f"s_add_u32 s6, s6, {(4 + m) * PA_JOB}")
            loads = [f"buffer_load_dwordx4 v[{G0 + 16 * h + 4 * q}:{G0 + 16 * h + 4 * q + 3}], v{VA[h]}, "
                     f"s[{SWS}:{SWS + 3}], s6 offen offset:{128 * q} sc1" for h in range(2) for q in range(4)]
            self.gather_tagged(loads, G0, 8, VT, sleep=32, skip=((4, 5, 6, 7), 58))
            for k in range(8):
                e(f"v_add_f32 v{GA + 8 * m + k}, v{G0 + 2 * k}, v{G0 + 16 + 2 * k}")
        self.reduce_sub(GA, 16)
        for k in range(16):
            self.round_bf16(GA + k)
        Z = G0 + 16
        c2 = -2.0 * 0.7978845608028654 * 1.4426950408889634
        e(f"s_mov_b32 s6, {hex(f2u(0.044715))}")
        for k in range(8):
            e(f"v_mul_f32 v{Z + k}, v{GA + k}, v{GA + k}")
        for k in range(8):
            e(f"v_mul_f32 v{Z + k}, v{Z + k}, v{GA + k}")
        for k in range(8):
            e(f"v_fma_f32 v{Z + k}, v{Z + k}, s6, v{GA + k}")
        for k in range(8):
            e(f"v_mul_f32 v{Z + k}, {hex(f2u(c2))}, v{Z + k}")
        for k in range(8):
            e(f"v_exp_f32 v{Z + k}, v{Z + k}")
        for k in range(8):
            e(f"v_add_f32 v{Z + k}, 1.0, v{Z + k}")
        for k in range(8):
            e(f"v_rcp_f32 v{Z + k}, v{Z + k}")
        for k in range(8):
            e(f"v_mul_f32 v{Z + k}, v{Z + k}, v{GA + k}")
        for k in range(8):
            self.round_bf16(Z + k)
        for k in range(8):
            e(f"v_mul_f32 v{Z + k}, v{Z + k}, v{UA + k}")
        for k in range(4):
            e(f"v_cvt_pk_bf16_f32 v{G0 + k}, v{Z + 2 * k}, v{Z + 2 * k + 1}")
        XO = 44
        self.expand(G0, XO)
        A2 = 60
        for k in range(8):
            e(f"v_mov_b32 v{A2 + k}, 0")
        for i in range(8):
            self.gemv_row(W + 4 * (32 + i), XO + 2 * i, A2)
        self.reduce_g2(A2, RESP)
        self.tag_regs(RESP)
        self.exec_tagged()
        e(f"buffer_store_dwordx4 v[{RESP}:{RESP + 3}], v{VPT}, s[{SWS}:{SWS + 3}], s55 offen sc1")
        e("s_mov_b64 exec, -1")
        self.stamp(3)

        self.c("attention output slices times wo")
        YA = 76
        for k in range(8):
            e(f"v_mov_b32 v{YA + k}, 0")
        e(f"v_lshlrev_b32 v{VG}, 8, v2")
        e(f"v_lshl_add_u32 v{VG}, v1, 5, v{VG}")
        for r in range(4):
            if r < 2:
                self.wait_lds(L_FLS, r + 6, VT, n=NS, sleep=8)
            elif r == 3:
                self.wait_lds(L_FLS, 8, VT, n=NS, sleep=1)
                self.stamp(4)
            e(f"s_mul_i32 s6, s{S_X}, {4 * 24576}")
            e(f"s_lshl_b32 s7, s{S_CB}, 13")
            e("s_add_u32 s6, s6, s7")
            e(f"s_add_u32 s6, s6, {WS_OP + 24576 * r}")
            e("s_add_u32 s7, s6, 4096")
            loads = []
            for j in range(4):
                for q in range(2):
                    d = G0 + 8 * j + 4 * q
                    loads.append(f"buffer_load_dwordx4 v[{d}:{d + 3}], v{VG}, s[{SWS}:{SWS + 3}], s{6 + j // 2} "
                                 f"offen offset:{2048 * (j % 2) + 16 * q} sc1")
            self.gather_valid(loads, G0, 32, VT, sleep=(0 if r == 3 else 32))
            if r == 3:
                self.stamp(5)
            for j in range(1, 4):
                for k in range(8):
                    e(f"v_add_f32 v{G0 + k}, v{G0 + k}, v{G0 + 8 * j + k}")
            self.reduce_sub(G0, 8)
            for k in range(4):
                e(f"v_cvt_pk_bf16_f32 v{G0 + 8 + k}, v{G0 + 2 * k}, v{G0 + 2 * k + 1}")
            self.expand(G0 + 8, XO)
            for i in range(8):
                self.gemv_row(W + 4 * (8 * r + i), XO + 2 * i, YA)
        self.reduce_g(YA, RESP, RESP + 4)
        self.sanitize(RESP, 4)
        e("s_mov_b32 exec_lo, 0xff")
        e("s_mov_b32 exec_hi, 0xff")
        e(f"buffer_store_dwordx4 v[{RESP}:{RESP + 3}], v{VP}, s[{SWS}:{SWS + 3}], s54 offen sc1")
        self.stamp(6)
        self.prof_store(7)
        e("s_endpgm")

        self.c("finisher: sums the projection partials of one 64-column block and writes the output")
        e("L_finisher:")
        e(f"s_sub_u32 s56, s{S_C}, 30")
        e("s_lshl_b32 s56, s56, 3")
        e(f"s_add_u32 s56, s56, s{S_X}")
        e("s_cmp_ge_u32 s56, 10")
        e("s_cbranch_scc1 L_exit")
        self.wait_lds(L_FLS, 2, VT, n=NS, sleep=8)
        e(f"v_lshlrev_b32 v{VA[1]}, 4, v0")
        e(f"v_and_b32 v{VA[3]}, 1, v1")
        e(f"v_lshlrev_b32 v{VA[2]}, 4, v2")
        e(f"v_lshl_add_u32 v{VA[0]}, v{VA[3]}, 8, v{VA[2]}")
        e(f"v_lshl_add_u32 v{VA[2]}, v{VA[3]}, 3, v{VA[2]}")
        e(f"v_lshrrev_b32 v{VA[3]}, 4, v0")
        e(f"v_lshl_add_u32 v{VA[0]}, v{VA[3]}, 9, v{VA[0]}")
        XV, BV = 64, 72
        e("s_lshl_b32 s57, s56, 7")
        e(f"buffer_load_dwordx2 v[{XV}:{XV + 1}], v{VA[2]}, s[{SX}:{SX + 3}], s57 offen")

        def finish_y():
            for sw in ("v_permlane16_swap_b32", "v_permlane32_swap_b32"):
                for k in range(4):
                    e(f"v_mov_b32 v{G0 + 4 + k}, v{G0 + k}")
                e("s_nop 0")
                for k in range(4):
                    e(f"{sw} v{G0 + k}, v{G0 + 4 + k}")
                e("s_nop 0")
                for k in range(4):
                    e(f"v_add_f32 v{G0 + k}, v{G0 + k}, v{G0 + 4 + k}")
            for k in range(4):
                self.round_bf16(G0 + k)

        def gather_y(base, sleep):
            e("s_mul_i32 s6, s56, 6144")
            e(f"s_add_u32 s6, s6, {base}")
            e("s_add_u32 s7, s6, 4096")
            loads = [f"buffer_load_dwordx4 v[{G0 + 4 * i}:{G0 + 4 * i + 3}], v{VA[1]}, s[{SWS}:{SWS + 3}], "
                     f"s{6 + i // 4} offen offset:{1024 * (i % 4)} sc1" for i in range(6)]
            self.gather_valid(loads, G0, 24, VT, sleep=sleep)
            for i in range(1, 6):
                for k in range(4):
                    e(f"v_add_f32 v{G0 + k}, v{G0 + k}, v{G0 + 4 * i + k}")
            finish_y()

        e("s_mul_i32 s6, s56, 12288")
        e(f"s_add_u32 s6, s6, {WS_YB}")
        e("s_add_u32 s7, s6, 4096")
        e("s_add_u32 s58, s6, 8192")
        loads = [f"buffer_load_dwordx4 v[{G0 + 8 * i + 4 * q}:{G0 + 8 * i + 4 * q + 3}], v{VA[0]}, s[{SWS}:{SWS + 3}], "
                 f"s{(6, 7, 58)[i // 2]} offen offset:{2048 * (i % 2) + 128 * q} sc1" for i in range(6) for q in range(2)]
        self.gather_tagged(loads, G0, 12, VT, sleep=32)
        for i in range(1, 6):
            for k in range(4):
                e(f"v_add_f32 v{G0 + 2 * k}, v{G0 + 2 * k}, v{G0 + 8 * i + 2 * k}")
        for k in range(1, 4):
            e(f"v_mov_b32 v{G0 + k}, v{G0 + 2 * k}")
        finish_y()
        for k in range(4):
            e(f"v_mov_b32 v{BV + k}, v{G0 + k}")
        e(f"v_lshlrev_b32 v{XV + 2}, 16, v{XV}")
        e(f"v_and_b32 v{XV + 3}, 0xffff0000, v{XV}")
        e(f"v_lshlrev_b32 v{XV + 4}, 16, v{XV + 1}")
        e(f"v_and_b32 v{XV + 5}, 0xffff0000, v{XV + 1}")
        self.srd(SA, P_OUT, 1280)
        self.stamp(3)
        self.wait_lds(L_FLS, 8, VT, n=NS, sleep=1)
        self.stamp(4)
        gather_y(WS_YA, 0)
        self.stamp(5)
        for k in range(4):
            e(f"v_add_f32 v{G0 + k}, v{G0 + k}, v{XV + 2 + k}")
        for k in range(4):
            self.round_bf16(G0 + k)
        for k in range(4):
            e(f"v_add_f32 v{G0 + k}, v{G0 + k}, v{BV + k}")
        e(f"v_cvt_pk_bf16_f32 v{G0}, v{G0}, v{G0 + 1}")
        e(f"v_cvt_pk_bf16_f32 v{G0 + 1}, v{G0 + 2}, v{G0 + 3}")
        e("s_mov_b64 exec, 0xffff")
        e(f"buffer_store_dwordx2 v[{G0}:{G0 + 1}], v{VA[2]}, s[{SA}:{SA + 3}], s57 offen")
        e("s_cmp_lg_u32 s56, 0")
        e("s_cbranch_scc1 L_fin_done")
        self.c("the next launch derives a different tag from this word")
        e(f"v_mov_b32 v{VT}, s{S_TAG}")
        e(f"v_mov_b32 v{VT + 1}, {WS_EPOCH}")
        e("s_mov_b64 exec, 1")
        e(f"buffer_store_dword v{VT}, v{VT + 1}, s[{SWS}:{SWS + 3}], 0 offen")
        e("L_fin_done:")
        self.stamp(6)
        self.prof_store(7)
        e("L_exit:")
        e("s_endpgm")
        return W + 160

    def build(self):
        self.entry()
        nv = max(self.streamer(), self.helperA(), self.helperB())
        assert nv <= 256
        body = "\n".join(l if l.endswith(":") or l.startswith(";") else "    " + l for l in self.o)
        return (HEADER.format(block=64 * (self.NS + 2), lds=self.lds, name=NAME) + body
                + FOOTER.format(name=NAME, vgpr=nv, acc=(nv + 3) // 4 * 4))


def gen(**kw):
    return Gen(**kw).build()


if __name__ == "__main__":
    out = sys.argv[1] if len(sys.argv) > 1 else f"cdna_kernels/{NAME}.s"
    kw = eval("dict(" + (sys.argv[2] if len(sys.argv) > 2 else "") + ")")
    open(out, "w").write(gen(**kw))
```

```python
import struct
import sys

NAME = "parallel_sum__mha_block_cached__geglu_ffn__decode"
HEAD = 32768 * 384
KV_BYTES = 32 * HEAD
SENT = 0xFFFFFFFF

WS_PA = 0x000000
PA_ROW, PA_JOB, PA_X = 1536, 15360, 92160
WS_ST = 0x0C0000
WS_OP = 0x0D0000
WS_YA = 0x190000
WS_YB = 0x1A0000
WS_EPOCH = 0x1F0000
WS_PROF = 0x200000
WS_SIZE = 0x400000
NONCE_STEP = 0x9E3779B9

L_FLS = 0
L_FLQ = 16
L_FLP = 20
L_FLN = 24
L_FLC = 28
L_TAG = 32
L_Q = 64
L_SC = 2048
L_DUMP = L_SC + 8192
S_TAG = 60


def f2u(x):
    return struct.unpack("<I", struct.pack("<f", x))[0]


LOG2E = f2u(1.4426950408889634)
SCALE = f2u(192 ** -0.5)

HEADER = """; Kernarg layout for this problem (96 bytes, ptrs only, base s[0:1]):
; @launch grid=(256,1,1) block=({block},1,1) lds={lds}
.amdgcn_target "amdgcn-amd-amdhsa--gfx950"
.text
.globl {name}_kernel
.p2align 8
.type {name}_kernel,@function
{name}_kernel:
"""
FOOTER = """
.section .rodata,"a"
.p2align 6
.amdhsa_kernel {name}_kernel
  .amdhsa_next_free_vgpr {vgpr}
  .amdhsa_next_free_sgpr 96
  .amdhsa_accum_offset {acc}
  .amdhsa_group_segment_fixed_size 0
  .amdhsa_kernarg_size 96
  .amdhsa_user_sgpr_count 2
  .amdhsa_user_sgpr_kernarg_segment_ptr 1
  .amdhsa_system_sgpr_workgroup_id_x 1
.end_amdhsa_kernel
"""

DPP_ALL = "row_mask:0xf bank_mask:0xf"
X1 = "quad_perm:[1,0,3,2] " + DPP_ALL
X2 = "quad_perm:[2,3,0,1] " + DPP_ALL
HM = "row_half_mirror " + DPP_ALL
RM = "row_mirror " + DPP_ALL
R8 = "row_ror:8 " + DPP_ALL

S_WAVE, S_X, S_C = 3, 4, 5
P_X, P_K, P_V, P_WQ, P_WO, P_G, P_U, P_D, P_OUT, P_DBG, P_WS = 16, 18, 20, 22, 24, 28, 30, 32, 34, 36, 38
SPIN_G = 400000
SPIN_L = 4000000


class Gen:
    def __init__(self, NS=2, R=24, L=23, cap=11, cap0=4, capH=14, cap_tail=None, tail_iters=1, prof=False, diag_hold=0, diag_dbg=False):
        self.NS, self.R, self.L = NS, R, L
        self.cap, self.cap0, self.capH = cap, cap0, capH
        self.cap_tail = cap_tail or cap
        self.tail_iters = tail_iters
        self.prof = prof
        self.diag_hold, self.diag_dbg = diag_hold, diag_dbg
        self.o = []
        self.uid = 0
        self.steps = 32768 // (32 * NS * 16)
        self.tpi = R // 6
        assert R % 24 == 0 and self.steps % self.tpi == 0 and L < R
        assert max(cap, cap0, self.cap_tail) <= L
        self.ipr = self.steps // self.tpi
        self.step_bytes = 32 * NS * 6144
        self.dump_bytes = 8 * NS * 768
        self.lds = L_DUMP + 4 * self.dump_bytes

    def e(self, s):
        self.o.append(s)

    def c(self, s):
        self.o.append("; " + s)

    def label(self, base):
        self.uid += 1
        return f"L_{base}_{self.uid}"

    def srd(self, d, p, size):
        self.e(f"s_mov_b32 s{d}, s{p}")
        self.e(f"s_mov_b32 s{d+1}, s{p+1}")
        self.e(f"s_mov_b32 s{d+2}, {size}")
        self.e(f"s_mov_b32 s{d+3}, 0x20000")

    def stamp(self, k):
        if self.prof:
            self.e(f"s_memrealtime s[{64 + 2 * k}:{65 + 2 * k}]")
            self.e("s_waitcnt lgkmcnt(0)")

    def prof_store(self, n):
        if not self.prof:
            return
        e = self.e
        e("s_mov_b64 exec, -1")
        e("s_waitcnt vmcnt(0) lgkmcnt(0)")
        self.srd(12, P_WS, WS_SIZE)
        e("s_lshl_b32 s6, s2, 2")
        e(f"s_add_u32 s6, s6, s{S_WAVE}")
        e("s_lshl_b32 s6, s6, 6")
        e(f"s_add_u32 s6, s6, {WS_PROF}")
        e("v_mov_b32 v1, 0")
        e("s_getreg_b32 s7, hwreg(HW_REG_XCC_ID)")
        e("v_mov_b32 v2, s7")
        e("s_mov_b64 exec, 1")
        e("buffer_store_dword v2, v1, s[12:15], s6 offen offset:60")
        for k in range(n):
            e(f"v_mov_b32 v{4 + k}, s{64 + 2 * k}")
            e(f"buffer_store_dword v{4 + k}, v1, s[12:15], s6 offen offset:{4 * k}")
        e("s_waitcnt vmcnt(0)")

    def allreduce(self, op, v, t):
        e = self.e
        for pat in (X1, X2, HM, RM):
            e("s_nop 1")
            e(f"{op}_dpp v{v}, v{v}, v{v} {pat}")
        for sw in ("v_permlane16_swap_b32", "v_permlane32_swap_b32"):
            e(f"v_mov_b32 v{t}, v{v}")
            e("s_nop 1")
            e(f"{sw} v{v}, v{t}")
            e("s_nop 1")
            e(f"{op} v{v}, v{v}, v{t}")

    def round_bf16(self, v):
        self.e(f"v_cvt_pk_bf16_f32 v{v}, v{v}, v{v}")
        self.e(f"v_and_b32 v{v}, 0xffff0000, v{v}")

    def expand(self, src, dst):
        e = self.e
        for k in range(4):
            e(f"v_and_b32 v{dst + 4 * k}, 0xffff, v{src + k}")
            e(f"v_lshlrev_b32 v{dst + 4 * k + 1}, 16, v{src + k}")
            e(f"v_lshrrev_b32 v{dst + 4 * k + 2}, 16, v{src + k}")
            e(f"v_and_b32 v{dst + 4 * k + 3}, 0xffff0000, v{src + k}")

    def gemv_row(self, w, xop, acc):
        for k in range(4):
            self.e(f"v_dot2c_f32_bf16 v{acc + 2 * k}, v{w + k}, v{xop}")
            self.e(f"v_dot2c_f32_bf16 v{acc + 2 * k + 1}, v{w + k}, v{xop + 1}")

    def reduce_g(self, acc, res, t):
        e = self.e
        e("s_nop 2")
        for k in range(4):
            e(f"v_permlane32_swap_b32 v{acc + k}, v{acc + k + 4}")
        e("s_nop 0")
        for k in range(4):
            e(f"v_add_f32 v{res + k}, v{acc + k}, v{acc + k + 4}")
        for k in range(4):
            e(f"v_mov_b32 v{t + k}, v{res + k}")
        e("s_nop 0")
        for k in range(4):
            e(f"v_permlane16_swap_b32 v{res + k}, v{t + k}")
        e("s_nop 0")
        for k in range(4):
            e(f"v_add_f32 v{res + k}, v{res + k}, v{t + k}")
        e("s_nop 0")
        for k in range(4):
            e(f"v_add_f32_dpp v{res + k}, v{res + k}, v{res + k} {R8}")

    def reduce_g2(self, acc, res):
        e = self.e
        e("s_nop 2")
        for k in range(4):
            e(f"v_permlane32_swap_b32 v{acc + k}, v{acc + k + 4}")
        e("s_nop 0")
        for k in range(4):
            e(f"v_add_f32 v{acc + k}, v{acc + k}, v{acc + k + 4}")
        e("s_nop 1")
        for k in range(2):
            e(f"v_permlane16_swap_b32 v{acc + k}, v{acc + k + 2}")
        e("s_nop 0")
        for k in range(2):
            e(f"v_add_f32 v{acc + k}, v{acc + k}, v{acc + k + 2}")
        e("s_nop 1")
        for k in range(2):
            e(f"v_add_f32_dpp v{res + 2 * k}, v{acc + k}, v{acc + k} {R8}")

    def tag_regs(self, res):
        self.e(f"v_mov_b32 v{res + 1}, s{S_TAG}")
        self.e(f"v_mov_b32 v{res + 3}, s{S_TAG}")

    def exec_tagged(self):
        self.e("s_mov_b32 exec_lo, 0x00ff00ff")
        self.e("s_mov_b32 exec_hi, 0x00ff00ff")

    def gather_tagged(self, loads, first, nrec, vt, sleep=1, skip=None):
        e = self.e
        lp, ok = self.label("gt"), self.label("gtok")
        e(f"s_mov_b32 s62, {SPIN_G}")
        e(f"{lp}:")
        for s_ in loads:
            e(s_)
        e(f"v_mov_b32 v{vt}, 0")
        e(f"v_mov_b32 v{vt + 1}, 0")
        e("s_waitcnt vmcnt(0)")
        for k in range(nrec):
            t = vt + 1 if skip and k in skip[0] else vt
            e(f"v_bitop3_b32 v{t}, v{t}, v{first + 4 * k + 1}, s{S_TAG} bitop3:0xf6")
            e(f"v_bitop3_b32 v{t}, v{t}, v{first + 4 * k + 3}, s{S_TAG} bitop3:0xf6")
        if skip:
            e(f"v_cndmask_b32 v{vt + 1}, 0, v{vt + 1}, s[{skip[1]}:{skip[1] + 1}]")
            e(f"v_or_b32 v{vt}, v{vt}, v{vt + 1}")
        e(f"v_cmp_ne_u32 vcc, 0, v{vt}")
        e("s_nop 4")
        e(f"s_cbranch_vccz {ok}")
        if sleep:
            e(f"s_sleep {sleep}")
        e("s_sub_u32 s62, s62, 1")
        e("s_cmp_lg_u32 s62, 0")
        e(f"s_cbranch_scc1 {lp}")
        e("s_endpgm")
        e(f"{ok}:")

    def reduce_sub(self, v, n):
        for pat in (X1, X2, HM):
            self.e("s_nop 1")
            for k in range(n):
                self.e(f"v_add_f32_dpp v{v + k}, v{v + k}, v{v + k} {pat}")

    def wait_lds(self, addr, val, vt, n=1, sleep=2, val_is_sreg=False):
        e = self.e
        lp, ok = self.label("wl"), self.label("wlok")
        e(f"s_mov_b32 s62, {SPIN_L}")
        e(f"v_mov_b32 v{vt + 4}, 0")
        e(f"{lp}:")
        if n == 1:
            e(f"ds_read_b32 v{vt}, v{vt + 4} offset:{addr}")
            e("s_waitcnt lgkmcnt(0)")
        elif n == 2:
            e(f"ds_read_b64 v[{vt}:{vt + 1}], v{vt + 4} offset:{addr}")
            e("s_waitcnt lgkmcnt(0)")
            e(f"v_min_u32 v{vt}, v{vt}, v{vt + 1}")
        else:
            e(f"ds_read_b128 v[{vt}:{vt + 3}], v{vt + 4} offset:{addr}")
            e("s_waitcnt lgkmcnt(0)")
            e(f"v_min_u32 v{vt}, v{vt}, v{vt + 1}")
            e(f"v_min3_u32 v{vt}, v{vt}, v{vt + 2}, v{vt + 3}")
        e("s_nop 0")
        e(f"v_readfirstlane_b32 s63, v{vt}")
        e(f"s_cmp_ge_u32 s63, {val}")
        e(f"s_cbranch_scc1 {ok}")
        if sleep:
            e(f"s_sleep {sleep}")
        e("s_sub_u32 s62, s62, 1")
        e("s_cmp_lg_u32 s62, 0")
        e(f"s_cbranch_scc1 {lp}")
        e("s_endpgm")
        e(f"{ok}:")

    def set_lds(self, addr, val, vt):
        e = self.e
        e("s_waitcnt lgkmcnt(0)")
        e(f"v_mov_b32 v{vt}, {addr}")
        e(f"v_mov_b32 v{vt + 1}, {val}")
        e(f"ds_write_b32 v{vt}, v{vt + 1}")

    def gather_valid(self, loads, first, nregs, vt, sleep=1):
        e = self.e
        lp, ok = self.label("gv"), self.label("gvok")
        e(f"s_mov_b32 s62, {SPIN_G}")
        e(f"{lp}:")
        for s in loads:
            e(s)
        e("s_waitcnt vmcnt(0)")
        e(f"v_max_u32 v{vt}, v{first}, v{first + 1}")
        for k in range(2, nregs, 2):
            e(f"v_max3_u32 v{vt}, v{vt}, v{first + k}, v{first + k + 1}")
        e(f"v_cmp_eq_u32 vcc, -1, v{vt}")
        e("s_nop 4")
        e(f"s_cbranch_vccz {ok}")
        if sleep:
            e(f"s_sleep {sleep}")
        e("s_sub_u32 s62, s62, 1")
        e("s_cmp_lg_u32 s62, 0")
        e(f"s_cbranch_scc1 {lp}")
        e("s_endpgm")
        e(f"{ok}:")

    def sanitize(self, v, n):
        for k in range(n):
            self.e(f"v_min_u32 v{v + k}, -2, v{v + k}")

    def ln_loads(self, srd, vlane, vg, xa, xb, xc, t, s_rb):
        e = self.e
        e(f"v_lshlrev_b32 v{t}, 4, v{vlane}")
        e(f"v_lshlrev_b32 v{t + 1}, 2, v{vlane}")
        e(f"v_lshlrev_b32 v{t + 2}, 4, v{vg}")
        e(f"s_lshl_b32 s6, s{s_rb}, 7")
        e(f"buffer_load_dwordx4 v[{xa}:{xa + 3}], v{t}, s[{srd}:{srd + 3}], 0 offen")
        e(f"buffer_load_dword v{xb}, v{t + 1}, s[{srd}:{srd + 3}], 0 offen offset:1024")
        e(f"buffer_load_dwordx4 v[{xc}:{xc + 3}], v{t + 2}, s[{srd}:{srd + 3}], s6 offen")

    def ln_compute(self, xa, xb, xc, f, xop):
        e = self.e
        src = [xa, xa + 1, xa + 2, xa + 3, xb]
        for k, s in enumerate(src):
            e(f"v_lshlrev_b32 v{f + 2 * k}, 16, v{s}")
            e(f"v_and_b32 v{f + 2 * k + 1}, 0xffff0000, v{s}")
        m, t, var = f + 10, f + 11, f + 12
        e(f"v_add_f32 v{m}, v{f}, v{f + 1}")
        for k in range(2, 10):
            e(f"v_add_f32 v{m}, v{m}, v{f + k}")
        self.allreduce("v_add_f32", m, t)
        e(f"v_mul_f32 v{m}, {hex(f2u(1.0 / 640))}, v{m}")
        for k in range(10):
            e(f"v_sub_f32 v{f + k}, v{f + k}, v{m}")
        e(f"v_mul_f32 v{var}, v{f}, v{f}")
        for k in range(1, 10):
            e(f"v_fmac_f32 v{var}, v{f + k}, v{f + k}")
        self.allreduce("v_add_f32", var, t)
        e(f"v_mul_f32 v{var}, {hex(f2u(1.0 / 640))}, v{var}")
        self.round_bf16(var)
        self.round_bf16(m)
        e(f"v_add_f32 v{var}, {hex(f2u(1e-5))}, v{var}")
        self.round_bf16(var)
        e(f"v_sqrt_f32 v{var}, v{var}")
        e("s_nop 0")
        self.round_bf16(var)
        e(f"v_rcp_f32 v{var}, v{var}")
        for k in range(4):
            e(f"v_lshlrev_b32 v{f + 2 * k}, 16, v{xc + k}")
            e(f"v_and_b32 v{f + 2 * k + 1}, 0xffff0000, v{xc + k}")
        for k in range(8):
            e(f"v_sub_f32 v{f + k}, v{f + k}, v{m}")
        for k in range(4):
            e(f"v_cvt_pk_bf16_f32 v{xc + k}, v{f + 2 * k}, v{f + 2 * k + 1}")
        for k in range(4):
            e(f"v_lshlrev_b32 v{f + 2 * k}, 16, v{xc + k}")
            e(f"v_and_b32 v{f + 2 * k + 1}, 0xffff0000, v{xc + k}")
        for k in range(8):
            e(f"v_mul_f32 v{f + k}, v{f + k}, v{var}")
        for k in range(4):
            e(f"v_cvt_pk_bf16_f32 v{xc + k}, v{f + 2 * k}, v{f + 2 * k + 1}")
        self.expand(xc, xop)

    def entry(self):
        e = self.e
        self.c("roles: waves 0..NS-1 stream K then V; wave NS does q/softmax exchanges; wave NS+1 does weight GEMVs")
        if self.prof or self.diag_hold or self.diag_dbg:
            e("s_memrealtime s[64:65]")
        e("s_cmp_ge_u32 s2, 256")
        e("s_cbranch_scc1 L_exit")
        e("s_load_dwordx16 s[16:31], s[0:1], 0")
        e("s_load_dwordx8 s[32:39], s[0:1], 64")
        e("v_lshrrev_b32 v1, 6, v0")
        e("v_and_b32 v0, 63, v0")
        e(f"v_readfirstlane_b32 s{S_WAVE}, v1")
        e(f"s_and_b32 s{S_X}, s2, 7")
        e(f"s_lshr_b32 s{S_C}, s2, 3")
        e("v_lshrrev_b32 v1, 3, v0")
        e("v_and_b32 v2, 7, v0")
        e(f"s_mul_i32 s40, s{S_C}, 43691")
        e("s_lshr_b32 s40, s40, 17")
        e("s_mul_i32 s41, s40, 3")
        e(f"s_sub_u32 s41, s{S_C}, s41")
        e(f"s_cmp_eq_u32 s{S_WAVE}, {self.NS}")
        e("s_cbranch_scc1 L_helperA")
        e(f"s_cmp_eq_u32 s{S_WAVE}, {self.NS + 1}")
        e("s_cbranch_scc1 L_helperB")

    def streamer(self):
        e = self.e
        NS, R, L = self.NS, self.R, self.L
        VOFF, VSC, VQ, VDUMP, VT = 3, 4, 5, 6, 8
        A = 14
        SC = 20
        Q = 20 + 8
        PN, PX = 52, 60
        RING = 64
        S_OFF, S_DELTA, S_B0, S_B1, S_IT, S_R = 44, 45, 46, 47, 48, 49
        offs = [(i // 3) * 3072 + (i % 3) * 128 for i in range(6)]
        cand = [j for j in range(R) if (j + L) % 6 == 5 and ((j + L + 1) // 6) % self.tpi == 0]
        assert len(cand) == 1
        self.c("streamer")
        e(f"v_mul_u32_u24 v{VOFF}, 384, v1")
        e(f"v_lshl_add_u32 v{VOFF}, v2, 4, v{VOFF}")
        tb = 4 * self.tpi
        e(f"s_mul_i32 s6, s{S_WAVE}, {8 * tb}")
        e(f"s_add_u32 s6, s6, {L_SC}")
        e(f"v_mul_u32_u24 v{VSC}, {tb}, v1")
        e(f"v_add_u32 v{VSC}, s6, v{VSC}")
        e(f"v_lshlrev_b32 v{VQ}, 4, v2")
        e(f"s_mul_i32 s6, s{S_WAVE}, {8 * 768}")
        e(f"s_add_u32 s6, s6, {L_DUMP}")
        e(f"v_mul_u32_u24 v{VDUMP}, 768, v1")
        e(f"v_lshl_add_u32 v{VDUMP}, v2, 5, v{VDUMP}")
        e(f"v_add_u32 v{VDUMP}, s6, v{VDUMP}")
        e(f"s_mul_i32 s{S_OFF}, s{S_X}, {HEAD}")
        e(f"s_mul_i32 s6, s{S_C}, {NS}")
        e(f"s_add_u32 s6, s6, s{S_WAVE}")
        e("s_mul_i32 s6, s6, 6144")
        e(f"s_add_u32 s{S_OFF}, s{S_OFF}, s6")
        e(f"s_lshl_b32 s7, s{S_WAVE}, 2")
        e(f"v_mov_b32 v7, s7")
        e(f"v_mov_b32 v{VT}, 0")
        e(f"ds_write_b32 v7, v{VT} offset:{L_FLS}")
        e("s_waitcnt lgkmcnt(0)")
        self.srd(8, P_K, KV_BYTES)
        e("s_barrier")

        def issue(p, boundary=False):
            r = RING + (p % R) * 4
            e(f"buffer_load_dwordx4 v[{r}:{r + 3}], v{VOFF}, s[8:11], s{S_OFF} offen offset:{offs[p % 6]} nt")
            if p % 6 == 5:
                if boundary:
                    e(f"s_add_u32 s{S_OFF}, s{S_OFF}, s{S_DELTA}")
                    e(f"s_mov_b32 s8, s{S_B0}")
                    e(f"s_mov_b32 s9, s{S_B1}")
                else:
                    e(f"s_add_u32 s{S_OFF}, s{S_OFF}, {self.step_bytes}")

        for p in range(L):
            if p >= self.cap0:
                e(f"s_waitcnt vmcnt({self.cap0 - 1})")
            issue(p)
        self.stamp(1)
        e(f"s_mov_b32 s{S_R}, 0")
        e(f"s_mov_b32 s{S_B0}, s{P_K}")
        e(f"s_mov_b32 s{S_B1}, s{P_K + 1}")
        e(f"s_mov_b32 s56, {self.step_bytes + 7 * HEAD}")

        e("L_kround:")
        e(f"s_add_u32 s50, s{S_R}, 1")
        self.wait_lds(L_FLQ, "s50", VT, sleep=0)
        for s in range(3):
            e(f"ds_read_b128 v[{Q + 4 * s}:{Q + 4 * s + 3}], v{VQ} offset:{L_Q + 128 * s}")
        e(f"v_add_u32 v{VQ}, 384, v{VQ}")
        if self.prof:
            e(f"s_cmp_lg_u32 s{S_R}, 0")
            e("s_cbranch_scc1 L_nostamp2")
            self.stamp(2)
            e("L_nostamp2:")
        e(f"s_mov_b32 s{S_IT}, {self.ipr}")
        e("s_waitcnt lgkmcnt(0)")
        e("L_kloop:")
        e(f"s_cmp_eq_u32 s{S_R}, 3")
        e(f"s_cselect_b32 s50, {hex((self.step_bytes - 25 * HEAD) & 0xffffffff)}, s56")
        e(f"s_cselect_b32 s51, 1, 0")
        e(f"s_cmp_eq_u32 s{S_IT}, 1")
        e(f"s_cselect_b32 s{S_DELTA}, s50, {self.step_bytes}")
        e(f"s_cmp_eq_u32 s{S_IT}, s51")
        e(f"s_cselect_b32 s{S_B0}, s{P_V}, s{S_B0}")
        e(f"s_cselect_b32 s{S_B1}, s{P_V + 1}, s{S_B1}")
        pend = []
        pos = [0]

        def main(s):
            e(s)
            pos[0] += 1
            if pend and pend[0][0] <= pos[0]:
                _, ins, gap = pend.pop(0)
                e(ins)
                pos[0] += 1
                if pend:
                    pend[0] = (max(pend[0][0], pos[0] + gap), pend[0][1], pend[0][2])

        for j in range(R):
            tile, jj = divmod(j, 6)
            kg, s = divmod(jj, 3)
            a = A + 2 * (tile % 2) + kg
            main(f"s_waitcnt vmcnt({self.cap - 1})")
            n0 = len(self.o)
            issue(j + L, boundary=(j == cand[0]))
            pos[0] += len(self.o) - n0
            if s == 0:
                main(f"v_mov_b32 v{a}, 0")
            r = RING + j * 4
            for k in range(4):
                main(f"v_dot2c_f32_bf16 v{a}, v{r + k}, v{Q + 4 * s + k}")
            if s == 2:
                first = pos[0] + 3
                pend.append((first, f"v_add_f32_dpp v{a}, v{a}, v{a} {X1}", 2))
                pend.append((0, f"v_add_f32_dpp v{a}, v{a}, v{a} {X2}", 2))
                pend.append((0, f"v_add_f32_dpp v{a}, v{a}, v{a} {HM}", 0))
                if kg == 1:
                    pend.append((0, f"v_cvt_pk_bf16_f32 v{SC + tile}, v{a - 1}, v{a}", 0))
        while pend:
            main("s_nop 0")
        for q4 in range(self.tpi // 4):
            e(f"ds_write_b128 v{VSC}, v[{SC + 4 * q4}:{SC + 4 * q4 + 3}] offset:{16 * q4}")
        e(f"v_add_u32 v{VSC}, {NS * 8 * tb}, v{VSC}")
        e(f"s_sub_u32 s{S_IT}, s{S_IT}, 1")
        e(f"s_cmp_lg_u32 s{S_IT}, 0")
        e("s_cbranch_scc1 L_kloop")
        e(f"s_add_u32 s{S_R}, s{S_R}, 1")
        e("s_waitcnt lgkmcnt(0)")
        e(f"v_mov_b32 v{VT}, s{S_R}")
        e(f"ds_write_b32 v7, v{VT} offset:{L_FLS}")
        e(f"s_cmp_lt_u32 s{S_R}, 4")
        e("s_cbranch_scc1 L_kround")
        self.stamp(3)

        e(f"v_subrev_u32 v{VSC}, 8192, v{VSC}")
        self.wait_lds(L_FLP, 1, VT, sleep=0)
        for q4 in range(self.tpi // 4):
            e(f"ds_read_b128 v[{PN + 4 * q4}:{PN + 4 * q4 + 3}], v{VSC} offset:{16 * q4}")
        e(f"v_add_u32 v{VSC}, {NS * 8 * tb}, v{VSC}")
        e(f"s_mov_b32 s{S_R}, 0")

        def vbody(cap, last=False):
            e("s_waitcnt lgkmcnt(0)")
            for j in range(R):
                tile, jj = divmod(j, 6)
                kg, s = divmod(jj, 3)
                if last and j + L >= R:
                    e(f"s_waitcnt vmcnt({R - 1 - j})")
                else:
                    e(f"s_waitcnt vmcnt({cap - 1})")
                    issue(j + L, boundary=(j == cand[0]))
                if jj == 0:
                    e(f"v_and_b32 v{PX}, 0xffff, v{PN + tile}")
                    e(f"v_lshlrev_b32 v{PX + 1}, 16, v{PN + tile}")
                    e(f"v_lshrrev_b32 v{PX + 2}, 16, v{PN + tile}")
                    e(f"v_and_b32 v{PX + 3}, 0xffff0000, v{PN + tile}")
                    if tile == self.tpi - 1 and not last:
                        for q4 in range(self.tpi // 4):
                            e(f"ds_read_b128 v[{PN + 4 * q4}:{PN + 4 * q4 + 3}], v{VSC} offset:{16 * q4}")
                        e(f"v_add_u32 v{VSC}, {NS * 8 * tb}, v{VSC}")
                self.gemv_row(RING + 4 * j, PX + 2 * kg, Q + 8 * s)

        def dump():
            e("s_nop 2")
            for s in range(3):
                for hlf in range(2):
                    r = Q + 8 * s + 4 * hlf
                    e(f"ds_write_b128 v{VDUMP}, v[{r}:{r + 3}] offset:{256 * s + 16 * hlf}")
            e(f"v_add_u32 v{VDUMP}, {self.dump_bytes}, v{VDUMP}")
            e(f"s_add_u32 s50, s{S_R}, 5")
            e("s_waitcnt lgkmcnt(0)")
            e(f"v_mov_b32 v{VT}, s50")
            e(f"ds_write_b32 v7, v{VT} offset:{L_FLS}")

        e("L_vround:")
        e(f"s_add_u32 s50, s{S_R}, 2")
        e("s_min_u32 s50, s50, 4")
        self.wait_lds(L_FLP, "s50", VT, sleep=0)
        for k in range(24):
            e(f"v_mov_b32 v{Q + k}, 0")
        e(f"s_cmp_eq_u32 s{S_R}, 3")
        e(f"s_cselect_b32 s52, {self.tail_iters}, 0")
        e(f"s_mov_b32 s{S_IT}, {self.ipr}")
        e("L_vloop:")
        e(f"s_cmp_eq_u32 s{S_IT}, 1")
        e(f"s_cselect_b32 s{S_DELTA}, s56, {self.step_bytes}")
        vbody(self.cap)
        e(f"s_sub_u32 s{S_IT}, s{S_IT}, 1")
        e(f"s_cmp_lg_u32 s{S_IT}, s52")
        e("s_cbranch_scc1 L_vloop")
        e(f"s_cmp_eq_u32 s{S_R}, 3")
        e("s_cbranch_scc1 L_vtail")
        dump()
        e(f"s_add_u32 s{S_R}, s{S_R}, 1")
        e("s_branch L_vround")
        e("L_vtail:")
        e(f"s_mov_b32 s{S_DELTA}, {self.step_bytes}")
        if self.tail_iters > 1:
            e("L_vtloop:")
            vbody(self.cap_tail)
            e(f"s_sub_u32 s{S_IT}, s{S_IT}, 1")
            e(f"s_cmp_lg_u32 s{S_IT}, 1")
            e("s_cbranch_scc1 L_vtloop")
        vbody(self.cap_tail, last=True)
        self.stamp(4)
        dump()
        self.prof_store(5)
        e("s_endpgm")
        return RING + 4 * R

    def helperA(self):
        e = self.e
        NS = self.NS
        S_RB, S_CB = 40, 41
        SX, SW, SWS, SDB = 8, 12, 44, 48
        XA, XB, XC, F, XOP = 8, 12, 16, 20, 36
        W, ACC, RES, T = 52, 84, 92, 96
        VT = 98
        VP, VL16, VOP = 4, 5, 6
        SCR = 108
        e("L_helperA:")
        e("s_setprio 3")
        e("v_mul_u32_u24 v7, 0x18000, v1")
        e("v_lshl_add_u32 v7, v2, 4, v7")
        e(f"s_mul_i32 s42, s{S_RB}, {64 * 12288}")
        e(f"s_mul_i32 s43, s{S_X}, 384")
        e("s_add_u32 s42, s42, s43")
        e(f"s_lshl_b32 s43, s{S_CB}, 7")
        e("s_add_u32 s42, s42, s43")
        e("s_waitcnt lgkmcnt(0)")
        self.srd(SX, P_X, 1280)
        self.srd(SW, P_WQ, 640 * 12288)
        self.ln_loads(SX, 0, 1, XA, XB, XC, F, S_RB)
        for i in range(8):
            e(f"buffer_load_dwordx4 v[{W + 4 * i}:{W + 4 * i + 3}], v7, s[{SW}:{SW + 3}], s42 offen nt")
            if i < 7:
                e("s_add_u32 s42, s42, 12288")
        e(f"s_mov_b32 s6, {WS_EPOCH}")
        e(f"s_load_dword s{S_TAG}, s[{P_WS}:{P_WS + 1}], s6")
        e("s_barrier")
        self.srd(SWS, P_WS, WS_SIZE)
        e(f"v_lshrrev_b32 v{VP}, 4, v0")
        e(f"v_lshlrev_b32 v{VP}, 7, v{VP}")
        e(f"v_lshl_add_u32 v{VP}, v2, 4, v{VP}")
        e(f"v_lshlrev_b32 v{VL16}, 4, v0")
        e(f"v_lshrrev_b32 v{VOP}, 4, v0")
        e(f"v_lshlrev_b32 v{VOP}, 13, v{VOP}")
        e(f"v_and_b32 v{T}, 15, v0")
        e(f"v_lshl_add_u32 v{VOP}, v{T}, 4, v{VOP}")
        VQ2, VQL = 104, 105
        e(f"v_and_b32 v{VQ2}, 31, v0")
        e(f"v_lshlrev_b32 v{VQ2}, 4, v{VQ2}")
        e(f"v_lshrrev_b32 v{T}, 5, v0")
        e(f"v_mul_u32_u24 v{T + 1}, {PA_ROW}, v{T}")
        e(f"v_add_u32 v{VQ2}, v{VQ2}, v{T + 1}")
        e(f"v_lshlrev_b32 v{VQL}, 7, v{T}")
        e(f"v_lshl_add_u32 v{VQL}, v2, 4, v{VQL}")
        e(f"v_and_b32 v{T}, 3, v1")
        e(f"v_lshl_add_u32 v{VQL}, v{T}, 2, v{VQL}")
        e(f"s_mul_i32 s53, s{S_X}, {PA_X}")
        for k in range(8):
            e(f"v_mov_b32 v{ACC + k}, 0")
        e("s_waitcnt vmcnt(8)")
        self.stamp(1)
        self.ln_compute(XA, XB, XC, F, XOP)
        for i in range(8):
            e(f"s_waitcnt vmcnt({7 - i})")
            self.gemv_row(W + 4 * i, XOP + 2 * i, ACC)
        self.reduce_g2(ACC, RES)
        e(f"s_mul_i32 s6, s{S_RB}, {PA_ROW}")
        e("s_add_u32 s6, s6, s53")
        e(f"s_lshl_b32 s7, s{S_CB}, 9")
        e("s_add_u32 s6, s6, s7")
        e("s_waitcnt lgkmcnt(0)")
        e(f"s_add_u32 s{S_TAG}, s{S_TAG}, {hex(NONCE_STEP)}")
        self.tag_regs(RES)
        e(f"s_cmp_ge_u32 s{S_C}, 30")
        e("s_cbranch_scc1 L_ha_noq")
        self.exec_tagged()
        e(f"buffer_store_dwordx4 v[{RES}:{RES + 3}], v{VP}, s[{SWS}:{SWS + 3}], s6 offen sc1")
        e("s_mov_b64 exec, -1")
        e("L_ha_noq:")
        self.stamp(2)
        self.set_lds(L_TAG, f"s{S_TAG}", VT)
        self.set_lds(L_FLN, 1, VT)
        e("s_waitcnt vmcnt(0)")
        self.stamp(3)
        GQ = 8

        def gather_q(r, sleep):
            e(f"s_add_u32 s6, s53, {r * PA_JOB}")
            for k in range(1, 5):
                e(f"s_add_u32 s{53 + k}, s6, {2 * PA_ROW * k}")
            sreg = lambda rb: "s6" if rb < 2 else f"s{53 + rb // 2}"
            loads = [f"buffer_load_dwordx4 v[{GQ + 4 * rb}:{GQ + 4 * rb + 3}], v{VL16}, s[{SWS}:{SWS + 3}], "
                     f"{sreg(rb)} offen offset:{PA_ROW * (rb % 2)} sc1" for rb in range(10)]
            loads += [f"buffer_load_dwordx4 v[{GQ + 40 + 4 * k}:{GQ + 43 + 4 * k}], v{VQ2}, s[{SWS}:{SWS + 3}], "
                      f"{sreg(2 * k)} offen offset:1024 sc1" for k in range(5)]
            self.gather_tagged(loads, GQ, 15, VT, sleep=sleep)
            if r == 0:
                self.stamp(4)
            for k in range(1, 5):
                for j in (0, 2):
                    e(f"v_add_f32 v{GQ + 40 + j}, v{GQ + 40 + j}, v{GQ + 40 + 4 * k + j}")
            for j in (0, 2):
                e(f"v_mov_b32 v{GQ + 41 + j}, v{GQ + 40 + j}")
            for rb in range(1, 10):
                for j in (0, 2):
                    e(f"v_add_f32 v{GQ + j}, v{GQ + j}, v{GQ + 4 * rb + j}")
            for j in (0, 2):
                e(f"v_permlane32_swap_b32 v{GQ + 40 + j}, v{GQ + 41 + j}")
            e(f"v_cvt_pk_bf16_f32 v{GQ}, v{GQ}, v{GQ + 2}")
            for j in (0, 2):
                e(f"v_add_f32 v{GQ + 40 + j}, v{GQ + 40 + j}, v{GQ + 41 + j}")
            e(f"ds_write_b32 v{VQL}, v{GQ} offset:{L_Q + 384 * r}")
            e(f"v_cvt_pk_bf16_f32 v{GQ + 40}, v{GQ + 40}, v{GQ + 42}")
            e("s_mov_b32 exec_hi, 0")
            e(f"ds_write_b32 v{VQL}, v{GQ + 40} offset:{L_Q + 384 * r + 256}")
            e("s_mov_b64 exec, -1")
            self.set_lds(L_FLQ, r + 1, VT)

        gather_q(0, 2)
        self.stamp(5)
        e("s_setprio 0")
        self.wait_lds(L_FLC, 1, VT, sleep=8)
        for r in (1, 2, 3):
            gather_q(r, 32)
        self.stamp(6)

        M, LS = 8, 9
        U = 12
        VS32 = 10

        def unpack(r):
            for k in range(8):
                e(f"v_lshlrev_b32 v{U + 2 * k}, 16, v{SCR + 8 * r + k}")
                e(f"v_and_b32 v{U + 2 * k + 1}, 0xffff0000, v{SCR + 8 * r + k}")

        def local_stats(r):
            self.wait_lds(L_FLS, r + 1, VT, n=NS, sleep=8)
            e(f"v_lshlrev_b32 v{VS32}, 5, v0")
            b = SCR + 8 * r
            e(f"ds_read_b128 v[{b}:{b + 3}], v{VS32} offset:{L_SC + 2048 * r}")
            e(f"ds_read_b128 v[{b + 4}:{b + 7}], v{VS32} offset:{L_SC + 2048 * r + 16}")
            e("s_waitcnt lgkmcnt(0)")
            unpack(r)
            for k in range(16):
                e(f"v_mul_f32 v{U + k}, {hex(SCALE)}, v{U + k}")
            for k in range(8):
                e(f"v_cvt_pk_bf16_f32 v{b + k}, v{U + 2 * k}, v{U + 2 * k + 1}")
            unpack(r)
            e(f"v_max_f32 v{M}, v{U}, v{U + 1}")
            for k in range(2, 16, 2):
                e(f"v_max3_f32 v{M}, v{M}, v{U + k}, v{U + k + 1}")
            self.allreduce("v_max_f32", M, T)
            for k in range(16):
                e(f"v_sub_f32 v{U + k}, v{U + k}, v{M}")
            for k in range(16):
                e(f"v_mul_f32 v{U + k}, {hex(LOG2E)}, v{U + k}")
            for k in range(16):
                e(f"v_exp_f32 v{U + k}, v{U + k}")
            e("s_nop 0")
            e(f"v_add_f32 v{LS}, v{U}, v{U + 1}")
            for k in range(2, 16):
                e(f"v_add_f32 v{LS}, v{LS}, v{U + k}")
            self.allreduce("v_add_f32", LS, T)
            e(f"v_mov_b32 v{U}, v{M}")
            e(f"v_mov_b32 v{U + 2}, v{LS}")
            self.tag_regs(U)
            e(f"s_lshl_b32 s6, s{S_X}, 11")
            e(f"s_lshl_b32 s7, s{S_C}, 4")
            e("s_add_u32 s6, s6, s7")
            e(f"s_add_u32 s6, s6, {WS_ST + 512 * r}")
            e(f"v_mov_b32 v{T}, 0")
            e("s_mov_b64 exec, 1")
            e(f"buffer_store_dwordx4 v[{U}:{U + 3}], v{T}, s[{SWS}:{SWS + 3}], s6 offen sc1")
            e("s_mov_b64 exec, -1")
            e("s_nop 1")

        def finalize_p(r):
            G = 28
            e(f"v_and_b32 v{T}, 31, v0")
            e(f"v_lshlrev_b32 v{T}, 4, v{T}")
            e(f"s_lshl_b32 s6, s{S_X}, 11")
            e(f"s_add_u32 s6, s6, {WS_ST + 512 * r}")
            self.gather_tagged([f"buffer_load_dwordx4 v[{G}:{G + 3}], v{T}, s[{SWS}:{SWS + 3}], s6 offen sc1"],
                               G, 1, VT, sleep=32)
            e(f"v_mov_b32 v{M}, v{G}")
            self.allreduce("v_max_f32", M, T)
            e(f"v_sub_f32 v{G}, v{G}, v{M}")
            e(f"v_mul_f32 v{G}, {hex(LOG2E)}, v{G}")
            e(f"v_exp_f32 v{G}, v{G}")
            e("s_nop 0")
            e(f"v_mul_f32 v{LS}, v{G}, v{G + 2}")
            self.allreduce("v_add_f32", LS, T)
            e(f"v_mul_f32 v{LS}, 0.5, v{LS}")
            e(f"v_rcp_f32 v{LS}, v{LS}")
            unpack(r)
            for k in range(16):
                e(f"v_sub_f32 v{U + k}, v{U + k}, v{M}")
            for k in range(16):
                e(f"v_mul_f32 v{U + k}, {hex(LOG2E)}, v{U + k}")
            for k in range(16):
                e(f"v_exp_f32 v{U + k}, v{U + k}")
            e("s_nop 0")
            for k in range(16):
                e(f"v_mul_f32 v{U + k}, v{U + k}, v{LS}")
            b = SCR + 8 * r
            for k in range(8):
                e(f"v_cvt_pk_bf16_f32 v{b + k}, v{U + 2 * k}, v{U + 2 * k + 1}")
            e(f"ds_write_b128 v{VS32}, v[{b}:{b + 3}] offset:{L_SC + 2048 * r}")
            e(f"ds_write_b128 v{VS32}, v[{b + 4}:{b + 7}] offset:{L_SC + 2048 * r + 16}")
            self.set_lds(L_FLP, r + 1, VT)

        def publish_op(r):
            self.wait_lds(L_FLS, r + 5, VT, n=NS, sleep=(1 if r == 3 else 8))
            if r == 3:
                self.stamp(7)
            e("s_mov_b32 exec_lo, -1")
            e("s_mov_b32 exec_hi, 0xffff")
            D = 28
            rows = 8 * NS
            for blk in range(0, rows, 16):
                for i in range(16):
                    d = D + 4 * (i + 1)
                    e(f"ds_read_b128 v[{d}:{d + 3}], v{VL16} offset:{L_DUMP + r * self.dump_bytes + 768 * (blk + i)}")
                    if i == 7:
                        e("s_waitcnt lgkmcnt(7)")
                for i in range(16):
                    d = D + 4 * (i + 1)
                    e(f"s_waitcnt lgkmcnt({min(15 - i, 15)})")
                    for k in range(4):
                        if blk == 0 and i == 0:
                            e(f"v_mov_b32 v{D + k}, v{d + k}")
                        else:
                            e(f"v_add_f32 v{D + k}, v{D + k}, v{d + k}")
            self.sanitize(D, 4)
            e(f"s_mul_i32 s6, s{S_X}, {4 * 24576}")
            e(f"s_lshl_b32 s7, s{S_C}, 8")
            e("s_add_u32 s6, s6, s7")
            e(f"s_add_u32 s6, s6, {WS_OP + 24576 * r}")
            e(f"buffer_store_dwordx4 v[{D}:{D + 3}], v{VOP}, s[{SWS}:{SWS + 3}], s6 offen sc1")
            e("s_mov_b64 exec, -1")

        assert NS == 2
        for r in range(4):
            local_stats(r)
            if r >= 1:
                finalize_p(r - 1)
        publish_op(0)
        finalize_p(3)
        for r in (1, 2, 3):
            publish_op(r)
        self.stamp(8)
        self.prof_store(9)
        e("s_endpgm")
        return SCR + 32

    def helperB(self):
        e = self.e
        NS = self.NS
        S_RB, S_CB = 40, 41
        SX, SA, SWS, SDB = 8, 12, 44, 48
        VT = 4
        XA, XB, XC, F, XOP = 12, 16, 20, 24, 40
        ACC, T = 56, 64
        RESP = 68
        VA = [88, 89, 90, 91]
        VP, VG, VPT = 92, 93, 94
        W = 96
        e("L_helperB:")
        e(f"v_mul_u32_u24 v{VA[0]}, 0x18000, v1")
        e(f"v_lshl_add_u32 v{VA[0]}, v2, 4, v{VA[0]}")
        e(f"v_mul_u32_u24 v{VA[1]}, 0x6000, v1")
        e(f"v_lshl_add_u32 v{VA[1]}, v2, 4, v{VA[1]}")
        e(f"v_mul_u32_u24 v{VA[2]}, 0x2800, v1")
        e(f"v_lshl_add_u32 v{VA[2]}, v2, 4, v{VA[2]}")
        e(f"v_lshrrev_b32 v{VP}, 5, v0")
        e(f"v_lshlrev_b32 v{VP}, 7, v{VP}")
        e(f"v_lshl_add_u32 v{VP}, v2, 4, v{VP}")
        e(f"v_lshrrev_b32 v{VPT}, 4, v0")
        e(f"v_lshlrev_b32 v{VPT}, 7, v{VPT}")
        e(f"v_lshl_add_u32 v{VPT}, v2, 4, v{VPT}")
        for k in range(4):
            e(f"v_mov_b32 v{VT + k}, 0")
        e(f"ds_write_b128 v{VT}, v[{VT}:{VT + 3}] offset:{L_FLQ}")
        e("s_waitcnt lgkmcnt(0)")
        self.srd(SX, P_X, 1280)
        self.srd(SWS, P_WS, WS_SIZE)
        self.srd(SA, P_WQ, 640 * 12288)
        e("s_barrier")
        e(f"s_mul_i32 s53, s{S_X}, {PA_X}")
        e(f"s_cmp_ge_u32 s{S_C}, 30")
        e("s_cbranch_scc1 L_hb_clear")
        self.ln_loads(SX, 0, 1, XA, XB, XC, F, S_RB)

        def setup_job(n):
            if n < 3:
                e(f"s_mul_i32 s42, s{S_RB}, {64 * 12288}")
                e(f"s_mul_i32 s43, s{S_X}, 384")
                e("s_add_u32 s42, s42, s43")
                e(f"s_lshl_b32 s43, s{S_CB}, 7")
                e("s_add_u32 s42, s42, s43")
                e(f"s_add_u32 s42, s42, {8 * 384 * (n + 1)}")
                return VA[0], 12288
            if n < 5:
                self.srd(SA, P_G if n == 3 else P_U, 640 * 3072)
                e(f"s_mul_i32 s42, s{S_RB}, {64 * 3072}")
                e(f"s_mul_i32 s43, s{S_X}, 384")
                e("s_add_u32 s42, s42, s43")
                e(f"s_lshl_b32 s43, s{S_CB}, 7")
                e("s_add_u32 s42, s42, s43")
                return VA[1], 3072
            if n == 5:
                self.srd(SA, P_WO, 6144 * 1280)
            if n == 9:
                self.srd(SA, P_D, 1536 * 1280)
            e(f"s_mul_i32 s42, s{S_X}, {192 * 1280}")
            e(f"s_mul_i32 s43, s{S_CB}, {64 * 1280}")
            e("s_add_u32 s42, s42, s43")
            e(f"s_lshl_b32 s43, s{S_RB}, 7")
            e("s_add_u32 s42, s42, s43")
            if 5 < n < 9:
                e(f"s_add_u32 s42, s42, {8 * 192 * 1280 * (n - 5)}")
            return VA[2], 1280

        cap = self.capH
        LH = max(cap, 16)
        for i in range(80):
            if i % 8 == 0:
                va, stride = setup_job(i // 8)
            if i >= cap - 3:
                e(f"s_waitcnt vmcnt({cap - 1})")
            r = W + 4 * (i % 40)
            e(f"buffer_load_dwordx4 v[{r}:{r + 3}], v{va}, s[{SA}:{SA + 3}], s42 offen nt")
            if i % 8 < 7:
                e(f"s_add_u32 s42, s42, {stride}")
            if i == LH - 1:
                self.ln_compute(XA, XB, XC, F, XOP)
            j = i - LH
            if 0 <= j < 40:
                if j % 8 == 0:
                    for k in range(8):
                        e(f"v_mov_b32 v{ACC + k}, 0")
                self.gemv_row(W + 4 * j, XOP + 2 * (j % 8), ACC)
                if j % 8 == 7:
                    self.reduce_g2(ACC, RESP + 4 * (j // 8))
        self.stamp(1)
        e("L_hb_clear:")
        self.wait_lds(L_FLN, 1, VT, sleep=2)
        e(f"ds_read_b32 v{VT}, v{VT + 4} offset:{L_TAG}")
        e("s_waitcnt lgkmcnt(0)")
        e(f"v_readfirstlane_b32 s{S_TAG}, v{VT}")
        for k in range(4):
            e(f"v_mov_b32 v{T + k}, -1")
        e(f"s_cmp_ge_u32 s{S_C}, 30")
        e("s_cbranch_scc1 L_hb_clear2")
        for n in range(5):
            self.tag_regs(RESP + 4 * n)
        e(f"s_mul_i32 s6, s{S_RB}, {PA_ROW}")
        e("s_add_u32 s6, s6, s53")
        e(f"s_lshl_b32 s7, s{S_CB}, 9")
        e("s_add_u32 s6, s6, s7")
        self.exec_tagged()
        for n in range(5):
            e(f"s_add_u32 s6, s6, {PA_JOB}")
            e(f"buffer_store_dwordx4 v[{RESP + 4 * n}:{RESP + 4 * n + 3}], v{VPT}, s[{SWS}:{SWS + 3}], s6 offen sc1")
        e(f"s_mul_i32 s54, s{S_RB}, 24")
        e(f"s_mul_i32 s7, s{S_X}, 3")
        e("s_add_u32 s54, s54, s7")
        e(f"s_add_u32 s54, s54, s{S_CB}")
        e("s_lshl_b32 s55, s54, 9")
        e("s_lshl_b32 s54, s54, 8")
        e(f"s_add_u32 s55, s55, {WS_YB}")
        e(f"s_add_u32 s54, s54, {WS_YA}")
        e("s_mov_b32 exec_lo, 0xff")
        e("s_mov_b32 exec_hi, 0xff")
        e(f"buffer_store_dwordx4 v[{T}:{T + 3}], v{VP}, s[{SWS}:{SWS + 3}], s54 offen sc1")
        e("s_mov_b64 exec, -1")
        e("L_hb_clear2:")
        self.c("mark this workgroup's later hand-off slots empty")
        e(f"v_lshrrev_b32 v{VG}, 4, v0")
        e(f"v_lshlrev_b32 v{VG}, 13, v{VG}")
        e(f"v_and_b32 v{VT}, 15, v0")
        e(f"v_lshl_add_u32 v{VG}, v{VT}, 4, v{VG}")
        e(f"s_mul_i32 s6, s{S_X}, {4 * 24576}")
        e(f"s_lshl_b32 s7, s{S_C}, 8")
        e("s_add_u32 s6, s6, s7")
        e(f"s_add_u32 s6, s6, {WS_OP}")
        e("s_mov_b32 exec_lo, -1")
        e("s_mov_b32 exec_hi, 0xffff")
        for r in range(4):
            e(f"buffer_store_dwordx4 v[{T}:{T + 3}], v{VG}, s[{SWS}:{SWS + 3}], s6 offen sc1")
            if r < 3:
                e("s_add_u32 s6, s6, 24576")
        e("s_mov_b64 exec, -1")
        e("s_waitcnt vmcnt(0)")
        self.set_lds(L_FLC, 1, VT)
        self.stamp(2)
        e(f"s_cmp_ge_u32 s{S_C}, 30")
        e("s_cbranch_scc1 L_finisher")

        self.c("ffn hidden slice and down projection")
        self.wait_lds(L_FLQ, 4, VT, sleep=8)
        G0 = 12
        GA, UA = 44, 52
        e(f"v_mul_u32_u24 v{VA[0]}, {PA_ROW}, v2")
        e(f"v_lshl_add_u32 v{VA[0]}, v1, 4, v{VA[0]}")
        e(f"v_add_u32 v{VA[1]}, {8 * PA_ROW}, v{VA[0]}")
        e(f"v_mov_b32 v{VA[2]}, 0x40000000")
        e("v_cmp_gt_u32 s[58:59], 2, v2")
        e("s_nop 1")
        e(f"v_cndmask_b32 v{VA[1]}, v{VA[2]}, v{VA[1]}, s[58:59]")
        for m in range(2):
            e(f"s_lshl_b32 s7, s{S_CB}, 9")
            e("s_add_u32 s6, s53, s7")
            e(f"s_add_u32 s6, s6, {(4 + m) * PA_JOB}")
            loads = [f"buffer_load_dwordx4 v[{G0 + 16 * h + 4 * q}:{G0 + 16 * h + 4 * q + 3}], v{VA[h]}, "
                     f"s[{SWS}:{SWS + 3}], s6 offen offset:{128 * q} sc1" for h in range(2) for q in range(4)]
            self.gather_tagged(loads, G0, 8, VT, sleep=32, skip=((4, 5, 6, 7), 58))
            for k in range(8):
                e(f"v_add_f32 v{GA + 8 * m + k}, v{G0 + 2 * k}, v{G0 + 16 + 2 * k}")
        self.reduce_sub(GA, 16)
        for k in range(16):
            self.round_bf16(GA + k)
        Z = G0 + 16
        c2 = -2.0 * 0.7978845608028654 * 1.4426950408889634
        e(f"s_mov_b32 s6, {hex(f2u(0.044715))}")
        for k in range(8):
            e(f"v_mul_f32 v{Z + k}, v{GA + k}, v{GA + k}")
        for k in range(8):
            e(f"v_mul_f32 v{Z + k}, v{Z + k}, v{GA + k}")
        for k in range(8):
            e(f"v_fma_f32 v{Z + k}, v{Z + k}, s6, v{GA + k}")
        for k in range(8):
            e(f"v_mul_f32 v{Z + k}, {hex(f2u(c2))}, v{Z + k}")
        for k in range(8):
            e(f"v_exp_f32 v{Z + k}, v{Z + k}")
        for k in range(8):
            e(f"v_add_f32 v{Z + k}, 1.0, v{Z + k}")
        for k in range(8):
            e(f"v_rcp_f32 v{Z + k}, v{Z + k}")
        for k in range(8):
            e(f"v_mul_f32 v{Z + k}, v{Z + k}, v{GA + k}")
        for k in range(8):
            self.round_bf16(Z + k)
        for k in range(8):
            e(f"v_mul_f32 v{Z + k}, v{Z + k}, v{UA + k}")
        for k in range(4):
            e(f"v_cvt_pk_bf16_f32 v{G0 + k}, v{Z + 2 * k}, v{Z + 2 * k + 1}")
        XO = 44
        self.expand(G0, XO)
        A2 = 60
        for k in range(8):
            e(f"v_mov_b32 v{A2 + k}, 0")
        for i in range(8):
            self.gemv_row(W + 4 * (32 + i), XO + 2 * i, A2)
        self.reduce_g2(A2, RESP)
        self.tag_regs(RESP)
        self.exec_tagged()
        e(f"buffer_store_dwordx4 v[{RESP}:{RESP + 3}], v{VPT}, s[{SWS}:{SWS + 3}], s55 offen sc1")
        e("s_mov_b64 exec, -1")
        self.stamp(3)

        self.c("attention output slices times wo")
        YA = 76
        for k in range(8):
            e(f"v_mov_b32 v{YA + k}, 0")
        e(f"v_lshlrev_b32 v{VG}, 8, v2")
        e(f"v_lshl_add_u32 v{VG}, v1, 5, v{VG}")
        for r in range(4):
            if r < 2:
                self.wait_lds(L_FLS, r + 6, VT, n=NS, sleep=8)
            elif r == 3:
                self.wait_lds(L_FLS, 8, VT, n=NS, sleep=1)
                self.stamp(4)
            e(f"s_mul_i32 s6, s{S_X}, {4 * 24576}")
            e(f"s_lshl_b32 s7, s{S_CB}, 13")
            e("s_add_u32 s6, s6, s7")
            e(f"s_add_u32 s6, s6, {WS_OP + 24576 * r}")
            e("s_add_u32 s7, s6, 4096")
            loads = []
            for j in range(4):
                for q in range(2):
                    d = G0 + 8 * j + 4 * q
                    loads.append(f"buffer_load_dwordx4 v[{d}:{d + 3}], v{VG}, s[{SWS}:{SWS + 3}], s{6 + j // 2} "
                                 f"offen offset:{2048 * (j % 2) + 16 * q} sc1")
            self.gather_valid(loads, G0, 32, VT, sleep=(0 if r == 3 else 32))
            if r == 3:
                self.stamp(5)
            for j in range(1, 4):
                for k in range(8):
                    e(f"v_add_f32 v{G0 + k}, v{G0 + k}, v{G0 + 8 * j + k}")
            self.reduce_sub(G0, 8)
            for k in range(4):
                e(f"v_cvt_pk_bf16_f32 v{G0 + 8 + k}, v{G0 + 2 * k}, v{G0 + 2 * k + 1}")
            self.expand(G0 + 8, XO)
            for i in range(8):
                self.gemv_row(W + 4 * (8 * r + i), XO + 2 * i, YA)
        self.reduce_g(YA, RESP, RESP + 4)
        self.sanitize(RESP, 4)
        e("s_mov_b32 exec_lo, 0xff")
        e("s_mov_b32 exec_hi, 0xff")
        e(f"buffer_store_dwordx4 v[{RESP}:{RESP + 3}], v{VP}, s[{SWS}:{SWS + 3}], s54 offen sc1")
        self.stamp(6)
        self.prof_store(7)
        e("s_endpgm")

        self.c("finisher: sums the projection partials of one 64-column block and writes the output")
        e("L_finisher:")
        e(f"s_sub_u32 s56, s{S_C}, 30")
        e("s_lshl_b32 s56, s56, 3")
        e(f"s_add_u32 s56, s56, s{S_X}")
        e("s_cmp_ge_u32 s56, 10")
        e("s_cbranch_scc1 L_exit")
        self.wait_lds(L_FLS, 2, VT, n=NS, sleep=8)
        e(f"v_lshlrev_b32 v{VA[1]}, 4, v0")
        e(f"v_and_b32 v{VA[3]}, 1, v1")
        e(f"v_lshlrev_b32 v{VA[2]}, 4, v2")
        e(f"v_lshl_add_u32 v{VA[0]}, v{VA[3]}, 8, v{VA[2]}")
        e(f"v_lshl_add_u32 v{VA[2]}, v{VA[3]}, 3, v{VA[2]}")
        e(f"v_lshrrev_b32 v{VA[3]}, 4, v0")
        e(f"v_lshl_add_u32 v{VA[0]}, v{VA[3]}, 9, v{VA[0]}")
        XV, BV = 64, 72
        e("s_lshl_b32 s57, s56, 7")
        e(f"buffer_load_dwordx2 v[{XV}:{XV + 1}], v{VA[2]}, s[{SX}:{SX + 3}], s57 offen")

        def finish_y():
            for sw in ("v_permlane16_swap_b32", "v_permlane32_swap_b32"):
                for k in range(4):
                    e(f"v_mov_b32 v{G0 + 4 + k}, v{G0 + k}")
                e("s_nop 0")
                for k in range(4):
                    e(f"{sw} v{G0 + k}, v{G0 + 4 + k}")
                e("s_nop 0")
                for k in range(4):
                    e(f"v_add_f32 v{G0 + k}, v{G0 + k}, v{G0 + 4 + k}")
            for k in range(4):
                self.round_bf16(G0 + k)

        def gather_y(base, sleep):
            e("s_mul_i32 s6, s56, 6144")
            e(f"s_add_u32 s6, s6, {base}")
            e("s_add_u32 s7, s6, 4096")
            loads = [f"buffer_load_dwordx4 v[{G0 + 4 * i}:{G0 + 4 * i + 3}], v{VA[1]}, s[{SWS}:{SWS + 3}], "
                     f"s{6 + i // 4} offen offset:{1024 * (i % 4)} sc1" for i in range(6)]
            self.gather_valid(loads, G0, 24, VT, sleep=sleep)
            for i in range(1, 6):
                for k in range(4):
                    e(f"v_add_f32 v{G0 + k}, v{G0 + k}, v{G0 + 4 * i + k}")
            finish_y()

        e("s_mul_i32 s6, s56, 12288")
        e(f"s_add_u32 s6, s6, {WS_YB}")
        e("s_add_u32 s7, s6, 4096")
        e("s_add_u32 s58, s6, 8192")
        loads = [f"buffer_load_dwordx4 v[{G0 + 8 * i + 4 * q}:{G0 + 8 * i + 4 * q + 3}], v{VA[0]}, s[{SWS}:{SWS + 3}], "
                 f"s{(6, 7, 58)[i // 2]} offen offset:{2048 * (i % 2) + 128 * q} sc1" for i in range(6) for q in range(2)]
        self.gather_tagged(loads, G0, 12, VT, sleep=32)
        for i in range(1, 6):
            for k in range(4):
                e(f"v_add_f32 v{G0 + 2 * k}, v{G0 + 2 * k}, v{G0 + 8 * i + 2 * k}")
        for k in range(1, 4):
            e(f"v_mov_b32 v{G0 + k}, v{G0 + 2 * k}")
        finish_y()
        for k in range(4):
            e(f"v_mov_b32 v{BV + k}, v{G0 + k}")
        e(f"v_lshlrev_b32 v{XV + 2}, 16, v{XV}")
        e(f"v_and_b32 v{XV + 3}, 0xffff0000, v{XV}")
        e(f"v_lshlrev_b32 v{XV + 4}, 16, v{XV + 1}")
        e(f"v_and_b32 v{XV + 5}, 0xffff0000, v{XV + 1}")
        self.srd(SA, P_OUT, 1280)
        self.stamp(3)
        self.wait_lds(L_FLS, 8, VT, n=NS, sleep=1)
        self.stamp(4)
        gather_y(WS_YA, 0)
        self.stamp(5)
        for k in range(4):
            e(f"v_add_f32 v{G0 + k}, v{G0 + k}, v{XV + 2 + k}")
        for k in range(4):
            self.round_bf16(G0 + k)
        for k in range(4):
            e(f"v_add_f32 v{G0 + k}, v{G0 + k}, v{BV + k}")
        e(f"v_cvt_pk_bf16_f32 v{G0}, v{G0}, v{G0 + 1}")
        e(f"v_cvt_pk_bf16_f32 v{G0 + 1}, v{G0 + 2}, v{G0 + 3}")
        e("s_mov_b64 exec, 0xffff")
        e(f"buffer_store_dwordx2 v[{G0}:{G0 + 1}], v{VA[2]}, s[{SA}:{SA + 3}], s57 offen")
        e("s_cmp_lg_u32 s56, 0")
        e("s_cbranch_scc1 L_fin_done")
        self.c("the next launch derives a different tag from this word")
        e(f"v_mov_b32 v{VT}, s{S_TAG}")
        e(f"v_mov_b32 v{VT + 1}, {WS_EPOCH}")
        e("s_mov_b64 exec, 1")
        e(f"buffer_store_dword v{VT}, v{VT + 1}, s[{SWS}:{SWS + 3}], 0 offen")
        e("L_fin_done:")
        if self.diag_dbg:
            e("s_memrealtime s[66:67]")
            e("s_waitcnt lgkmcnt(0)")
            e("s_sub_u32 s66, s66, s64")
            self.srd(48, P_DBG, 256)
            e(f"v_mov_b32 v{VT}, s66")
            e("s_lshl_b32 s6, s56, 2")
            e(f"v_mov_b32 v{VT + 1}, s6")
            e("s_mov_b64 exec, 1")
            e(f"buffer_store_dword v{VT}, v{VT + 1}, s[48:51], 0 offen")
        if self.diag_hold:
            e("L_hold:")
            e("s_memrealtime s[66:67]")
            e("s_waitcnt lgkmcnt(0)")
            e("s_sub_u32 s66, s66, s64")
            e(f"s_cmp_lt_u32 s66, {self.diag_hold}")
            e("s_cbranch_scc1 L_hold")
        self.stamp(6)
        self.prof_store(7)
        e("L_exit:")
        e("s_endpgm")
        return W + 160

    def build(self):
        self.entry()
        nv = max(self.streamer(), self.helperA(), self.helperB())
        assert nv <= 256
        body = "\n".join(l if l.endswith(":") or l.startswith(";") else "    " + l for l in self.o)
        return (HEADER.format(block=64 * (self.NS + 2), lds=self.lds, name=NAME) + body
                + FOOTER.format(name=NAME, vgpr=nv, acc=(nv + 3) // 4 * 4))


def gen(**kw):
    return Gen(**kw).build()


if __name__ == "__main__":
    out = sys.argv[1] if len(sys.argv) > 1 else f"cdna_kernels/{NAME}.s"
    kw = eval("dict(" + (sys.argv[2] if len(sys.argv) > 2 else "") + ")")
    open(out, "w").write(gen(**kw))
```

```python
import struct
import sys

NAME = "parallel_sum__mha_block_cached__geglu_ffn__decode"
HEAD = 32768 * 384
KV_BYTES = 32 * HEAD
SENT = 0xFFFFFFFF

WS_PA = 0x000000
PA_ROW, PA_JOB, PA_X = 1536, 15360, 92160
WS_ST = 0x0C0000
WS_OP = 0x0D0000
WS_YA = 0x190000
WS_YB = 0x1A0000
WS_EPOCH = 0x1F0000
WS_PROF = 0x200000
WS_SIZE = 0x400000
NONCE_STEP = 0x9E3779B9

L_FLS = 0
L_FLQ = 16
L_FLP = 20
L_FLN = 24
L_FLC = 28
L_TAG = 32
L_FLG = 8
L_Q = 64
L_SC = 2048
L_DUMP = L_SC + 8192
S_TAG = 60


def f2u(x):
    return struct.unpack("<I", struct.pack("<f", x))[0]


LOG2E = f2u(1.4426950408889634)
SCALE = f2u(192 ** -0.5)

HEADER = """; Kernarg layout for this problem (96 bytes, ptrs only, base s[0:1]):
; @launch grid=(256,1,1) block=({block},1,1) lds={lds}
.amdgcn_target "amdgcn-amd-amdhsa--gfx950"
.text
.globl {name}_kernel
.p2align 8
.type {name}_kernel,@function
{name}_kernel:
"""
FOOTER = """
.section .rodata,"a"
.p2align 6
.amdhsa_kernel {name}_kernel
  .amdhsa_next_free_vgpr {vgpr}
  .amdhsa_next_free_sgpr 96
  .amdhsa_accum_offset {acc}
  .amdhsa_group_segment_fixed_size 0
  .amdhsa_kernarg_size 96
  .amdhsa_user_sgpr_count 2
  .amdhsa_user_sgpr_kernarg_segment_ptr 1
  .amdhsa_system_sgpr_workgroup_id_x 1
.end_amdhsa_kernel
"""

DPP_ALL = "row_mask:0xf bank_mask:0xf"
X1 = "quad_perm:[1,0,3,2] " + DPP_ALL
X2 = "quad_perm:[2,3,0,1] " + DPP_ALL
HM = "row_half_mirror " + DPP_ALL
RM = "row_mirror " + DPP_ALL
R8 = "row_ror:8 " + DPP_ALL

S_WAVE, S_X, S_C = 3, 4, 5
P_X, P_K, P_V, P_WQ, P_WO, P_G, P_U, P_D, P_OUT, P_DBG, P_WS = 16, 18, 20, 22, 24, 28, 30, 32, 34, 36, 38
SPIN_G = 400000
SPIN_L = 4000000


class Gen:
    def __init__(self, NS=2, R=24, L=23, cap=11, cap0=4, capH=14, cap_tail=None, tail_iters=1, prof=False, diag_hold=0, diag_dbg=False,
                 d_noclear=False, d_noq=False, d_nopa=False, go_at=None, tail_sleep=0):
        self.NS, self.R, self.L = NS, R, L
        self.cap, self.cap0, self.capH = cap, cap0, capH
        self.cap_tail = cap_tail or cap
        self.tail_iters = tail_iters
        self.prof = prof
        self.d_noclear, self.d_noq, self.d_nopa, self.go_at = d_noclear, d_noq, d_nopa, go_at
        self.tail_sleep = tail_sleep
        self.diag_hold, self.diag_dbg = diag_hold, diag_dbg
        self.o = []
        self.uid = 0
        self.steps = 32768 // (32 * NS * 16)
        self.tpi = R // 6
        assert R % 24 == 0 and self.steps % self.tpi == 0 and L < R
        assert max(cap, cap0, self.cap_tail) <= L
        self.ipr = self.steps // self.tpi
        self.step_bytes = 32 * NS * 6144
        self.dump_bytes = 8 * NS * 768
        self.lds = L_DUMP + 4 * self.dump_bytes

    def e(self, s):
        self.o.append(s)

    def c(self, s):
        self.o.append("; " + s)

    def label(self, base):
        self.uid += 1
        return f"L_{base}_{self.uid}"

    def srd(self, d, p, size):
        self.e(f"s_mov_b32 s{d}, s{p}")
        self.e(f"s_mov_b32 s{d+1}, s{p+1}")
        self.e(f"s_mov_b32 s{d+2}, {size}")
        self.e(f"s_mov_b32 s{d+3}, 0x20000")

    def stamp(self, k):
        if self.prof:
            self.e(f"s_memrealtime s[{64 + 2 * k}:{65 + 2 * k}]")
            self.e("s_waitcnt lgkmcnt(0)")

    def stamp_round(self, sreg, base):
        if not self.prof:
            return
        for r in range(4):
            lb = self.label("st")
            self.e(f"s_cmp_lg_u32 s{sreg}, {r}")
            self.e(f"s_cbranch_scc1 {lb}")
            self.stamp(base + r)
            self.e(f"{lb}:")

    def prof_store(self, n):
        if not self.prof:
            return
        e = self.e
        e("s_mov_b64 exec, -1")
        e("s_waitcnt vmcnt(0) lgkmcnt(0)")
        self.srd(12, P_WS, WS_SIZE)
        e("s_lshl_b32 s6, s2, 2")
        e(f"s_add_u32 s6, s6, s{S_WAVE}")
        e("s_lshl_b32 s6, s6, 6")
        e(f"s_add_u32 s6, s6, {WS_PROF}")
        e("v_mov_b32 v1, 0")
        e("s_getreg_b32 s7, hwreg(HW_REG_XCC_ID)")
        e("v_mov_b32 v2, s7")
        e("s_mov_b64 exec, 1")
        e("buffer_store_dword v2, v1, s[12:15], s6 offen offset:60")
        for k in range(n):
            e(f"v_mov_b32 v{4 + k}, s{64 + 2 * k}")
            e(f"buffer_store_dword v{4 + k}, v1, s[12:15], s6 offen offset:{4 * k}")
        e("s_waitcnt vmcnt(0)")

    def allreduce(self, op, v, t):
        e = self.e
        for pat in (X1, X2, HM, RM):
            e("s_nop 1")
            e(f"{op}_dpp v{v}, v{v}, v{v} {pat}")
        for sw in ("v_permlane16_swap_b32", "v_permlane32_swap_b32"):
            e(f"v_mov_b32 v{t}, v{v}")
            e("s_nop 1")
            e(f"{sw} v{v}, v{t}")
            e("s_nop 1")
            e(f"{op} v{v}, v{v}, v{t}")

    def round_bf16(self, v):
        self.e(f"v_cvt_pk_bf16_f32 v{v}, v{v}, v{v}")
        self.e(f"v_and_b32 v{v}, 0xffff0000, v{v}")

    def expand(self, src, dst):
        e = self.e
        for k in range(4):
            e(f"v_and_b32 v{dst + 4 * k}, 0xffff, v{src + k}")
            e(f"v_lshlrev_b32 v{dst + 4 * k + 1}, 16, v{src + k}")
            e(f"v_lshrrev_b32 v{dst + 4 * k + 2}, 16, v{src + k}")
            e(f"v_and_b32 v{dst + 4 * k + 3}, 0xffff0000, v{src + k}")

    def gemv_row(self, w, xop, acc):
        for k in range(4):
            self.e(f"v_dot2c_f32_bf16 v{acc + 2 * k}, v{w + k}, v{xop}")
            self.e(f"v_dot2c_f32_bf16 v{acc + 2 * k + 1}, v{w + k}, v{xop + 1}")

    def reduce_g(self, acc, res, t):
        e = self.e
        e("s_nop 2")
        for k in range(4):
            e(f"v_permlane32_swap_b32 v{acc + k}, v{acc + k + 4}")
        e("s_nop 0")
        for k in range(4):
            e(f"v_add_f32 v{res + k}, v{acc + k}, v{acc + k + 4}")
        for k in range(4):
            e(f"v_mov_b32 v{t + k}, v{res + k}")
        e("s_nop 0")
        for k in range(4):
            e(f"v_permlane16_swap_b32 v{res + k}, v{t + k}")
        e("s_nop 0")
        for k in range(4):
            e(f"v_add_f32 v{res + k}, v{res + k}, v{t + k}")
        e("s_nop 0")
        for k in range(4):
            e(f"v_add_f32_dpp v{res + k}, v{res + k}, v{res + k} {R8}")

    def reduce_g2(self, acc, res):
        e = self.e
        e("s_nop 2")
        for k in range(4):
            e(f"v_permlane32_swap_b32 v{acc + k}, v{acc + k + 4}")
        e("s_nop 0")
        for k in range(4):
            e(f"v_add_f32 v{acc + k}, v{acc + k}, v{acc + k + 4}")
        e("s_nop 1")
        for k in range(2):
            e(f"v_permlane16_swap_b32 v{acc + k}, v{acc + k + 2}")
        e("s_nop 0")
        for k in range(2):
            e(f"v_add_f32 v{acc + k}, v{acc + k}, v{acc + k + 2}")
        e("s_nop 1")
        for k in range(2):
            e(f"v_add_f32_dpp v{res + 2 * k}, v{acc + k}, v{acc + k} {R8}")

    def tag_regs(self, res):
        self.e(f"v_mov_b32 v{res + 1}, s{S_TAG}")
        self.e(f"v_mov_b32 v{res + 3}, s{S_TAG}")

    def exec_tagged(self):
        self.e("s_mov_b32 exec_lo, 0x00ff00ff")
        self.e("s_mov_b32 exec_hi, 0x00ff00ff")

    def gather_tagged(self, loads, first, nrec, vt, sleep=1, skip=None):
        e = self.e
        lp, ok = self.label("gt"), self.label("gtok")
        e(f"s_mov_b32 s62, {SPIN_G}")
        e(f"{lp}:")
        for s_ in loads:
            e(s_)
        e(f"v_mov_b32 v{vt}, 0")
        e(f"v_mov_b32 v{vt + 1}, 0")
        e("s_waitcnt vmcnt(0)")
        for k in range(nrec):
            t = vt + 1 if skip and k in skip[0] else vt
            e(f"v_bitop3_b32 v{t}, v{t}, v{first + 4 * k + 1}, s{S_TAG} bitop3:0xf6")
            e(f"v_bitop3_b32 v{t}, v{t}, v{first + 4 * k + 3}, s{S_TAG} bitop3:0xf6")
        if skip:
            e(f"v_cndmask_b32 v{vt + 1}, 0, v{vt + 1}, s[{skip[1]}:{skip[1] + 1}]")
            e(f"v_or_b32 v{vt}, v{vt}, v{vt + 1}")
        e(f"v_cmp_ne_u32 vcc, 0, v{vt}")
        e("s_nop 4")
        e(f"s_cbranch_vccz {ok}")
        if sleep:
            e(f"s_sleep {sleep}")
        e("s_sub_u32 s62, s62, 1")
        e("s_cmp_lg_u32 s62, 0")
        e(f"s_cbranch_scc1 {lp}")
        e("s_endpgm")
        e(f"{ok}:")

    def reduce_sub(self, v, n):
        for pat in (X1, X2, HM):
            self.e("s_nop 1")
            for k in range(n):
                self.e(f"v_add_f32_dpp v{v + k}, v{v + k}, v{v + k} {pat}")

    def wait_lds(self, addr, val, vt, n=1, sleep=2, val_is_sreg=False):
        e = self.e
        lp, ok = self.label("wl"), self.label("wlok")
        e(f"s_mov_b32 s62, {SPIN_L}")
        e(f"v_mov_b32 v{vt + 4}, 0")
        e(f"{lp}:")
        if n == 1:
            e(f"ds_read_b32 v{vt}, v{vt + 4} offset:{addr}")
            e("s_waitcnt lgkmcnt(0)")
        elif n == 2:
            e(f"ds_read_b64 v[{vt}:{vt + 1}], v{vt + 4} offset:{addr}")
            e("s_waitcnt lgkmcnt(0)")
            e(f"v_min_u32 v{vt}, v{vt}, v{vt + 1}")
        else:
            e(f"ds_read_b128 v[{vt}:{vt + 3}], v{vt + 4} offset:{addr}")
            e("s_waitcnt lgkmcnt(0)")
            e(f"v_min_u32 v{vt}, v{vt}, v{vt + 1}")
            e(f"v_min3_u32 v{vt}, v{vt}, v{vt + 2}, v{vt + 3}")
        e("s_nop 0")
        e(f"v_readfirstlane_b32 s63, v{vt}")
        e(f"s_cmp_ge_u32 s63, {val}")
        e(f"s_cbranch_scc1 {ok}")
        if sleep:
            e(f"s_sleep {sleep}")
        e("s_sub_u32 s62, s62, 1")
        e("s_cmp_lg_u32 s62, 0")
        e(f"s_cbranch_scc1 {lp}")
        e("s_endpgm")
        e(f"{ok}:")

    def set_lds(self, addr, val, vt):
        e = self.e
        e("s_waitcnt lgkmcnt(0)")
        e(f"v_mov_b32 v{vt}, {addr}")
        e(f"v_mov_b32 v{vt + 1}, {val}")
        e(f"ds_write_b32 v{vt}, v{vt + 1}")

    def gather_valid(self, loads, first, nregs, vt, sleep=1):
        e = self.e
        lp, ok = self.label("gv"), self.label("gvok")
        e(f"s_mov_b32 s62, {SPIN_G}")
        e(f"{lp}:")
        for s in loads:
            e(s)
        e("s_waitcnt vmcnt(0)")
        e(f"v_max_u32 v{vt}, v{first}, v{first + 1}")
        for k in range(2, nregs, 2):
            e(f"v_max3_u32 v{vt}, v{vt}, v{first + k}, v{first + k + 1}")
        e(f"v_cmp_eq_u32 vcc, -1, v{vt}")
        e("s_nop 4")
        e(f"s_cbranch_vccz {ok}")
        if sleep:
            e(f"s_sleep {sleep}")
        e("s_sub_u32 s62, s62, 1")
        e("s_cmp_lg_u32 s62, 0")
        e(f"s_cbranch_scc1 {lp}")
        e("s_endpgm")
        e(f"{ok}:")

    def sanitize(self, v, n):
        for k in range(n):
            self.e(f"v_min_u32 v{v + k}, -2, v{v + k}")

    def ln_loads(self, srd, vlane, vg, xa, xb, xc, t, s_rb):
        e = self.e
        e(f"v_lshlrev_b32 v{t}, 4, v{vlane}")
        e(f"v_lshlrev_b32 v{t + 1}, 2, v{vlane}")
        e(f"v_lshlrev_b32 v{t + 2}, 4, v{vg}")
        e(f"s_lshl_b32 s6, s{s_rb}, 7")
        e(f"buffer_load_dwordx4 v[{xa}:{xa + 3}], v{t}, s[{srd}:{srd + 3}], 0 offen")
        e(f"buffer_load_dword v{xb}, v{t + 1}, s[{srd}:{srd + 3}], 0 offen offset:1024")
        e(f"buffer_load_dwordx4 v[{xc}:{xc + 3}], v{t + 2}, s[{srd}:{srd + 3}], s6 offen")

    def ln_compute(self, xa, xb, xc, f, xop):
        e = self.e
        src = [xa, xa + 1, xa + 2, xa + 3, xb]
        for k, s in enumerate(src):
            e(f"v_lshlrev_b32 v{f + 2 * k}, 16, v{s}")
            e(f"v_and_b32 v{f + 2 * k + 1}, 0xffff0000, v{s}")
        m, t, var = f + 10, f + 11, f + 12
        e(f"v_add_f32 v{m}, v{f}, v{f + 1}")
        for k in range(2, 10):
            e(f"v_add_f32 v{m}, v{m}, v{f + k}")
        self.allreduce("v_add_f32", m, t)
        e(f"v_mul_f32 v{m}, {hex(f2u(1.0 / 640))}, v{m}")
        for k in range(10):
            e(f"v_sub_f32 v{f + k}, v{f + k}, v{m}")
        e(f"v_mul_f32 v{var}, v{f}, v{f}")
        for k in range(1, 10):
            e(f"v_fmac_f32 v{var}, v{f + k}, v{f + k}")
        self.allreduce("v_add_f32", var, t)
        e(f"v_mul_f32 v{var}, {hex(f2u(1.0 / 640))}, v{var}")
        self.round_bf16(var)
        self.round_bf16(m)
        e(f"v_add_f32 v{var}, {hex(f2u(1e-5))}, v{var}")
        self.round_bf16(var)
        e(f"v_sqrt_f32 v{var}, v{var}")
        e("s_nop 0")
        self.round_bf16(var)
        e(f"v_rcp_f32 v{var}, v{var}")
        for k in range(4):
            e(f"v_lshlrev_b32 v{f + 2 * k}, 16, v{xc + k}")
            e(f"v_and_b32 v{f + 2 * k + 1}, 0xffff0000, v{xc + k}")
        for k in range(8):
            e(f"v_sub_f32 v{f + k}, v{f + k}, v{m}")
        for k in range(4):
            e(f"v_cvt_pk_bf16_f32 v{xc + k}, v{f + 2 * k}, v{f + 2 * k + 1}")
        for k in range(4):
            e(f"v_lshlrev_b32 v{f + 2 * k}, 16, v{xc + k}")
            e(f"v_and_b32 v{f + 2 * k + 1}, 0xffff0000, v{xc + k}")
        for k in range(8):
            e(f"v_mul_f32 v{f + k}, v{f + k}, v{var}")
        for k in range(4):
            e(f"v_cvt_pk_bf16_f32 v{xc + k}, v{f + 2 * k}, v{f + 2 * k + 1}")
        self.expand(xc, xop)

    def entry(self):
        e = self.e
        self.c("roles: waves 0..NS-1 stream K then V; wave NS does q/softmax exchanges; wave NS+1 does weight GEMVs")
        if self.prof or self.diag_hold or self.diag_dbg:
            e("s_memrealtime s[64:65]")
        e("s_cmp_ge_u32 s2, 256")
        e("s_cbranch_scc1 L_exit")
        e("s_load_dwordx16 s[16:31], s[0:1], 0")
        e("s_load_dwordx8 s[32:39], s[0:1], 64")
        e("v_lshrrev_b32 v1, 6, v0")
        e("v_and_b32 v0, 63, v0")
        e(f"v_readfirstlane_b32 s{S_WAVE}, v1")
        e(f"s_and_b32 s{S_X}, s2, 7")
        e(f"s_lshr_b32 s{S_C}, s2, 3")
        e("v_lshrrev_b32 v1, 3, v0")
        e("v_and_b32 v2, 7, v0")
        e(f"s_mul_i32 s40, s{S_C}, 43691")
        e("s_lshr_b32 s40, s40, 17")
        e("s_mul_i32 s41, s40, 3")
        e(f"s_sub_u32 s41, s{S_C}, s41")
        e(f"s_cmp_eq_u32 s{S_WAVE}, {self.NS}")
        e("s_cbranch_scc1 L_helperA")
        e(f"s_cmp_eq_u32 s{S_WAVE}, {self.NS + 1}")
        e("s_cbranch_scc1 L_helperB")

    def streamer(self):
        e = self.e
        NS, R, L = self.NS, self.R, self.L
        VOFF, VSC, VQ, VDUMP, VT = 3, 4, 5, 6, 8
        A = 14
        SC = 20
        Q = 20 + 8
        PN, PX = 52, 60
        RING = 64
        S_OFF, S_DELTA, S_B0, S_B1, S_IT, S_R = 44, 45, 46, 47, 48, 49
        offs = [(i // 3) * 3072 + (i % 3) * 128 for i in range(6)]
        cand = [j for j in range(R) if (j + L) % 6 == 5 and ((j + L + 1) // 6) % self.tpi == 0]
        assert len(cand) == 1
        self.c("streamer")
        e(f"v_mul_u32_u24 v{VOFF}, 384, v1")
        e(f"v_lshl_add_u32 v{VOFF}, v2, 4, v{VOFF}")
        tb = 4 * self.tpi
        e(f"s_mul_i32 s6, s{S_WAVE}, {8 * tb}")
        e(f"s_add_u32 s6, s6, {L_SC}")
        e(f"v_mul_u32_u24 v{VSC}, {tb}, v1")
        e(f"v_add_u32 v{VSC}, s6, v{VSC}")
        e(f"v_lshlrev_b32 v{VQ}, 4, v2")
        e(f"s_mul_i32 s6, s{S_WAVE}, {8 * 768}")
        e(f"s_add_u32 s6, s6, {L_DUMP}")
        e(f"v_mul_u32_u24 v{VDUMP}, 768, v1")
        e(f"v_lshl_add_u32 v{VDUMP}, v2, 5, v{VDUMP}")
        e(f"v_add_u32 v{VDUMP}, s6, v{VDUMP}")
        e(f"s_mul_i32 s{S_OFF}, s{S_X}, {HEAD}")
        e(f"s_mul_i32 s6, s{S_C}, {NS}")
        e(f"s_add_u32 s6, s6, s{S_WAVE}")
        e("s_mul_i32 s6, s6, 6144")
        e(f"s_add_u32 s{S_OFF}, s{S_OFF}, s6")
        e(f"s_lshl_b32 s7, s{S_WAVE}, 2")
        e(f"v_mov_b32 v7, s7")
        e(f"v_mov_b32 v{VT}, 0")
        e(f"ds_write_b32 v7, v{VT} offset:{L_FLS}")
        e("s_waitcnt lgkmcnt(0)")
        self.srd(8, P_K, KV_BYTES)
        e("s_barrier")

        def issue(p, boundary=False):
            r = RING + (p % R) * 4
            e(f"buffer_load_dwordx4 v[{r}:{r + 3}], v{VOFF}, s[8:11], s{S_OFF} offen offset:{offs[p % 6]} nt")
            if p % 6 == 5:
                if boundary:
                    e(f"s_add_u32 s{S_OFF}, s{S_OFF}, s{S_DELTA}")
                    e(f"s_mov_b32 s8, s{S_B0}")
                    e(f"s_mov_b32 s9, s{S_B1}")
                else:
                    e(f"s_add_u32 s{S_OFF}, s{S_OFF}, {self.step_bytes}")

        if self.go_at is not None:
            self.wait_lds(L_FLG, 1, VT, sleep=1)
        for p in range(L):
            if p >= self.cap0:
                e(f"s_waitcnt vmcnt({self.cap0 - 1})")
            issue(p)
        self.stamp(1)
        e(f"s_mov_b32 s{S_R}, 0")
        e(f"s_mov_b32 s{S_B0}, s{P_K}")
        e(f"s_mov_b32 s{S_B1}, s{P_K + 1}")
        e(f"s_mov_b32 s56, {self.step_bytes + 7 * HEAD}")

        e("L_kround:")
        e(f"s_add_u32 s50, s{S_R}, 1")
        self.wait_lds(L_FLQ, "s50", VT, sleep=0)
        for s in range(3):
            e(f"ds_read_b128 v[{Q + 4 * s}:{Q + 4 * s + 3}], v{VQ} offset:{L_Q + 128 * s}")
        e(f"v_add_u32 v{VQ}, 384, v{VQ}")
        if self.prof:
            e(f"s_cmp_lg_u32 s{S_R}, 0")
            e("s_cbranch_scc1 L_nostamp2")
            self.stamp(2)
            e("L_nostamp2:")
        e(f"s_mov_b32 s{S_IT}, {self.ipr}")
        e("s_waitcnt lgkmcnt(0)")
        e("L_kloop:")
        e(f"s_cmp_eq_u32 s{S_R}, 3")
        e(f"s_cselect_b32 s50, {hex((self.step_bytes - 25 * HEAD) & 0xffffffff)}, s56")
        e(f"s_cselect_b32 s51, 1, 0")
        e(f"s_cmp_eq_u32 s{S_IT}, 1")
        e(f"s_cselect_b32 s{S_DELTA}, s50, {self.step_bytes}")
        e(f"s_cmp_eq_u32 s{S_IT}, s51")
        e(f"s_cselect_b32 s{S_B0}, s{P_V}, s{S_B0}")
        e(f"s_cselect_b32 s{S_B1}, s{P_V + 1}, s{S_B1}")
        pend = []
        pos = [0]

        def main(s):
            e(s)
            pos[0] += 1
            if pend and pend[0][0] <= pos[0]:
                _, ins, gap = pend.pop(0)
                e(ins)
                pos[0] += 1
                if pend:
                    pend[0] = (max(pend[0][0], pos[0] + gap), pend[0][1], pend[0][2])

        for j in range(R):
            tile, jj = divmod(j, 6)
            kg, s = divmod(jj, 3)
            a = A + 2 * (tile % 2) + kg
            main(f"s_waitcnt vmcnt({self.cap - 1})")
            n0 = len(self.o)
            issue(j + L, boundary=(j == cand[0]))
            pos[0] += len(self.o) - n0
            if s == 0:
                main(f"v_mov_b32 v{a}, 0")
            r = RING + j * 4
            for k in range(4):
                main(f"v_dot2c_f32_bf16 v{a}, v{r + k}, v{Q + 4 * s + k}")
            if s == 2:
                first = pos[0] + 3
                pend.append((first, f"v_add_f32_dpp v{a}, v{a}, v{a} {X1}", 2))
                pend.append((0, f"v_add_f32_dpp v{a}, v{a}, v{a} {X2}", 2))
                pend.append((0, f"v_add_f32_dpp v{a}, v{a}, v{a} {HM}", 0))
                if kg == 1:
                    pend.append((0, f"v_cvt_pk_bf16_f32 v{SC + tile}, v{a - 1}, v{a}", 0))
        while pend:
            main("s_nop 0")
        for q4 in range(self.tpi // 4):
            e(f"ds_write_b128 v{VSC}, v[{SC + 4 * q4}:{SC + 4 * q4 + 3}] offset:{16 * q4}")
        e(f"v_add_u32 v{VSC}, {NS * 8 * tb}, v{VSC}")
        e(f"s_sub_u32 s{S_IT}, s{S_IT}, 1")
        e(f"s_cmp_lg_u32 s{S_IT}, 0")
        e("s_cbranch_scc1 L_kloop")
        self.stamp_round(S_R, 3)
        e(f"s_add_u32 s{S_R}, s{S_R}, 1")
        e("s_waitcnt lgkmcnt(0)")
        e(f"v_mov_b32 v{VT}, s{S_R}")
        e(f"ds_write_b32 v7, v{VT} offset:{L_FLS}")
        e(f"s_cmp_lt_u32 s{S_R}, 4")
        e("s_cbranch_scc1 L_kround")

        e(f"v_subrev_u32 v{VSC}, 8192, v{VSC}")
        self.wait_lds(L_FLP, 1, VT, sleep=0)
        for q4 in range(self.tpi // 4):
            e(f"ds_read_b128 v[{PN + 4 * q4}:{PN + 4 * q4 + 3}], v{VSC} offset:{16 * q4}")
        e(f"v_add_u32 v{VSC}, {NS * 8 * tb}, v{VSC}")
        e(f"s_mov_b32 s{S_R}, 0")

        def vbody(cap, last=False):
            e("s_waitcnt lgkmcnt(0)")
            for j in range(R):
                tile, jj = divmod(j, 6)
                kg, s = divmod(jj, 3)
                if last and j + L >= R:
                    e(f"s_waitcnt vmcnt({R - 1 - j})")
                else:
                    e(f"s_waitcnt vmcnt({cap - 1})")
                    issue(j + L, boundary=(j == cand[0]))
                if jj == 0:
                    e(f"v_and_b32 v{PX}, 0xffff, v{PN + tile}")
                    e(f"v_lshlrev_b32 v{PX + 1}, 16, v{PN + tile}")
                    e(f"v_lshrrev_b32 v{PX + 2}, 16, v{PN + tile}")
                    e(f"v_and_b32 v{PX + 3}, 0xffff0000, v{PN + tile}")
                    if tile == self.tpi - 1 and not last:
                        for q4 in range(self.tpi // 4):
                            e(f"ds_read_b128 v[{PN + 4 * q4}:{PN + 4 * q4 + 3}], v{VSC} offset:{16 * q4}")
                        e(f"v_add_u32 v{VSC}, {NS * 8 * tb}, v{VSC}")
                self.gemv_row(RING + 4 * j, PX + 2 * kg, Q + 8 * s)

        def dump():
            e("s_nop 2")
            for s in range(3):
                for hlf in range(2):
                    r = Q + 8 * s + 4 * hlf
                    e(f"ds_write_b128 v{VDUMP}, v[{r}:{r + 3}] offset:{256 * s + 16 * hlf}")
            e(f"v_add_u32 v{VDUMP}, {self.dump_bytes}, v{VDUMP}")
            e(f"s_add_u32 s50, s{S_R}, 5")
            e("s_waitcnt lgkmcnt(0)")
            e(f"v_mov_b32 v{VT}, s50")
            e(f"ds_write_b32 v7, v{VT} offset:{L_FLS}")

        e("L_vround:")
        e(f"s_add_u32 s50, s{S_R}, 2")
        e("s_min_u32 s50, s50, 4")
        self.wait_lds(L_FLP, "s50", VT, sleep=0)
        for k in range(24):
            e(f"v_mov_b32 v{Q + k}, 0")
        e(f"s_cmp_eq_u32 s{S_R}, 3")
        e(f"s_cselect_b32 s52, {self.tail_iters}, 0")
        e(f"s_mov_b32 s{S_IT}, {self.ipr}")
        e("L_vloop:")
        e(f"s_cmp_eq_u32 s{S_IT}, 1")
        e(f"s_cselect_b32 s{S_DELTA}, s56, {self.step_bytes}")
        vbody(self.cap)
        e(f"s_sub_u32 s{S_IT}, s{S_IT}, 1")
        e(f"s_cmp_lg_u32 s{S_IT}, s52")
        e("s_cbranch_scc1 L_vloop")
        e(f"s_cmp_eq_u32 s{S_R}, 3")
        e("s_cbranch_scc1 L_vtail")
        self.stamp_round(S_R, 7)
        dump()
        e(f"s_add_u32 s{S_R}, s{S_R}, 1")
        e("s_branch L_vround")
        e("L_vtail:")
        e(f"s_mov_b32 s{S_DELTA}, {self.step_bytes}")
        if self.tail_iters > 1:
            e("L_vtloop:")
            vbody(self.cap_tail)
            e(f"s_sub_u32 s{S_IT}, s{S_IT}, 1")
            e(f"s_cmp_lg_u32 s{S_IT}, 1")
            e("s_cbranch_scc1 L_vtloop")
        vbody(self.cap_tail, last=True)
        self.stamp(10)
        dump()
        self.prof_store(11)
        e("s_endpgm")
        return RING + 4 * R

    def helperA(self):
        e = self.e
        NS = self.NS
        S_RB, S_CB = 40, 41
        SX, SW, SWS, SDB = 8, 12, 44, 48
        XA, XB, XC, F, XOP = 8, 12, 16, 20, 36
        W, ACC, RES, T = 52, 84, 92, 96
        VT = 98
        VP, VL16, VOP = 4, 5, 6
        SCR = 108
        e("L_helperA:")
        e("s_setprio 3")
        e("v_mul_u32_u24 v7, 0x18000, v1")
        e("v_lshl_add_u32 v7, v2, 4, v7")
        e(f"s_mul_i32 s42, s{S_RB}, {64 * 12288}")
        e(f"s_mul_i32 s43, s{S_X}, 384")
        e("s_add_u32 s42, s42, s43")
        e(f"s_lshl_b32 s43, s{S_CB}, 7")
        e("s_add_u32 s42, s42, s43")
        e("s_waitcnt lgkmcnt(0)")
        self.srd(SX, P_X, 1280)
        self.srd(SW, P_WQ, 640 * 12288)
        self.ln_loads(SX, 0, 1, XA, XB, XC, F, S_RB)
        for i in range(8):
            e(f"buffer_load_dwordx4 v[{W + 4 * i}:{W + 4 * i + 3}], v7, s[{SW}:{SW + 3}], s42 offen nt")
            if i < 7:
                e("s_add_u32 s42, s42, 12288")
        e(f"s_mov_b32 s6, {WS_EPOCH}")
        e(f"s_load_dword s{S_TAG}, s[{P_WS}:{P_WS + 1}], s6")
        e("s_barrier")
        self.srd(SWS, P_WS, WS_SIZE)
        e(f"v_lshrrev_b32 v{VP}, 4, v0")
        e(f"v_lshlrev_b32 v{VP}, 7, v{VP}")
        e(f"v_lshl_add_u32 v{VP}, v2, 4, v{VP}")
        e(f"v_lshlrev_b32 v{VL16}, 4, v0")
        e(f"v_lshrrev_b32 v{VOP}, 4, v0")
        e(f"v_lshlrev_b32 v{VOP}, 13, v{VOP}")
        e(f"v_and_b32 v{T}, 15, v0")
        e(f"v_lshl_add_u32 v{VOP}, v{T}, 4, v{VOP}")
        VQ2, VQL = 104, 105
        e(f"v_and_b32 v{VQ2}, 31, v0")
        e(f"v_lshlrev_b32 v{VQ2}, 4, v{VQ2}")
        e(f"v_lshrrev_b32 v{T}, 5, v0")
        e(f"v_mul_u32_u24 v{T + 1}, {PA_ROW}, v{T}")
        e(f"v_add_u32 v{VQ2}, v{VQ2}, v{T + 1}")
        e(f"v_lshlrev_b32 v{VQL}, 7, v{T}")
        e(f"v_lshl_add_u32 v{VQL}, v2, 4, v{VQL}")
        e(f"v_and_b32 v{T}, 3, v1")
        e(f"v_lshl_add_u32 v{VQL}, v{T}, 2, v{VQL}")
        e(f"s_mul_i32 s53, s{S_X}, {PA_X}")
        for k in range(8):
            e(f"v_mov_b32 v{ACC + k}, 0")
        e("s_waitcnt vmcnt(8)")
        self.stamp(1)
        self.ln_compute(XA, XB, XC, F, XOP)
        for i in range(8):
            e(f"s_waitcnt vmcnt({7 - i})")
            self.gemv_row(W + 4 * i, XOP + 2 * i, ACC)
        self.reduce_g2(ACC, RES)
        e(f"s_mul_i32 s6, s{S_RB}, {PA_ROW}")
        e("s_add_u32 s6, s6, s53")
        e(f"s_lshl_b32 s7, s{S_CB}, 9")
        e("s_add_u32 s6, s6, s7")
        e("s_waitcnt lgkmcnt(0)")
        e(f"s_add_u32 s{S_TAG}, s{S_TAG}, {hex(NONCE_STEP)}")
        self.tag_regs(RES)
        e(f"s_cmp_ge_u32 s{S_C}, 30")
        e("s_cbranch_scc1 L_ha_noq")
        self.exec_tagged()
        e(f"buffer_store_dwordx4 v[{RES}:{RES + 3}], v{VP}, s[{SWS}:{SWS + 3}], s6 offen sc1")
        e("s_mov_b64 exec, -1")
        e("L_ha_noq:")
        self.stamp(2)
        self.set_lds(L_TAG, f"s{S_TAG}", VT)
        self.set_lds(L_FLN, 1, VT)
        e("s_waitcnt vmcnt(0)")
        self.stamp(3)
        GQ = 8

        def gather_q(r, sleep):
            e(f"s_add_u32 s6, s53, {r * PA_JOB}")
            for k in range(1, 5):
                e(f"s_add_u32 s{53 + k}, s6, {2 * PA_ROW * k}")
            sreg = lambda rb: "s6" if rb < 2 else f"s{53 + rb // 2}"
            loads = [f"buffer_load_dwordx4 v[{GQ + 4 * rb}:{GQ + 4 * rb + 3}], v{VL16}, s[{SWS}:{SWS + 3}], "
                     f"{sreg(rb)} offen offset:{PA_ROW * (rb % 2)} sc1" for rb in range(10)]
            loads += [f"buffer_load_dwordx4 v[{GQ + 40 + 4 * k}:{GQ + 43 + 4 * k}], v{VQ2}, s[{SWS}:{SWS + 3}], "
                      f"{sreg(2 * k)} offen offset:1024 sc1" for k in range(5)]
            self.gather_tagged(loads, GQ, 15, VT, sleep=sleep)
            if r == 0:
                self.stamp(4)
            for k in range(1, 5):
                for j in (0, 2):
                    e(f"v_add_f32 v{GQ + 40 + j}, v{GQ + 40 + j}, v{GQ + 40 + 4 * k + j}")
            for j in (0, 2):
                e(f"v_mov_b32 v{GQ + 41 + j}, v{GQ + 40 + j}")
            for rb in range(1, 10):
                for j in (0, 2):
                    e(f"v_add_f32 v{GQ + j}, v{GQ + j}, v{GQ + 4 * rb + j}")
            for j in (0, 2):
                e(f"v_permlane32_swap_b32 v{GQ + 40 + j}, v{GQ + 41 + j}")
            e(f"v_cvt_pk_bf16_f32 v{GQ}, v{GQ}, v{GQ + 2}")
            for j in (0, 2):
                e(f"v_add_f32 v{GQ + 40 + j}, v{GQ + 40 + j}, v{GQ + 41 + j}")
            e(f"ds_write_b32 v{VQL}, v{GQ} offset:{L_Q + 384 * r}")
            e(f"v_cvt_pk_bf16_f32 v{GQ + 40}, v{GQ + 40}, v{GQ + 42}")
            e("s_mov_b32 exec_hi, 0")
            e(f"ds_write_b32 v{VQL}, v{GQ + 40} offset:{L_Q + 384 * r + 256}")
            e("s_mov_b64 exec, -1")
            self.set_lds(L_FLQ, r + 1, VT)

        gather_q(0, 2)
        self.stamp(5)
        e("s_setprio 0")
        self.wait_lds(L_FLC, 1, VT, sleep=8)
        for r in (1, 2, 3):
            if self.d_noq:
                self.set_lds(L_FLQ, r + 1, VT)
            else:
                gather_q(r, 32)
        self.stamp(6)

        M, LS = 8, 9
        U = 12
        VS32 = 10

        def unpack(r):
            for k in range(8):
                e(f"v_lshlrev_b32 v{U + 2 * k}, 16, v{SCR + 8 * r + k}")
                e(f"v_and_b32 v{U + 2 * k + 1}, 0xffff0000, v{SCR + 8 * r + k}")

        def local_stats(r):
            self.wait_lds(L_FLS, r + 1, VT, n=NS, sleep=8)
            e(f"v_lshlrev_b32 v{VS32}, 5, v0")
            b = SCR + 8 * r
            e(f"ds_read_b128 v[{b}:{b + 3}], v{VS32} offset:{L_SC + 2048 * r}")
            e(f"ds_read_b128 v[{b + 4}:{b + 7}], v{VS32} offset:{L_SC + 2048 * r + 16}")
            e("s_waitcnt lgkmcnt(0)")
            unpack(r)
            for k in range(16):
                e(f"v_mul_f32 v{U + k}, {hex(SCALE)}, v{U + k}")
            for k in range(8):
                e(f"v_cvt_pk_bf16_f32 v{b + k}, v{U + 2 * k}, v{U + 2 * k + 1}")
            unpack(r)
            e(f"v_max_f32 v{M}, v{U}, v{U + 1}")
            for k in range(2, 16, 2):
                e(f"v_max3_f32 v{M}, v{M}, v{U + k}, v{U + k + 1}")
            self.allreduce("v_max_f32", M, T)
            for k in range(16):
                e(f"v_sub_f32 v{U + k}, v{U + k}, v{M}")
            for k in range(16):
                e(f"v_mul_f32 v{U + k}, {hex(LOG2E)}, v{U + k}")
            for k in range(16):
                e(f"v_exp_f32 v{U + k}, v{U + k}")
            e("s_nop 0")
            e(f"v_add_f32 v{LS}, v{U}, v{U + 1}")
            for k in range(2, 16):
                e(f"v_add_f32 v{LS}, v{LS}, v{U + k}")
            self.allreduce("v_add_f32", LS, T)
            e(f"v_mov_b32 v{U}, v{M}")
            e(f"v_mov_b32 v{U + 2}, v{LS}")
            self.tag_regs(U)
            e(f"s_lshl_b32 s6, s{S_X}, 11")
            e(f"s_lshl_b32 s7, s{S_C}, 4")
            e("s_add_u32 s6, s6, s7")
            e(f"s_add_u32 s6, s6, {WS_ST + 512 * r}")
            e(f"v_mov_b32 v{T}, 0")
            e("s_mov_b64 exec, 1")
            e(f"buffer_store_dwordx4 v[{U}:{U + 3}], v{T}, s[{SWS}:{SWS + 3}], s6 offen sc1")
            e("s_mov_b64 exec, -1")
            e("s_nop 1")

        def finalize_p(r):
            G = 28
            e(f"v_and_b32 v{T}, 31, v0")
            e(f"v_lshlrev_b32 v{T}, 4, v{T}")
            e(f"s_lshl_b32 s6, s{S_X}, 11")
            e(f"s_add_u32 s6, s6, {WS_ST + 512 * r}")
            self.gather_tagged([f"buffer_load_dwordx4 v[{G}:{G + 3}], v{T}, s[{SWS}:{SWS + 3}], s6 offen sc1"],
                               G, 1, VT, sleep=32)
            e(f"v_mov_b32 v{M}, v{G}")
            self.allreduce("v_max_f32", M, T)
            e(f"v_sub_f32 v{G}, v{G}, v{M}")
            e(f"v_mul_f32 v{G}, {hex(LOG2E)}, v{G}")
            e(f"v_exp_f32 v{G}, v{G}")
            e("s_nop 0")
            e(f"v_mul_f32 v{LS}, v{G}, v{G + 2}")
            self.allreduce("v_add_f32", LS, T)
            e(f"v_mul_f32 v{LS}, 0.5, v{LS}")
            e(f"v_rcp_f32 v{LS}, v{LS}")
            unpack(r)
            for k in range(16):
                e(f"v_sub_f32 v{U + k}, v{U + k}, v{M}")
            for k in range(16):
                e(f"v_mul_f32 v{U + k}, {hex(LOG2E)}, v{U + k}")
            for k in range(16):
                e(f"v_exp_f32 v{U + k}, v{U + k}")
            e("s_nop 0")
            for k in range(16):
                e(f"v_mul_f32 v{U + k}, v{U + k}, v{LS}")
            b = SCR + 8 * r
            for k in range(8):
                e(f"v_cvt_pk_bf16_f32 v{b + k}, v{U + 2 * k}, v{U + 2 * k + 1}")
            e(f"ds_write_b128 v{VS32}, v[{b}:{b + 3}] offset:{L_SC + 2048 * r}")
            e(f"ds_write_b128 v{VS32}, v[{b + 4}:{b + 7}] offset:{L_SC + 2048 * r + 16}")
            self.set_lds(L_FLP, r + 1, VT)

        def publish_op(r):
            self.wait_lds(L_FLS, r + 5, VT, n=NS, sleep=(1 if r == 3 else 8))
            if r == 3:
                self.stamp(7)
            e("s_mov_b32 exec_lo, -1")
            e("s_mov_b32 exec_hi, 0xffff")
            D = 28
            rows = 8 * NS
            for blk in range(0, rows, 16):
                for i in range(16):
                    d = D + 4 * (i + 1)
                    e(f"ds_read_b128 v[{d}:{d + 3}], v{VL16} offset:{L_DUMP + r * self.dump_bytes + 768 * (blk + i)}")
                    if i == 7:
                        e("s_waitcnt lgkmcnt(7)")
                for i in range(16):
                    d = D + 4 * (i + 1)
                    e(f"s_waitcnt lgkmcnt({min(15 - i, 15)})")
                    for k in range(4):
                        if blk == 0 and i == 0:
                            e(f"v_mov_b32 v{D + k}, v{d + k}")
                        else:
                            e(f"v_add_f32 v{D + k}, v{D + k}, v{d + k}")
            self.sanitize(D, 4)
            e(f"s_mul_i32 s6, s{S_X}, {4 * 24576}")
            e(f"s_lshl_b32 s7, s{S_C}, 8")
            e("s_add_u32 s6, s6, s7")
            e(f"s_add_u32 s6, s6, {WS_OP + 24576 * r}")
            e(f"buffer_store_dwordx4 v[{D}:{D + 3}], v{VOP}, s[{SWS}:{SWS + 3}], s6 offen sc1")
            e("s_mov_b64 exec, -1")

        assert NS == 2
        for r in range(4):
            local_stats(r)
            if r >= 1:
                finalize_p(r - 1)
        publish_op(0)
        finalize_p(3)
        for r in (1, 2, 3):
            publish_op(r)
        self.stamp(8)
        self.prof_store(9)
        e("s_endpgm")
        return SCR + 32

    def helperB(self):
        e = self.e
        NS = self.NS
        S_RB, S_CB = 40, 41
        SX, SA, SWS, SDB = 8, 12, 44, 48
        VT = 4
        XA, XB, XC, F, XOP = 12, 16, 20, 24, 40
        ACC, T = 56, 64
        RESP = 68
        VA = [88, 89, 90, 91]
        VP, VG, VPT = 92, 93, 94
        W = 96
        e("L_helperB:")
        e(f"v_mul_u32_u24 v{VA[0]}, 0x18000, v1")
        e(f"v_lshl_add_u32 v{VA[0]}, v2, 4, v{VA[0]}")
        e(f"v_mul_u32_u24 v{VA[1]}, 0x6000, v1")
        e(f"v_lshl_add_u32 v{VA[1]}, v2, 4, v{VA[1]}")
        e(f"v_mul_u32_u24 v{VA[2]}, 0x2800, v1")
        e(f"v_lshl_add_u32 v{VA[2]}, v2, 4, v{VA[2]}")
        e(f"v_lshrrev_b32 v{VP}, 5, v0")
        e(f"v_lshlrev_b32 v{VP}, 7, v{VP}")
        e(f"v_lshl_add_u32 v{VP}, v2, 4, v{VP}")
        e(f"v_lshrrev_b32 v{VPT}, 4, v0")
        e(f"v_lshlrev_b32 v{VPT}, 7, v{VPT}")
        e(f"v_lshl_add_u32 v{VPT}, v2, 4, v{VPT}")
        for k in range(4):
            e(f"v_mov_b32 v{VT + k}, 0")
        e(f"ds_write_b128 v{VT}, v[{VT}:{VT + 3}] offset:{L_FLQ}")
        e(f"ds_write_b32 v{VT}, v{VT} offset:{L_FLG}")
        e("s_waitcnt lgkmcnt(0)")
        self.srd(SX, P_X, 1280)
        self.srd(SWS, P_WS, WS_SIZE)
        self.srd(SA, P_WQ, 640 * 12288)
        e("s_barrier")
        e(f"s_mul_i32 s53, s{S_X}, {PA_X}")
        e(f"s_cmp_ge_u32 s{S_C}, 30")
        e("s_cbranch_scc1 L_hb_clear")
        self.ln_loads(SX, 0, 1, XA, XB, XC, F, S_RB)

        def setup_job(n):
            if n < 3:
                e(f"s_mul_i32 s42, s{S_RB}, {64 * 12288}")
                e(f"s_mul_i32 s43, s{S_X}, 384")
                e("s_add_u32 s42, s42, s43")
                e(f"s_lshl_b32 s43, s{S_CB}, 7")
                e("s_add_u32 s42, s42, s43")
                e(f"s_add_u32 s42, s42, {8 * 384 * (n + 1)}")
                return VA[0], 12288
            if n < 5:
                self.srd(SA, P_G if n == 3 else P_U, 640 * 3072)
                e(f"s_mul_i32 s42, s{S_RB}, {64 * 3072}")
                e(f"s_mul_i32 s43, s{S_X}, 384")
                e("s_add_u32 s42, s42, s43")
                e(f"s_lshl_b32 s43, s{S_CB}, 7")
                e("s_add_u32 s42, s42, s43")
                return VA[1], 3072
            if n == 5:
                self.srd(SA, P_WO, 6144 * 1280)
            if n == 9:
                self.srd(SA, P_D, 1536 * 1280)
            e(f"s_mul_i32 s42, s{S_X}, {192 * 1280}")
            e(f"s_mul_i32 s43, s{S_CB}, {64 * 1280}")
            e("s_add_u32 s42, s42, s43")
            e(f"s_lshl_b32 s43, s{S_RB}, 7")
            e("s_add_u32 s42, s42, s43")
            if 5 < n < 9:
                e(f"s_add_u32 s42, s42, {8 * 192 * 1280 * (n - 5)}")
            return VA[2], 1280

        cap = self.capH
        LH = max(cap, 16)
        for i in range(80):
            if i % 8 == 0:
                va, stride = setup_job(i // 8)
            if i >= cap - 3:
                e(f"s_waitcnt vmcnt({cap - 1})")
            r = W + 4 * (i % 40)
            e(f"buffer_load_dwordx4 v[{r}:{r + 3}], v{va}, s[{SA}:{SA + 3}], s42 offen nt")
            if i % 8 < 7:
                e(f"s_add_u32 s42, s42, {stride}")
            if i == self.go_at:
                self.set_lds(L_FLG, 1, VT)
            if i == LH - 1:
                self.ln_compute(XA, XB, XC, F, XOP)
            j = i - LH
            if 0 <= j < 40:
                if j % 8 == 0:
                    for k in range(8):
                        e(f"v_mov_b32 v{ACC + k}, 0")
                self.gemv_row(W + 4 * j, XOP + 2 * (j % 8), ACC)
                if j % 8 == 7:
                    self.reduce_g2(ACC, RESP + 4 * (j // 8))
        self.stamp(1)
        e("L_hb_clear:")
        if self.go_at is not None:
            self.set_lds(L_FLG, 1, VT)
        self.wait_lds(L_FLN, 1, VT, sleep=2)
        e(f"ds_read_b32 v{VT}, v{VT + 4} offset:{L_TAG}")
        e("s_waitcnt lgkmcnt(0)")
        e(f"v_readfirstlane_b32 s{S_TAG}, v{VT}")
        for k in range(4):
            e(f"v_mov_b32 v{T + k}, -1")
        e(f"s_cmp_ge_u32 s{S_C}, 30")
        e("s_cbranch_scc1 L_hb_clear2")
        for n in range(5):
            self.tag_regs(RESP + 4 * n)
        e(f"s_mul_i32 s6, s{S_RB}, {PA_ROW}")
        e("s_add_u32 s6, s6, s53")
        e(f"s_lshl_b32 s7, s{S_CB}, 9")
        e("s_add_u32 s6, s6, s7")
        self.exec_tagged()
        for n in range(5):
            e(f"s_add_u32 s6, s6, {PA_JOB}")
            if not (self.d_nopa and n < 3):
                e(f"buffer_store_dwordx4 v[{RESP + 4 * n}:{RESP + 4 * n + 3}], v{VPT}, s[{SWS}:{SWS + 3}], s6 offen sc1")
        e(f"s_mul_i32 s54, s{S_RB}, 24")
        e(f"s_mul_i32 s7, s{S_X}, 3")
        e("s_add_u32 s54, s54, s7")
        e(f"s_add_u32 s54, s54, s{S_CB}")
        e("s_lshl_b32 s55, s54, 9")
        e("s_lshl_b32 s54, s54, 8")
        e(f"s_add_u32 s55, s55, {WS_YB}")
        e(f"s_add_u32 s54, s54, {WS_YA}")
        e("s_mov_b32 exec_lo, 0xff")
        e("s_mov_b32 exec_hi, 0xff")
        e(f"buffer_store_dwordx4 v[{T}:{T + 3}], v{VP}, s[{SWS}:{SWS + 3}], s54 offen sc1")
        e("s_mov_b64 exec, -1")
        e("L_hb_clear2:")
        self.c("mark this workgroup's later hand-off slots empty")
        e(f"v_lshrrev_b32 v{VG}, 4, v0")
        e(f"v_lshlrev_b32 v{VG}, 13, v{VG}")
        e(f"v_and_b32 v{VT}, 15, v0")
        e(f"v_lshl_add_u32 v{VG}, v{VT}, 4, v{VG}")
        e(f"s_mul_i32 s6, s{S_X}, {4 * 24576}")
        e(f"s_lshl_b32 s7, s{S_C}, 8")
        e("s_add_u32 s6, s6, s7")
        e(f"s_add_u32 s6, s6, {WS_OP}")
        e("s_mov_b32 exec_lo, -1")
        e("s_mov_b32 exec_hi, 0xffff")
        for r in range(4):
            if not self.d_noclear or r == 3:
                e(f"buffer_store_dwordx4 v[{T}:{T + 3}], v{VG}, s[{SWS}:{SWS + 3}], s6 offen sc1")
            if r < 3:
                e("s_add_u32 s6, s6, 24576")
        e("s_mov_b64 exec, -1")
        e("s_waitcnt vmcnt(0)")
        self.set_lds(L_FLC, 1, VT)
        self.stamp(2)
        e(f"s_cmp_ge_u32 s{S_C}, 30")
        e("s_cbranch_scc1 L_finisher")

        self.c("ffn hidden slice and down projection")
        self.wait_lds(L_FLQ, 4, VT, sleep=8)
        G0 = 12
        GA, UA = 44, 52
        e(f"v_mul_u32_u24 v{VA[0]}, {PA_ROW}, v2")
        e(f"v_lshl_add_u32 v{VA[0]}, v1, 4, v{VA[0]}")
        e(f"v_add_u32 v{VA[1]}, {8 * PA_ROW}, v{VA[0]}")
        e(f"v_mov_b32 v{VA[2]}, 0x40000000")
        e("v_cmp_gt_u32 s[58:59], 2, v2")
        e("s_nop 1")
        e(f"v_cndmask_b32 v{VA[1]}, v{VA[2]}, v{VA[1]}, s[58:59]")
        for m in range(2):
            e(f"s_lshl_b32 s7, s{S_CB}, 9")
            e("s_add_u32 s6, s53, s7")
            e(f"s_add_u32 s6, s6, {(4 + m) * PA_JOB}")
            loads = [f"buffer_load_dwordx4 v[{G0 + 16 * h + 4 * q}:{G0 + 16 * h + 4 * q + 3}], v{VA[h]}, "
                     f"s[{SWS}:{SWS + 3}], s6 offen offset:{128 * q} sc1" for h in range(2) for q in range(4)]
            self.gather_tagged(loads, G0, 8, VT, sleep=32, skip=((4, 5, 6, 7), 58))
            for k in range(8):
                e(f"v_add_f32 v{GA + 8 * m + k}, v{G0 + 2 * k}, v{G0 + 16 + 2 * k}")
        self.reduce_sub(GA, 16)
        for k in range(16):
            self.round_bf16(GA + k)
        Z = G0 + 16
        c2 = -2.0 * 0.7978845608028654 * 1.4426950408889634
        e(f"s_mov_b32 s6, {hex(f2u(0.044715))}")
        for k in range(8):
            e(f"v_mul_f32 v{Z + k}, v{GA + k}, v{GA + k}")
        for k in range(8):
            e(f"v_mul_f32 v{Z + k}, v{Z + k}, v{GA + k}")
        for k in range(8):
            e(f"v_fma_f32 v{Z + k}, v{Z + k}, s6, v{GA + k}")
        for k in range(8):
            e(f"v_mul_f32 v{Z + k}, {hex(f2u(c2))}, v{Z + k}")
        for k in range(8):
            e(f"v_exp_f32 v{Z + k}, v{Z + k}")
        for k in range(8):
            e(f"v_add_f32 v{Z + k}, 1.0, v{Z + k}")
        for k in range(8):
            e(f"v_rcp_f32 v{Z + k}, v{Z + k}")
        for k in range(8):
            e(f"v_mul_f32 v{Z + k}, v{Z + k}, v{GA + k}")
        for k in range(8):
            self.round_bf16(Z + k)
        for k in range(8):
            e(f"v_mul_f32 v{Z + k}, v{Z + k}, v{UA + k}")
        for k in range(4):
            e(f"v_cvt_pk_bf16_f32 v{G0 + k}, v{Z + 2 * k}, v{Z + 2 * k + 1}")
        XO = 44
        self.expand(G0, XO)
        A2 = 60
        for k in range(8):
            e(f"v_mov_b32 v{A2 + k}, 0")
        for i in range(8):
            self.gemv_row(W + 4 * (32 + i), XO + 2 * i, A2)
        self.reduce_g2(A2, RESP)
        self.tag_regs(RESP)
        self.exec_tagged()
        e(f"buffer_store_dwordx4 v[{RESP}:{RESP + 3}], v{VPT}, s[{SWS}:{SWS + 3}], s55 offen sc1")
        e("s_mov_b64 exec, -1")
        self.stamp(3)

        self.c("attention output slices times wo")
        YA = 76
        for k in range(8):
            e(f"v_mov_b32 v{YA + k}, 0")
        e(f"v_lshlrev_b32 v{VG}, 8, v2")
        e(f"v_lshl_add_u32 v{VG}, v1, 5, v{VG}")
        for r in range(4):
            if r < 2:
                self.wait_lds(L_FLS, r + 6, VT, n=NS, sleep=8)
            elif r == 3:
                self.wait_lds(L_FLS, 8, VT, n=NS, sleep=1)
                self.stamp(4)
            e(f"s_mul_i32 s6, s{S_X}, {4 * 24576}")
            e(f"s_lshl_b32 s7, s{S_CB}, 13")
            e("s_add_u32 s6, s6, s7")
            e(f"s_add_u32 s6, s6, {WS_OP + 24576 * r}")
            e("s_add_u32 s7, s6, 4096")
            loads = []
            for j in range(4):
                for q in range(2):
                    d = G0 + 8 * j + 4 * q
                    loads.append(f"buffer_load_dwordx4 v[{d}:{d + 3}], v{VG}, s[{SWS}:{SWS + 3}], s{6 + j // 2} "
                                 f"offen offset:{2048 * (j % 2) + 16 * q} sc1")
            self.gather_valid(loads, G0, 32, VT, sleep=(self.tail_sleep if r == 3 else 32))
            if r == 3:
                self.stamp(5)
            for j in range(1, 4):
                for k in range(8):
                    e(f"v_add_f32 v{G0 + k}, v{G0 + k}, v{G0 + 8 * j + k}")
            self.reduce_sub(G0, 8)
            for k in range(4):
                e(f"v_cvt_pk_bf16_f32 v{G0 + 8 + k}, v{G0 + 2 * k}, v{G0 + 2 * k + 1}")
            self.expand(G0 + 8, XO)
            for i in range(8):
                self.gemv_row(W + 4 * (8 * r + i), XO + 2 * i, YA)
        self.reduce_g(YA, RESP, RESP + 4)
        self.sanitize(RESP, 4)
        e("s_mov_b32 exec_lo, 0xff")
        e("s_mov_b32 exec_hi, 0xff")
        e(f"buffer_store_dwordx4 v[{RESP}:{RESP + 3}], v{VP}, s[{SWS}:{SWS + 3}], s54 offen sc1")
        self.stamp(6)
        self.prof_store(7)
        e("s_endpgm")

        self.c("finisher: sums the projection partials of one 64-column block and writes the output")
        e("L_finisher:")
        e(f"s_sub_u32 s56, s{S_C}, 30")
        e("s_lshl_b32 s56, s56, 3")
        e(f"s_add_u32 s56, s56, s{S_X}")
        e("s_cmp_ge_u32 s56, 10")
        e("s_cbranch_scc1 L_exit")
        self.wait_lds(L_FLS, 2, VT, n=NS, sleep=8)
        e(f"v_lshlrev_b32 v{VA[1]}, 4, v0")
        e(f"v_and_b32 v{VA[3]}, 1, v1")
        e(f"v_lshlrev_b32 v{VA[2]}, 4, v2")
        e(f"v_lshl_add_u32 v{VA[0]}, v{VA[3]}, 8, v{VA[2]}")
        e(f"v_lshl_add_u32 v{VA[2]}, v{VA[3]}, 3, v{VA[2]}")
        e(f"v_lshrrev_b32 v{VA[3]}, 4, v0")
        e(f"v_lshl_add_u32 v{VA[0]}, v{VA[3]}, 9, v{VA[0]}")
        XV, BV = 64, 72
        e("s_lshl_b32 s57, s56, 7")
        e(f"buffer_load_dwordx2 v[{XV}:{XV + 1}], v{VA[2]}, s[{SX}:{SX + 3}], s57 offen")

        def finish_y():
            for sw in ("v_permlane16_swap_b32", "v_permlane32_swap_b32"):
                for k in range(4):
                    e(f"v_mov_b32 v{G0 + 4 + k}, v{G0 + k}")
                e("s_nop 0")
                for k in range(4):
                    e(f"{sw} v{G0 + k}, v{G0 + 4 + k}")
                e("s_nop 0")
                for k in range(4):
                    e(f"v_add_f32 v{G0 + k}, v{G0 + k}, v{G0 + 4 + k}")
            for k in range(4):
                self.round_bf16(G0 + k)

        def gather_y(base, sleep):
            e("s_mul_i32 s6, s56, 6144")
            e(f"s_add_u32 s6, s6, {base}")
            e("s_add_u32 s7, s6, 4096")
            loads = [f"buffer_load_dwordx4 v[{G0 + 4 * i}:{G0 + 4 * i + 3}], v{VA[1]}, s[{SWS}:{SWS + 3}], "
                     f"s{6 + i // 4} offen offset:{1024 * (i % 4)} sc1" for i in range(6)]
            self.gather_valid(loads, G0, 24, VT, sleep=sleep)
            for i in range(1, 6):
                for k in range(4):
                    e(f"v_add_f32 v{G0 + k}, v{G0 + k}, v{G0 + 4 * i + k}")
            finish_y()

        e("s_mul_i32 s6, s56, 12288")
        e(f"s_add_u32 s6, s6, {WS_YB}")
        e("s_add_u32 s7, s6, 4096")
        e("s_add_u32 s58, s6, 8192")
        loads = [f"buffer_load_dwordx4 v[{G0 + 8 * i + 4 * q}:{G0 + 8 * i + 4 * q + 3}], v{VA[0]}, s[{SWS}:{SWS + 3}], "
                 f"s{(6, 7, 58)[i // 2]} offen offset:{2048 * (i % 2) + 128 * q} sc1" for i in range(6) for q in range(2)]
        self.gather_tagged(loads, G0, 12, VT, sleep=32)
        for i in range(1, 6):
            for k in range(4):
                e(f"v_add_f32 v{G0 + 2 * k}, v{G0 + 2 * k}, v{G0 + 8 * i + 2 * k}")
        for k in range(1, 4):
            e(f"v_mov_b32 v{G0 + k}, v{G0 + 2 * k}")
        finish_y()
        for k in range(4):
            e(f"v_mov_b32 v{BV + k}, v{G0 + k}")
        e(f"v_lshlrev_b32 v{XV + 2}, 16, v{XV}")
        e(f"v_and_b32 v{XV + 3}, 0xffff0000, v{XV}")
        e(f"v_lshlrev_b32 v{XV + 4}, 16, v{XV + 1}")
        e(f"v_and_b32 v{XV + 5}, 0xffff0000, v{XV + 1}")
        self.srd(SA, P_OUT, 1280)
        self.stamp(3)
        self.wait_lds(L_FLS, 8, VT, n=NS, sleep=1)
        self.stamp(4)
        gather_y(WS_YA, 0)
        self.stamp(5)
        for k in range(4):
            e(f"v_add_f32 v{G0 + k}, v{G0 + k}, v{XV + 2 + k}")
        for k in range(4):
            self.round_bf16(G0 + k)
        for k in range(4):
            e(f"v_add_f32 v{G0 + k}, v{G0 + k}, v{BV + k}")
        e(f"v_cvt_pk_bf16_f32 v{G0}, v{G0}, v{G0 + 1}")
        e(f"v_cvt_pk_bf16_f32 v{G0 + 1}, v{G0 + 2}, v{G0 + 3}")
        e("s_mov_b64 exec, 0xffff")
        e(f"buffer_store_dwordx2 v[{G0}:{G0 + 1}], v{VA[2]}, s[{SA}:{SA + 3}], s57 offen")
        e("s_cmp_lg_u32 s56, 0")
        e("s_cbranch_scc1 L_fin_done")
        self.c("the next launch derives a different tag from this word")
        e(f"v_mov_b32 v{VT}, s{S_TAG}")
        e(f"v_mov_b32 v{VT + 1}, {WS_EPOCH}")
        e("s_mov_b64 exec, 1")
        e(f"buffer_store_dword v{VT}, v{VT + 1}, s[{SWS}:{SWS + 3}], 0 offen")
        e("L_fin_done:")
        if self.diag_dbg:
            e("s_memrealtime s[66:67]")
            e("s_waitcnt lgkmcnt(0)")
            e("s_sub_u32 s66, s66, s64")
            self.srd(48, P_DBG, 256)
            e(f"v_mov_b32 v{VT}, s66")
            e("s_lshl_b32 s6, s56, 2")
            e(f"v_mov_b32 v{VT + 1}, s6")
            e("s_mov_b64 exec, 1")
            e(f"buffer_store_dword v{VT}, v{VT + 1}, s[48:51], 0 offen")
        if self.diag_hold:
            e("L_hold:")
            e("s_memrealtime s[66:67]")
            e("s_waitcnt lgkmcnt(0)")
            e("s_sub_u32 s66, s66, s64")
            e(f"s_cmp_lt_u32 s66, {self.diag_hold}")
            e("s_cbranch_scc1 L_hold")
        self.stamp(6)
        self.prof_store(7)
        e("L_exit:")
        e("s_endpgm")
        return W + 160

    def build(self):
        self.entry()
        nv = max(self.streamer(), self.helperA(), self.helperB())
        assert nv <= 256
        body = "\n".join(l if l.endswith(":") or l.startswith(";") else "    " + l for l in self.o)
        return (HEADER.format(block=64 * (self.NS + 2), lds=self.lds, name=NAME) + body
                + FOOTER.format(name=NAME, vgpr=nv, acc=(nv + 3) // 4 * 4))


def gen(**kw):
    return Gen(**kw).build()


if __name__ == "__main__":
    out = sys.argv[1] if len(sys.argv) > 1 else f"cdna_kernels/{NAME}.s"
    kw = eval("dict(" + (sys.argv[2] if len(sys.argv) > 2 else "") + ")")
    open(out, "w").write(gen(**kw))
```

```python
import struct
import sys

NAME = "parallel_sum__mha_block_cached__geglu_ffn__decode"
HEAD = 32768 * 384
KV_BYTES = 32 * HEAD
SENT = 0xFFFFFFFF

WS_PA0 = 0x000000
WS_PA1 = 0x020000
WS_STA = 0x040000
WS_STB = 0x044000
WS_YA = 0x050000
WS_YB = 0x060000
WS_OP = 0x070000
WS_EPOCH = 0x140000
WS_PROF = 0x200000
WS_SIZE = 0x400000
NONCE_STEP = 0x9E3779B9

L_FLS = 0
L_FIT = 8
L_FLQ = 16
L_FLP = 20
L_FLN = 24
L_FLG = 28
L_TAG = 32
L_PCN = 36
L_PD = 40
L_Q = 64
L_XN = 1664
L_SC = 3072
L_PAIR = L_SC + 8192
L_DUMP = L_PAIR + 2048
S_TAG = 60


def f2u(x):
    return struct.unpack("<I", struct.pack("<f", x))[0]


LOG2E = f2u(1.4426950408889634)
SCALE = f2u(192 ** -0.5)

HEADER = """; Kernarg layout for this problem (96 bytes, ptrs only, base s[0:1]):
; @launch grid=(256,1,1) block=({block},1,1) lds={lds}
.amdgcn_target "amdgcn-amd-amdhsa--gfx950"
.text
.globl {name}_kernel
.p2align 8
.type {name}_kernel,@function
{name}_kernel:
"""
FOOTER = """
.section .rodata,"a"
.p2align 6
.amdhsa_kernel {name}_kernel
  .amdhsa_next_free_vgpr {vgpr}
  .amdhsa_next_free_sgpr 96
  .amdhsa_accum_offset {acc}
  .amdhsa_group_segment_fixed_size 0
  .amdhsa_kernarg_size 96
  .amdhsa_user_sgpr_count 2
  .amdhsa_user_sgpr_kernarg_segment_ptr 1
  .amdhsa_system_sgpr_workgroup_id_x 1
.end_amdhsa_kernel
"""

DPP_ALL = "row_mask:0xf bank_mask:0xf"
X1 = "quad_perm:[1,0,3,2] " + DPP_ALL
X2 = "quad_perm:[2,3,0,1] " + DPP_ALL
HM = "row_half_mirror " + DPP_ALL
RM = "row_mirror " + DPP_ALL
R8 = "row_ror:8 " + DPP_ALL

S_WAVE, S_X, S_C = 3, 4, 5
P_X, P_K, P_V, P_WQ, P_WO, P_G, P_U, P_D, P_OUT, P_DBG, P_WS = 16, 18, 20, 22, 24, 28, 30, 32, 34, 36, 38
SPIN_G = 400000
SPIN_L = 4000000


class Gen:
    def __init__(self, R=24, L=23, cap=11, cap0=11, capA=22, capB=22, a_early=0, go_at=39, cap_tail=None,
                 tail_iters=1, it_q=3, it_st=4, it_op=3, prof=False, diag_hold=0, diag_dbg=False):
        NS = 2
        self.NS, self.R, self.L = NS, R, L
        self.cap, self.cap0, self.capA, self.capB = cap, cap0, capA, capB
        self.a_early, self.go_at = a_early, go_at
        self.cap_tail = cap_tail or cap
        self.tail_iters = tail_iters
        self.it_q, self.it_st, self.it_op = it_q, it_st, it_op
        self.prof = prof
        self.diag_hold, self.diag_dbg = diag_hold, diag_dbg
        self.o = []
        self.uid = 0
        self.steps = 32768 // (32 * NS * 16)
        self.tpi = R // 6
        assert R == 24 and L < R
        assert max(cap, cap0, self.cap_tail) <= L
        self.ipr = self.steps // self.tpi
        self.step_bytes = 32 * NS * 6144
        self.dump_bytes = 8 * NS * 768
        self.lds = L_DUMP + 3 * self.dump_bytes

    def e(self, s):
        self.o.append(s)

    def c(self, s):
        self.o.append("; " + s)

    def label(self, base):
        self.uid += 1
        return f"L_{base}_{self.uid}"

    def srd(self, d, p, size):
        self.e(f"s_mov_b32 s{d}, s{p}")
        self.e(f"s_mov_b32 s{d+1}, s{p+1}")
        self.e(f"s_mov_b32 s{d+2}, {size}")
        self.e(f"s_mov_b32 s{d+3}, 0x20000")

    def stamp(self, k):
        if self.prof:
            self.e(f"s_memrealtime s[{64 + 2 * k}:{65 + 2 * k}]")
            self.e("s_waitcnt lgkmcnt(0)")

    def stamp_round(self, sreg, base):
        if not self.prof:
            return
        for r in range(4):
            lb = self.label("st")
            self.e(f"s_cmp_lg_u32 s{sreg}, {r}")
            self.e(f"s_cbranch_scc1 {lb}")
            self.stamp(base + r)
            self.e(f"{lb}:")

    def prof_store(self, n):
        if not self.prof:
            return
        e = self.e
        e("s_mov_b64 exec, -1")
        e("s_waitcnt vmcnt(0) lgkmcnt(0)")
        self.srd(12, P_WS, WS_SIZE)
        e("s_lshl_b32 s6, s2, 2")
        e(f"s_add_u32 s6, s6, s{S_WAVE}")
        e("s_lshl_b32 s6, s6, 6")
        e(f"s_add_u32 s6, s6, {WS_PROF}")
        e("v_mov_b32 v1, 0")
        e("s_getreg_b32 s7, hwreg(HW_REG_XCC_ID)")
        e("v_mov_b32 v2, s7")
        e("s_mov_b64 exec, 1")
        e("buffer_store_dword v2, v1, s[12:15], s6 offen offset:60")
        for k in range(n):
            e(f"v_mov_b32 v{4 + k}, s{64 + 2 * k}")
            e(f"buffer_store_dword v{4 + k}, v1, s[12:15], s6 offen offset:{4 * k}")
        e("s_waitcnt vmcnt(0)")

    def allreduce(self, op, v, t):
        e = self.e
        for pat in (X1, X2, HM, RM):
            e("s_nop 1")
            e(f"{op}_dpp v{v}, v{v}, v{v} {pat}")
        for sw in ("v_permlane16_swap_b32", "v_permlane32_swap_b32"):
            e(f"v_mov_b32 v{t}, v{v}")
            e("s_nop 1")
            e(f"{sw} v{v}, v{t}")
            e("s_nop 1")
            e(f"{op} v{v}, v{v}, v{t}")

    def round_bf16(self, v):
        self.e(f"v_cvt_pk_bf16_f32 v{v}, v{v}, v{v}")
        self.e(f"v_and_b32 v{v}, 0xffff0000, v{v}")

    def expand(self, src, dst):
        e = self.e
        for k in range(4):
            e(f"v_and_b32 v{dst + 4 * k}, 0xffff, v{src + k}")
            e(f"v_lshlrev_b32 v{dst + 4 * k + 1}, 16, v{src + k}")
            e(f"v_lshrrev_b32 v{dst + 4 * k + 2}, 16, v{src + k}")
            e(f"v_and_b32 v{dst + 4 * k + 3}, 0xffff0000, v{src + k}")

    def gemv_row(self, w, xop, acc):
        for k in range(4):
            self.e(f"v_dot2c_f32_bf16 v{acc + 2 * k}, v{w + k}, v{xop}")
            self.e(f"v_dot2c_f32_bf16 v{acc + 2 * k + 1}, v{w + k}, v{xop + 1}")

    def reduce_g(self, acc, res, t):
        e = self.e
        e("s_nop 2")
        for k in range(4):
            e(f"v_permlane32_swap_b32 v{acc + k}, v{acc + k + 4}")
        e("s_nop 0")
        for k in range(4):
            e(f"v_add_f32 v{res + k}, v{acc + k}, v{acc + k + 4}")
        for k in range(4):
            e(f"v_mov_b32 v{t + k}, v{res + k}")
        e("s_nop 0")
        for k in range(4):
            e(f"v_permlane16_swap_b32 v{res + k}, v{t + k}")
        e("s_nop 0")
        for k in range(4):
            e(f"v_add_f32 v{res + k}, v{res + k}, v{t + k}")
        e("s_nop 0")
        for k in range(4):
            e(f"v_add_f32_dpp v{res + k}, v{res + k}, v{res + k} {R8}")

    def tag_regs(self, res):
        self.e(f"v_mov_b32 v{res + 1}, s{S_TAG}")
        self.e(f"v_mov_b32 v{res + 3}, s{S_TAG}")

    def reduce_g2(self, acc, res):
        e = self.e
        e("s_nop 2")
        for k in range(4):
            e(f"v_permlane32_swap_b32 v{acc + k}, v{acc + k + 4}")
        e("s_nop 0")
        for k in range(4):
            e(f"v_add_f32 v{acc + k}, v{acc + k}, v{acc + k + 4}")
        e("s_nop 1")
        for k in range(2):
            e(f"v_permlane16_swap_b32 v{acc + k}, v{acc + k + 2}")
        e("s_nop 0")
        for k in range(2):
            e(f"v_add_f32 v{acc + k}, v{acc + k}, v{acc + k + 2}")
        e("s_nop 1")
        for k in range(2):
            e(f"v_add_f32_dpp v{res + 2 * k}, v{acc + k}, v{acc + k} {R8}")

    def exec_tagged(self):
        self.e("s_mov_b32 exec_lo, 0x00ff00ff")
        self.e("s_mov_b32 exec_hi, 0x00ff00ff")

    def make_tags(self, dst):
        self.e("s_movk_i32 s61, 0xff")
        for k in range(4):
            self.e(f"v_bfe_u32 v{dst + k}, s{S_TAG}, {8 * k}, 8")

    def embed(self, v, tg):
        for k in range(4):
            self.e(f"v_bfi_b32 v{v + k}, s61, v{tg + k}, v{v + k}")

    def read_tag(self, vt):
        e = self.e
        e(f"v_mov_b32 v{vt + 4}, 0")
        e(f"ds_read_b32 v{vt}, v{vt + 4} offset:{L_TAG}")
        e("s_waitcnt lgkmcnt(0)")
        e(f"v_readfirstlane_b32 s{S_TAG}, v{vt}")
        e("s_nop 1")

    def gather_emb(self, groups, tg, vt, sm, lanes=64, sleep=1, between=None, whole=False):
        e = self.e
        lp, ok, mid = self.label("ge"), self.label("geok"), self.label("gemid")
        n = len(groups)
        e(f"s_mov_b32 s62, {SPIN_G}")
        for j in range(n):
            e(f"s_mov_b32 s{sm + 2 * j}, -1")
            e(f"s_mov_b32 s{sm + 2 * j + 1}, {hex((1 << (lanes - 32)) - 1)}")
        if between:
            e(f"s_mov_b64 exec, s[{sm}:{sm + 1}]")
            for loads, _, _ in groups:
                for s_ in loads:
                    e(s_)
            e("s_mov_b64 exec, -1")
            between()
            e(f"s_branch {mid}")
        e(f"{lp}:")
        for j, (loads, _, _) in enumerate(groups):
            sk = self.label("gs")
            e(f"s_mov_b64 exec, s[{sm + 2 * j}:{sm + 2 * j + 1}]")
            e(f"s_cbranch_execz {sk}")
            for s_ in loads:
                e(s_)
            e(f"{sk}:")
        e(f"{mid}:")
        e("s_mov_b64 vcc, 0")
        e("s_waitcnt vmcnt(0)")
        for j, (_, first, nrec) in enumerate(groups):
            sk = self.label("gs")
            e(f"s_mov_b64 exec, s[{sm + 2 * j}:{sm + 2 * j + 1}]")
            e(f"s_cbranch_execz {sk}")
            for k in range(4 * nrec):
                e(f"v_xor_b32 v{first + k}, v{first + k}, v{tg + k % 4}")
            e(f"v_or_b32 v{vt}, v{first}, v{first + 1}")
            for k in range(2, 4 * nrec, 2):
                e(f"v_or3_b32 v{vt}, v{vt}, v{first + k}, v{first + k + 1}")
            e(f"v_and_b32 v{vt}, s61, v{vt}")
            e(f"v_cmp_ne_u32 s[{sm + 2 * j}:{sm + 2 * j + 1}], 0, v{vt}")
            e("s_nop 0")
            e(f"s_or_b64 vcc, vcc, s[{sm + 2 * j}:{sm + 2 * j + 1}]")
            if whole:
                e(f"s_cmp_lg_u64 s[{sm + 2 * j}:{sm + 2 * j + 1}], 0")
                e(f"s_cselect_b64 s[{sm + 2 * j}:{sm + 2 * j + 1}], -1, 0")
            e(f"{sk}:")
        e("s_mov_b64 exec, -1")
        e("s_cmp_eq_u64 vcc, 0")
        e(f"s_cbranch_scc1 {ok}")
        if isinstance(sleep, str):
            sk = self.label("gs")
            e(f"s_cmp_eq_u32 {sleep}, 0")
            e(f"s_cbranch_scc1 {sk}")
            e("s_sleep 32")
            e(f"{sk}:")
        elif sleep:
            e(f"s_sleep {sleep}")
        e("s_sub_u32 s62, s62, 1")
        e("s_cmp_lg_u32 s62, 0")
        e(f"s_cbranch_scc1 {lp}")
        e("s_endpgm")
        e(f"{ok}:")

    def gather_tagged(self, loads, first, nrec, vt, sleep=1, skip=None, between=None):
        e = self.e
        lp, ok, mid = self.label("gt"), self.label("gtok"), self.label("gtmid")
        e(f"s_mov_b32 s62, {SPIN_G}")
        if between:
            for s_ in loads:
                e(s_)
            between()
            e(f"s_branch {mid}")
        e(f"{lp}:")
        for s_ in loads:
            e(s_)
        e(f"{mid}:")
        e(f"v_mov_b32 v{vt}, 0")
        e(f"v_mov_b32 v{vt + 1}, 0")
        e("s_waitcnt vmcnt(0)")
        for k in range(nrec):
            t = vt + 1 if skip and k in skip[0] else vt
            e(f"v_bitop3_b32 v{t}, v{t}, v{first + 4 * k + 1}, s{S_TAG} bitop3:0xf6")
            e(f"v_bitop3_b32 v{t}, v{t}, v{first + 4 * k + 3}, s{S_TAG} bitop3:0xf6")
        if skip:
            e(f"v_cndmask_b32 v{vt + 1}, 0, v{vt + 1}, s[{skip[1]}:{skip[1] + 1}]")
            e(f"v_or_b32 v{vt}, v{vt}, v{vt + 1}")
        e(f"v_cmp_ne_u32 vcc, 0, v{vt}")
        e("s_nop 4")
        e(f"s_cbranch_vccz {ok}")
        if sleep:
            e(f"s_sleep {sleep}")
        e("s_sub_u32 s62, s62, 1")
        e("s_cmp_lg_u32 s62, 0")
        e(f"s_cbranch_scc1 {lp}")
        e("s_endpgm")
        e(f"{ok}:")

    def reduce_sub(self, v, n):
        for pat in (X1, X2, HM):
            self.e("s_nop 1")
            for k in range(n):
                self.e(f"v_add_f32_dpp v{v + k}, v{v + k}, v{v + k} {pat}")

    def wait_lds(self, addr, val, vt, n=1, sleep=2, val_is_sreg=False):
        e = self.e
        lp, ok = self.label("wl"), self.label("wlok")
        e(f"s_mov_b32 s62, {SPIN_L}")
        e(f"v_mov_b32 v{vt + 4}, 0")
        e(f"{lp}:")
        if n == 1:
            e(f"ds_read_b32 v{vt}, v{vt + 4} offset:{addr}")
            e("s_waitcnt lgkmcnt(0)")
        elif n == 2:
            e(f"ds_read_b64 v[{vt}:{vt + 1}], v{vt + 4} offset:{addr}")
            e("s_waitcnt lgkmcnt(0)")
            e(f"v_min_u32 v{vt}, v{vt}, v{vt + 1}")
        else:
            e(f"ds_read_b128 v[{vt}:{vt + 3}], v{vt + 4} offset:{addr}")
            e("s_waitcnt lgkmcnt(0)")
            e(f"v_min_u32 v{vt}, v{vt}, v{vt + 1}")
            e(f"v_min3_u32 v{vt}, v{vt}, v{vt + 2}, v{vt + 3}")
        e("s_nop 0")
        e(f"v_readfirstlane_b32 s63, v{vt}")
        e(f"s_cmp_ge_u32 s63, {val}")
        e(f"s_cbranch_scc1 {ok}")
        if sleep:
            e(f"s_sleep {sleep}")
        e("s_sub_u32 s62, s62, 1")
        e("s_cmp_lg_u32 s62, 0")
        e(f"s_cbranch_scc1 {lp}")
        e("s_endpgm")
        e(f"{ok}:")

    def set_lds(self, addr, val, vt):
        e = self.e
        e("s_waitcnt lgkmcnt(0)")
        e(f"v_mov_b32 v{vt}, {addr}")
        e(f"v_mov_b32 v{vt + 1}, {val}")
        e(f"ds_write_b32 v{vt}, v{vt + 1}")

    def layernorm(self, xa, f):
        e = self.e

        def unpack():
            for k in range(5):
                e(f"v_lshlrev_b32 v{f + 2 * k}, 16, v{xa + k}")
                e(f"v_and_b32 v{f + 2 * k + 1}, 0xffff0000, v{xa + k}")

        def pack():
            for k in range(5):
                e(f"v_cvt_pk_bf16_f32 v{xa + k}, v{f + 2 * k}, v{f + 2 * k + 1}")

        unpack()
        m, t, var, d = f + 10, f + 11, f + 12, f + 13
        e(f"v_add_f32 v{m}, v{f}, v{f + 1}")
        for k in range(2, 10):
            e(f"v_add_f32 v{m}, v{m}, v{f + k}")
        self.allreduce("v_add_f32", m, t)
        e(f"v_mul_f32 v{m}, {hex(f2u(1.0 / 640))}, v{m}")
        e(f"v_mov_b32 v{var}, 0")
        for k in range(10):
            e(f"v_sub_f32 v{d}, v{f + k}, v{m}")
            e(f"v_fmac_f32 v{var}, v{d}, v{d}")
        self.allreduce("v_add_f32", var, t)
        e(f"v_mul_f32 v{var}, {hex(f2u(1.0 / 640))}, v{var}")
        self.round_bf16(var)
        self.round_bf16(m)
        e(f"v_add_f32 v{var}, {hex(f2u(1e-5))}, v{var}")
        self.round_bf16(var)
        e(f"v_sqrt_f32 v{var}, v{var}")
        for k in range(10):
            e(f"v_sub_f32 v{f + k}, v{f + k}, v{m}")
        self.round_bf16(var)
        e(f"v_rcp_f32 v{var}, v{var}")
        pack()
        unpack()
        for k in range(10):
            e(f"v_mul_f32 v{f + k}, v{f + k}, v{var}")
        pack()

    def entry(self):
        e = self.e
        self.c("roles: waves 0..NS-1 stream K then V; wave NS does q/softmax exchanges; wave NS+1 does weight GEMVs")
        if self.prof or self.diag_hold or self.diag_dbg:
            e("s_memrealtime s[64:65]")
        e("s_cmp_ge_u32 s2, 256")
        e("s_cbranch_scc1 L_exit")
        e("s_load_dwordx16 s[16:31], s[0:1], 0")
        e("s_load_dwordx8 s[32:39], s[0:1], 64")
        e("v_lshrrev_b32 v1, 6, v0")
        e("v_and_b32 v0, 63, v0")
        e(f"v_readfirstlane_b32 s{S_WAVE}, v1")
        e(f"s_and_b32 s{S_X}, s2, 7")
        e(f"s_lshr_b32 s{S_C}, s2, 3")
        e("v_lshrrev_b32 v1, 3, v0")
        e("v_and_b32 v2, 7, v0")
        e(f"s_mul_i32 s40, s{S_C}, 43691")
        e("s_lshr_b32 s40, s40, 17")
        e("s_mul_i32 s41, s40, 3")
        e(f"s_sub_u32 s41, s{S_C}, s41")
        e(f"s_cmp_eq_u32 s{S_WAVE}, {self.NS}")
        e("s_cbranch_scc1 L_helperA")
        e(f"s_cmp_eq_u32 s{S_WAVE}, {self.NS + 1}")
        e("s_cbranch_scc1 L_helperB")

    def streamer(self):
        e = self.e
        NS, R, L = self.NS, self.R, self.L
        VOFF, VSC, VQ, VDUMP, VT = 3, 4, 5, 6, 8
        VIT = 13
        A = 14
        VO, VPR, TG = 18, 19, 24
        SC = 20
        Q = 20 + 8
        PN, PX = 52, 60
        RING = 64
        S_OFF, S_DELTA, S_B0, S_B1, S_IT, S_R = 44, 45, 46, 47, 48, 49
        offs = [(i // 3) * 3072 + (i % 3) * 128 for i in range(6)]
        cand = [j for j in range(R) if (j + L) % 6 == 5 and ((j + L + 1) // 6) % self.tpi == 0]
        assert len(cand) == 1
        self.c("streamer")
        e(f"v_mul_u32_u24 v{VOFF}, 384, v1")
        e(f"v_lshl_add_u32 v{VOFF}, v2, 4, v{VOFF}")
        tb = 4 * self.tpi
        e(f"s_mul_i32 s6, s{S_WAVE}, {8 * tb}")
        e(f"s_add_u32 s6, s6, {L_SC}")
        e(f"v_mul_u32_u24 v{VSC}, {tb}, v1")
        e(f"v_add_u32 v{VSC}, s6, v{VSC}")
        e(f"v_lshlrev_b32 v{VQ}, 4, v2")
        e(f"s_mul_i32 s6, s{S_WAVE}, {8 * 768}")
        e(f"s_add_u32 s6, s6, {L_DUMP}")
        e(f"v_mul_u32_u24 v{VDUMP}, 768, v1")
        e(f"v_lshl_add_u32 v{VDUMP}, v2, 5, v{VDUMP}")
        e(f"v_add_u32 v{VDUMP}, s6, v{VDUMP}")
        e(f"s_mul_i32 s{S_OFF}, s{S_X}, {HEAD}")
        e(f"s_mul_i32 s6, s{S_C}, {NS}")
        e(f"s_add_u32 s6, s6, s{S_WAVE}")
        e("s_mul_i32 s6, s6, 6144")
        e(f"s_add_u32 s{S_OFF}, s{S_OFF}, s6")
        e(f"s_lshl_b32 s7, s{S_WAVE}, 2")
        e(f"v_mov_b32 v7, s7")
        e(f"v_mov_b32 v{VIT}, 0")
        e("s_waitcnt lgkmcnt(0)")
        self.srd(8, P_K, KV_BYTES)
        e("s_barrier")

        def issue(p, boundary=False):
            r = RING + (p % R) * 4
            e(f"buffer_load_dwordx4 v[{r}:{r + 3}], v{VOFF}, s[8:11], s{S_OFF} offen offset:{offs[p % 6]} nt")
            if p % 6 == 5:
                if boundary:
                    e(f"s_add_u32 s{S_OFF}, s{S_OFF}, s{S_DELTA}")
                    e(f"s_mov_b32 s8, s{S_B0}")
                    e(f"s_mov_b32 s9, s{S_B1}")
                else:
                    e(f"s_add_u32 s{S_OFF}, s{S_OFF}, {self.step_bytes}")

        if self.go_at is not None:
            self.wait_lds(L_FLG, 1, VT, sleep=1)
        for p in range(L):
            if p >= self.cap0:
                e(f"s_waitcnt vmcnt({self.cap0 - 1})")
            issue(p)
        self.stamp(1)
        e(f"s_mov_b32 s{S_R}, 0")
        e(f"s_mov_b32 s{S_B0}, s{P_K}")
        e(f"s_mov_b32 s{S_B1}, s{P_K + 1}")
        e(f"s_mov_b32 s56, {self.step_bytes + 7 * HEAD}")

        self.c("addresses of the final publish")
        e(f"v_and_b32 v{VT}, 1, v1")
        e(f"v_bfe_u32 v{VO}, v0, 4, 1")
        e(f"v_cmp_eq_u32 vcc, 1, v{VT}")
        e(f"v_lshrrev_b32 v{VT + 1}, 5, v0")
        e(f"v_lshlrev_b32 v{VPR}, 4, v0")
        e(f"v_cndmask_b32 v{VO}, v{VO}, 2, vcc")
        e(f"v_lshlrev_b32 v{VO}, 13, v{VO}")
        e(f"v_lshl_add_u32 v{VO}, v{VT + 1}, 7, v{VO}")
        e(f"v_lshl_add_u32 v{VO}, v2, 4, v{VO}")
        e(f"s_mul_i32 s57, s{S_X}, {4 * 24576}")
        e(f"s_lshl_b32 s7, s{S_C}, 8")
        e("s_add_u32 s57, s57, s7")
        e(f"s_add_u32 s57, s57, {WS_OP + 3 * 24576}")
        self.srd(12, P_WS, WS_SIZE)
        self.wait_lds(L_FLN, 1, VT, sleep=1)
        self.read_tag(VT)
        self.make_tags(TG)

        e("L_kround:")
        e(f"s_add_u32 s50, s{S_R}, 1")
        self.wait_lds(L_FLQ, "s50", VT, sleep=0)
        for s in range(3):
            e(f"ds_read_b128 v[{Q + 4 * s}:{Q + 4 * s + 3}], v{VQ} offset:{L_Q + 128 * s}")
        e(f"v_add_u32 v{VQ}, 384, v{VQ}")
        if self.prof:
            e(f"s_cmp_lg_u32 s{S_R}, 0")
            e("s_cbranch_scc1 L_nostamp2")
            self.stamp(2)
            e("L_nostamp2:")
        e(f"s_mov_b32 s{S_IT}, {self.ipr}")
        e("s_waitcnt lgkmcnt(0)")
        e("L_kloop:")
        e(f"s_cmp_eq_u32 s{S_R}, 3")
        e(f"s_cselect_b32 s50, {hex((self.step_bytes - 25 * HEAD) & 0xffffffff)}, s56")
        e(f"s_cselect_b32 s51, 1, 0")
        e(f"s_cmp_eq_u32 s{S_IT}, 1")
        e(f"s_cselect_b32 s{S_DELTA}, s50, {self.step_bytes}")
        e(f"s_cmp_eq_u32 s{S_IT}, s51")
        e(f"s_cselect_b32 s{S_B0}, s{P_V}, s{S_B0}")
        e(f"s_cselect_b32 s{S_B1}, s{P_V + 1}, s{S_B1}")
        pend = []
        pos = [0]

        def main(s):
            e(s)
            pos[0] += 1
            if pend and pend[0][0] <= pos[0]:
                _, ins, gap = pend.pop(0)
                e(ins)
                pos[0] += 1
                if pend:
                    pend[0] = (max(pend[0][0], pos[0] + gap), pend[0][1], pend[0][2])

        for j in range(R):
            tile, jj = divmod(j, 6)
            kg, s = divmod(jj, 3)
            a = A + 2 * (tile % 2) + kg
            main(f"s_waitcnt vmcnt({self.cap - 1})")
            n0 = len(self.o)
            issue(j + L, boundary=(j == cand[0]))
            pos[0] += len(self.o) - n0
            if s == 0:
                main(f"v_mov_b32 v{a}, 0")
            r = RING + j * 4
            for k in range(4):
                main(f"v_dot2c_f32_bf16 v{a}, v{r + k}, v{Q + 4 * s + k}")
            if s == 2:
                first = pos[0] + 3
                pend.append((first, f"v_add_f32_dpp v{a}, v{a}, v{a} {X1}", 2))
                pend.append((0, f"v_add_f32_dpp v{a}, v{a}, v{a} {X2}", 2))
                pend.append((0, f"v_add_f32_dpp v{a}, v{a}, v{a} {HM}", 0))
                if kg == 1:
                    pend.append((0, f"v_cvt_pk_bf16_f32 v{SC + tile}, v{a - 1}, v{a}", 0))
        while pend:
            main("s_nop 0")
        for q4 in range(self.tpi // 4):
            e(f"ds_write_b128 v{VSC}, v[{SC + 4 * q4}:{SC + 4 * q4 + 3}] offset:{16 * q4}")
        e(f"v_add_u32 v{VIT}, 1, v{VIT}")
        e(f"v_add_u32 v{VSC}, {NS * 8 * tb}, v{VSC}")
        e(f"ds_write_b32 v7, v{VIT} offset:{L_FIT}")
        e(f"s_sub_u32 s{S_IT}, s{S_IT}, 1")
        e(f"s_cmp_lg_u32 s{S_IT}, 0")
        e("s_cbranch_scc1 L_kloop")
        self.stamp_round(S_R, 3)
        e(f"s_add_u32 s{S_R}, s{S_R}, 1")
        e(f"v_mov_b32 v{VT}, s{S_R}")
        e(f"ds_write_b32 v7, v{VT} offset:{L_FLS}")
        e(f"s_cmp_lt_u32 s{S_R}, 4")
        e("s_cbranch_scc1 L_kround")

        e(f"v_subrev_u32 v{VSC}, 8192, v{VSC}")
        self.wait_lds(L_FLP, 1, VT, sleep=0)
        for q4 in range(self.tpi // 4):
            e(f"ds_read_b128 v[{PN + 4 * q4}:{PN + 4 * q4 + 3}], v{VSC} offset:{16 * q4}")
        e(f"v_add_u32 v{VSC}, {NS * 8 * tb}, v{VSC}")
        e(f"s_mov_b32 s{S_R}, 0")

        def vbody(cap, last=False):
            e("s_waitcnt lgkmcnt(0)")
            for j in range(R):
                tile, jj = divmod(j, 6)
                kg, s = divmod(jj, 3)
                if last and j + L >= R:
                    e(f"s_waitcnt vmcnt({R - 1 - j})")
                else:
                    e(f"s_waitcnt vmcnt({cap - 1})")
                    issue(j + L, boundary=(j == cand[0]))
                if jj == 0:
                    e(f"v_and_b32 v{PX}, 0xffff, v{PN + tile}")
                    e(f"v_lshlrev_b32 v{PX + 1}, 16, v{PN + tile}")
                    e(f"v_lshrrev_b32 v{PX + 2}, 16, v{PN + tile}")
                    e(f"v_and_b32 v{PX + 3}, 0xffff0000, v{PN + tile}")
                    if tile == self.tpi - 1 and not last:
                        e(f"v_add_u32 v{VIT}, 1, v{VIT}")
                        e(f"ds_write_b32 v7, v{VIT} offset:{L_FIT}")
                        for q4 in range(self.tpi // 4):
                            e(f"ds_read_b128 v[{PN + 4 * q4}:{PN + 4 * q4 + 3}], v{VSC} offset:{16 * q4}")
                        e(f"v_add_u32 v{VSC}, {NS * 8 * tb}, v{VSC}")
                self.gemv_row(RING + 4 * j, PX + 2 * kg, Q + 8 * s)

        def dump():
            e("s_nop 2")
            for s in range(3):
                for hlf in range(2):
                    r = Q + 8 * s + 4 * hlf
                    e(f"ds_write_b128 v{VDUMP}, v[{r}:{r + 3}] offset:{256 * s + 16 * hlf}")
            e(f"v_add_u32 v{VDUMP}, {self.dump_bytes}, v{VDUMP}")
            e(f"s_add_u32 s50, s{S_R}, 5")
            e(f"v_mov_b32 v{VT}, s50")
            e(f"ds_write_b32 v7, v{VT} offset:{L_FLS}")

        e("L_vround:")
        e(f"s_add_u32 s50, s{S_R}, 2")
        e("s_min_u32 s50, s50, 4")
        self.wait_lds(L_FLP, "s50", VT, sleep=0)
        for k in range(24):
            e(f"v_mov_b32 v{Q + k}, 0")
        e(f"s_cmp_eq_u32 s{S_R}, 3")
        e(f"s_cselect_b32 s52, {self.tail_iters}, 0")
        e(f"s_mov_b32 s{S_IT}, {self.ipr}")
        e("L_vloop:")
        e(f"s_cmp_eq_u32 s{S_IT}, 1")
        e(f"s_cselect_b32 s{S_DELTA}, s56, {self.step_bytes}")
        vbody(self.cap)
        e(f"s_sub_u32 s{S_IT}, s{S_IT}, 1")
        e(f"s_cmp_lg_u32 s{S_IT}, s52")
        e("s_cbranch_scc1 L_vloop")
        e(f"s_cmp_eq_u32 s{S_R}, 3")
        e("s_cbranch_scc1 L_vtail")
        self.stamp_round(S_R, 7)
        dump()
        e(f"s_add_u32 s{S_R}, s{S_R}, 1")
        e("s_branch L_vround")
        e("L_vtail:")
        e(f"s_mov_b32 s{S_DELTA}, {self.step_bytes}")
        if self.tail_iters > 1:
            e("L_vtloop:")
            vbody(self.cap_tail)
            e(f"s_sub_u32 s{S_IT}, s{S_IT}, 1")
            e(f"s_cmp_lg_u32 s{S_IT}, 1")
            e("s_cbranch_scc1 L_vtloop")
        vbody(self.cap_tail, last=True)
        self.stamp(10)
        self.c("last head: reduce over lane groups, combine the two streamers, publish")
        e(f"v_mov_b32 v{VIT}, 64")
        e(f"ds_write_b32 v7, v{VIT} offset:{L_FIT}")
        e(f"s_xor_b32 s50, s{S_WAVE}, 1")
        for s_ in range(3):
            for k in range(4):
                e(f"v_permlane32_swap_b32 v{Q + 8 * s_ + k}, v{Q + 8 * s_ + k + 4}")
        for s_ in range(3):
            for k in range(4):
                e(f"v_add_f32 v{Q + 8 * s_ + k}, v{Q + 8 * s_ + k}, v{Q + 8 * s_ + k + 4}")
        e("s_lshl_b32 s51, s50, 10")
        e(f"v_add_u32 v{VT + 2}, s51, v{VPR}")
        e(f"v_xor_b32 v{VT + 1}, 4, v7")
        for k in range(4):
            e(f"v_mov_b32 v{Q + 20 + k}, v{Q + 16 + k}")
        e(f"ds_read_b32 v{VT}, v{VT + 1} offset:{L_PD}")
        e(f"ds_read_b128 v[{PN}:{PN + 3}], v{VT + 2} offset:{L_PAIR}")
        for k in range(4):
            e(f"v_permlane16_swap_b32 v{Q + k}, v{Q + 8 + k}")
        for k in range(4):
            e(f"v_permlane16_swap_b32 v{Q + 16 + k}, v{Q + 20 + k}")
        for k in range(4):
            e(f"v_add_f32 v{Q + k}, v{Q + k}, v{Q + 8 + k}")
        for k in range(4):
            e(f"v_add_f32 v{Q + 16 + k}, v{Q + 16 + k}, v{Q + 20 + k}")
        for k in range(4):
            e(f"v_add_f32_dpp v{PX + k}, v{Q + k}, v{Q + k} row_ror:8 row_mask:0xf bank_mask:0x3")
        for k in range(4):
            e(f"v_add_f32_dpp v{PX + k}, v{Q + 16 + k}, v{Q + 16 + k} row_ror:8 row_mask:0xf bank_mask:0xc")
        e("s_waitcnt lgkmcnt(0)")
        e(f"v_readfirstlane_b32 s63, v{VT}")
        e("s_cmp_lg_u32 s63, 0")
        e("s_cbranch_scc1 L_spub")
        e(f"s_lshl_b32 s51, s{S_WAVE}, 10")
        e(f"v_add_u32 v{VT + 3}, s51, v{VPR}")
        e(f"v_mov_b32 v{VT}, 1")
        e(f"v_mov_b32 v{VT + 4}, 0")
        e(f"ds_write_b128 v{VT + 3}, v[{PX}:{PX + 3}] offset:{L_PAIR}")
        e(f"ds_write_b32 v7, v{VT} offset:{L_PD}")
        e("s_mov_b64 exec, 1")
        e(f"ds_add_rtn_u32 v{VT + 1}, v{VT + 4}, v{VT} offset:{L_PCN}")
        e("s_mov_b64 exec, -1")
        e(f"ds_read_b128 v[{PN}:{PN + 3}], v{VT + 2} offset:{L_PAIR}")
        e("s_waitcnt lgkmcnt(0)")
        e(f"v_readfirstlane_b32 s63, v{VT + 1}")
        e("s_cmp_eq_u32 s63, 0")
        e("s_cbranch_scc1 L_sdone")
        e("L_spub:")
        for k in range(4):
            e(f"v_add_f32 v{PX + k}, v{PX + k}, v{PN + k}")
        self.embed(PX, TG)
        e("s_mov_b32 exec_lo, 0xffffff")
        e("s_mov_b32 exec_hi, 0xffffff")
        e(f"buffer_store_dwordx4 v[{PX}:{PX + 3}], v{VO}, s[12:15], s57 offen sc1")
        e("L_sdone:")
        self.stamp(11)
        self.prof_store(12)
        e("s_endpgm")
        return RING + 4 * R

    def helperA(self):
        e = self.e
        NS = self.NS
        S_RB, S_CB = 40, 41
        SX, SW, SWS, SJ = 8, 12, 44, 48
        SM = 84
        VW, VT, VQL = 3, 4, 9
        T, TGL, VP, VL16 = 10, 14, 18, 19
        XA, VW2, VXS, XC, F, XOP = 20, 25, 26, 28, 52, 68
        ACC, RES, RING, GQ = 84, 92, 96, 192
        VG0, VG1 = 66, 67
        e("L_helperA:")
        e("s_setprio 3")
        e(f"v_mul_u32_u24 v{VW}, 0x18000, v1")
        e(f"v_lshl_add_u32 v{VW}, v2, 4, v{VW}")
        e(f"v_lshlrev_b32 v{VL16}, 4, v0")
        e(f"v_lshlrev_b32 v{T}, 2, v0")
        e(f"s_mul_i32 s42, s{S_RB}, {64 * 12288}")
        e(f"s_mul_i32 s43, s{S_X}, 384")
        e("s_add_u32 s42, s42, s43")
        e(f"s_lshl_b32 s6, s{S_CB}, 7")
        e("s_add_u32 s42, s42, s6")
        e("s_waitcnt lgkmcnt(0)")
        self.srd(SX, P_X, 1280)
        self.srd(SW, P_WQ, 640 * 12288)
        e(f"buffer_load_dwordx4 v[{XA}:{XA + 3}], v{VL16}, s[{SX}:{SX + 3}], 0 offen")
        e(f"buffer_load_dword v{XA + 4}, v{T}, s[{SX}:{SX + 3}], 0 offen offset:1024")
        for i in range(8):
            e(f"buffer_load_dwordx4 v[{GQ + 4 * i}:{GQ + 4 * i + 3}], v{VW}, s[{SW}:{SW + 3}], s42 offen nt")
            if i < 7:
                e("s_add_u32 s42, s42, 12288")
        e(f"s_mov_b32 s6, {WS_EPOCH}")
        e(f"s_load_dword s{S_TAG}, s[{P_WS}:{P_WS + 1}], s6")
        e("s_barrier")
        self.srd(SWS, P_WS, WS_SIZE)
        self.c("second job: half of the rows of one 64-column block of wq (heads 1..3), gate or up")
        e(f"s_lshr_b32 s52, s{S_C}, 1")
        e(f"s_and_b32 s53, s{S_C}, 1")
        e("s_mul_i32 s54, s52, 43691")
        e("s_lshr_b32 s54, s54, 17")
        e("s_mul_i32 s55, s54, 3")
        e("s_sub_u32 s55, s52, s55")
        e("s_cmp_eq_u32 s54, 3")
        e(f"s_cselect_b32 s{SJ}, s{P_G}, s{P_U}")
        e(f"s_cselect_b32 s{SJ + 1}, s{P_G + 1}, s{P_U + 1}")
        e("s_add_u32 s6, s54, 1")
        e("s_mul_i32 s6, s6, 3072")
        e("s_movk_i32 s56, 0xc00")
        e("s_cmp_lt_u32 s54, 3")
        e(f"s_cselect_b32 s{SJ}, s{P_WQ}, s{SJ}")
        e(f"s_cselect_b32 s{SJ + 1}, s{P_WQ + 1}, s{SJ + 1}")
        e("s_cselect_b32 s56, 12288, s56")
        e("s_cselect_b32 s6, s6, 0")
        e(f"s_mul_i32 s{SJ + 2}, s56, 640")
        e("s_cmp_lt_u32 s54, 5")
        e(f"s_cselect_b32 s{SJ + 2}, s{SJ + 2}, 0")
        e(f"s_mov_b32 s{SJ + 3}, 0x20000")
        e("s_add_u32 s42, s43, s6")
        e("s_lshl_b32 s6, s55, 7")
        e("s_add_u32 s42, s42, s6")
        e("s_mul_i32 s6, s56, 320")
        e("s_mul_i32 s6, s6, s53")
        e("s_add_u32 s42, s42, s6")
        e("s_mul_i32 s57, s56, 57")
        e("s_lshl_b32 s6, s56, 3")
        e(f"v_mul_u32_u24 v{VW2}, s6, v1")
        e(f"v_lshl_add_u32 v{VW2}, v2, 4, v{VW2}")
        e(f"v_lshrrev_b32 v{VP}, 4, v0")
        e(f"v_lshlrev_b32 v{VP}, 7, v{VP}")
        e(f"v_lshl_add_u32 v{VP}, v2, 4, v{VP}")
        e(f"v_and_b32 v{T + 1}, 3, v1")
        e(f"v_lshlrev_b32 v{VQL}, 4, v2")
        e(f"v_lshl_add_u32 v{VQL}, v{T + 1}, 2, v{VQL}")
        e(f"v_and_b32 v{T + 1}, 31, v0")
        e(f"v_lshlrev_b32 v{T + 1}, 4, v{T + 1}")
        e(f"v_lshrrev_b32 v{T + 2}, 5, v0")
        e(f"v_mul_u32_u24 v{VG0}, 1536, v{T + 2}")
        e(f"v_add_u32 v{VG0}, v{VG0}, v{T + 1}")
        e(f"v_mul_u32_u24 v{VG1}, 7680, v{T + 2}")
        e(f"v_add_u32 v{VG1}, v{VG1}, v{T + 1}")
        e(f"s_lshl_b32 s6, s{S_RB}, 7")
        e(f"v_lshl_add_u32 v{VXS}, v1, 4, s6")
        e("s_mul_i32 s6, s53, 640")
        e(f"v_lshl_add_u32 v{VXS + 1}, v1, 4, s6")
        for k in range(8):
            e(f"v_mov_b32 v{ACC + k}, 0")

        def job_load(i):
            r = RING + 4 * (i % 24)
            e(f"buffer_load_dwordx4 v[{r}:{r + 3}], v{VW2}, s[{SJ}:{SJ + 3}], s42 offen nt")
            if i < 39:
                e(f"s_add_u32 s42, s42, s{57 if i % 8 == 7 else 56}")
            if i == self.go_at:
                e(f"v_mov_b32 v{VT}, {L_FLG}")
                e(f"v_mov_b32 v{VT + 1}, 1")
                e(f"ds_write_b32 v{VT}, v{VT + 1}")

        ae = self.a_early
        e("s_waitcnt vmcnt(8)")
        self.stamp(1)
        for i in range(ae):
            job_load(i)
        self.layernorm(XA, F)
        e(f"ds_write_b128 v{VL16}, v[{XA}:{XA + 3}] offset:{L_XN}")
        e(f"ds_write_b32 v{T}, v{XA + 4} offset:{L_XN + 1024}")
        e(f"ds_read_b128 v[{XC}:{XC + 3}], v{VXS} offset:{L_XN}")
        for u in range(5):
            e(f"ds_read_b128 v[{XC + 4 + 4 * u}:{XC + 7 + 4 * u}], v{VXS + 1} offset:{L_XN + 128 * u}")
        e("s_waitcnt lgkmcnt(0)")
        e(f"s_add_u32 s{S_TAG}, s{S_TAG}, {hex(NONCE_STEP)}")
        self.expand(XC, XOP)
        self.tag_regs(RES)
        for i in range(8):
            e(f"s_waitcnt vmcnt({7 - i + ae})")
            self.gemv_row(GQ + 4 * i, XOP + 2 * i, ACC)
        self.reduce_g2(ACC, RES)
        e(f"s_mul_i32 s58, s{S_X}, 15360")
        e(f"s_lshl_b32 s6, s{S_C}, 9")
        e("s_add_u32 s6, s6, s58")
        e(f"s_cmp_lt_u32 s{S_C}, 30")
        e(f"s_cselect_b32 s6, s6, {WS_SIZE}")
        self.exec_tagged()
        e(f"buffer_store_dwordx4 v[{RES}:{RES + 3}], v{VP}, s[{SWS}:{SWS + 3}], s6 offen sc1")
        e("s_mov_b64 exec, -1")
        self.stamp(2)
        cap = self.capA
        assert ae <= cap <= 23

        def job_consume(j):
            if j % 8 == 0:
                self.expand(XC + 4 + 4 * (j // 8), XOP)
            self.gemv_row(RING + 4 * (j % 24), XOP + 2 * (j % 8), ACC)

        for i in range(ae, 40):
            if i >= cap:
                e(f"s_waitcnt vmcnt({cap - 1})")
            job_load(i)
            if i == max(ae, cap - 1):
                self.set_lds(L_TAG, f"s{S_TAG}", VT)
                self.set_lds(L_FLN, 1, VT)
                for k in range(8):
                    e(f"v_mov_b32 v{ACC + k}, 0")
            if i >= cap:
                job_consume(i - cap)
        self.stamp(3)

        def rest_of_job():
            for j in range(40 - cap, 40):
                e(f"s_waitcnt vmcnt({39 - j + 15})")
                job_consume(j)

        def finish_q(regs, lds0):
            for r in regs:
                e(f"v_mov_b32 v{r + 1}, v{r}")
                e(f"v_mov_b32 v{r + 3}, v{r + 2}")
            e("s_nop 0")
            for r in regs:
                e(f"v_permlane32_swap_b32 v{r}, v{r + 1}")
                e(f"v_permlane32_swap_b32 v{r + 2}, v{r + 3}")
            for r in regs:
                e(f"v_add_f32 v{r}, v{r}, v{r + 1}")
                e(f"v_add_f32 v{r + 2}, v{r + 2}, v{r + 3}")
            for i, r in enumerate(regs):
                e(f"v_cvt_pk_bf16_f32 v{r}, v{r}, v{r + 2}")
                e(f"ds_write_b32 v{VQL}, v{r} offset:{lds0 + 128 * i}")

        for k in range(5):
            e(f"s_add_u32 s{SM + k}, s58, {3072 * k}")
        loads = [f"buffer_load_dwordx4 v[{GQ + 12 * k + 4 * cb}:{GQ + 12 * k + 4 * cb + 3}], v{VG0}, s[{SWS}:{SWS + 3}], "
                 f"s{SM + k} offen offset:{512 * cb} sc1" for k in range(5) for cb in range(3)]
        self.gather_tagged(loads, GQ, 15, VT, sleep=4, between=rest_of_job)
        self.stamp(4)
        for k in range(1, 5):
            for j in range(0, 12, 2):
                e(f"v_add_f32 v{GQ + j}, v{GQ + j}, v{GQ + 12 * k + j}")
        finish_q([GQ, GQ + 4, GQ + 8], L_Q)
        self.set_lds(L_FLQ, 1, VT)
        self.stamp(5)
        e("s_setprio 0")
        self.reduce_g2(ACC, RES)
        e("s_mul_i32 s6, s53, 7680")
        e("s_lshl_b32 s7, s52, 9")
        e("s_add_u32 s6, s6, s7")
        e("s_add_u32 s6, s6, s58")
        e(f"s_add_u32 s6, s6, {WS_PA1}")
        e(f"s_cmp_lt_u32 s{S_C}, 30")
        e(f"s_cselect_b32 s6, s6, {WS_SIZE}")
        self.exec_tagged()
        e(f"buffer_store_dwordx4 v[{RES}:{RES + 3}], v{VP}, s[{SWS}:{SWS + 3}], s6 offen sc1")
        e("s_mov_b64 exec, -1")
        self.wait_lds(L_FIT, self.it_q, VT, n=NS, sleep=8)
        e(f"s_add_u32 s6, s58, {WS_PA1}")
        e("s_add_u32 s7, s6, 4096")
        loads = [f"buffer_load_dwordx4 v[{GQ + 4 * j}:{GQ + 4 * j + 3}], v{VG1}, s[{SWS}:{SWS + 3}], "
                 f"s{6 + j // 8} offen offset:{512 * (j % 8)} sc1" for j in range(9)]
        self.gather_tagged(loads, GQ, 9, VT, sleep=32)
        finish_q([GQ + 4 * j for j in range(9)], L_Q + 384)
        self.set_lds(L_FLQ, 4, VT)
        self.stamp(6)
        self.make_tags(TGL)
        SCR, ST, OPR = 128, 160, 176

        M, LS, VS32 = 20, 21, 22
        U = 24

        def unpack(r):
            for k in range(8):
                e(f"v_lshlrev_b32 v{U + 2 * k}, 16, v{SCR + 8 * r + k}")
                e(f"v_and_b32 v{U + 2 * k + 1}, 0xffff0000, v{SCR + 8 * r + k}")

        def local_stats(r):
            self.wait_lds(L_FLS, r + 1, VT, n=NS, sleep=8)
            e(f"v_lshlrev_b32 v{VS32}, 5, v0")
            b = SCR + 8 * r
            e(f"ds_read_b128 v[{b}:{b + 3}], v{VS32} offset:{L_SC + 2048 * r}")
            e(f"ds_read_b128 v[{b + 4}:{b + 7}], v{VS32} offset:{L_SC + 2048 * r + 16}")
            e("s_waitcnt lgkmcnt(0)")
            unpack(r)
            for k in range(16):
                e(f"v_mul_f32 v{U + k}, {hex(SCALE)}, v{U + k}")
            for k in range(8):
                e(f"v_cvt_pk_bf16_f32 v{b + k}, v{U + 2 * k}, v{U + 2 * k + 1}")
            unpack(r)
            e(f"v_max_f32 v{M}, v{U}, v{U + 1}")
            for k in range(2, 16, 2):
                e(f"v_max3_f32 v{M}, v{M}, v{U + k}, v{U + k + 1}")
            self.allreduce("v_max_f32", M, T)
            for k in range(16):
                e(f"v_sub_f32 v{U + k}, v{U + k}, v{M}")
            for k in range(16):
                e(f"v_mul_f32 v{U + k}, {hex(LOG2E)}, v{U + k}")
            for k in range(16):
                e(f"v_exp_f32 v{U + k}, v{U + k}")
            e("s_nop 0")
            e(f"v_add_f32 v{LS}, v{U}, v{U + 1}")
            for k in range(2, 16):
                e(f"v_add_f32 v{LS}, v{LS}, v{U + k}")
            self.allreduce("v_add_f32", LS, T)
            e(f"v_cmp_eq_u32 vcc, {r % 3}, v0")
            e("s_nop 1")
            e(f"v_cndmask_b32 v{ST}, v{ST}, v{M}, vcc")
            e(f"v_cndmask_b32 v{ST + 2}, v{ST + 2}, v{LS}, vcc")

        def publish_stats(base, shift, lanes):
            self.tag_regs(ST)
            e(f"s_lshl_b32 s6, s{S_X}, {shift + 5}")
            e(f"s_lshl_b32 s7, s{S_C}, {shift}")
            e("s_add_u32 s6, s6, s7")
            e(f"s_add_u32 s6, s6, {base}")
            e(f"s_mov_b64 exec, {(1 << lanes) - 1}")
            e(f"buffer_store_dwordx4 v[{ST}:{ST + 3}], v{VL16}, s[{SWS}:{SWS + 3}], s6 offen sc1")
            e("s_mov_b64 exec, -1")
            e("s_nop 1")

        def gather_stats(base, shift, n):
            e(f"v_and_b32 v{T + 1}, 31, v0")
            e(f"v_lshlrev_b32 v{T + 1}, {shift}, v{T + 1}")
            e(f"s_lshl_b32 s6, s{S_X}, {shift + 5}")
            e(f"s_add_u32 s6, s6, {base}")
            self.gather_tagged([f"buffer_load_dwordx4 v[{ST + 4 + 4 * k}:{ST + 7 + 4 * k}], v{T + 1}, s[{SWS}:{SWS + 3}], "
                                f"s6 offen offset:{16 * k} sc1" for k in range(n)], ST + 4, n, VT, sleep=32)

        def finalize_p(r):
            G = ST + 4 + 4 * (r % 3)
            e(f"v_mov_b32 v{M}, v{G}")
            self.allreduce("v_max_f32", M, T)
            e(f"v_sub_f32 v{G}, v{G}, v{M}")
            e(f"v_mul_f32 v{G}, {hex(LOG2E)}, v{G}")
            e(f"v_exp_f32 v{G}, v{G}")
            e("s_nop 0")
            e(f"v_mul_f32 v{LS}, v{G}, v{G + 2}")
            self.allreduce("v_add_f32", LS, T)
            e(f"v_mul_f32 v{LS}, 0.5, v{LS}")
            e(f"v_rcp_f32 v{LS}, v{LS}")
            unpack(r)
            for k in range(16):
                e(f"v_sub_f32 v{U + k}, v{U + k}, v{M}")
            for k in range(16):
                e(f"v_mul_f32 v{U + k}, {hex(LOG2E)}, v{U + k}")
            for k in range(16):
                e(f"v_exp_f32 v{U + k}, v{U + k}")
            e("s_nop 0")
            for k in range(16):
                e(f"v_mul_f32 v{U + k}, v{U + k}, v{LS}")
            b = SCR + 8 * r
            for k in range(8):
                e(f"v_cvt_pk_bf16_f32 v{b + k}, v{U + 2 * k}, v{U + 2 * k + 1}")
            e(f"ds_write_b128 v{VS32}, v[{b}:{b + 3}] offset:{L_SC + 2048 * r}")
            e(f"ds_write_b128 v{VS32}, v[{b + 4}:{b + 7}] offset:{L_SC + 2048 * r + 16}")
            self.set_lds(L_FLP, r + 1, VT)

        def reduce_op(r):
            self.wait_lds(L_FLS, r + 5, VT, n=NS, sleep=8)
            D, O = 40, OPR + 4 * r
            for i in range(16):
                d = D + 4 * i
                e(f"ds_read_b128 v[{d}:{d + 3}], v{VQL} offset:{L_DUMP + r * self.dump_bytes + 768 * i}")
                if i == 7:
                    e("s_waitcnt lgkmcnt(7)")
            for i in range(1, 16):
                e(f"s_waitcnt lgkmcnt({15 - i})")
                for k in range(4):
                    e(f"v_add_f32 v{O + k}, v{D + k if i == 1 else O + k}, v{D + 4 * i + k}")
            self.embed(O, TGL)

        for r in range(3):
            local_stats(r)
        publish_stats(WS_STA, 6, 3)
        self.wait_lds(L_FIT, 24 + self.it_st, VT, n=NS, sleep=8)
        gather_stats(WS_STA, 6, 3)
        for r in range(3):
            finalize_p(r)
        self.stamp(7)
        local_stats(3)
        publish_stats(WS_STB, 4, 1)
        self.wait_lds(L_FIT, 32 + self.it_st + 2, VT, n=NS, sleep=8)
        gather_stats(WS_STB, 4, 1)
        finalize_p(3)
        e(f"v_lshrrev_b32 v{VQL}, 4, v0")
        e(f"v_lshlrev_b32 v{VQL}, 8, v{VQL}")
        e(f"v_lshl_add_u32 v{VQL}, v2, 5, v{VQL}")
        e(f"v_and_b32 v{T + 1}, 1, v1")
        e(f"v_lshl_add_u32 v{VQL}, v{T + 1}, 4, v{VQL}")
        for r in range(3):
            reduce_op(r)
        e(f"v_lshrrev_b32 v{T}, 4, v0")
        e(f"v_lshlrev_b32 v{T}, 13, v{T}")
        e(f"v_and_b32 v{T + 1}, 15, v0")
        e(f"v_lshl_add_u32 v{T}, v{T + 1}, 4, v{T}")
        e(f"s_mul_i32 s6, s{S_X}, {4 * 24576}")
        e(f"s_lshl_b32 s7, s{S_C}, 8")
        e("s_add_u32 s6, s6, s7")
        e(f"s_add_u32 s6, s6, {WS_OP}")
        e("s_mov_b32 exec_hi, 0xffff")
        for r in range(3):
            e(f"buffer_store_dwordx4 v[{OPR + 4 * r}:{OPR + 4 * r + 3}], v{T}, s[{SWS}:{SWS + 3}], s6 offen sc1")
            if r < 2:
                e("s_add_u32 s6, s6, 24576")
        self.stamp(8)
        self.prof_store(9)
        e("s_endpgm")
        return GQ + 60

    def helperB(self):
        e = self.e
        NS = self.NS
        S_RB, S_CB = 40, 41
        SX, SA, SWS = 8, 12, 44
        SM = 84
        VA, VT = 3, 4
        G0, WK, YA = 12, 44, 76
        TGL, TGG, VP, VG = 84, 88, 92, 93
        W = 96
        e("L_helperB:")
        e(f"v_mul_u32_u24 v{VA}, 0x2800, v1")
        e(f"v_lshl_add_u32 v{VA}, v2, 4, v{VA}")
        for k in range(4):
            e(f"v_mov_b32 v{VT + k}, 0")
        for k in range(3):
            e(f"ds_write_b128 v{VT}, v[{VT}:{VT + 3}] offset:{16 * k}")
        e(f"s_mul_i32 s43, s{S_X}, {192 * 1280}")
        e(f"s_mul_i32 s6, s{S_CB}, {64 * 1280}")
        e("s_add_u32 s43, s43, s6")
        e(f"s_lshl_b32 s6, s{S_RB}, 7")
        e("s_add_u32 s43, s43, s6")
        e("s_waitcnt lgkmcnt(0)")
        self.srd(SA, P_WO, 6144 * 1280)
        e("s_barrier")
        e(f"s_cmp_ge_u32 s{S_C}, 30")
        e("s_cbranch_scc1 L_hb_tags")
        for i in range(40):
            n, ii = divmod(i, 8)
            if i == 32:
                self.srd(SA, P_D, 1536 * 1280)
            if ii % 4 == 0:
                e(f"s_add_u32 s42, s43, {(8 * 192 * 1280 * n if n < 4 else 0) + 1280 * ii}")
            if i >= self.capB:
                e(f"s_waitcnt vmcnt({self.capB - 1})")
            r = W + 4 * i
            e(f"buffer_load_dwordx4 v[{r}:{r + 3}], v{VA}, s[{SA}:{SA + 3}], s42 offen offset:{1280 * (ii % 4)} nt")
        self.stamp(1)
        e("L_hb_tags:")
        self.srd(SX, P_X, 1280)
        self.srd(SWS, P_WS, WS_SIZE)
        self.wait_lds(L_FLN, 1, VT, sleep=4)
        self.read_tag(VT)
        self.make_tags(TGL)
        e(f"s_cmp_ge_u32 s{S_C}, 30")
        e("s_cbranch_scc1 L_finisher")
        e(f"v_lshrrev_b32 v{VP}, 5, v0")
        e(f"v_lshlrev_b32 v{VP}, 7, v{VP}")
        e(f"v_lshl_add_u32 v{VP}, v2, 4, v{VP}")
        e(f"s_mul_i32 s54, s{S_RB}, 24")
        e(f"s_mul_i32 s7, s{S_X}, 3")
        e("s_add_u32 s54, s54, s7")
        e(f"s_add_u32 s54, s54, s{S_CB}")
        e("s_lshl_b32 s54, s54, 8")
        e(f"s_add_u32 s54, s54, {WS_YB}")
        e("s_mov_b32 s48, 0x05040100")
        e("s_mov_b32 s49, 0x07060302")

        def permute(n):
            for pr in range(4):
                for k in range(4):
                    lo, hi = W + 32 * n + 8 * pr + k, W + 32 * n + 8 * pr + 4 + k
                    e(f"v_perm_b32 v{WK + 8 * pr + 2 * k}, v{hi}, v{lo}, s48")
                    e(f"v_perm_b32 v{WK + 8 * pr + 2 * k + 1}, v{hi}, v{lo}, s49")

        OV = G0 + 24

        def gemv():
            for pr in range(4):
                for c_ in range(8):
                    e(f"v_dot2c_f32_bf16 v{YA + c_}, v{WK + 8 * pr + c_}, v{OV + pr}")

        self.c("ffn hidden slice")
        self.wait_lds(L_FLQ, 4, VT, sleep=8)
        e(f"v_lshlrev_b32 v{VG}, 4, v1")
        e(f"v_and_b32 v{VA}, 1, v2")
        e(f"v_mul_u32_u24 v{VA}, 7680, v{VA}")
        e(f"v_add_u32 v{VA}, v{VA}, v{VG}")
        e(f"s_mul_i32 s6, s{S_X}, 15360")
        e(f"s_lshl_b32 s7, s{S_CB}, 9")
        e("s_add_u32 s6, s6, s7")
        e(f"s_add_u32 s6, s6, {WS_PA1 + 9 * 512}")
        loads = [f"buffer_load_dwordx4 v[{G0 + 16 * m + 4 * q}:{G0 + 16 * m + 4 * q + 3}], v{VA}, "
                 f"s[{SWS}:{SWS + 3}], s6 offen offset:{1536 * m + 128 * q} sc1" for m in range(2) for q in range(4)]
        self.gather_tagged(loads, G0, 8, VT, sleep=32)
        GA, UA, Z = WK, WK + 8, WK + 16
        for k in range(16):
            e(f"v_add_f32_dpp v{GA + k}, v{G0 + 2 * k}, v{G0 + 2 * k} {X1}")
        for k in range(8):
            self.round_bf16(GA + k)
            self.round_bf16(UA + k)
        c2 = -2.0 * 0.7978845608028654 * 1.4426950408889634
        e(f"s_mov_b32 s6, {hex(f2u(0.044715))}")
        for k in range(8):
            e(f"v_mul_f32 v{Z + k}, v{GA + k}, v{GA + k}")
        for k in range(8):
            e(f"v_mul_f32 v{Z + k}, v{Z + k}, v{GA + k}")
        for k in range(8):
            e(f"v_fma_f32 v{Z + k}, v{Z + k}, s6, v{GA + k}")
        for k in range(8):
            e(f"v_mul_f32 v{Z + k}, {hex(f2u(c2))}, v{Z + k}")
        for k in range(8):
            e(f"v_exp_f32 v{Z + k}, v{Z + k}")
        for k in range(8):
            e(f"v_add_f32 v{Z + k}, 1.0, v{Z + k}")
        for k in range(8):
            e(f"v_rcp_f32 v{Z + k}, v{Z + k}")
        for k in range(8):
            e(f"v_mul_f32 v{Z + k}, v{Z + k}, v{GA + k}")
        for k in range(8):
            self.round_bf16(Z + k)
        for k in range(8):
            e(f"v_mul_f32 v{Z + k}, v{Z + k}, v{UA + k}")
        for k in range(4):
            e(f"v_cvt_pk_bf16_f32 v{OV + k}, v{Z + 2 * k}, v{Z + 2 * k + 1}")
        permute(4)
        for k in range(8):
            e(f"v_mov_b32 v{YA + k}, 0")
        e(f"v_lshl_add_u32 v{VG}, v2, 8, v{VG}")
        e(f"s_mul_i32 s52, s{S_X}, {4 * 24576}")
        e(f"s_lshl_b32 s7, s{S_CB}, 13")
        e("s_add_u32 s52, s52, s7")
        e(f"s_add_u32 s52, s52, {WS_OP}")
        e("s_mov_b32 s50, -1")
        e("s_branch L_hb_gemv")

        self.c("s50 = head round; each pass multiplies one 64-row vector slice with its weight block")
        e("L_hb_round:")
        for r in range(4):
            nx = self.label("hbr")
            e(f"s_cmp_lg_u32 s50, {r}")
            e(f"s_cbranch_scc1 {nx}")
            permute(r)
            if r == 0:
                self.wait_lds(L_FIT, 56 + self.it_op, VT, n=NS, sleep=8)
            if r == 3:
                self.stamp(3)
                self.wait_lds(L_FIT, 64, VT, n=NS, sleep=1)
                self.stamp(4)
            e(f"{nx}:")
        e("s_add_u32 s53, s52, 4096")
        e("s_sub_u32 s51, 3, s50")
        groups = []
        for j in range(4):
            groups.append(([f"buffer_load_dwordx4 v[{G0 + 8 * j + 4 * q}:{G0 + 8 * j + 4 * q + 3}], v{VG}, "
                            f"s[{SWS}:{SWS + 3}], s{52 + j // 2} offen offset:{2048 * (j % 2) + 128 * q} sc1"
                            for q in range(2)], G0 + 8 * j, 2))
        self.gather_emb(groups, TGL, VT, SM, sleep="s51")
        self.stamp(5)
        for k in range(8):
            e(f"v_add_f32 v{G0 + k}, v{G0 + k}, v{G0 + 8 + k}")
            e(f"v_add_f32 v{G0 + 16 + k}, v{G0 + 16 + k}, v{G0 + 24 + k}")
        for k in range(8):
            e(f"v_add_f32 v{G0 + k}, v{G0 + k}, v{G0 + 16 + k}")
        for pat in (X1, X2, HM):
            for k in range(8):
                e(f"v_add_f32_dpp v{G0 + k}, v{G0 + k}, v{G0 + k} {pat}")
        for k in range(4):
            e(f"v_cvt_pk_bf16_f32 v{OV + k}, v{G0 + 2 * k}, v{G0 + 2 * k + 1}")
        e("s_add_u32 s52, s52, 24576")
        e("L_hb_gemv:")
        gemv()
        e("s_add_u32 s50, s50, 1")
        e("s_and_b32 s51, s50, 3")
        e("s_cbranch_scc1 L_hb_round")
        self.reduce_g(YA, G0, G0 + 4)
        self.embed(G0, TGL)
        e("s_mov_b32 exec_lo, 0xff")
        e("s_mov_b32 exec_hi, 0xff")
        e(f"buffer_store_dwordx4 v[{G0}:{G0 + 3}], v{VP}, s[{SWS}:{SWS + 3}], s54 offen sc1")
        e("s_mov_b64 exec, -1")
        e("s_cmp_lg_u32 s50, 0")
        e("s_cbranch_scc1 L_hb_done")
        self.stamp(2)
        e(f"s_sub_u32 s54, s54, {WS_YB - WS_YA}")
        for k in range(8):
            e(f"v_mov_b32 v{YA + k}, 0")
        e("s_branch L_hb_round")
        e("L_hb_done:")
        self.stamp(6)
        self.prof_store(7)
        e("s_endpgm")

        self.c("finisher: sums the projection partials of one 64-column block and writes the output")
        e("L_finisher:")
        e(f"s_sub_u32 s56, s{S_C}, 30")
        e("s_lshl_b32 s56, s56, 3")
        e(f"s_add_u32 s56, s56, s{S_X}")
        e("s_cmp_ge_u32 s56, 10")
        e("s_cbranch_scc1 L_exit")
        XV, BV = 64, 72
        e(f"v_lshlrev_b32 v{VG}, 4, v0")
        e(f"v_and_b32 v{VA}, 1, v1")
        e(f"v_lshlrev_b32 v{VA}, 3, v{VA}")
        e(f"v_lshl_add_u32 v{VA}, v2, 4, v{VA}")
        e("s_lshl_b32 s57, s56, 7")
        e(f"buffer_load_dwordx2 v[{XV}:{XV + 1}], v{VA}, s[{SX}:{SX + 3}], s57 offen")
        self.srd(SA, P_OUT, 1280)
        e("s_mul_i32 s52, s56, 6144")
        e(f"s_add_u32 s52, s52, {WS_YB}")
        e("s_mov_b32 s50, 16")
        e("s_mov_b32 s51, 1")
        e("L_fin_pass:")
        self.wait_lds(L_FIT, "s50", VT, n=NS, sleep=1)
        self.stamp(4)
        e("s_add_u32 s53, s52, 4096")
        groups = [([f"buffer_load_dwordx4 v[{G0 + 4 * i}:{G0 + 4 * i + 3}], v{VG}, s[{SWS}:{SWS + 3}], "
                    f"s{52 + i // 4} offen offset:{1024 * (i % 4)} sc1"], G0 + 4 * i, 1) for i in range(6)]
        self.gather_emb(groups, TGL, VT, SM, sleep="s51", whole=True)
        self.stamp(5)
        for i in (0, 2, 4):
            for k in range(4):
                e(f"v_add_f32 v{G0 + 4 * i + k}, v{G0 + 4 * i + k}, v{G0 + 4 * i + 4 + k}")
        for i in (2, 4):
            for k in range(4):
                e(f"v_add_f32 v{G0 + k}, v{G0 + k}, v{G0 + 4 * i + k}")
        for sw in ("v_permlane16_swap_b32", "v_permlane32_swap_b32"):
            for k in range(4):
                e(f"v_mov_b32 v{G0 + 4 + k}, v{G0 + k}")
            e("s_nop 0")
            for k in range(4):
                e(f"{sw} v{G0 + k}, v{G0 + 4 + k}")
            e("s_nop 0")
            for k in range(4):
                e(f"v_add_f32 v{G0 + k}, v{G0 + k}, v{G0 + 4 + k}")
        for k in range(4):
            self.round_bf16(G0 + k)
        e("s_cmp_lg_u32 s51, 0")
        e("s_cbranch_scc1 L_fin_first")
        for k in range(4):
            e(f"v_add_f32 v{G0 + k}, v{G0 + k}, v{XV + 2 + k}")
        for k in range(4):
            self.round_bf16(G0 + k)
        for k in range(4):
            e(f"v_add_f32 v{G0 + k}, v{G0 + k}, v{BV + k}")
        e(f"v_cvt_pk_bf16_f32 v{G0}, v{G0}, v{G0 + 1}")
        e(f"v_cvt_pk_bf16_f32 v{G0 + 1}, v{G0 + 2}, v{G0 + 3}")
        e("s_mov_b64 exec, 0xffff")
        e(f"buffer_store_dwordx2 v[{G0}:{G0 + 1}], v{VA}, s[{SA}:{SA + 3}], s57 offen")
        e("s_cmp_lg_u32 s56, 0")
        e("s_cbranch_scc1 L_fin_done")
        self.c("the next launch derives a different tag from this word")
        e(f"v_mov_b32 v{VT}, s{S_TAG}")
        e(f"v_mov_b32 v{VT + 1}, {WS_EPOCH}")
        e("s_mov_b64 exec, 1")
        e(f"buffer_store_dword v{VT}, v{VT + 1}, s[{SWS}:{SWS + 3}], 0 offen")
        e("L_fin_done:")
        if self.diag_dbg:
            e("s_memrealtime s[66:67]")
            e("s_waitcnt lgkmcnt(0)")
            e("s_sub_u32 s66, s66, s64")
            self.srd(48, P_DBG, 256)
            e(f"v_mov_b32 v{VT}, s66")
            e("s_lshl_b32 s6, s56, 2")
            e(f"v_mov_b32 v{VT + 1}, s6")
            e("s_mov_b64 exec, 1")
            e(f"buffer_store_dword v{VT}, v{VT + 1}, s[48:51], 0 offen")
        self.stamp(6)
        self.prof_store(7)
        e("L_exit:")
        e("s_endpgm")
        e("L_fin_first:")
        for k in range(4):
            e(f"v_mov_b32 v{BV + k}, v{G0 + k}")
        e(f"v_lshlrev_b32 v{XV + 2}, 16, v{XV}")
        e(f"v_and_b32 v{XV + 3}, 0xffff0000, v{XV}")
        e(f"v_lshlrev_b32 v{XV + 4}, 16, v{XV + 1}")
        e(f"v_and_b32 v{XV + 5}, 0xffff0000, v{XV + 1}")
        e(f"s_sub_u32 s52, s52, {WS_YB - WS_YA}")
        e("s_mov_b32 s50, 64")
        e("s_mov_b32 s51, 0")
        self.stamp(3)
        e("s_branch L_fin_pass")
        return W + 160

    def build(self):
        self.entry()
        nv = max(self.streamer(), self.helperA(), self.helperB())
        assert nv <= 256
        body = "\n".join(l if l.endswith(":") or l.startswith(";") else "    " + l for l in self.o)
        return (HEADER.format(block=64 * (self.NS + 2), lds=self.lds, name=NAME) + body
                + FOOTER.format(name=NAME, vgpr=nv, acc=(nv + 3) // 4 * 4))


def gen(**kw):
    return Gen(**kw).build()


if __name__ == "__main__":
    out = sys.argv[1] if len(sys.argv) > 1 else f"cdna_kernels/{NAME}.s"
    kw = eval("dict(" + (sys.argv[2] if len(sys.argv) > 2 else "") + ")")
    open(out, "w").write(gen(**kw))
```

```python
import struct
import sys

NAME = "parallel_sum__mha_block_cached__geglu_ffn__decode"
HEAD = 32768 * 384
KV_BYTES = 32 * HEAD
SENT = 0xFFFFFFFF

WS_PA0 = 0x000000
WS_PA1 = 0x020000
WS_STA = 0x040000
WS_STB = 0x044000
WS_YA = 0x050000
WS_YB = 0x060000
WS_OP = 0x070000
WS_PR = 0x140000
PR_STRIDE = 4352
WS_EPOCH = 0x190000
WS_PROF = 0x200000
WS_SIZE = 0x400000
NONCE_STEP = 0x9E3779B9

L_FLS = 0
L_FIT = 8
L_FLQ = 16
L_FLP = 20
L_FLN = 24
L_FLG = 28
L_TAG = 32
L_PCN = 36
L_PD = 40
L_CAP = 48
L_Q = 64
L_XN = 1664
L_SC = 3072
L_PAIR = L_SC + 8192
L_DUMP = L_PAIR + 2048
S_TAG = 60


def f2u(x):
    return struct.unpack("<I", struct.pack("<f", x))[0]


LOG2E = f2u(1.4426950408889634)
SCALE = f2u(192 ** -0.5)

HEADER = """; Kernarg layout for this problem (96 bytes, ptrs only, base s[0:1]):
; @launch grid=(256,1,1) block=({block},1,1) lds={lds}
.amdgcn_target "amdgcn-amd-amdhsa--gfx950"
.text
.globl {name}_kernel
.p2align 8
.type {name}_kernel,@function
{name}_kernel:
"""
FOOTER = """
.section .rodata,"a"
.p2align 6
.amdhsa_kernel {name}_kernel
  .amdhsa_next_free_vgpr {vgpr}
  .amdhsa_next_free_sgpr 96
  .amdhsa_accum_offset {acc}
  .amdhsa_group_segment_fixed_size 0
  .amdhsa_kernarg_size 96
  .amdhsa_user_sgpr_count 2
  .amdhsa_user_sgpr_kernarg_segment_ptr 1
  .amdhsa_system_sgpr_workgroup_id_x 1
.end_amdhsa_kernel
"""

DPP_ALL = "row_mask:0xf bank_mask:0xf"
X1 = "quad_perm:[1,0,3,2] " + DPP_ALL
X2 = "quad_perm:[2,3,0,1] " + DPP_ALL
HM = "row_half_mirror " + DPP_ALL
RM = "row_mirror " + DPP_ALL
R8 = "row_ror:8 " + DPP_ALL

S_WAVE, S_X, S_C = 3, 4, 5
P_X, P_K, P_V, P_WQ, P_WO, P_G, P_U, P_D, P_OUT, P_DBG, P_WS = 16, 18, 20, 22, 24, 28, 30, 32, 34, 36, 38
SPIN_G = 400000
SPIN_L = 4000000


class Gen:
    def __init__(self, R=24, L=23, cap=11, cap0=11, capA=22, capB=22, a_early=0, go_at=39, cap_tail=None,
                 tail_iters=1, caps=None, thr=(38, 102), rep_c=7, lv_end=1, it_q=3, it_st=4, it_op=3, prof=False, diag_hold=0, diag_dbg=False):
        NS = 2
        self.NS, self.R, self.L = NS, R, L
        self.cap, self.cap0, self.capA, self.capB = cap, cap0, capA, capB
        self.a_early, self.go_at = a_early, go_at
        self.cap_tail = cap_tail or cap
        self.tail_iters = tail_iters
        self.caps, self.thr, self.rep_c, self.lv_end = caps, thr, rep_c, lv_end
        self.it_q, self.it_st, self.it_op = it_q, it_st, it_op
        self.prof = prof
        self.diag_hold, self.diag_dbg = diag_hold, diag_dbg
        self.o = []
        self.uid = 0
        self.steps = 32768 // (32 * NS * 16)
        self.tpi = R // 6
        assert R == 24 and L < R
        assert max(cap, cap0, self.cap_tail) <= L
        self.ipr = self.steps // self.tpi
        self.step_bytes = 32 * NS * 6144
        self.dump_bytes = 8 * NS * 768
        self.lds = L_DUMP + 3 * self.dump_bytes

    def e(self, s):
        self.o.append(s)

    def c(self, s):
        self.o.append("; " + s)

    def label(self, base):
        self.uid += 1
        return f"L_{base}_{self.uid}"

    def srd(self, d, p, size):
        self.e(f"s_mov_b32 s{d}, s{p}")
        self.e(f"s_mov_b32 s{d+1}, s{p+1}")
        self.e(f"s_mov_b32 s{d+2}, {size}")
        self.e(f"s_mov_b32 s{d+3}, 0x20000")

    def stamp(self, k):
        if self.prof:
            self.e(f"s_memrealtime s[{64 + 2 * k}:{65 + 2 * k}]")
            self.e("s_waitcnt lgkmcnt(0)")

    def stamp_round(self, sreg, base):
        if not self.prof:
            return
        for r in range(4):
            lb = self.label("st")
            self.e(f"s_cmp_lg_u32 s{sreg}, {r}")
            self.e(f"s_cbranch_scc1 {lb}")
            self.stamp(base + r)
            self.e(f"{lb}:")

    def prof_store(self, n):
        if not self.prof:
            return
        e = self.e
        e("s_mov_b64 exec, -1")
        e("s_waitcnt vmcnt(0) lgkmcnt(0)")
        self.srd(12, P_WS, WS_SIZE)
        e("s_lshl_b32 s6, s2, 2")
        e(f"s_add_u32 s6, s6, s{S_WAVE}")
        e("s_lshl_b32 s6, s6, 6")
        e(f"s_add_u32 s6, s6, {WS_PROF}")
        e("v_mov_b32 v1, 0")
        e("s_getreg_b32 s7, hwreg(HW_REG_XCC_ID)")
        e("v_mov_b32 v2, s7")
        e("s_mov_b64 exec, 1")
        e("buffer_store_dword v2, v1, s[12:15], s6 offen offset:60")
        for k in range(n):
            e(f"v_mov_b32 v{4 + k}, s{64 + 2 * k}")
            e(f"buffer_store_dword v{4 + k}, v1, s[12:15], s6 offen offset:{4 * k}")
        e("s_waitcnt vmcnt(0)")

    def allreduce(self, op, v, t):
        e = self.e
        for pat in (X1, X2, HM, RM):
            e("s_nop 1")
            e(f"{op}_dpp v{v}, v{v}, v{v} {pat}")
        for sw in ("v_permlane16_swap_b32", "v_permlane32_swap_b32"):
            e(f"v_mov_b32 v{t}, v{v}")
            e("s_nop 1")
            e(f"{sw} v{v}, v{t}")
            e("s_nop 1")
            e(f"{op} v{v}, v{v}, v{t}")

    def round_bf16(self, v):
        self.e(f"v_cvt_pk_bf16_f32 v{v}, v{v}, v{v}")
        self.e(f"v_and_b32 v{v}, 0xffff0000, v{v}")

    def expand(self, src, dst):
        e = self.e
        for k in range(4):
            e(f"v_and_b32 v{dst + 4 * k}, 0xffff, v{src + k}")
            e(f"v_lshlrev_b32 v{dst + 4 * k + 1}, 16, v{src + k}")
            e(f"v_lshrrev_b32 v{dst + 4 * k + 2}, 16, v{src + k}")
            e(f"v_and_b32 v{dst + 4 * k + 3}, 0xffff0000, v{src + k}")

    def gemv_row(self, w, xop, acc):
        for k in range(4):
            self.e(f"v_dot2c_f32_bf16 v{acc + 2 * k}, v{w + k}, v{xop}")
            self.e(f"v_dot2c_f32_bf16 v{acc + 2 * k + 1}, v{w + k}, v{xop + 1}")

    def reduce_g(self, acc, res, t):
        e = self.e
        e("s_nop 2")
        for k in range(4):
            e(f"v_permlane32_swap_b32 v{acc + k}, v{acc + k + 4}")
        e("s_nop 0")
        for k in range(4):
            e(f"v_add_f32 v{res + k}, v{acc + k}, v{acc + k + 4}")
        for k in range(4):
            e(f"v_mov_b32 v{t + k}, v{res + k}")
        e("s_nop 0")
        for k in range(4):
            e(f"v_permlane16_swap_b32 v{res + k}, v{t + k}")
        e("s_nop 0")
        for k in range(4):
            e(f"v_add_f32 v{res + k}, v{res + k}, v{t + k}")
        e("s_nop 0")
        for k in range(4):
            e(f"v_add_f32_dpp v{res + k}, v{res + k}, v{res + k} {R8}")

    def tag_regs(self, res):
        self.e(f"v_mov_b32 v{res + 1}, s{S_TAG}")
        self.e(f"v_mov_b32 v{res + 3}, s{S_TAG}")

    def reduce_g2(self, acc, res):
        e = self.e
        e("s_nop 2")
        for k in range(4):
            e(f"v_permlane32_swap_b32 v{acc + k}, v{acc + k + 4}")
        e("s_nop 0")
        for k in range(4):
            e(f"v_add_f32 v{acc + k}, v{acc + k}, v{acc + k + 4}")
        e("s_nop 1")
        for k in range(2):
            e(f"v_permlane16_swap_b32 v{acc + k}, v{acc + k + 2}")
        e("s_nop 0")
        for k in range(2):
            e(f"v_add_f32 v{acc + k}, v{acc + k}, v{acc + k + 2}")
        e("s_nop 1")
        for k in range(2):
            e(f"v_add_f32_dpp v{res + 2 * k}, v{acc + k}, v{acc + k} {R8}")

    def exec_tagged(self):
        self.e("s_mov_b32 exec_lo, 0x00ff00ff")
        self.e("s_mov_b32 exec_hi, 0x00ff00ff")

    def make_tags(self, dst):
        self.e("s_movk_i32 s61, 0xff")
        for k in range(4):
            self.e(f"v_bfe_u32 v{dst + k}, s{S_TAG}, {8 * k}, 8")

    def embed(self, v, tg):
        for k in range(4):
            self.e(f"v_bfi_b32 v{v + k}, s61, v{tg + k}, v{v + k}")

    def read_tag(self, vt):
        e = self.e
        e(f"v_mov_b32 v{vt + 4}, 0")
        e(f"ds_read_b32 v{vt}, v{vt + 4} offset:{L_TAG}")
        e("s_waitcnt lgkmcnt(0)")
        e(f"v_readfirstlane_b32 s{S_TAG}, v{vt}")
        e("s_nop 1")

    def gather_emb(self, groups, tg, vt, sm, lanes=64, sleep=1, between=None, whole=False):
        e = self.e
        lp, ok, mid = self.label("ge"), self.label("geok"), self.label("gemid")
        n = len(groups)
        e(f"s_mov_b32 s62, {SPIN_G}")
        for j in range(n):
            e(f"s_mov_b32 s{sm + 2 * j}, -1")
            e(f"s_mov_b32 s{sm + 2 * j + 1}, {hex((1 << (lanes - 32)) - 1)}")
        if between:
            e(f"s_mov_b64 exec, s[{sm}:{sm + 1}]")
            for loads, _, _ in groups:
                for s_ in loads:
                    e(s_)
            e("s_mov_b64 exec, -1")
            between()
            e(f"s_branch {mid}")
        e(f"{lp}:")
        for j, (loads, _, _) in enumerate(groups):
            sk = self.label("gs")
            e(f"s_mov_b64 exec, s[{sm + 2 * j}:{sm + 2 * j + 1}]")
            e(f"s_cbranch_execz {sk}")
            for s_ in loads:
                e(s_)
            e(f"{sk}:")
        e(f"{mid}:")
        e("s_mov_b64 vcc, 0")
        e("s_waitcnt vmcnt(0)")
        for j, (_, first, nrec) in enumerate(groups):
            sk = self.label("gs")
            e(f"s_mov_b64 exec, s[{sm + 2 * j}:{sm + 2 * j + 1}]")
            e(f"s_cbranch_execz {sk}")
            for k in range(4 * nrec):
                e(f"v_xor_b32 v{first + k}, v{first + k}, v{tg + k % 4}")
            e(f"v_or_b32 v{vt}, v{first}, v{first + 1}")
            for k in range(2, 4 * nrec, 2):
                e(f"v_or3_b32 v{vt}, v{vt}, v{first + k}, v{first + k + 1}")
            e(f"v_and_b32 v{vt}, s61, v{vt}")
            e(f"v_cmp_ne_u32 s[{sm + 2 * j}:{sm + 2 * j + 1}], 0, v{vt}")
            e("s_nop 0")
            e(f"s_or_b64 vcc, vcc, s[{sm + 2 * j}:{sm + 2 * j + 1}]")
            if whole:
                e(f"s_cmp_lg_u64 s[{sm + 2 * j}:{sm + 2 * j + 1}], 0")
                e(f"s_cselect_b64 s[{sm + 2 * j}:{sm + 2 * j + 1}], -1, 0")
            e(f"{sk}:")
        e("s_mov_b64 exec, -1")
        e("s_cmp_eq_u64 vcc, 0")
        e(f"s_cbranch_scc1 {ok}")
        if isinstance(sleep, str):
            sk = self.label("gs")
            e(f"s_cmp_eq_u32 {sleep}, 0")
            e(f"s_cbranch_scc1 {sk}")
            e("s_sleep 32")
            e(f"{sk}:")
        elif sleep:
            e(f"s_sleep {sleep}")
        e("s_sub_u32 s62, s62, 1")
        e("s_cmp_lg_u32 s62, 0")
        e(f"s_cbranch_scc1 {lp}")
        e("s_endpgm")
        e(f"{ok}:")

    def gather_tagged(self, loads, first, nrec, vt, sleep=1, skip=None, between=None):
        e = self.e
        lp, ok, mid = self.label("gt"), self.label("gtok"), self.label("gtmid")
        e(f"s_mov_b32 s62, {SPIN_G}")
        if between:
            for s_ in loads:
                e(s_)
            between()
            e(f"s_branch {mid}")
        e(f"{lp}:")
        for s_ in loads:
            e(s_)
        e(f"{mid}:")
        e(f"v_mov_b32 v{vt}, 0")
        e(f"v_mov_b32 v{vt + 1}, 0")
        e("s_waitcnt vmcnt(0)")
        for k in range(nrec):
            t = vt + 1 if skip and k in skip[0] else vt
            e(f"v_bitop3_b32 v{t}, v{t}, v{first + 4 * k + 1}, s{S_TAG} bitop3:0xf6")
            e(f"v_bitop3_b32 v{t}, v{t}, v{first + 4 * k + 3}, s{S_TAG} bitop3:0xf6")
        if skip:
            e(f"v_cndmask_b32 v{vt + 1}, 0, v{vt + 1}, s[{skip[1]}:{skip[1] + 1}]")
            e(f"v_or_b32 v{vt}, v{vt}, v{vt + 1}")
        e(f"v_cmp_ne_u32 vcc, 0, v{vt}")
        e("s_nop 4")
        e(f"s_cbranch_vccz {ok}")
        if sleep:
            e(f"s_sleep {sleep}")
        e("s_sub_u32 s62, s62, 1")
        e("s_cmp_lg_u32 s62, 0")
        e(f"s_cbranch_scc1 {lp}")
        e("s_endpgm")
        e(f"{ok}:")

    def reduce_sub(self, v, n):
        for pat in (X1, X2, HM):
            self.e("s_nop 1")
            for k in range(n):
                self.e(f"v_add_f32_dpp v{v + k}, v{v + k}, v{v + k} {pat}")

    def wait_lds(self, addr, val, vt, n=1, sleep=2, val_is_sreg=False):
        e = self.e
        lp, ok = self.label("wl"), self.label("wlok")
        e(f"s_mov_b32 s62, {SPIN_L}")
        e(f"v_mov_b32 v{vt + 4}, 0")
        e(f"{lp}:")
        if n == 1:
            e(f"ds_read_b32 v{vt}, v{vt + 4} offset:{addr}")
            e("s_waitcnt lgkmcnt(0)")
        elif n == 2:
            e(f"ds_read_b64 v[{vt}:{vt + 1}], v{vt + 4} offset:{addr}")
            e("s_waitcnt lgkmcnt(0)")
            e(f"v_min_u32 v{vt}, v{vt}, v{vt + 1}")
        else:
            e(f"ds_read_b128 v[{vt}:{vt + 3}], v{vt + 4} offset:{addr}")
            e("s_waitcnt lgkmcnt(0)")
            e(f"v_min_u32 v{vt}, v{vt}, v{vt + 1}")
            e(f"v_min3_u32 v{vt}, v{vt}, v{vt + 2}, v{vt + 3}")
        e("s_nop 0")
        e(f"v_readfirstlane_b32 s63, v{vt}")
        e(f"s_cmp_ge_u32 s63, {val}")
        e(f"s_cbranch_scc1 {ok}")
        if sleep:
            e(f"s_sleep {sleep}")
        e("s_sub_u32 s62, s62, 1")
        e("s_cmp_lg_u32 s62, 0")
        e(f"s_cbranch_scc1 {lp}")
        e("s_endpgm")
        e(f"{ok}:")

    def set_lds(self, addr, val, vt):
        e = self.e
        e("s_waitcnt lgkmcnt(0)")
        e(f"v_mov_b32 v{vt}, {addr}")
        e(f"v_mov_b32 v{vt + 1}, {val}")
        e(f"ds_write_b32 v{vt}, v{vt + 1}")

    def layernorm(self, xa, f):
        e = self.e

        def unpack():
            for k in range(5):
                e(f"v_lshlrev_b32 v{f + 2 * k}, 16, v{xa + k}")
                e(f"v_and_b32 v{f + 2 * k + 1}, 0xffff0000, v{xa + k}")

        def pack():
            for k in range(5):
                e(f"v_cvt_pk_bf16_f32 v{xa + k}, v{f + 2 * k}, v{f + 2 * k + 1}")

        unpack()
        m, t, var, d = f + 10, f + 11, f + 12, f + 13
        e(f"v_add_f32 v{m}, v{f}, v{f + 1}")
        for k in range(2, 10):
            e(f"v_add_f32 v{m}, v{m}, v{f + k}")
        self.allreduce("v_add_f32", m, t)
        e(f"v_mul_f32 v{m}, {hex(f2u(1.0 / 640))}, v{m}")
        e(f"v_mov_b32 v{var}, 0")
        for k in range(10):
            e(f"v_sub_f32 v{d}, v{f + k}, v{m}")
            e(f"v_fmac_f32 v{var}, v{d}, v{d}")
        self.allreduce("v_add_f32", var, t)
        e(f"v_mul_f32 v{var}, {hex(f2u(1.0 / 640))}, v{var}")
        self.round_bf16(var)
        self.round_bf16(m)
        e(f"v_add_f32 v{var}, {hex(f2u(1e-5))}, v{var}")
        self.round_bf16(var)
        e(f"v_sqrt_f32 v{var}, v{var}")
        for k in range(10):
            e(f"v_sub_f32 v{f + k}, v{f + k}, v{m}")
        self.round_bf16(var)
        e(f"v_rcp_f32 v{var}, v{var}")
        pack()
        unpack()
        for k in range(10):
            e(f"v_mul_f32 v{f + k}, v{f + k}, v{var}")
        pack()

    def entry(self):
        e = self.e
        self.c("roles: waves 0..NS-1 stream K then V; wave NS does q/softmax exchanges; wave NS+1 does weight GEMVs")
        if self.prof or self.diag_hold or self.diag_dbg:
            e("s_memrealtime s[64:65]")
        e("s_cmp_ge_u32 s2, 256")
        e("s_cbranch_scc1 L_exit")
        e("s_load_dwordx16 s[16:31], s[0:1], 0")
        e("s_load_dwordx8 s[32:39], s[0:1], 64")
        e("v_lshrrev_b32 v1, 6, v0")
        e("v_and_b32 v0, 63, v0")
        e(f"v_readfirstlane_b32 s{S_WAVE}, v1")
        e(f"s_and_b32 s{S_X}, s2, 7")
        e(f"s_lshr_b32 s{S_C}, s2, 3")
        e("v_lshrrev_b32 v1, 3, v0")
        e("v_and_b32 v2, 7, v0")
        e(f"s_mul_i32 s40, s{S_C}, 43691")
        e("s_lshr_b32 s40, s40, 17")
        e("s_mul_i32 s41, s40, 3")
        e(f"s_sub_u32 s41, s{S_C}, s41")
        e(f"s_cmp_eq_u32 s{S_WAVE}, {self.NS}")
        e("s_cbranch_scc1 L_helperA")
        e(f"s_cmp_eq_u32 s{S_WAVE}, {self.NS + 1}")
        e("s_cbranch_scc1 L_helperB")

    def streamer(self):
        e = self.e
        NS, R, L = self.NS, self.R, self.L
        VOFF, VSC, VQ, VDUMP, VT = 3, 4, 5, 6, 8
        VIT = 13
        A = 14
        VO, VPR, TG = 18, 19, 24
        VSM, VPB, VPA, VL4 = 56, 57, 58, 59
        SC = 20
        Q = 20 + 8
        PN, PX = 52, 60
        RING = 64
        S_OFF, S_DELTA, S_B0, S_B1, S_IT, S_R = 44, 45, 46, 47, 48, 49
        offs = [(i // 3) * 3072 + (i % 3) * 128 for i in range(6)]
        cand = [j for j in range(R) if (j + L) % 6 == 5 and ((j + L + 1) // 6) % self.tpi == 0]
        assert len(cand) == 1
        self.c("streamer")
        e(f"v_mul_u32_u24 v{VOFF}, 384, v1")
        e(f"v_lshl_add_u32 v{VOFF}, v2, 4, v{VOFF}")
        tb = 4 * self.tpi
        e(f"s_mul_i32 s6, s{S_WAVE}, {8 * tb}")
        e(f"s_add_u32 s6, s6, {L_SC}")
        e(f"v_mul_u32_u24 v{VSC}, {tb}, v1")
        e(f"v_add_u32 v{VSC}, s6, v{VSC}")
        e(f"v_lshlrev_b32 v{VQ}, 4, v2")
        e(f"s_mul_i32 s6, s{S_WAVE}, {8 * 768}")
        e(f"s_add_u32 s6, s6, {L_DUMP}")
        e(f"v_mul_u32_u24 v{VDUMP}, 768, v1")
        e(f"v_lshl_add_u32 v{VDUMP}, v2, 5, v{VDUMP}")
        e(f"v_add_u32 v{VDUMP}, s6, v{VDUMP}")
        e(f"s_mul_i32 s{S_OFF}, s{S_X}, {HEAD}")
        e(f"s_mul_i32 s6, s{S_C}, {NS}")
        e(f"s_add_u32 s6, s6, s{S_WAVE}")
        e("s_mul_i32 s6, s6, 6144")
        e(f"s_add_u32 s{S_OFF}, s{S_OFF}, s6")
        e(f"s_lshl_b32 s7, s{S_WAVE}, 2")
        e(f"v_mov_b32 v7, s7")
        e(f"v_mov_b32 v{VIT}, 0")
        e("s_waitcnt lgkmcnt(0)")
        self.srd(8, P_K, KV_BYTES)
        e("s_barrier")

        def issue(p, boundary=False):
            r = RING + (p % R) * 4
            e(f"buffer_load_dwordx4 v[{r}:{r + 3}], v{VOFF}, s[8:11], s{S_OFF} offen offset:{offs[p % 6]} nt")
            if p % 6 == 5:
                if boundary:
                    e(f"s_add_u32 s{S_OFF}, s{S_OFF}, s{S_DELTA}")
                    e(f"s_mov_b32 s8, s{S_B0}")
                    e(f"s_mov_b32 s9, s{S_B1}")
                else:
                    e(f"s_add_u32 s{S_OFF}, s{S_OFF}, {self.step_bytes}")

        if self.go_at is not None:
            self.wait_lds(L_FLG, 1, VT, sleep=1)
        for p in range(L):
            if p >= self.cap0:
                e(f"s_waitcnt vmcnt({self.cap0 - 1})")
            issue(p)
        self.stamp(1)
        e(f"s_mov_b32 s{S_R}, 0")
        e(f"s_mov_b32 s53, {len(self.caps) // 2 if self.caps else 0}")
        e(f"s_mov_b32 s{S_B0}, s{P_K}")
        e(f"s_mov_b32 s{S_B1}, s{P_K + 1}")
        e(f"s_mov_b32 s56, {self.step_bytes + 7 * HEAD}")

        self.c("addresses of the final publish")
        e(f"v_and_b32 v{VT}, 1, v1")
        e(f"v_bfe_u32 v{VO}, v0, 4, 1")
        e(f"v_cmp_eq_u32 vcc, 1, v{VT}")
        e(f"v_lshrrev_b32 v{VT + 1}, 5, v0")
        e(f"v_lshlrev_b32 v{VPR}, 4, v0")
        e(f"v_cndmask_b32 v{VO}, v{VO}, 2, vcc")
        e(f"v_lshlrev_b32 v{VO}, 13, v{VO}")
        e(f"v_lshl_add_u32 v{VO}, v{VT + 1}, 7, v{VO}")
        e(f"v_lshl_add_u32 v{VO}, v2, 4, v{VO}")
        e(f"s_mul_i32 s57, s{S_X}, {4 * 24576}")
        e(f"s_lshl_b32 s7, s{S_C}, 8")
        e("s_add_u32 s57, s57, s7")
        e(f"s_add_u32 s57, s57, {WS_OP + 3 * 24576}")
        self.srd(12, P_WS, WS_SIZE)
        if self.caps:
            e(f"v_lshlrev_b32 v{VL4}, 2, v0")
            e(f"v_lshlrev_b32 v{VPA}, 24, v0")
            e(f"s_mul_i32 s59, s{S_X}, {PR_STRIDE}")
            e(f"s_add_u32 s59, s59, {WS_PR}")
            e(f"s_lshl_b32 s6, s{S_C}, 1")
            e(f"s_add_u32 s6, s6, s{S_WAVE}")
            e("s_lshl_b32 s6, s6, 2")
            e("s_add_u32 s58, s59, s6")
            if self.prof:
                e("s_mov_b32 s92, 0")
        self.wait_lds(L_FLN, 1, VT, sleep=1)
        self.read_tag(VT)
        self.make_tags(TG)

        e("L_kround:")
        e(f"s_add_u32 s50, s{S_R}, 1")
        self.wait_lds(L_FLQ, "s50", VT, sleep=0)
        for s in range(3):
            e(f"ds_read_b128 v[{Q + 4 * s}:{Q + 4 * s + 3}], v{VQ} offset:{L_Q + 128 * s}")
        e(f"v_add_u32 v{VQ}, 384, v{VQ}")
        if self.prof:
            e(f"s_cmp_lg_u32 s{S_R}, 0")
            e("s_cbranch_scc1 L_nostamp2")
            self.stamp(2)
            e("L_nostamp2:")
        e(f"s_mov_b32 s{S_IT}, {self.ipr}")
        e("s_waitcnt lgkmcnt(0)")
        e("L_kloop:")
        e(f"s_cmp_eq_u32 s{S_R}, 3")
        e(f"s_cselect_b32 s50, {hex((self.step_bytes - 25 * HEAD) & 0xffffffff)}, s56")
        e(f"s_cselect_b32 s51, 1, 0")
        e(f"s_cmp_eq_u32 s{S_IT}, 1")
        e(f"s_cselect_b32 s{S_DELTA}, s50, {self.step_bytes}")
        e(f"s_cmp_eq_u32 s{S_IT}, s51")
        e(f"s_cselect_b32 s{S_B0}, s{P_V}, s{S_B0}")
        e(f"s_cselect_b32 s{S_B1}, s{P_V + 1}, s{S_B1}")
        nlev = len(self.caps) if self.caps else 0
        mid = nlev // 2

        def ctl_issue():
            e(f"v_add_u32 v{VPB}, s{S_TAG}, v{VIT}")
            e(f"buffer_store_dword v{VPB}, v{VPA}, s[12:15], s58 offen")
            e(f"buffer_load_dword v{VSM}, v{VL4}, s[12:15], s59 offen sc1")

        def ctl_ops():
            ops = [f"v_sub_u32 v{VSM}, v{VSM}, v{VPB}",
                   f"v_add_u32 v{VPB}, 8, v{VSM}",
                   f"v_cmp_gt_u32 vcc, 17, v{VPB}",
                   f"v_lshl_add_u32 v{VSM}, v{VSM}, 1, 1",
                   f"v_cndmask_b32 v{VSM}, 0, v{VSM}, vcc"]
            ops += [f"v_add_u32_dpp v{VSM}, v{VSM}, v{VSM} {pat}" for pat in (X1, X2, HM, RM)]
            ops += [f"v_readlane_b32 s{88 + k}, v{VSM}, {16 * k}" for k in range(4)]
            return ops

        def wait_count(cap, j, ctl):
            return cap - 1 + (2 if ctl and 0 < j <= cap else 0)

        def pick_level():
            if not self.caps:
                return
            e("s_add_u32 s88, s88, s89")
            e("s_add_u32 s90, s90, s91")
            e("s_add_u32 s88, s88, s90")
            e(f"s_mov_b32 s53, {mid}")
            for k in range(1, mid + 1):
                e(f"s_cmp_gt_i32 s88, {self.thr[k - 1]}")
                e(f"s_cselect_b32 s53, {mid + k}, s53")
                e(f"s_cmp_lt_i32 s88, {-self.thr[k - 1]}")
                e(f"s_cselect_b32 s53, {mid - k}, s53")
            if self.prof:
                e("s_mul_i32 s7, s53, 6")
                e("s_lshl_b32 s7, 1, s7")
                e("s_add_u32 s92, s92, s7")

        def kbody(cap):
            pend = []
            pos = [0]
            side = ctl_ops()
            assert cap + 1 <= 17

            def main(s):
                e(s)
                pos[0] += 1
                if pend and pend[0][0] <= pos[0]:
                    _, ins, gap = pend.pop(0)
                    e(ins)
                    pos[0] += 1
                    if pend:
                        pend[0] = (max(pend[0][0], pos[0] + gap), pend[0][1], pend[0][2])

            for j in range(R):
                tile, jj = divmod(j, 6)
                kg, s = divmod(jj, 3)
                a = A + 2 * (tile % 2) + kg
                main(f"s_waitcnt vmcnt({wait_count(cap, j, nlev)})")
                n0 = len(self.o)
                issue(j + L, boundary=(j == cand[0]))
                if nlev and j == 0:
                    ctl_issue()
                if nlev and j >= 17 and side:
                    e(side.pop(0))
                pos[0] += len(self.o) - n0
                if s == 0:
                    main(f"v_mov_b32 v{a}, 0")
                r = RING + j * 4
                for k in range(4):
                    main(f"v_dot2c_f32_bf16 v{a}, v{r + k}, v{Q + 4 * s + k}")
                    if nlev and j >= 17 and k == 2 and side:
                        e(side.pop(0))
                        pos[0] += 1
                if s == 2:
                    first = pos[0] + 3
                    pend.append((first, f"v_add_f32_dpp v{a}, v{a}, v{a} {X1}", 2))
                    pend.append((0, f"v_add_f32_dpp v{a}, v{a}, v{a} {X2}", 2))
                    pend.append((0, f"v_add_f32_dpp v{a}, v{a}, v{a} {HM}", 0))
                    if kg == 1:
                        pend.append((0, f"v_cvt_pk_bf16_f32 v{SC + tile}, v{a - 1}, v{a}", 0))
            while pend:
                main("s_nop 0")

        def dispatch(name, fn):
            if not self.caps:
                fn(self.cap)
                return
            others = [k for k in range(nlev) if k != mid]
            e(f"s_cmp_eq_u32 s53, {mid}")
            e(f"s_cbranch_scc1 L_{name}{mid}")
            for code in others[1:]:
                e(f"s_cmp_eq_u32 s53, {code}")
                e(f"s_cbranch_scc1 L_{name}{code}")
            for code in others + [mid]:
                e(f"L_{name}{code}:")
                fn(self.caps[code])
                if code != mid:
                    e(f"s_branch L_{name}_end")
            e(f"L_{name}_end:")

        dispatch("kb", kbody)
        pick_level()
        for q4 in range(self.tpi // 4):
            e(f"ds_write_b128 v{VSC}, v[{SC + 4 * q4}:{SC + 4 * q4 + 3}] offset:{16 * q4}")
        e(f"v_add_u32 v{VIT}, 1, v{VIT}")
        e(f"v_add_u32 v{VSC}, {NS * 8 * tb}, v{VSC}")
        e(f"ds_write_b32 v7, v{VIT} offset:{L_FIT}")
        e(f"s_sub_u32 s{S_IT}, s{S_IT}, 1")
        e(f"s_cmp_lg_u32 s{S_IT}, 0")
        e("s_cbranch_scc1 L_kloop")
        self.stamp_round(S_R, 3)
        e(f"s_add_u32 s{S_R}, s{S_R}, 1")
        e(f"v_mov_b32 v{VT}, s{S_R}")
        e(f"ds_write_b32 v7, v{VT} offset:{L_FLS}")
        e(f"s_cmp_lt_u32 s{S_R}, 4")
        e("s_cbranch_scc1 L_kround")

        e(f"v_subrev_u32 v{VSC}, 8192, v{VSC}")
        self.wait_lds(L_FLP, 1, VT, sleep=0)
        for q4 in range(self.tpi // 4):
            e(f"ds_read_b128 v[{PN + 4 * q4}:{PN + 4 * q4 + 3}], v{VSC} offset:{16 * q4}")
        e(f"v_add_u32 v{VSC}, {NS * 8 * tb}, v{VSC}")
        e(f"s_mov_b32 s{S_R}, 0")

        def vbody(cap, last=False, ctl=True):
            ctl = ctl and nlev and not last
            side = ctl_ops() if ctl else []
            e("s_waitcnt lgkmcnt(0)")
            for j in range(R):
                tile, jj = divmod(j, 6)
                kg, s = divmod(jj, 3)
                if last and j + L >= R:
                    e(f"s_waitcnt vmcnt({R - 1 - j})")
                else:
                    e(f"s_waitcnt vmcnt({wait_count(cap, j, ctl)})")
                    issue(j + L, boundary=(j == cand[0]))
                if ctl and j == 0:
                    ctl_issue()
                if j >= 17 and side:
                    e(side.pop(0))
                if jj == 0:
                    e(f"v_and_b32 v{PX}, 0xffff, v{PN + tile}")
                    e(f"v_lshlrev_b32 v{PX + 1}, 16, v{PN + tile}")
                    e(f"v_lshrrev_b32 v{PX + 2}, 16, v{PN + tile}")
                    e(f"v_and_b32 v{PX + 3}, 0xffff0000, v{PN + tile}")
                    if tile == self.tpi - 1 and not last:
                        e(f"v_add_u32 v{VIT}, 1, v{VIT}")
                        e(f"ds_write_b32 v7, v{VIT} offset:{L_FIT}")
                        for q4 in range(self.tpi // 4):
                            e(f"ds_read_b128 v[{PN + 4 * q4}:{PN + 4 * q4 + 3}], v{VSC} offset:{16 * q4}")
                        e(f"v_add_u32 v{VSC}, {NS * 8 * tb}, v{VSC}")
                self.gemv_row(RING + 4 * j, PX + 2 * kg, Q + 8 * s)
                if j >= 17 and side:
                    e(side.pop(0))
            assert not side

        def dump():
            e("s_nop 2")
            for s in range(3):
                for hlf in range(2):
                    r = Q + 8 * s + 4 * hlf
                    e(f"ds_write_b128 v{VDUMP}, v[{r}:{r + 3}] offset:{256 * s + 16 * hlf}")
            e(f"v_add_u32 v{VDUMP}, {self.dump_bytes}, v{VDUMP}")
            e(f"s_add_u32 s50, s{S_R}, 5")
            e(f"v_mov_b32 v{VT}, s50")
            e(f"ds_write_b32 v7, v{VT} offset:{L_FLS}")

        e("L_vround:")
        e(f"s_add_u32 s50, s{S_R}, 2")
        e("s_min_u32 s50, s50, 4")
        self.wait_lds(L_FLP, "s50", VT, sleep=0)
        for k in range(24):
            e(f"v_mov_b32 v{Q + k}, 0")
        e(f"s_cmp_eq_u32 s{S_R}, 3")
        e(f"s_cselect_b32 s52, {self.tail_iters}, 0")
        e(f"s_mov_b32 s{S_IT}, {self.ipr}")
        e("L_vloop:")
        e(f"s_cmp_eq_u32 s{S_IT}, 1")
        e(f"s_cselect_b32 s{S_DELTA}, s56, {self.step_bytes}")
        dispatch("vb", vbody)
        pick_level()
        e(f"s_sub_u32 s{S_IT}, s{S_IT}, 1")
        e(f"s_cmp_lg_u32 s{S_IT}, s52")
        e("s_cbranch_scc1 L_vloop")
        e(f"s_cmp_eq_u32 s{S_R}, 3")
        e("s_cbranch_scc1 L_vtail")
        self.stamp_round(S_R, 7)
        dump()
        e(f"s_add_u32 s{S_R}, s{S_R}, 1")
        e("s_branch L_vround")
        e("L_vtail:")
        e(f"s_mov_b32 s{S_DELTA}, {self.step_bytes}")
        if self.tail_iters > 1:
            e("L_vtloop:")
            vbody(self.cap_tail, ctl=False)
            e(f"s_sub_u32 s{S_IT}, s{S_IT}, 1")
            e(f"s_cmp_lg_u32 s{S_IT}, 1")
            e("s_cbranch_scc1 L_vtloop")
        vbody(self.cap_tail, last=True)
        self.stamp(10)
        self.c("last head: reduce over lane groups, combine the two streamers, publish")
        e(f"v_mov_b32 v{VIT}, 64")
        e(f"ds_write_b32 v7, v{VIT} offset:{L_FIT}")
        e(f"s_xor_b32 s50, s{S_WAVE}, 1")
        for s_ in range(3):
            for k in range(4):
                e(f"v_permlane32_swap_b32 v{Q + 8 * s_ + k}, v{Q + 8 * s_ + k + 4}")
        for s_ in range(3):
            for k in range(4):
                e(f"v_add_f32 v{Q + 8 * s_ + k}, v{Q + 8 * s_ + k}, v{Q + 8 * s_ + k + 4}")
        e("s_lshl_b32 s51, s50, 10")
        e(f"v_add_u32 v{VT + 2}, s51, v{VPR}")
        e(f"v_xor_b32 v{VT + 1}, 4, v7")
        for k in range(4):
            e(f"v_mov_b32 v{Q + 20 + k}, v{Q + 16 + k}")
        e(f"ds_read_b32 v{VT}, v{VT + 1} offset:{L_PD}")
        e(f"ds_read_b128 v[{PN}:{PN + 3}], v{VT + 2} offset:{L_PAIR}")
        for k in range(4):
            e(f"v_permlane16_swap_b32 v{Q + k}, v{Q + 8 + k}")
        for k in range(4):
            e(f"v_permlane16_swap_b32 v{Q + 16 + k}, v{Q + 20 + k}")
        for k in range(4):
            e(f"v_add_f32 v{Q + k}, v{Q + k}, v{Q + 8 + k}")
        for k in range(4):
            e(f"v_add_f32 v{Q + 16 + k}, v{Q + 16 + k}, v{Q + 20 + k}")
        for k in range(4):
            e(f"v_add_f32_dpp v{PX + k}, v{Q + k}, v{Q + k} row_ror:8 row_mask:0xf bank_mask:0x3")
        for k in range(4):
            e(f"v_add_f32_dpp v{PX + k}, v{Q + 16 + k}, v{Q + 16 + k} row_ror:8 row_mask:0xf bank_mask:0xc")
        e("s_waitcnt lgkmcnt(0)")
        e(f"v_readfirstlane_b32 s63, v{VT}")
        e("s_cmp_lg_u32 s63, 0")
        e("s_cbranch_scc1 L_spub")
        e(f"s_lshl_b32 s51, s{S_WAVE}, 10")
        e(f"v_add_u32 v{VT + 3}, s51, v{VPR}")
        e(f"v_mov_b32 v{VT}, 1")
        e(f"v_mov_b32 v{VT + 4}, 0")
        e(f"ds_write_b128 v{VT + 3}, v[{PX}:{PX + 3}] offset:{L_PAIR}")
        e(f"ds_write_b32 v7, v{VT} offset:{L_PD}")
        e("s_mov_b64 exec, 1")
        e(f"ds_add_rtn_u32 v{VT + 1}, v{VT + 4}, v{VT} offset:{L_PCN}")
        e("s_mov_b64 exec, -1")
        e(f"ds_read_b128 v[{PN}:{PN + 3}], v{VT + 2} offset:{L_PAIR}")
        e("s_waitcnt lgkmcnt(0)")
        e(f"v_readfirstlane_b32 s63, v{VT + 1}")
        e("s_cmp_eq_u32 s63, 0")
        e("s_cbranch_scc1 L_sdone")
        e("L_spub:")
        for k in range(4):
            e(f"v_add_f32 v{PX + k}, v{PX + k}, v{PN + k}")
        self.embed(PX, TG)
        e("s_mov_b32 exec_lo, 0xffffff")
        e("s_mov_b32 exec_hi, 0xffffff")
        e(f"buffer_store_dwordx4 v[{PX}:{PX + 3}], v{VO}, s[12:15], s57 offen sc1")
        e("L_sdone:")
        self.stamp(11)
        if self.prof:
            e("s_mov_b32 s88, s92")
        self.prof_store(13)
        e("s_endpgm")
        return RING + 4 * R

    def helperA(self):
        e = self.e
        NS = self.NS
        S_RB, S_CB = 40, 41
        SX, SW, SWS, SJ = 8, 12, 44, 48
        SM = 84
        VW, VT, VQL = 3, 4, 9
        T, TGL, VP, VL16 = 10, 14, 18, 19
        XA, VW2, VXS, XC, F, XOP = 20, 25, 26, 28, 52, 68
        ACC, RES, RING, GQ = 84, 92, 96, 192
        VG0, VG1 = 66, 67
        e("L_helperA:")
        e("s_setprio 3")
        e(f"v_mul_u32_u24 v{VW}, 0x18000, v1")
        e(f"v_lshl_add_u32 v{VW}, v2, 4, v{VW}")
        e(f"v_lshlrev_b32 v{VL16}, 4, v0")
        e(f"v_lshlrev_b32 v{T}, 2, v0")
        e(f"s_mul_i32 s42, s{S_RB}, {64 * 12288}")
        e(f"s_mul_i32 s43, s{S_X}, 384")
        e("s_add_u32 s42, s42, s43")
        e(f"s_lshl_b32 s6, s{S_CB}, 7")
        e("s_add_u32 s42, s42, s6")
        e("s_waitcnt lgkmcnt(0)")
        self.srd(SX, P_X, 1280)
        self.srd(SW, P_WQ, 640 * 12288)
        e(f"buffer_load_dwordx4 v[{XA}:{XA + 3}], v{VL16}, s[{SX}:{SX + 3}], 0 offen")
        e(f"buffer_load_dword v{XA + 4}, v{T}, s[{SX}:{SX + 3}], 0 offen offset:1024")
        for i in range(8):
            e(f"buffer_load_dwordx4 v[{GQ + 4 * i}:{GQ + 4 * i + 3}], v{VW}, s[{SW}:{SW + 3}], s42 offen nt")
            if i < 7:
                e("s_add_u32 s42, s42, 12288")
        e(f"s_mov_b32 s6, {WS_EPOCH}")
        e(f"s_load_dword s{S_TAG}, s[{P_WS}:{P_WS + 1}], s6")
        e("s_barrier")
        self.srd(SWS, P_WS, WS_SIZE)
        self.c("second job: half of the rows of one 64-column block of wq (heads 1..3), gate or up")
        e(f"s_lshr_b32 s52, s{S_C}, 1")
        e(f"s_and_b32 s53, s{S_C}, 1")
        e("s_mul_i32 s54, s52, 43691")
        e("s_lshr_b32 s54, s54, 17")
        e("s_mul_i32 s55, s54, 3")
        e("s_sub_u32 s55, s52, s55")
        e("s_cmp_eq_u32 s54, 3")
        e(f"s_cselect_b32 s{SJ}, s{P_G}, s{P_U}")
        e(f"s_cselect_b32 s{SJ + 1}, s{P_G + 1}, s{P_U + 1}")
        e("s_add_u32 s6, s54, 1")
        e("s_mul_i32 s6, s6, 3072")
        e("s_movk_i32 s56, 0xc00")
        e("s_cmp_lt_u32 s54, 3")
        e(f"s_cselect_b32 s{SJ}, s{P_WQ}, s{SJ}")
        e(f"s_cselect_b32 s{SJ + 1}, s{P_WQ + 1}, s{SJ + 1}")
        e("s_cselect_b32 s56, 12288, s56")
        e("s_cselect_b32 s6, s6, 0")
        e(f"s_mul_i32 s{SJ + 2}, s56, 640")
        e("s_cmp_lt_u32 s54, 5")
        e(f"s_cselect_b32 s{SJ + 2}, s{SJ + 2}, 0")
        e(f"s_mov_b32 s{SJ + 3}, 0x20000")
        e("s_add_u32 s42, s43, s6")
        e("s_lshl_b32 s6, s55, 7")
        e("s_add_u32 s42, s42, s6")
        e("s_mul_i32 s6, s56, 320")
        e("s_mul_i32 s6, s6, s53")
        e("s_add_u32 s42, s42, s6")
        e("s_mul_i32 s57, s56, 57")
        e("s_lshl_b32 s6, s56, 3")
        e(f"v_mul_u32_u24 v{VW2}, s6, v1")
        e(f"v_lshl_add_u32 v{VW2}, v2, 4, v{VW2}")
        e(f"v_lshrrev_b32 v{VP}, 4, v0")
        e(f"v_lshlrev_b32 v{VP}, 7, v{VP}")
        e(f"v_lshl_add_u32 v{VP}, v2, 4, v{VP}")
        e(f"v_and_b32 v{T + 1}, 3, v1")
        e(f"v_lshlrev_b32 v{VQL}, 4, v2")
        e(f"v_lshl_add_u32 v{VQL}, v{T + 1}, 2, v{VQL}")
        e(f"v_and_b32 v{T + 1}, 31, v0")
        e(f"v_lshlrev_b32 v{T + 1}, 4, v{T + 1}")
        e(f"v_lshrrev_b32 v{T + 2}, 5, v0")
        e(f"v_mul_u32_u24 v{VG0}, 1536, v{T + 2}")
        e(f"v_add_u32 v{VG0}, v{VG0}, v{T + 1}")
        e(f"v_mul_u32_u24 v{VG1}, 7680, v{T + 2}")
        e(f"v_add_u32 v{VG1}, v{VG1}, v{T + 1}")
        e(f"s_lshl_b32 s6, s{S_RB}, 7")
        e(f"v_lshl_add_u32 v{VXS}, v1, 4, s6")
        e("s_mul_i32 s6, s53, 640")
        e(f"v_lshl_add_u32 v{VXS + 1}, v1, 4, s6")
        for k in range(8):
            e(f"v_mov_b32 v{ACC + k}, 0")

        def job_load(i):
            r = RING + 4 * (i % 24)
            e(f"buffer_load_dwordx4 v[{r}:{r + 3}], v{VW2}, s[{SJ}:{SJ + 3}], s42 offen nt")
            if i < 39:
                e(f"s_add_u32 s42, s42, s{57 if i % 8 == 7 else 56}")
            if i == self.go_at:
                e(f"v_mov_b32 v{VT}, {L_FLG}")
                e(f"v_mov_b32 v{VT + 1}, 1")
                e(f"ds_write_b32 v{VT}, v{VT + 1}")

        ae = self.a_early
        e("s_waitcnt vmcnt(8)")
        self.stamp(1)
        for i in range(ae):
            job_load(i)
        self.layernorm(XA, F)
        e(f"ds_write_b128 v{VL16}, v[{XA}:{XA + 3}] offset:{L_XN}")
        e(f"ds_write_b32 v{T}, v{XA + 4} offset:{L_XN + 1024}")
        e(f"ds_read_b128 v[{XC}:{XC + 3}], v{VXS} offset:{L_XN}")
        for u in range(5):
            e(f"ds_read_b128 v[{XC + 4 + 4 * u}:{XC + 7 + 4 * u}], v{VXS + 1} offset:{L_XN + 128 * u}")
        e("s_waitcnt lgkmcnt(0)")
        e(f"s_add_u32 s{S_TAG}, s{S_TAG}, {hex(NONCE_STEP)}")
        self.expand(XC, XOP)
        self.tag_regs(RES)
        for i in range(8):
            e(f"s_waitcnt vmcnt({7 - i + ae})")
            self.gemv_row(GQ + 4 * i, XOP + 2 * i, ACC)
        self.reduce_g2(ACC, RES)
        e(f"s_mul_i32 s58, s{S_X}, 15360")
        e(f"s_lshl_b32 s6, s{S_C}, 9")
        e("s_add_u32 s6, s6, s58")
        e(f"s_cmp_lt_u32 s{S_C}, 30")
        e(f"s_cselect_b32 s6, s6, {WS_SIZE}")
        self.exec_tagged()
        e(f"buffer_store_dwordx4 v[{RES}:{RES + 3}], v{VP}, s[{SWS}:{SWS + 3}], s6 offen sc1")
        e("s_mov_b64 exec, -1")
        self.stamp(2)
        cap = self.capA
        assert ae <= cap <= 23

        def job_consume(j):
            if j % 8 == 0:
                self.expand(XC + 4 + 4 * (j // 8), XOP)
            self.gemv_row(RING + 4 * (j % 24), XOP + 2 * (j % 8), ACC)

        for i in range(ae, 40):
            if i >= cap:
                e(f"s_waitcnt vmcnt({cap - 1})")
            job_load(i)
            if i == max(ae, cap - 1):
                self.set_lds(L_TAG, f"s{S_TAG}", VT)
                self.set_lds(L_FLN, 1, VT)
                for k in range(8):
                    e(f"v_mov_b32 v{ACC + k}, 0")
            if i >= cap:
                job_consume(i - cap)
        self.stamp(3)

        def rest_of_job():
            for j in range(40 - cap, 40):
                e(f"s_waitcnt vmcnt({39 - j + 15})")
                job_consume(j)

        def finish_q(regs, lds0):
            for r in regs:
                e(f"v_mov_b32 v{r + 1}, v{r}")
                e(f"v_mov_b32 v{r + 3}, v{r + 2}")
            e("s_nop 0")
            for r in regs:
                e(f"v_permlane32_swap_b32 v{r}, v{r + 1}")
                e(f"v_permlane32_swap_b32 v{r + 2}, v{r + 3}")
            for r in regs:
                e(f"v_add_f32 v{r}, v{r}, v{r + 1}")
                e(f"v_add_f32 v{r + 2}, v{r + 2}, v{r + 3}")
            for i, r in enumerate(regs):
                e(f"v_cvt_pk_bf16_f32 v{r}, v{r}, v{r + 2}")
                e(f"ds_write_b32 v{VQL}, v{r} offset:{lds0 + 128 * i}")

        for k in range(5):
            e(f"s_add_u32 s{SM + k}, s58, {3072 * k}")
        loads = [f"buffer_load_dwordx4 v[{GQ + 12 * k + 4 * cb}:{GQ + 12 * k + 4 * cb + 3}], v{VG0}, s[{SWS}:{SWS + 3}], "
                 f"s{SM + k} offen offset:{512 * cb} sc1" for k in range(5) for cb in range(3)]
        self.gather_tagged(loads, GQ, 15, VT, sleep=4, between=rest_of_job)
        self.stamp(4)
        for k in range(1, 5):
            for j in range(0, 12, 2):
                e(f"v_add_f32 v{GQ + j}, v{GQ + j}, v{GQ + 12 * k + j}")
        finish_q([GQ, GQ + 4, GQ + 8], L_Q)
        self.set_lds(L_FLQ, 1, VT)
        self.stamp(5)
        e("s_setprio 0")
        self.reduce_g2(ACC, RES)
        e("s_mul_i32 s6, s53, 7680")
        e("s_lshl_b32 s7, s52, 9")
        e("s_add_u32 s6, s6, s7")
        e("s_add_u32 s6, s6, s58")
        e(f"s_add_u32 s6, s6, {WS_PA1}")
        e(f"s_cmp_lt_u32 s{S_C}, 30")
        e(f"s_cselect_b32 s6, s6, {WS_SIZE}")
        self.exec_tagged()
        e(f"buffer_store_dwordx4 v[{RES}:{RES + 3}], v{VP}, s[{SWS}:{SWS + 3}], s6 offen sc1")
        e("s_mov_b64 exec, -1")
        self.wait_lds(L_FIT, self.it_q, VT, n=NS, sleep=8)
        e(f"s_add_u32 s6, s58, {WS_PA1}")
        e("s_add_u32 s7, s6, 4096")
        loads = [f"buffer_load_dwordx4 v[{GQ + 4 * j}:{GQ + 4 * j + 3}], v{VG1}, s[{SWS}:{SWS + 3}], "
                 f"s{6 + j // 8} offen offset:{512 * (j % 8)} sc1" for j in range(9)]
        self.gather_tagged(loads, GQ, 9, VT, sleep=32)
        finish_q([GQ + 4 * j for j in range(9)], L_Q + 384)
        self.set_lds(L_FLQ, 4, VT)
        self.stamp(6)
        self.make_tags(TGL)
        SCR, ST, OPR = 128, 160, 176

        M, LS, VS32 = 20, 21, 22
        U = 24

        def unpack(r):
            for k in range(8):
                e(f"v_lshlrev_b32 v{U + 2 * k}, 16, v{SCR + 8 * r + k}")
                e(f"v_and_b32 v{U + 2 * k + 1}, 0xffff0000, v{SCR + 8 * r + k}")

        def local_stats(r):
            self.wait_lds(L_FLS, r + 1, VT, n=NS, sleep=8)
            e(f"v_lshlrev_b32 v{VS32}, 5, v0")
            b = SCR + 8 * r
            e(f"ds_read_b128 v[{b}:{b + 3}], v{VS32} offset:{L_SC + 2048 * r}")
            e(f"ds_read_b128 v[{b + 4}:{b + 7}], v{VS32} offset:{L_SC + 2048 * r + 16}")
            e("s_waitcnt lgkmcnt(0)")
            unpack(r)
            for k in range(16):
                e(f"v_mul_f32 v{U + k}, {hex(SCALE)}, v{U + k}")
            for k in range(8):
                e(f"v_cvt_pk_bf16_f32 v{b + k}, v{U + 2 * k}, v{U + 2 * k + 1}")
            unpack(r)
            e(f"v_max_f32 v{M}, v{U}, v{U + 1}")
            for k in range(2, 16, 2):
                e(f"v_max3_f32 v{M}, v{M}, v{U + k}, v{U + k + 1}")
            self.allreduce("v_max_f32", M, T)
            for k in range(16):
                e(f"v_sub_f32 v{U + k}, v{U + k}, v{M}")
            for k in range(16):
                e(f"v_mul_f32 v{U + k}, {hex(LOG2E)}, v{U + k}")
            for k in range(16):
                e(f"v_exp_f32 v{U + k}, v{U + k}")
            e("s_nop 0")
            e(f"v_add_f32 v{LS}, v{U}, v{U + 1}")
            for k in range(2, 16):
                e(f"v_add_f32 v{LS}, v{LS}, v{U + k}")
            self.allreduce("v_add_f32", LS, T)
            e(f"v_cmp_eq_u32 vcc, {r % 3}, v0")
            e("s_nop 1")
            e(f"v_cndmask_b32 v{ST}, v{ST}, v{M}, vcc")
            e(f"v_cndmask_b32 v{ST + 2}, v{ST + 2}, v{LS}, vcc")

        def publish_stats(base, shift, lanes):
            self.tag_regs(ST)
            e(f"s_lshl_b32 s6, s{S_X}, {shift + 5}")
            e(f"s_lshl_b32 s7, s{S_C}, {shift}")
            e("s_add_u32 s6, s6, s7")
            e(f"s_add_u32 s6, s6, {base}")
            e(f"s_mov_b64 exec, {(1 << lanes) - 1}")
            e(f"buffer_store_dwordx4 v[{ST}:{ST + 3}], v{VL16}, s[{SWS}:{SWS + 3}], s6 offen sc1")
            e("s_mov_b64 exec, -1")
            e("s_nop 1")

        def gather_stats(base, shift, n):
            e(f"v_and_b32 v{T + 1}, 31, v0")
            e(f"v_lshlrev_b32 v{T + 1}, {shift}, v{T + 1}")
            e(f"s_lshl_b32 s6, s{S_X}, {shift + 5}")
            e(f"s_add_u32 s6, s6, {base}")
            self.gather_tagged([f"buffer_load_dwordx4 v[{ST + 4 + 4 * k}:{ST + 7 + 4 * k}], v{T + 1}, s[{SWS}:{SWS + 3}], "
                                f"s6 offen offset:{16 * k} sc1" for k in range(n)], ST + 4, n, VT, sleep=32)

        def finalize_p(r):
            G = ST + 4 + 4 * (r % 3)
            e(f"v_mov_b32 v{M}, v{G}")
            self.allreduce("v_max_f32", M, T)
            e(f"v_sub_f32 v{G}, v{G}, v{M}")
            e(f"v_mul_f32 v{G}, {hex(LOG2E)}, v{G}")
            e(f"v_exp_f32 v{G}, v{G}")
            e("s_nop 0")
            e(f"v_mul_f32 v{LS}, v{G}, v{G + 2}")
            self.allreduce("v_add_f32", LS, T)
            e(f"v_mul_f32 v{LS}, 0.5, v{LS}")
            e(f"v_rcp_f32 v{LS}, v{LS}")
            unpack(r)
            for k in range(16):
                e(f"v_sub_f32 v{U + k}, v{U + k}, v{M}")
            for k in range(16):
                e(f"v_mul_f32 v{U + k}, {hex(LOG2E)}, v{U + k}")
            for k in range(16):
                e(f"v_exp_f32 v{U + k}, v{U + k}")
            e("s_nop 0")
            for k in range(16):
                e(f"v_mul_f32 v{U + k}, v{U + k}, v{LS}")
            b = SCR + 8 * r
            for k in range(8):
                e(f"v_cvt_pk_bf16_f32 v{b + k}, v{U + 2 * k}, v{U + 2 * k + 1}")
            e(f"ds_write_b128 v{VS32}, v[{b}:{b + 3}] offset:{L_SC + 2048 * r}")
            e(f"ds_write_b128 v{VS32}, v[{b + 4}:{b + 7}] offset:{L_SC + 2048 * r + 16}")
            self.set_lds(L_FLP, r + 1, VT)

        def reduce_op(r):
            self.wait_lds(L_FLS, r + 5, VT, n=NS, sleep=8)
            D, O = 40, OPR + 4 * r
            for i in range(16):
                d = D + 4 * i
                e(f"ds_read_b128 v[{d}:{d + 3}], v{VQL} offset:{L_DUMP + r * self.dump_bytes + 768 * i}")
                if i == 7:
                    e("s_waitcnt lgkmcnt(7)")
            for i in range(1, 16):
                e(f"s_waitcnt lgkmcnt({15 - i})")
                for k in range(4):
                    e(f"v_add_f32 v{O + k}, v{D + k if i == 1 else O + k}, v{D + 4 * i + k}")
            self.embed(O, TGL)

        for r in range(3):
            local_stats(r)
        publish_stats(WS_STA, 6, 3)
        self.wait_lds(L_FIT, 24 + self.it_st, VT, n=NS, sleep=8)
        gather_stats(WS_STA, 6, 3)
        for r in range(3):
            finalize_p(r)
        self.stamp(7)
        local_stats(3)
        publish_stats(WS_STB, 4, 1)
        self.wait_lds(L_FIT, 32 + self.it_st + 2, VT, n=NS, sleep=8)
        gather_stats(WS_STB, 4, 1)
        finalize_p(3)
        e(f"v_lshrrev_b32 v{VQL}, 4, v0")
        e(f"v_lshlrev_b32 v{VQL}, 8, v{VQL}")
        e(f"v_lshl_add_u32 v{VQL}, v2, 5, v{VQL}")
        e(f"v_and_b32 v{T + 1}, 1, v1")
        e(f"v_lshl_add_u32 v{VQL}, v{T + 1}, 4, v{VQL}")
        for r in range(3):
            reduce_op(r)
        e(f"v_lshrrev_b32 v{T}, 4, v0")
        e(f"v_lshlrev_b32 v{T}, 13, v{T}")
        e(f"v_and_b32 v{T + 1}, 15, v0")
        e(f"v_lshl_add_u32 v{T}, v{T + 1}, 4, v{T}")
        e(f"s_mul_i32 s6, s{S_X}, {4 * 24576}")
        e(f"s_lshl_b32 s7, s{S_C}, 8")
        e("s_add_u32 s6, s6, s7")
        e(f"s_add_u32 s6, s6, {WS_OP}")
        e("s_mov_b32 exec_hi, 0xffff")
        for r in range(3):
            e(f"buffer_store_dwordx4 v[{OPR + 4 * r}:{OPR + 4 * r + 3}], v{T}, s[{SWS}:{SWS + 3}], s6 offen sc1")
            if r < 2:
                e("s_add_u32 s6, s6, 24576")
        self.stamp(8)
        self.prof_store(9)
        e("s_endpgm")
        return GQ + 60

    def controller(self, upto, vt, sws):
        e = self.e
        self.wait_lds(L_FIT, upto, vt, n=self.NS, sleep=8)

    def helperB(self):
        e = self.e
        NS = self.NS
        S_RB, S_CB = 40, 41
        SX, SA, SWS = 8, 12, 44
        SM = 84
        VA, VT = 3, 4
        G0, WK, YA = 12, 44, 76
        TGL, TGG, VP, VG = 84, 88, 92, 93
        W = 96
        e("L_helperB:")
        e(f"v_mul_u32_u24 v{VA}, 0x2800, v1")
        e(f"v_lshl_add_u32 v{VA}, v2, 4, v{VA}")
        for k in range(4):
            e(f"v_mov_b32 v{VT + k}, 0")
        for k in range(4):
            e(f"ds_write_b128 v{VT}, v[{VT}:{VT + 3}] offset:{16 * k}")
        e(f"s_mul_i32 s43, s{S_X}, {192 * 1280}")
        e(f"s_mul_i32 s6, s{S_CB}, {64 * 1280}")
        e("s_add_u32 s43, s43, s6")
        e(f"s_lshl_b32 s6, s{S_RB}, 7")
        e("s_add_u32 s43, s43, s6")
        e("s_waitcnt lgkmcnt(0)")
        self.srd(SA, P_WO, 6144 * 1280)
        e("s_barrier")
        e(f"s_cmp_ge_u32 s{S_C}, 30")
        e("s_cbranch_scc1 L_hb_tags")
        for i in range(40):
            n, ii = divmod(i, 8)
            if i == 32:
                self.srd(SA, P_D, 1536 * 1280)
            if ii % 4 == 0:
                e(f"s_add_u32 s42, s43, {(8 * 192 * 1280 * n if n < 4 else 0) + 1280 * ii}")
            if i >= self.capB:
                e(f"s_waitcnt vmcnt({self.capB - 1})")
            r = W + 4 * i
            e(f"buffer_load_dwordx4 v[{r}:{r + 3}], v{VA}, s[{SA}:{SA + 3}], s42 offen offset:{1280 * (ii % 4)} nt")
        self.stamp(1)
        e("L_hb_tags:")
        if self.prof:
            e("s_mov_b32 s78, 0")
        self.srd(SX, P_X, 1280)
        self.srd(SWS, P_WS, WS_SIZE)
        self.wait_lds(L_FLN, 1, VT, sleep=4)
        self.read_tag(VT)
        self.make_tags(TGL)
        e(f"s_cmp_ge_u32 s{S_C}, 30")
        e("s_cbranch_scc1 L_finisher")
        e(f"v_lshrrev_b32 v{VP}, 5, v0")
        e(f"v_lshlrev_b32 v{VP}, 7, v{VP}")
        e(f"v_lshl_add_u32 v{VP}, v2, 4, v{VP}")
        e(f"s_mul_i32 s54, s{S_RB}, 24")
        e(f"s_mul_i32 s7, s{S_X}, 3")
        e("s_add_u32 s54, s54, s7")
        e(f"s_add_u32 s54, s54, s{S_CB}")
        e("s_lshl_b32 s54, s54, 8")
        e(f"s_add_u32 s54, s54, {WS_YB}")
        e("s_mov_b32 s48, 0x05040100")
        e("s_mov_b32 s49, 0x07060302")

        def permute(n):
            for pr in range(4):
                for k in range(4):
                    lo, hi = W + 32 * n + 8 * pr + k, W + 32 * n + 8 * pr + 4 + k
                    e(f"v_perm_b32 v{WK + 8 * pr + 2 * k}, v{hi}, v{lo}, s48")
                    e(f"v_perm_b32 v{WK + 8 * pr + 2 * k + 1}, v{hi}, v{lo}, s49")

        OV = G0 + 24

        def gemv():
            for pr in range(4):
                for c_ in range(8):
                    e(f"v_dot2c_f32_bf16 v{YA + c_}, v{WK + 8 * pr + c_}, v{OV + pr}")

        self.c("ffn hidden slice")
        self.wait_lds(L_FLQ, 4, VT, sleep=8)
        e(f"v_lshlrev_b32 v{VG}, 4, v1")
        e(f"v_and_b32 v{VA}, 1, v2")
        e(f"v_mul_u32_u24 v{VA}, 7680, v{VA}")
        e(f"v_add_u32 v{VA}, v{VA}, v{VG}")
        e(f"s_mul_i32 s6, s{S_X}, 15360")
        e(f"s_lshl_b32 s7, s{S_CB}, 9")
        e("s_add_u32 s6, s6, s7")
        e(f"s_add_u32 s6, s6, {WS_PA1 + 9 * 512}")
        loads = [f"buffer_load_dwordx4 v[{G0 + 16 * m + 4 * q}:{G0 + 16 * m + 4 * q + 3}], v{VA}, "
                 f"s[{SWS}:{SWS + 3}], s6 offen offset:{1536 * m + 128 * q} sc1" for m in range(2) for q in range(4)]
        self.gather_tagged(loads, G0, 8, VT, sleep=32)
        GA, UA, Z = WK, WK + 8, WK + 16
        for k in range(16):
            e(f"v_add_f32_dpp v{GA + k}, v{G0 + 2 * k}, v{G0 + 2 * k} {X1}")
        for k in range(8):
            self.round_bf16(GA + k)
            self.round_bf16(UA + k)
        c2 = -2.0 * 0.7978845608028654 * 1.4426950408889634
        e(f"s_mov_b32 s6, {hex(f2u(0.044715))}")
        for k in range(8):
            e(f"v_mul_f32 v{Z + k}, v{GA + k}, v{GA + k}")
        for k in range(8):
            e(f"v_mul_f32 v{Z + k}, v{Z + k}, v{GA + k}")
        for k in range(8):
            e(f"v_fma_f32 v{Z + k}, v{Z + k}, s6, v{GA + k}")
        for k in range(8):
            e(f"v_mul_f32 v{Z + k}, {hex(f2u(c2))}, v{Z + k}")
        for k in range(8):
            e(f"v_exp_f32 v{Z + k}, v{Z + k}")
        for k in range(8):
            e(f"v_add_f32 v{Z + k}, 1.0, v{Z + k}")
        for k in range(8):
            e(f"v_rcp_f32 v{Z + k}, v{Z + k}")
        for k in range(8):
            e(f"v_mul_f32 v{Z + k}, v{Z + k}, v{GA + k}")
        for k in range(8):
            self.round_bf16(Z + k)
        for k in range(8):
            e(f"v_mul_f32 v{Z + k}, v{Z + k}, v{UA + k}")
        for k in range(4):
            e(f"v_cvt_pk_bf16_f32 v{OV + k}, v{Z + 2 * k}, v{Z + 2 * k + 1}")
        permute(4)
        for k in range(8):
            e(f"v_mov_b32 v{YA + k}, 0")
        e(f"v_lshl_add_u32 v{VG}, v2, 8, v{VG}")
        e(f"s_mul_i32 s52, s{S_X}, {4 * 24576}")
        e(f"s_lshl_b32 s7, s{S_CB}, 13")
        e("s_add_u32 s52, s52, s7")
        e(f"s_add_u32 s52, s52, {WS_OP}")
        e("s_mov_b32 s50, -1")
        e("s_branch L_hb_gemv")

        self.c("s50 = head round; each pass multiplies one 64-row vector slice with its weight block")
        e("L_hb_round:")
        for r in range(4):
            nx = self.label("hbr")
            e(f"s_cmp_lg_u32 s50, {r}")
            e(f"s_cbranch_scc1 {nx}")
            permute(r)
            if r == 0:
                self.controller(56 + self.it_op, VT, SWS)
            if r == 3:
                self.stamp(3)
                self.wait_lds(L_FIT, 64, VT, n=NS, sleep=1)
                self.stamp(4)
            e(f"{nx}:")
        e("s_add_u32 s53, s52, 4096")
        e("s_sub_u32 s51, 3, s50")
        groups = []
        for j in range(4):
            groups.append(([f"buffer_load_dwordx4 v[{G0 + 8 * j + 4 * q}:{G0 + 8 * j + 4 * q + 3}], v{VG}, "
                            f"s[{SWS}:{SWS + 3}], s{52 + j // 2} offen offset:{2048 * (j % 2) + 128 * q} sc1"
                            for q in range(2)], G0 + 8 * j, 2))
        self.gather_emb(groups, TGL, VT, SM, sleep="s51")
        self.stamp(5)
        for k in range(8):
            e(f"v_add_f32 v{G0 + k}, v{G0 + k}, v{G0 + 8 + k}")
            e(f"v_add_f32 v{G0 + 16 + k}, v{G0 + 16 + k}, v{G0 + 24 + k}")
        for k in range(8):
            e(f"v_add_f32 v{G0 + k}, v{G0 + k}, v{G0 + 16 + k}")
        for pat in (X1, X2, HM):
            for k in range(8):
                e(f"v_add_f32_dpp v{G0 + k}, v{G0 + k}, v{G0 + k} {pat}")
        for k in range(4):
            e(f"v_cvt_pk_bf16_f32 v{OV + k}, v{G0 + 2 * k}, v{G0 + 2 * k + 1}")
        e("s_add_u32 s52, s52, 24576")
        e("L_hb_gemv:")
        gemv()
        e("s_add_u32 s50, s50, 1")
        e("s_and_b32 s51, s50, 3")
        e("s_cbranch_scc1 L_hb_round")
        self.reduce_g(YA, G0, G0 + 4)
        self.embed(G0, TGL)
        e("s_mov_b32 exec_lo, 0xff")
        e("s_mov_b32 exec_hi, 0xff")
        e(f"buffer_store_dwordx4 v[{G0}:{G0 + 3}], v{VP}, s[{SWS}:{SWS + 3}], s54 offen sc1")
        e("s_mov_b64 exec, -1")
        e("s_cmp_lg_u32 s50, 0")
        e("s_cbranch_scc1 L_hb_done")
        self.stamp(2)
        e(f"s_sub_u32 s54, s54, {WS_YB - WS_YA}")
        for k in range(8):
            e(f"v_mov_b32 v{YA + k}, 0")
        e("s_branch L_hb_round")
        e("L_hb_done:")
        self.stamp(6)
        self.prof_store(8)
        e("s_endpgm")

        self.c("finisher: sums the projection partials of one 64-column block and writes the output")
        e("L_finisher:")
        e(f"s_sub_u32 s56, s{S_C}, 30")
        e("s_lshl_b32 s56, s56, 3")
        e(f"s_add_u32 s56, s56, s{S_X}")
        XV, BV = 64, 72
        e(f"v_lshlrev_b32 v{VG}, 4, v0")
        e(f"v_and_b32 v{VA}, 1, v1")
        e(f"v_lshlrev_b32 v{VA}, 3, v{VA}")
        e(f"v_lshl_add_u32 v{VA}, v2, 4, v{VA}")
        e("s_lshl_b32 s57, s56, 7")
        e(f"buffer_load_dwordx2 v[{XV}:{XV + 1}], v{VA}, s[{SX}:{SX + 3}], s57 offen")
        self.srd(SA, P_OUT, 1280)
        e("s_mul_i32 s52, s56, 6144")
        e(f"s_add_u32 s52, s52, {WS_YB}")
        self.controller(56 + self.it_op, VT, SWS)
        e("s_cmp_ge_u32 s56, 10")
        e("s_cbranch_scc1 L_exit")
        e("s_mov_b32 s50, 16")
        e("s_mov_b32 s51, 1")
        e("L_fin_pass:")
        self.wait_lds(L_FIT, "s50", VT, n=NS, sleep=1)
        self.stamp(4)
        e("s_add_u32 s53, s52, 4096")
        groups = [([f"buffer_load_dwordx4 v[{G0 + 4 * i}:{G0 + 4 * i + 3}], v{VG}, s[{SWS}:{SWS + 3}], "
                    f"s{52 + i // 4} offen offset:{1024 * (i % 4)} sc1"], G0 + 4 * i, 1) for i in range(6)]
        self.gather_emb(groups, TGL, VT, SM, sleep="s51", whole=True)
        self.stamp(5)
        for i in (0, 2, 4):
            for k in range(4):
                e(f"v_add_f32 v{G0 + 4 * i + k}, v{G0 + 4 * i + k}, v{G0 + 4 * i + 4 + k}")
        for i in (2, 4):
            for k in range(4):
                e(f"v_add_f32 v{G0 + k}, v{G0 + k}, v{G0 + 4 * i + k}")
        for sw in ("v_permlane16_swap_b32", "v_permlane32_swap_b32"):
            for k in range(4):
                e(f"v_mov_b32 v{G0 + 4 + k}, v{G0 + k}")
            e("s_nop 0")
            for k in range(4):
                e(f"{sw} v{G0 + k}, v{G0 + 4 + k}")
            e("s_nop 0")
            for k in range(4):
                e(f"v_add_f32 v{G0 + k}, v{G0 + k}, v{G0 + 4 + k}")
        for k in range(4):
            self.round_bf16(G0 + k)
        e("s_cmp_lg_u32 s51, 0")
        e("s_cbranch_scc1 L_fin_first")
        for k in range(4):
            e(f"v_add_f32 v{G0 + k}, v{G0 + k}, v{XV + 2 + k}")
        for k in range(4):
            self.round_bf16(G0 + k)
        for k in range(4):
            e(f"v_add_f32 v{G0 + k}, v{G0 + k}, v{BV + k}")
        e(f"v_cvt_pk_bf16_f32 v{G0}, v{G0}, v{G0 + 1}")
        e(f"v_cvt_pk_bf16_f32 v{G0 + 1}, v{G0 + 2}, v{G0 + 3}")
        e("s_mov_b64 exec, 0xffff")
        e(f"buffer_store_dwordx2 v[{G0}:{G0 + 1}], v{VA}, s[{SA}:{SA + 3}], s57 offen")
        e("s_cmp_lg_u32 s56, 0")
        e("s_cbranch_scc1 L_fin_done")
        self.c("the next launch derives a different tag from this word")
        e(f"v_mov_b32 v{VT}, s{S_TAG}")
        e(f"v_mov_b32 v{VT + 1}, {WS_EPOCH}")
        e("s_mov_b64 exec, 1")
        e(f"buffer_store_dword v{VT}, v{VT + 1}, s[{SWS}:{SWS + 3}], 0 offen")
        e("L_fin_done:")
        if self.diag_dbg:
            e("s_memrealtime s[66:67]")
            e("s_waitcnt lgkmcnt(0)")
            e("s_sub_u32 s66, s66, s64")
            self.srd(48, P_DBG, 256)
            e(f"v_mov_b32 v{VT}, s66")
            e("s_lshl_b32 s6, s56, 2")
            e(f"v_mov_b32 v{VT + 1}, s6")
            e("s_mov_b64 exec, 1")
            e(f"buffer_store_dword v{VT}, v{VT + 1}, s[48:51], 0 offen")
        self.stamp(6)
        self.prof_store(7)
        e("L_exit:")
        e("s_endpgm")
        e("L_fin_first:")
        for k in range(4):
            e(f"v_mov_b32 v{BV + k}, v{G0 + k}")
        e(f"v_lshlrev_b32 v{XV + 2}, 16, v{XV}")
        e(f"v_and_b32 v{XV + 3}, 0xffff0000, v{XV}")
        e(f"v_lshlrev_b32 v{XV + 4}, 16, v{XV + 1}")
        e(f"v_and_b32 v{XV + 5}, 0xffff0000, v{XV + 1}")
        e(f"s_sub_u32 s52, s52, {WS_YB - WS_YA}")
        e("s_mov_b32 s50, 64")
        e("s_mov_b32 s51, 0")
        self.stamp(3)
        e("s_branch L_fin_pass")
        return W + 160

    def build(self):
        self.entry()
        nv = max(self.streamer(), self.helperA(), self.helperB())
        assert nv <= 256
        body = "\n".join(l if l.endswith(":") or l.startswith(";") else "    " + l for l in self.o)
        return (HEADER.format(block=64 * (self.NS + 2), lds=self.lds, name=NAME) + body
                + FOOTER.format(name=NAME, vgpr=nv, acc=(nv + 3) // 4 * 4))


def gen(**kw):
    return Gen(**kw).build()


if __name__ == "__main__":
    out = sys.argv[1] if len(sys.argv) > 1 else f"cdna_kernels/{NAME}.s"
    kw = eval("dict(" + (sys.argv[2] if len(sys.argv) > 2 else "") + ")")
    open(out, "w").write(gen(**kw))
```

```python
import struct
import sys

NAME = "parallel_sum__mha_block_cached__geglu_ffn__decode"
HEAD = 32768 * 384
KV_BYTES = 32 * HEAD
SENT = 0xFFFFFFFF

WS_PA0 = 0x000000
WS_PA1 = 0x020000
WS_STA = 0x040000
WS_STB = 0x044000
WS_YA = 0x050000
WS_YB = 0x060000
WS_OP = 0x070000
WS_PR = 0x140000
PR_STRIDE = 4352
WS_RK = 0x150000
WS_EPOCH = 0x1A0000
WS_PROF = 0x200000
WS_SIZE = 0x400000
NONCE_STEP = 0x9E3779B9

L_FLS = 0
L_FIT = 8
L_FLQ = 16
L_FLP = 20
L_FLN = 24
L_FLG = 28
L_TAG = 32
L_PCN = 36
L_PD = 40
L_LOC = 48
L_Q = 64
L_XN = 1664
L_SC = 3072
L_PAIR = L_SC + 8192
L_DUMP = L_PAIR + 2048
S_TAG = 60


def f2u(x):
    return struct.unpack("<I", struct.pack("<f", x))[0]


LOG2E = f2u(1.4426950408889634)
SCALE = f2u(192 ** -0.5)

HEADER = """; Kernarg layout for this problem (96 bytes, ptrs only, base s[0:1]):
; @launch grid=(256,1,1) block=({block},1,1) lds={lds}
.amdgcn_target "amdgcn-amd-amdhsa--gfx950"
.text
.globl {name}_kernel
.p2align 8
.type {name}_kernel,@function
{name}_kernel:
"""
FOOTER = """
.section .rodata,"a"
.p2align 6
.amdhsa_kernel {name}_kernel
  .amdhsa_next_free_vgpr {vgpr}
  .amdhsa_next_free_sgpr 96
  .amdhsa_accum_offset {acc}
  .amdhsa_group_segment_fixed_size 0
  .amdhsa_kernarg_size 96
  .amdhsa_user_sgpr_count 2
  .amdhsa_user_sgpr_kernarg_segment_ptr 1
  .amdhsa_system_sgpr_workgroup_id_x 1
.end_amdhsa_kernel
"""

DPP_ALL = "row_mask:0xf bank_mask:0xf"
X1 = "quad_perm:[1,0,3,2] " + DPP_ALL
X2 = "quad_perm:[2,3,0,1] " + DPP_ALL
HM = "row_half_mirror " + DPP_ALL
RM = "row_mirror " + DPP_ALL
R8 = "row_ror:8 " + DPP_ALL

S_WAVE, S_X, S_C = 3, 4, 5
P_X, P_K, P_V, P_WQ, P_WO, P_G, P_U, P_D, P_OUT, P_DBG, P_WS = 16, 18, 20, 22, 24, 28, 30, 32, 34, 36, 38
SPIN_G = 400000
SPIN_L = 4000000


class Gen:
    def __init__(self, R=24, L=23, cap=12, cap0=11, capA=22, capB=22, a_early=0, go_at=39, cap_tail=None,
                 tail_iters=1, caps=(9, 11, 12, 14, 16), thr=(38, 60), rep_c=7, xg=3, xstep=2, local=True, it_q=3, it_st=4, it_op=3, prof=False, diag_hold=0, diag_dbg=False):
        NS = 2
        self.NS, self.R, self.L = NS, R, L
        self.cap, self.cap0, self.capA, self.capB = cap, cap0, capA, capB
        self.a_early, self.go_at = a_early, go_at
        self.cap_tail = cap_tail or cap
        self.tail_iters = tail_iters
        self.caps, self.thr, self.rep_c = caps, thr, rep_c
        self.xg, self.xstep, self.local = xg, xstep, local
        self.it_q, self.it_st, self.it_op = it_q, it_st, it_op
        self.prof = prof
        self.diag_hold, self.diag_dbg = diag_hold, diag_dbg
        self.o = []
        self.uid = 0
        self.steps = 32768 // (32 * NS * 16)
        self.tpi = R // 6
        assert R == 24 and L < R
        assert max(cap, cap0, self.cap_tail) <= L
        self.ipr = self.steps // self.tpi
        self.step_bytes = 32 * NS * 6144
        self.dump_bytes = 8 * NS * 768
        self.lds = L_DUMP + 3 * self.dump_bytes

    def e(self, s):
        self.o.append(s)

    def c(self, s):
        self.o.append("; " + s)

    def label(self, base):
        self.uid += 1
        return f"L_{base}_{self.uid}"

    def srd(self, d, p, size):
        self.e(f"s_mov_b32 s{d}, s{p}")
        self.e(f"s_mov_b32 s{d+1}, s{p+1}")
        self.e(f"s_mov_b32 s{d+2}, {size}")
        self.e(f"s_mov_b32 s{d+3}, 0x20000")

    def stamp(self, k):
        if self.prof:
            self.e(f"s_memrealtime s[{64 + 2 * k}:{65 + 2 * k}]")
            self.e("s_waitcnt lgkmcnt(0)")

    def stamp_round(self, sreg, base):
        if not self.prof:
            return
        for r in range(4):
            lb = self.label("st")
            self.e(f"s_cmp_lg_u32 s{sreg}, {r}")
            self.e(f"s_cbranch_scc1 {lb}")
            self.stamp(base + r)
            self.e(f"{lb}:")

    def prof_store(self, n):
        if not self.prof:
            return
        e = self.e
        e("s_mov_b64 exec, -1")
        e("s_waitcnt vmcnt(0) lgkmcnt(0)")
        self.srd(12, P_WS, WS_SIZE)
        e("s_lshl_b32 s6, s2, 2")
        e(f"s_add_u32 s6, s6, s{S_WAVE}")
        e("s_lshl_b32 s6, s6, 6")
        e(f"s_add_u32 s6, s6, {WS_PROF}")
        e("v_mov_b32 v1, 0")
        e("s_getreg_b32 s7, hwreg(HW_REG_XCC_ID)")
        e("v_mov_b32 v2, s7")
        e("s_mov_b64 exec, 1")
        e("buffer_store_dword v2, v1, s[12:15], s6 offen offset:60")
        for k in range(n):
            e(f"v_mov_b32 v{4 + k}, s{64 + 2 * k}")
            e(f"buffer_store_dword v{4 + k}, v1, s[12:15], s6 offen offset:{4 * k}")
        e("s_waitcnt vmcnt(0)")

    def allreduce(self, op, v, t):
        e = self.e
        for pat in (X1, X2, HM, RM):
            e("s_nop 1")
            e(f"{op}_dpp v{v}, v{v}, v{v} {pat}")
        for sw in ("v_permlane16_swap_b32", "v_permlane32_swap_b32"):
            e(f"v_mov_b32 v{t}, v{v}")
            e("s_nop 1")
            e(f"{sw} v{v}, v{t}")
            e("s_nop 1")
            e(f"{op} v{v}, v{v}, v{t}")

    def round_bf16(self, v):
        self.e(f"v_cvt_pk_bf16_f32 v{v}, v{v}, v{v}")
        self.e(f"v_and_b32 v{v}, 0xffff0000, v{v}")

    def expand(self, src, dst):
        e = self.e
        for k in range(4):
            e(f"v_and_b32 v{dst + 4 * k}, 0xffff, v{src + k}")
            e(f"v_lshlrev_b32 v{dst + 4 * k + 1}, 16, v{src + k}")
            e(f"v_lshrrev_b32 v{dst + 4 * k + 2}, 16, v{src + k}")
            e(f"v_and_b32 v{dst + 4 * k + 3}, 0xffff0000, v{src + k}")

    def gemv_row(self, w, xop, acc):
        for k in range(4):
            self.e(f"v_dot2c_f32_bf16 v{acc + 2 * k}, v{w + k}, v{xop}")
            self.e(f"v_dot2c_f32_bf16 v{acc + 2 * k + 1}, v{w + k}, v{xop + 1}")

    def reduce_g(self, acc, res, t):
        e = self.e
        e("s_nop 2")
        for k in range(4):
            e(f"v_permlane32_swap_b32 v{acc + k}, v{acc + k + 4}")
        e("s_nop 0")
        for k in range(4):
            e(f"v_add_f32 v{res + k}, v{acc + k}, v{acc + k + 4}")
        for k in range(4):
            e(f"v_mov_b32 v{t + k}, v{res + k}")
        e("s_nop 0")
        for k in range(4):
            e(f"v_permlane16_swap_b32 v{res + k}, v{t + k}")
        e("s_nop 0")
        for k in range(4):
            e(f"v_add_f32 v{res + k}, v{res + k}, v{t + k}")
        e("s_nop 0")
        for k in range(4):
            e(f"v_add_f32_dpp v{res + k}, v{res + k}, v{res + k} {R8}")

    def tag_regs(self, res):
        self.e(f"v_mov_b32 v{res + 1}, s{S_TAG}")
        self.e(f"v_mov_b32 v{res + 3}, s{S_TAG}")

    def reduce_g2(self, acc, res):
        e = self.e
        e("s_nop 2")
        for k in range(4):
            e(f"v_permlane32_swap_b32 v{acc + k}, v{acc + k + 4}")
        e("s_nop 0")
        for k in range(4):
            e(f"v_add_f32 v{acc + k}, v{acc + k}, v{acc + k + 4}")
        e("s_nop 1")
        for k in range(2):
            e(f"v_permlane16_swap_b32 v{acc + k}, v{acc + k + 2}")
        e("s_nop 0")
        for k in range(2):
            e(f"v_add_f32 v{acc + k}, v{acc + k}, v{acc + k + 2}")
        e("s_nop 1")
        for k in range(2):
            e(f"v_add_f32_dpp v{res + 2 * k}, v{acc + k}, v{acc + k} {R8}")

    def exec_tagged(self):
        self.e("s_mov_b32 exec_lo, 0x00ff00ff")
        self.e("s_mov_b32 exec_hi, 0x00ff00ff")

    def make_tags(self, dst):
        self.e("s_movk_i32 s61, 0xff")
        for k in range(4):
            self.e(f"v_bfe_u32 v{dst + k}, s{S_TAG}, {8 * k}, 8")

    def embed(self, v, tg):
        for k in range(4):
            self.e(f"v_bfi_b32 v{v + k}, s61, v{tg + k}, v{v + k}")

    def read_tag(self, vt):
        e = self.e
        e(f"v_mov_b32 v{vt + 4}, 0")
        e(f"ds_read_b32 v{vt}, v{vt + 4} offset:{L_TAG}")
        e("s_waitcnt lgkmcnt(0)")
        e(f"v_readfirstlane_b32 s{S_TAG}, v{vt}")
        e("s_nop 1")

    def gather_emb(self, groups, tg, vt, sm, lanes=64, sleep=1, between=None, whole=False):
        e = self.e
        lp, ok, mid = self.label("ge"), self.label("geok"), self.label("gemid")
        n = len(groups)
        e(f"s_mov_b32 s62, {SPIN_G}")
        for j in range(n):
            e(f"s_mov_b32 s{sm + 2 * j}, -1")
            e(f"s_mov_b32 s{sm + 2 * j + 1}, {hex((1 << (lanes - 32)) - 1)}")
        if between:
            e(f"s_mov_b64 exec, s[{sm}:{sm + 1}]")
            for loads, _, _ in groups:
                for s_ in loads:
                    e(s_)
            e("s_mov_b64 exec, -1")
            between()
            e(f"s_branch {mid}")
        e(f"{lp}:")
        for j, (loads, _, _) in enumerate(groups):
            sk = self.label("gs")
            e(f"s_mov_b64 exec, s[{sm + 2 * j}:{sm + 2 * j + 1}]")
            e(f"s_cbranch_execz {sk}")
            for s_ in loads:
                e(s_)
            e(f"{sk}:")
        e(f"{mid}:")
        e("s_mov_b64 vcc, 0")
        e("s_waitcnt vmcnt(0)")
        for j, (_, first, nrec) in enumerate(groups):
            sk = self.label("gs")
            e(f"s_mov_b64 exec, s[{sm + 2 * j}:{sm + 2 * j + 1}]")
            e(f"s_cbranch_execz {sk}")
            for k in range(4 * nrec):
                e(f"v_xor_b32 v{first + k}, v{first + k}, v{tg + k % 4}")
            e(f"v_or_b32 v{vt}, v{first}, v{first + 1}")
            for k in range(2, 4 * nrec, 2):
                e(f"v_or3_b32 v{vt}, v{vt}, v{first + k}, v{first + k + 1}")
            e(f"v_and_b32 v{vt}, s61, v{vt}")
            e(f"v_cmp_ne_u32 s[{sm + 2 * j}:{sm + 2 * j + 1}], 0, v{vt}")
            e("s_nop 0")
            e(f"s_or_b64 vcc, vcc, s[{sm + 2 * j}:{sm + 2 * j + 1}]")
            if whole:
                e(f"s_cmp_lg_u64 s[{sm + 2 * j}:{sm + 2 * j + 1}], 0")
                e(f"s_cselect_b64 s[{sm + 2 * j}:{sm + 2 * j + 1}], -1, 0")
            e(f"{sk}:")
        e("s_mov_b64 exec, -1")
        e("s_cmp_eq_u64 vcc, 0")
        e(f"s_cbranch_scc1 {ok}")
        if isinstance(sleep, str):
            sk = self.label("gs")
            e(f"s_cmp_eq_u32 {sleep}, 0")
            e(f"s_cbranch_scc1 {sk}")
            e("s_sleep 32")
            e(f"{sk}:")
        elif sleep:
            e(f"s_sleep {sleep}")
        e("s_sub_u32 s62, s62, 1")
        e("s_cmp_lg_u32 s62, 0")
        e(f"s_cbranch_scc1 {lp}")
        e("s_endpgm")
        e(f"{ok}:")

    def gather_tagged(self, loads, first, nrec, vt, sleep=1, skip=None, between=None):
        e = self.e
        lp, ok, mid = self.label("gt"), self.label("gtok"), self.label("gtmid")
        e(f"s_mov_b32 s62, {SPIN_G}")
        if between:
            for s_ in loads:
                e(s_)
            between()
            e(f"s_branch {mid}")
        e(f"{lp}:")
        for s_ in loads:
            e(s_)
        e(f"{mid}:")
        e(f"v_mov_b32 v{vt}, 0")
        e(f"v_mov_b32 v{vt + 1}, 0")
        e("s_waitcnt vmcnt(0)")
        for k in range(nrec):
            t = vt + 1 if skip and k in skip[0] else vt
            e(f"v_bitop3_b32 v{t}, v{t}, v{first + 4 * k + 1}, s{S_TAG} bitop3:0xf6")
            e(f"v_bitop3_b32 v{t}, v{t}, v{first + 4 * k + 3}, s{S_TAG} bitop3:0xf6")
        if skip:
            e(f"v_cndmask_b32 v{vt + 1}, 0, v{vt + 1}, s[{skip[1]}:{skip[1] + 1}]")
            e(f"v_or_b32 v{vt}, v{vt}, v{vt + 1}")
        e(f"v_cmp_ne_u32 vcc, 0, v{vt}")
        e("s_nop 4")
        e(f"s_cbranch_vccz {ok}")
        if sleep:
            e(f"s_sleep {sleep}")
        e("s_sub_u32 s62, s62, 1")
        e("s_cmp_lg_u32 s62, 0")
        e(f"s_cbranch_scc1 {lp}")
        e("s_endpgm")
        e(f"{ok}:")

    def reduce_sub(self, v, n):
        for pat in (X1, X2, HM):
            self.e("s_nop 1")
            for k in range(n):
                self.e(f"v_add_f32_dpp v{v + k}, v{v + k}, v{v + k} {pat}")

    def wait_lds(self, addr, val, vt, n=1, sleep=2, val_is_sreg=False):
        e = self.e
        lp, ok = self.label("wl"), self.label("wlok")
        e(f"s_mov_b32 s62, {SPIN_L}")
        e(f"v_mov_b32 v{vt + 4}, 0")
        e(f"{lp}:")
        if n == 1:
            e(f"ds_read_b32 v{vt}, v{vt + 4} offset:{addr}")
            e("s_waitcnt lgkmcnt(0)")
        elif n == 2:
            e(f"ds_read_b64 v[{vt}:{vt + 1}], v{vt + 4} offset:{addr}")
            e("s_waitcnt lgkmcnt(0)")
            e(f"v_min_u32 v{vt}, v{vt}, v{vt + 1}")
        else:
            e(f"ds_read_b128 v[{vt}:{vt + 3}], v{vt + 4} offset:{addr}")
            e("s_waitcnt lgkmcnt(0)")
            e(f"v_min_u32 v{vt}, v{vt}, v{vt + 1}")
            e(f"v_min3_u32 v{vt}, v{vt}, v{vt + 2}, v{vt + 3}")
        e("s_nop 0")
        e(f"v_readfirstlane_b32 s63, v{vt}")
        e(f"s_cmp_ge_u32 s63, {val}")
        e(f"s_cbranch_scc1 {ok}")
        if sleep:
            e(f"s_sleep {sleep}")
        e("s_sub_u32 s62, s62, 1")
        e("s_cmp_lg_u32 s62, 0")
        e(f"s_cbranch_scc1 {lp}")
        e("s_endpgm")
        e(f"{ok}:")

    def set_lds(self, addr, val, vt):
        e = self.e
        e("s_waitcnt lgkmcnt(0)")
        e(f"v_mov_b32 v{vt}, {addr}")
        e(f"v_mov_b32 v{vt + 1}, {val}")
        e(f"ds_write_b32 v{vt}, v{vt + 1}")

    def layernorm(self, xa, f):
        e = self.e

        def unpack():
            for k in range(5):
                e(f"v_lshlrev_b32 v{f + 2 * k}, 16, v{xa + k}")
                e(f"v_and_b32 v{f + 2 * k + 1}, 0xffff0000, v{xa + k}")

        def pack():
            for k in range(5):
                e(f"v_cvt_pk_bf16_f32 v{xa + k}, v{f + 2 * k}, v{f + 2 * k + 1}")

        unpack()
        m, t, var, d = f + 10, f + 11, f + 12, f + 13
        e(f"v_add_f32 v{m}, v{f}, v{f + 1}")
        for k in range(2, 10):
            e(f"v_add_f32 v{m}, v{m}, v{f + k}")
        self.allreduce("v_add_f32", m, t)
        e(f"v_mul_f32 v{m}, {hex(f2u(1.0 / 640))}, v{m}")
        e(f"v_mov_b32 v{var}, 0")
        for k in range(10):
            e(f"v_sub_f32 v{d}, v{f + k}, v{m}")
            e(f"v_fmac_f32 v{var}, v{d}, v{d}")
        self.allreduce("v_add_f32", var, t)
        e(f"v_mul_f32 v{var}, {hex(f2u(1.0 / 640))}, v{var}")
        self.round_bf16(var)
        self.round_bf16(m)
        e(f"v_add_f32 v{var}, {hex(f2u(1e-5))}, v{var}")
        self.round_bf16(var)
        e(f"v_sqrt_f32 v{var}, v{var}")
        for k in range(10):
            e(f"v_sub_f32 v{f + k}, v{f + k}, v{m}")
        self.round_bf16(var)
        e(f"v_rcp_f32 v{var}, v{var}")
        pack()
        unpack()
        for k in range(10):
            e(f"v_mul_f32 v{f + k}, v{f + k}, v{var}")
        pack()

    def entry(self):
        e = self.e
        self.c("roles: waves 0..NS-1 stream K then V; wave NS does q/softmax exchanges; wave NS+1 does weight GEMVs")
        if self.prof or self.diag_hold or self.diag_dbg:
            e("s_memrealtime s[64:65]")
        e("s_cmp_ge_u32 s2, 256")
        e("s_cbranch_scc1 L_exit")
        e("s_load_dwordx16 s[16:31], s[0:1], 0")
        e("s_load_dwordx8 s[32:39], s[0:1], 64")
        e("v_lshrrev_b32 v1, 6, v0")
        e("v_and_b32 v0, 63, v0")
        e(f"v_readfirstlane_b32 s{S_WAVE}, v1")
        e(f"s_and_b32 s{S_X}, s2, 7")
        e(f"s_lshr_b32 s{S_C}, s2, 3")
        e("v_lshrrev_b32 v1, 3, v0")
        e("v_and_b32 v2, 7, v0")
        e(f"s_mul_i32 s40, s{S_C}, 43691")
        e("s_lshr_b32 s40, s40, 17")
        e("s_mul_i32 s41, s40, 3")
        e(f"s_sub_u32 s41, s{S_C}, s41")
        e(f"s_cmp_eq_u32 s{S_WAVE}, {self.NS}")
        e("s_cbranch_scc1 L_helperA")
        e(f"s_cmp_eq_u32 s{S_WAVE}, {self.NS + 1}")
        e("s_cbranch_scc1 L_helperB")

    def streamer(self):
        e = self.e
        NS, R, L = self.NS, self.R, self.L
        VOFF, VSC, VQ, VDUMP, VT = 3, 4, 5, 6, 8
        VIT = 13
        A = 14
        VO, VPR, TG = 18, 19, 24
        VSM, VPB, VPA, VL4 = 56, 57, 58, 59
        SC = 20
        Q = 20 + 8
        PN, PX = 52, 60
        RING = 64
        S_OFF, S_DELTA, S_B0, S_B1, S_IT, S_R = 44, 45, 46, 47, 48, 49
        offs = [(i // 3) * 3072 + (i % 3) * 128 for i in range(6)]
        cand = [j for j in range(R) if (j + L) % 6 == 5 and ((j + L + 1) // 6) % self.tpi == 0]
        assert len(cand) == 1
        self.c("streamer")
        e(f"v_mul_u32_u24 v{VOFF}, 384, v1")
        e(f"v_lshl_add_u32 v{VOFF}, v2, 4, v{VOFF}")
        tb = 4 * self.tpi
        e(f"s_mul_i32 s6, s{S_WAVE}, {8 * tb}")
        e(f"s_add_u32 s6, s6, {L_SC}")
        e(f"v_mul_u32_u24 v{VSC}, {tb}, v1")
        e(f"v_add_u32 v{VSC}, s6, v{VSC}")
        e(f"v_lshlrev_b32 v{VQ}, 4, v2")
        e(f"s_mul_i32 s6, s{S_WAVE}, {8 * 768}")
        e(f"s_add_u32 s6, s6, {L_DUMP}")
        e(f"v_mul_u32_u24 v{VDUMP}, 768, v1")
        e(f"v_lshl_add_u32 v{VDUMP}, v2, 5, v{VDUMP}")
        e(f"v_add_u32 v{VDUMP}, s6, v{VDUMP}")
        e(f"s_mul_i32 s{S_OFF}, s{S_X}, {HEAD}")
        e(f"s_mul_i32 s6, s{S_C}, {NS}")
        e(f"s_add_u32 s6, s6, s{S_WAVE}")
        e("s_mul_i32 s6, s6, 6144")
        e(f"s_add_u32 s{S_OFF}, s{S_OFF}, s6")
        e(f"s_lshl_b32 s7, s{S_WAVE}, 2")
        e(f"v_mov_b32 v7, s7")
        e(f"v_mov_b32 v{VIT}, 0")
        e("s_waitcnt lgkmcnt(0)")
        self.srd(8, P_K, KV_BYTES)
        e("s_barrier")

        def issue(p, boundary=False):
            r = RING + (p % R) * 4
            e(f"buffer_load_dwordx4 v[{r}:{r + 3}], v{VOFF}, s[8:11], s{S_OFF} offen offset:{offs[p % 6]} nt")
            if p % 6 == 5:
                if boundary:
                    e(f"s_add_u32 s{S_OFF}, s{S_OFF}, s{S_DELTA}")
                    e(f"s_mov_b32 s8, s{S_B0}")
                    e(f"s_mov_b32 s9, s{S_B1}")
                else:
                    e(f"s_add_u32 s{S_OFF}, s{S_OFF}, {self.step_bytes}")

        if self.go_at is not None:
            self.wait_lds(L_FLG, 1, VT, sleep=1)
        for p in range(L):
            if p >= self.cap0:
                e(f"s_waitcnt vmcnt({self.cap0 - 1})")
            issue(p)
        self.stamp(1)
        e(f"s_mov_b32 s{S_R}, 0")
        e(f"s_mov_b32 s53, {len(self.caps) // 2 if self.caps else 0}")
        e(f"s_mov_b32 s{S_B0}, s{P_K}")
        e(f"s_mov_b32 s{S_B1}, s{P_K + 1}")
        e(f"s_mov_b32 s56, {self.step_bytes + 7 * HEAD}")

        self.c("addresses of the final publish")
        e(f"v_and_b32 v{VT}, 1, v1")
        e(f"v_bfe_u32 v{VO}, v0, 4, 1")
        e(f"v_cmp_eq_u32 vcc, 1, v{VT}")
        e(f"v_lshrrev_b32 v{VT + 1}, 5, v0")
        e(f"v_lshlrev_b32 v{VPR}, 4, v0")
        e(f"v_cndmask_b32 v{VO}, v{VO}, 2, vcc")
        e(f"v_lshlrev_b32 v{VO}, 13, v{VO}")
        e(f"v_lshl_add_u32 v{VO}, v{VT + 1}, 7, v{VO}")
        e(f"v_lshl_add_u32 v{VO}, v2, 4, v{VO}")
        e(f"s_mul_i32 s57, s{S_X}, {4 * 24576}")
        e(f"s_lshl_b32 s7, s{S_C}, 8")
        e("s_add_u32 s57, s57, s7")
        e(f"s_add_u32 s57, s57, {WS_OP + 3 * 24576}")
        self.srd(12, P_WS, WS_SIZE)
        if self.caps:
            e(f"v_lshlrev_b32 v{VL4}, 2, v0")
            e(f"v_lshlrev_b32 v{VPA}, 24, v0")
            e(f"s_mul_i32 s59, s{S_X}, {PR_STRIDE}")
            e(f"s_add_u32 s59, s59, {WS_PR}")
            e(f"s_lshl_b32 s6, s{S_C}, 1")
            e(f"s_add_u32 s6, s6, s{S_WAVE}")
            e("s_lshl_b32 s6, s6, 2")
            e("s_add_u32 s58, s59, s6")
            if self.xg:
                e("s_cmp_eq_u32 s6, 252")
                e(f"s_cselect_b32 s58, {WS_SIZE}, s58")
            if self.prof:
                e("s_mov_b32 s92, 0")
        self.wait_lds(L_FLN, 1, VT, sleep=1)
        self.read_tag(VT)
        self.make_tags(TG)
        e(f"s_add_u32 s55, s{S_TAG}, 0x1000")

        e("L_kround:")
        e(f"s_add_u32 s50, s{S_R}, 1")
        self.wait_lds(L_FLQ, "s50", VT, sleep=0)
        for s in range(3):
            e(f"ds_read_b128 v[{Q + 4 * s}:{Q + 4 * s + 3}], v{VQ} offset:{L_Q + 128 * s}")
        e(f"v_add_u32 v{VQ}, 384, v{VQ}")
        if self.prof:
            e(f"s_cmp_lg_u32 s{S_R}, 0")
            e("s_cbranch_scc1 L_nostamp2")
            self.stamp(2)
            e("L_nostamp2:")
        e(f"s_mov_b32 s{S_IT}, {self.ipr}")
        e("s_waitcnt lgkmcnt(0)")
        e("L_kloop:")
        e(f"s_cmp_eq_u32 s{S_R}, 3")
        e(f"s_cselect_b32 s50, {hex((self.step_bytes - 25 * HEAD) & 0xffffffff)}, s56")
        e(f"s_cselect_b32 s51, 1, 0")
        e(f"s_cmp_eq_u32 s{S_IT}, 1")
        e(f"s_cselect_b32 s{S_DELTA}, s50, {self.step_bytes}")
        e(f"s_cmp_eq_u32 s{S_IT}, s51")
        e(f"s_cselect_b32 s{S_B0}, s{P_V}, s{S_B0}")
        e(f"s_cselect_b32 s{S_B1}, s{P_V + 1}, s{S_B1}")
        nlev = len(self.caps) if self.caps else 0
        mid = nlev // 2

        def ctl_issue():
            e(f"v_add_u32 v{VPB}, s{S_TAG}, v{VIT}")
            e(f"buffer_store_dword v{VPB}, v{VPA}, s[12:15], s58 offen")
            e(f"buffer_load_dword v{VSM}, v{VL4}, s[12:15], s59 offen sc1")

        def ctl_ops():
            ops = [f"v_readlane_b32 s93, v{VSM}, 63"] if self.xg else []
            ops += [f"v_sub_u32 v{VSM}, v{VSM}, v{VPB}",
                   f"v_add_u32 v{VPB}, 8, v{VSM}",
                   f"v_cmp_gt_u32 vcc, 17, v{VPB}",
                   f"v_lshl_add_u32 v{VSM}, v{VSM}, 1, 1",
                   f"v_cndmask_b32 v{VSM}, 0, v{VSM}, vcc"]
            ops += [f"v_add_u32_dpp v{VSM}, v{VSM}, v{VSM} {pat}" for pat in (X1, X2, HM, RM)]
            ops += [f"v_readlane_b32 s{88 + k}, v{VSM}, {16 * k}" for k in range(4)]
            return ops

        def wait_count(cap, j, ctl):
            return cap - 1 + (2 if ctl and 0 < j <= cap else 0)

        def pick_level():
            if not self.caps:
                return
            e("s_add_u32 s88, s88, s89")
            e("s_add_u32 s90, s90, s91")
            e("s_add_u32 s88, s88, s90")
            if self.xg:
                e("s_sub_u32 s93, s93, s55")
                e(f"s_mul_i32 s89, s93, {2 * self.xg}")
                e(f"s_sub_u32 s89, s89, {7 * self.xg}")
                e("s_cmp_lt_u32 s93, 8")
                e("s_cselect_b32 s89, s89, 0")
                e("s_add_u32 s88, s88, s89")
            e(f"s_mov_b32 s53, {mid}")
            for k in range(1, mid + 1):
                e(f"s_cmp_gt_i32 s88, {self.thr[k - 1]}")
                e(f"s_cselect_b32 s53, {mid + k}, s53")
                e(f"s_cmp_lt_i32 s88, {-self.thr[k - 1]}")
                e(f"s_cselect_b32 s53, {mid - k}, s53")
            if self.prof:
                e("s_mul_i32 s7, s53, 6")
                e("s_lshl_b32 s7, 1, s7")
                e("s_add_u32 s92, s92, s7")

        def kbody(cap):
            pend = []
            pos = [0]
            side = ctl_ops()
            assert cap + 1 <= 17

            def main(s):
                e(s)
                pos[0] += 1
                if pend and pend[0][0] <= pos[0]:
                    _, ins, gap = pend.pop(0)
                    e(ins)
                    pos[0] += 1
                    if pend:
                        pend[0] = (max(pend[0][0], pos[0] + gap), pend[0][1], pend[0][2])

            for j in range(R):
                tile, jj = divmod(j, 6)
                kg, s = divmod(jj, 3)
                a = A + 2 * (tile % 2) + kg
                main(f"s_waitcnt vmcnt({wait_count(cap, j, nlev)})")
                n0 = len(self.o)
                issue(j + L, boundary=(j == cand[0]))
                if nlev and j == 0:
                    ctl_issue()
                if nlev and j >= 17 and side:
                    e(side.pop(0))
                pos[0] += len(self.o) - n0
                if s == 0:
                    main(f"v_mov_b32 v{a}, 0")
                r = RING + j * 4
                for k in range(4):
                    main(f"v_dot2c_f32_bf16 v{a}, v{r + k}, v{Q + 4 * s + k}")
                    if nlev and j >= 17 and k == 2 and side:
                        e(side.pop(0))
                        pos[0] += 1
                if s == 2:
                    first = pos[0] + 3
                    pend.append((first, f"v_add_f32_dpp v{a}, v{a}, v{a} {X1}", 2))
                    pend.append((0, f"v_add_f32_dpp v{a}, v{a}, v{a} {X2}", 2))
                    pend.append((0, f"v_add_f32_dpp v{a}, v{a}, v{a} {HM}", 0))
                    if kg == 1:
                        pend.append((0, f"v_cvt_pk_bf16_f32 v{SC + tile}, v{a - 1}, v{a}", 0))
            while pend:
                main("s_nop 0")

        def dispatch(name, fn):
            if not self.caps:
                fn(self.cap)
                return
            others = [k for k in range(nlev) if k != mid]
            e(f"s_cmp_eq_u32 s53, {mid}")
            e(f"s_cbranch_scc1 L_{name}{mid}")
            for code in others[1:]:
                e(f"s_cmp_eq_u32 s53, {code}")
                e(f"s_cbranch_scc1 L_{name}{code}")
            for code in others + [mid]:
                e(f"L_{name}{code}:")
                fn(self.caps[code])
                if code != mid:
                    e(f"s_branch L_{name}_end")
            e(f"L_{name}_end:")

        dispatch("kb", kbody)
        pick_level()
        for q4 in range(self.tpi // 4):
            e(f"ds_write_b128 v{VSC}, v[{SC + 4 * q4}:{SC + 4 * q4 + 3}] offset:{16 * q4}")
        e(f"v_add_u32 v{VIT}, 1, v{VIT}")
        e(f"v_add_u32 v{VSC}, {NS * 8 * tb}, v{VSC}")
        e(f"ds_write_b32 v7, v{VIT} offset:{L_FIT}")
        e(f"s_sub_u32 s{S_IT}, s{S_IT}, 1")
        e(f"s_cmp_lg_u32 s{S_IT}, 0")
        e("s_cbranch_scc1 L_kloop")
        self.stamp_round(S_R, 3)
        e(f"s_add_u32 s{S_R}, s{S_R}, 1")
        e(f"v_mov_b32 v{VT}, s{S_R}")
        e(f"ds_write_b32 v7, v{VT} offset:{L_FLS}")
        e(f"s_cmp_lt_u32 s{S_R}, 4")
        e("s_cbranch_scc1 L_kround")

        e(f"v_subrev_u32 v{VSC}, 8192, v{VSC}")
        self.wait_lds(L_FLP, 1, VT, sleep=0)
        e(f"ds_read_b32 v{A}, v{VT + 4} offset:{L_LOC}")
        for q4 in range(self.tpi // 4):
            e(f"ds_read_b128 v[{PN + 4 * q4}:{PN + 4 * q4 + 3}], v{VSC} offset:{16 * q4}")
        e(f"v_add_u32 v{VSC}, {NS * 8 * tb}, v{VSC}")
        e(f"s_mov_b32 s{S_R}, 0")

        def vbody(cap, last=False, ctl=True):
            ctl = ctl and nlev and not last
            side = ctl_ops() if ctl else []
            e("s_waitcnt lgkmcnt(0)")
            for j in range(R):
                tile, jj = divmod(j, 6)
                kg, s = divmod(jj, 3)
                if last and j + L >= R:
                    e(f"s_waitcnt vmcnt({R - 1 - j})")
                else:
                    e(f"s_waitcnt vmcnt({wait_count(cap, j, ctl)})")
                    issue(j + L, boundary=(j == cand[0]))
                if ctl and j == 0:
                    ctl_issue()
                if j >= 17 and side:
                    e(side.pop(0))
                if jj == 0:
                    e(f"v_and_b32 v{PX}, 0xffff, v{PN + tile}")
                    e(f"v_lshlrev_b32 v{PX + 1}, 16, v{PN + tile}")
                    e(f"v_lshrrev_b32 v{PX + 2}, 16, v{PN + tile}")
                    e(f"v_and_b32 v{PX + 3}, 0xffff0000, v{PN + tile}")
                    if tile == self.tpi - 1 and not last:
                        e(f"v_add_u32 v{VIT}, 1, v{VIT}")
                        e(f"ds_write_b32 v7, v{VIT} offset:{L_FIT}")
                        for q4 in range(self.tpi // 4):
                            e(f"ds_read_b128 v[{PN + 4 * q4}:{PN + 4 * q4 + 3}], v{VSC} offset:{16 * q4}")
                        e(f"v_add_u32 v{VSC}, {NS * 8 * tb}, v{VSC}")
                self.gemv_row(RING + 4 * j, PX + 2 * kg, Q + 8 * s)
                if j >= 17 and side:
                    e(side.pop(0))
            assert not side

        def dump():
            e("s_nop 2")
            for s in range(3):
                for hlf in range(2):
                    r = Q + 8 * s + 4 * hlf
                    e(f"ds_write_b128 v{VDUMP}, v[{r}:{r + 3}] offset:{256 * s + 16 * hlf}")
            e(f"v_add_u32 v{VDUMP}, {self.dump_bytes}, v{VDUMP}")
            e(f"s_add_u32 s50, s{S_R}, 5")
            e(f"v_mov_b32 v{VT}, s50")
            e(f"ds_write_b32 v7, v{VT} offset:{L_FLS}")

        e("L_vround:")
        e(f"s_add_u32 s50, s{S_R}, 2")
        e("s_min_u32 s50, s50, 4")
        self.wait_lds(L_FLP, "s50", VT, sleep=0)
        e(f"v_readfirstlane_b32 s54, v{A}")
        for k in range(24):
            e(f"v_mov_b32 v{Q + k}, 0")
        self.c("one streamer makes the last head's slots resident, with tags that cannot match")
        e(f"s_sub_u32 s50, 3, s{S_R}")
        e(f"s_or_b32 s50, s50, s{S_WAVE}")
        e("s_cmp_ge_u32 s50, s54")
        e("s_cbranch_scc1 L_notouch")
        for k in range(4):
            e(f"v_not_b32 v{PX + k}, v{TG + k}")
        e("s_mov_b32 exec_lo, 0xffffff")
        e("s_mov_b32 exec_hi, 0xffffff")
        e(f"buffer_store_dwordx4 v[{PX}:{PX + 3}], v{VO}, s[12:15], s57 offen")
        e("s_mov_b64 exec, -1")
        e("L_notouch:")
        e(f"s_cmp_eq_u32 s{S_R}, 3")
        e(f"s_cselect_b32 s52, {self.tail_iters}, 0")
        e(f"s_mov_b32 s{S_IT}, {self.ipr}")
        e("L_vloop:")
        e(f"s_cmp_eq_u32 s{S_IT}, 1")
        e(f"s_cselect_b32 s{S_DELTA}, s56, {self.step_bytes}")
        dispatch("vb", vbody)
        pick_level()
        e(f"s_sub_u32 s{S_IT}, s{S_IT}, 1")
        e(f"s_cmp_lg_u32 s{S_IT}, s52")
        e("s_cbranch_scc1 L_vloop")
        e(f"s_cmp_eq_u32 s{S_R}, 3")
        e("s_cbranch_scc1 L_vtail")
        self.stamp_round(S_R, 7)
        dump()
        e(f"s_add_u32 s{S_R}, s{S_R}, 1")
        e("s_branch L_vround")
        e("L_vtail:")
        e(f"s_mov_b32 s{S_DELTA}, {self.step_bytes}")
        if self.tail_iters > 1:
            e("L_vtloop:")
            vbody(self.cap_tail, ctl=False)
            e(f"s_sub_u32 s{S_IT}, s{S_IT}, 1")
            e(f"s_cmp_lg_u32 s{S_IT}, 1")
            e("s_cbranch_scc1 L_vtloop")
        vbody(self.cap_tail, last=True)
        self.stamp(10)
        self.c("last head: reduce over lane groups, combine the two streamers, publish")
        e(f"v_mov_b32 v{VIT}, 64")
        e(f"ds_write_b32 v7, v{VIT} offset:{L_FIT}")
        e(f"s_xor_b32 s50, s{S_WAVE}, 1")
        for s_ in range(3):
            for k in range(4):
                e(f"v_permlane32_swap_b32 v{Q + 8 * s_ + k}, v{Q + 8 * s_ + k + 4}")
        for s_ in range(3):
            for k in range(4):
                e(f"v_add_f32 v{Q + 8 * s_ + k}, v{Q + 8 * s_ + k}, v{Q + 8 * s_ + k + 4}")
        e("s_lshl_b32 s51, s50, 10")
        e(f"v_add_u32 v{VT + 2}, s51, v{VPR}")
        e(f"v_xor_b32 v{VT + 1}, 4, v7")
        for k in range(4):
            e(f"v_mov_b32 v{Q + 20 + k}, v{Q + 16 + k}")
        e(f"ds_read_b32 v{VT}, v{VT + 1} offset:{L_PD}")
        e(f"ds_read_b128 v[{PN}:{PN + 3}], v{VT + 2} offset:{L_PAIR}")
        for k in range(4):
            e(f"v_permlane16_swap_b32 v{Q + k}, v{Q + 8 + k}")
        for k in range(4):
            e(f"v_permlane16_swap_b32 v{Q + 16 + k}, v{Q + 20 + k}")
        for k in range(4):
            e(f"v_add_f32 v{Q + k}, v{Q + k}, v{Q + 8 + k}")
        for k in range(4):
            e(f"v_add_f32 v{Q + 16 + k}, v{Q + 16 + k}, v{Q + 20 + k}")
        for k in range(4):
            e(f"v_add_f32_dpp v{PX + k}, v{Q + k}, v{Q + k} row_ror:8 row_mask:0xf bank_mask:0x3")
        for k in range(4):
            e(f"v_add_f32_dpp v{PX + k}, v{Q + 16 + k}, v{Q + 16 + k} row_ror:8 row_mask:0xf bank_mask:0xc")
        e("s_waitcnt lgkmcnt(0)")
        e(f"v_readfirstlane_b32 s63, v{VT}")
        e("s_cmp_lg_u32 s63, 0")
        e("s_cbranch_scc1 L_spub")
        e(f"s_lshl_b32 s51, s{S_WAVE}, 10")
        e(f"v_add_u32 v{VT + 3}, s51, v{VPR}")
        e(f"v_mov_b32 v{VT}, 1")
        e(f"v_mov_b32 v{VT + 4}, 0")
        e(f"ds_write_b128 v{VT + 3}, v[{PX}:{PX + 3}] offset:{L_PAIR}")
        e(f"ds_write_b32 v7, v{VT} offset:{L_PD}")
        e("s_mov_b64 exec, 1")
        e(f"ds_add_rtn_u32 v{VT + 1}, v{VT + 4}, v{VT} offset:{L_PCN}")
        e("s_mov_b64 exec, -1")
        e(f"ds_read_b128 v[{PN}:{PN + 3}], v{VT + 2} offset:{L_PAIR}")
        e("s_waitcnt lgkmcnt(0)")
        e(f"v_readfirstlane_b32 s63, v{VT + 1}")
        e("s_cmp_eq_u32 s63, 0")
        e("s_cbranch_scc1 L_sdone")
        e("L_spub:")
        for k in range(4):
            e(f"v_add_f32 v{PX + k}, v{PX + k}, v{PN + k}")
        self.embed(PX, TG)
        e("s_mov_b32 exec_lo, 0xffffff")
        e("s_mov_b32 exec_hi, 0xffffff")
        e("s_cmp_eq_u32 s54, 0")
        e("s_cbranch_scc1 L_spub_far")
        e(f"buffer_store_dwordx4 v[{PX}:{PX + 3}], v{VO}, s[12:15], s57 offen")
        e("s_branch L_sdone")
        e("L_spub_far:")
        e(f"buffer_store_dwordx4 v[{PX}:{PX + 3}], v{VO}, s[12:15], s57 offen sc1")
        e("L_sdone:")
        self.stamp(11)
        if self.prof:
            e("s_mov_b32 s88, s92")
        self.prof_store(13)
        e("s_endpgm")
        return RING + 4 * R

    def helperA(self):
        e = self.e
        NS = self.NS
        S_RB, S_CB = 40, 41
        SX, SW, SWS, SJ = 8, 12, 44, 48
        SM = 84
        VW, VT, VQL = 3, 4, 9
        T, TGL, VP, VL16 = 10, 14, 18, 19
        XA, VW2, VXS, XC, F, XOP = 20, 25, 26, 28, 52, 68
        ACC, RES, RING, GQ = 84, 92, 96, 192
        VG0, VG1 = 66, 67
        e("L_helperA:")
        e("s_setprio 3")
        e(f"v_mul_u32_u24 v{VW}, 0x18000, v1")
        e(f"v_lshl_add_u32 v{VW}, v2, 4, v{VW}")
        e(f"v_lshlrev_b32 v{VL16}, 4, v0")
        e(f"v_lshlrev_b32 v{T}, 2, v0")
        e(f"s_mul_i32 s42, s{S_RB}, {64 * 12288}")
        e(f"s_mul_i32 s43, s{S_X}, 384")
        e("s_add_u32 s42, s42, s43")
        e(f"s_lshl_b32 s6, s{S_CB}, 7")
        e("s_add_u32 s42, s42, s6")
        e("s_waitcnt lgkmcnt(0)")
        self.srd(SX, P_X, 1280)
        self.srd(SW, P_WQ, 640 * 12288)
        e(f"buffer_load_dwordx4 v[{XA}:{XA + 3}], v{VL16}, s[{SX}:{SX + 3}], 0 offen")
        e(f"buffer_load_dword v{XA + 4}, v{T}, s[{SX}:{SX + 3}], 0 offen offset:1024")
        for i in range(8):
            e(f"buffer_load_dwordx4 v[{GQ + 4 * i}:{GQ + 4 * i + 3}], v{VW}, s[{SW}:{SW + 3}], s42 offen nt")
            if i < 7:
                e("s_add_u32 s42, s42, 12288")
        e(f"s_mov_b32 s6, {WS_EPOCH}")
        e(f"s_load_dword s{S_TAG}, s[{P_WS}:{P_WS + 1}], s6")
        e("s_barrier")
        self.srd(SWS, P_WS, WS_SIZE)
        self.c("second job: half of the rows of one 64-column block of wq (heads 1..3), gate or up")
        e(f"s_lshr_b32 s52, s{S_C}, 1")
        e(f"s_and_b32 s53, s{S_C}, 1")
        e("s_mul_i32 s54, s52, 43691")
        e("s_lshr_b32 s54, s54, 17")
        e("s_mul_i32 s55, s54, 3")
        e("s_sub_u32 s55, s52, s55")
        e("s_cmp_eq_u32 s54, 3")
        e(f"s_cselect_b32 s{SJ}, s{P_G}, s{P_U}")
        e(f"s_cselect_b32 s{SJ + 1}, s{P_G + 1}, s{P_U + 1}")
        e("s_add_u32 s6, s54, 1")
        e("s_mul_i32 s6, s6, 3072")
        e("s_movk_i32 s56, 0xc00")
        e("s_cmp_lt_u32 s54, 3")
        e(f"s_cselect_b32 s{SJ}, s{P_WQ}, s{SJ}")
        e(f"s_cselect_b32 s{SJ + 1}, s{P_WQ + 1}, s{SJ + 1}")
        e("s_cselect_b32 s56, 12288, s56")
        e("s_cselect_b32 s6, s6, 0")
        e(f"s_mul_i32 s{SJ + 2}, s56, 640")
        e("s_cmp_lt_u32 s54, 5")
        e(f"s_cselect_b32 s{SJ + 2}, s{SJ + 2}, 0")
        e(f"s_mov_b32 s{SJ + 3}, 0x20000")
        e("s_add_u32 s42, s43, s6")
        e("s_lshl_b32 s6, s55, 7")
        e("s_add_u32 s42, s42, s6")
        e("s_mul_i32 s6, s56, 320")
        e("s_mul_i32 s6, s6, s53")
        e("s_add_u32 s42, s42, s6")
        e("s_mul_i32 s57, s56, 57")
        e("s_lshl_b32 s6, s56, 3")
        e(f"v_mul_u32_u24 v{VW2}, s6, v1")
        e(f"v_lshl_add_u32 v{VW2}, v2, 4, v{VW2}")
        e(f"v_lshrrev_b32 v{VP}, 4, v0")
        e(f"v_lshlrev_b32 v{VP}, 7, v{VP}")
        e(f"v_lshl_add_u32 v{VP}, v2, 4, v{VP}")
        e(f"v_and_b32 v{T + 1}, 3, v1")
        e(f"v_lshlrev_b32 v{VQL}, 4, v2")
        e(f"v_lshl_add_u32 v{VQL}, v{T + 1}, 2, v{VQL}")
        e(f"v_and_b32 v{T + 1}, 31, v0")
        e(f"v_lshlrev_b32 v{T + 1}, 4, v{T + 1}")
        e(f"v_lshrrev_b32 v{T + 2}, 5, v0")
        e(f"v_mul_u32_u24 v{VG0}, 1536, v{T + 2}")
        e(f"v_add_u32 v{VG0}, v{VG0}, v{T + 1}")
        e(f"v_mul_u32_u24 v{VG1}, 7680, v{T + 2}")
        e(f"v_add_u32 v{VG1}, v{VG1}, v{T + 1}")
        e(f"s_lshl_b32 s6, s{S_RB}, 7")
        e(f"v_lshl_add_u32 v{VXS}, v1, 4, s6")
        e("s_mul_i32 s6, s53, 640")
        e(f"v_lshl_add_u32 v{VXS + 1}, v1, 4, s6")
        for k in range(8):
            e(f"v_mov_b32 v{ACC + k}, 0")

        def job_load(i):
            r = RING + 4 * (i % 24)
            e(f"buffer_load_dwordx4 v[{r}:{r + 3}], v{VW2}, s[{SJ}:{SJ + 3}], s42 offen nt")
            if i < 39:
                e(f"s_add_u32 s42, s42, s{57 if i % 8 == 7 else 56}")
            if i == self.go_at:
                e(f"v_mov_b32 v{VT}, {L_FLG}")
                e(f"v_mov_b32 v{VT + 1}, 1")
                e(f"ds_write_b32 v{VT}, v{VT + 1}")

        ae = self.a_early
        e("s_waitcnt vmcnt(8)")
        self.stamp(1)
        for i in range(ae):
            job_load(i)
        self.layernorm(XA, F)
        e(f"ds_write_b128 v{VL16}, v[{XA}:{XA + 3}] offset:{L_XN}")
        e(f"ds_write_b32 v{T}, v{XA + 4} offset:{L_XN + 1024}")
        e(f"ds_read_b128 v[{XC}:{XC + 3}], v{VXS} offset:{L_XN}")
        for u in range(5):
            e(f"ds_read_b128 v[{XC + 4 + 4 * u}:{XC + 7 + 4 * u}], v{VXS + 1} offset:{L_XN + 128 * u}")
        e("s_waitcnt lgkmcnt(0)")
        e(f"s_add_u32 s{S_TAG}, s{S_TAG}, {hex(NONCE_STEP)}")
        self.expand(XC, XOP)
        self.tag_regs(RES)
        for i in range(8):
            e(f"s_waitcnt vmcnt({7 - i + ae})")
            self.gemv_row(GQ + 4 * i, XOP + 2 * i, ACC)
        self.reduce_g2(ACC, RES)
        e(f"s_mul_i32 s58, s{S_X}, 15360")
        e(f"s_lshl_b32 s6, s{S_C}, 9")
        e("s_add_u32 s6, s6, s58")
        e(f"s_cmp_lt_u32 s{S_C}, 30")
        e(f"s_cselect_b32 s6, s6, {WS_SIZE}")
        self.exec_tagged()
        e(f"buffer_store_dwordx4 v[{RES}:{RES + 3}], v{VP}, s[{SWS}:{SWS + 3}], s6 offen sc1")
        e("s_mov_b64 exec, -1")
        self.stamp(2)
        cap = self.capA
        assert ae <= cap <= 23

        def job_consume(j):
            if j % 8 == 0:
                self.expand(XC + 4 + 4 * (j // 8), XOP)
            self.gemv_row(RING + 4 * (j % 24), XOP + 2 * (j % 8), ACC)

        for i in range(ae, 40):
            if i >= cap:
                e(f"s_waitcnt vmcnt({cap - 1})")
            job_load(i)
            if i == max(ae, cap - 1):
                self.set_lds(L_TAG, f"s{S_TAG}", VT)
                self.set_lds(L_FLN, 1, VT)
                for k in range(8):
                    e(f"v_mov_b32 v{ACC + k}, 0")
            if i >= cap:
                job_consume(i - cap)
        self.stamp(3)

        def rest_of_job():
            for j in range(40 - cap, 40):
                e(f"s_waitcnt vmcnt({39 - j + 15})")
                job_consume(j)

        def finish_q(regs, lds0):
            for r in regs:
                e(f"v_mov_b32 v{r + 1}, v{r}")
                e(f"v_mov_b32 v{r + 3}, v{r + 2}")
            e("s_nop 0")
            for r in regs:
                e(f"v_permlane32_swap_b32 v{r}, v{r + 1}")
                e(f"v_permlane32_swap_b32 v{r + 2}, v{r + 3}")
            for r in regs:
                e(f"v_add_f32 v{r}, v{r}, v{r + 1}")
                e(f"v_add_f32 v{r + 2}, v{r + 2}, v{r + 3}")
            for i, r in enumerate(regs):
                e(f"v_cvt_pk_bf16_f32 v{r}, v{r}, v{r + 2}")
                e(f"ds_write_b32 v{VQL}, v{r} offset:{lds0 + 128 * i}")

        for k in range(5):
            e(f"s_add_u32 s{SM + k}, s58, {3072 * k}")
        loads = [f"buffer_load_dwordx4 v[{GQ + 12 * k + 4 * cb}:{GQ + 12 * k + 4 * cb + 3}], v{VG0}, s[{SWS}:{SWS + 3}], "
                 f"s{SM + k} offen offset:{512 * cb} sc1" for k in range(5) for cb in range(3)]
        self.gather_tagged(loads, GQ, 15, VT, sleep=4, between=rest_of_job)
        self.stamp(4)
        for k in range(1, 5):
            for j in range(0, 12, 2):
                e(f"v_add_f32 v{GQ + j}, v{GQ + j}, v{GQ + 12 * k + j}")
        finish_q([GQ, GQ + 4, GQ + 8], L_Q)
        self.set_lds(L_FLQ, 1, VT)
        self.stamp(5)
        e("s_setprio 0")
        self.reduce_g2(ACC, RES)
        e("s_mul_i32 s6, s53, 7680")
        e("s_lshl_b32 s7, s52, 9")
        e("s_add_u32 s6, s6, s7")
        e("s_add_u32 s6, s6, s58")
        e(f"s_add_u32 s6, s6, {WS_PA1}")
        e(f"s_cmp_lt_u32 s{S_C}, 30")
        e(f"s_cselect_b32 s6, s6, {WS_SIZE}")
        self.exec_tagged()
        e(f"buffer_store_dwordx4 v[{RES}:{RES + 3}], v{VP}, s[{SWS}:{SWS + 3}], s6 offen sc1")
        e("s_mov_b64 exec, -1")
        self.wait_lds(L_FIT, self.it_q, VT, n=NS, sleep=8)
        e(f"s_add_u32 s6, s58, {WS_PA1}")
        e("s_add_u32 s7, s6, 4096")
        loads = [f"buffer_load_dwordx4 v[{GQ + 4 * j}:{GQ + 4 * j + 3}], v{VG1}, s[{SWS}:{SWS + 3}], "
                 f"s{6 + j // 8} offen offset:{512 * (j % 8)} sc1" for j in range(9)]
        self.gather_tagged(loads, GQ, 9, VT, sleep=32)
        finish_q([GQ + 4 * j for j in range(9)], L_Q + 384)
        self.set_lds(L_FLQ, 4, VT)
        self.stamp(6)
        self.make_tags(TGL)
        SCR, ST, OPR = 128, 160, 180

        M, LS, VS32 = 20, 21, 22
        U = 24

        def unpack(r):
            for k in range(8):
                e(f"v_lshlrev_b32 v{U + 2 * k}, 16, v{SCR + 8 * r + k}")
                e(f"v_and_b32 v{U + 2 * k + 1}, 0xffff0000, v{SCR + 8 * r + k}")

        def local_stats(r):
            self.wait_lds(L_FLS, r + 1, VT, n=NS, sleep=8)
            e(f"v_lshlrev_b32 v{VS32}, 5, v0")
            b = SCR + 8 * r
            e(f"ds_read_b128 v[{b}:{b + 3}], v{VS32} offset:{L_SC + 2048 * r}")
            e(f"ds_read_b128 v[{b + 4}:{b + 7}], v{VS32} offset:{L_SC + 2048 * r + 16}")
            e("s_waitcnt lgkmcnt(0)")
            unpack(r)
            for k in range(16):
                e(f"v_mul_f32 v{U + k}, {hex(SCALE)}, v{U + k}")
            for k in range(8):
                e(f"v_cvt_pk_bf16_f32 v{b + k}, v{U + 2 * k}, v{U + 2 * k + 1}")
            unpack(r)
            e(f"v_max_f32 v{M}, v{U}, v{U + 1}")
            for k in range(2, 16, 2):
                e(f"v_max3_f32 v{M}, v{M}, v{U + k}, v{U + k + 1}")
            self.allreduce("v_max_f32", M, T)
            for k in range(16):
                e(f"v_sub_f32 v{U + k}, v{U + k}, v{M}")
            for k in range(16):
                e(f"v_mul_f32 v{U + k}, {hex(LOG2E)}, v{U + k}")
            for k in range(16):
                e(f"v_exp_f32 v{U + k}, v{U + k}")
            e("s_nop 0")
            e(f"v_add_f32 v{LS}, v{U}, v{U + 1}")
            for k in range(2, 16):
                e(f"v_add_f32 v{LS}, v{LS}, v{U + k}")
            self.allreduce("v_add_f32", LS, T)
            e(f"v_cmp_eq_u32 vcc, {r % 3}, v0")
            e("s_nop 1")
            e(f"v_cndmask_b32 v{ST}, v{ST}, v{M}, vcc")
            e(f"v_cndmask_b32 v{ST + 2}, v{ST + 2}, v{LS}, vcc")

        def publish_stats(base, shift, lanes):
            self.tag_regs(ST)
            e(f"s_lshl_b32 s6, s{S_X}, {shift + 5}")
            e(f"s_lshl_b32 s7, s{S_C}, {shift}")
            e("s_add_u32 s6, s6, s7")
            e(f"s_add_u32 s6, s6, {base}")
            e(f"s_mov_b64 exec, {(1 << lanes) - 1}")
            e(f"buffer_store_dwordx4 v[{ST}:{ST + 3}], v{VL16}, s[{SWS}:{SWS + 3}], s6 offen sc1")
            e("s_mov_b64 exec, -1")
            e("s_nop 1")

        def gather_stats(base, shift, n):
            e(f"v_and_b32 v{T + 1}, 31, v0")
            e(f"v_lshlrev_b32 v{T + 1}, {shift}, v{T + 1}")
            e(f"s_lshl_b32 s6, s{S_X}, {shift + 5}")
            e(f"s_add_u32 s6, s6, {base}")
            self.gather_tagged([f"buffer_load_dwordx4 v[{ST + 4 + 4 * k}:{ST + 7 + 4 * k}], v{T + 1}, s[{SWS}:{SWS + 3}], "
                                f"s6 offen offset:{16 * k} sc1" for k in range(n)], ST + 4, n, VT, sleep=32)

        def finalize_p(r):
            G = ST + 4 + 4 * (r % 3)
            e(f"v_mov_b32 v{M}, v{G}")
            self.allreduce("v_max_f32", M, T)
            e(f"v_sub_f32 v{G}, v{G}, v{M}")
            e(f"v_mul_f32 v{G}, {hex(LOG2E)}, v{G}")
            e(f"v_exp_f32 v{G}, v{G}")
            e("s_nop 0")
            e(f"v_mul_f32 v{LS}, v{G}, v{G + 2}")
            self.allreduce("v_add_f32", LS, T)
            e(f"v_mul_f32 v{LS}, 0.5, v{LS}")
            e(f"v_rcp_f32 v{LS}, v{LS}")
            unpack(r)
            for k in range(16):
                e(f"v_sub_f32 v{U + k}, v{U + k}, v{M}")
            for k in range(16):
                e(f"v_mul_f32 v{U + k}, {hex(LOG2E)}, v{U + k}")
            for k in range(16):
                e(f"v_exp_f32 v{U + k}, v{U + k}")
            e("s_nop 0")
            for k in range(16):
                e(f"v_mul_f32 v{U + k}, v{U + k}, v{LS}")
            b = SCR + 8 * r
            for k in range(8):
                e(f"v_cvt_pk_bf16_f32 v{b + k}, v{U + 2 * k}, v{U + 2 * k + 1}")
            e(f"ds_write_b128 v{VS32}, v[{b}:{b + 3}] offset:{L_SC + 2048 * r}")
            e(f"ds_write_b128 v{VS32}, v[{b + 4}:{b + 7}] offset:{L_SC + 2048 * r + 16}")
            self.set_lds(L_FLP, r + 1, VT)

        def reduce_op(r):
            self.wait_lds(L_FLS, r + 5, VT, n=NS, sleep=8)
            D, O = 40, OPR + 4 * r
            for i in range(16):
                d = D + 4 * i
                e(f"ds_read_b128 v[{d}:{d + 3}], v{VQL} offset:{L_DUMP + r * self.dump_bytes + 768 * i}")
                if i == 7:
                    e("s_waitcnt lgkmcnt(7)")
            for i in range(1, 16):
                e(f"s_waitcnt lgkmcnt({15 - i})")
                for k in range(4):
                    e(f"v_add_f32 v{O + k}, v{D + k if i == 1 else O + k}, v{D + 4 * i + k}")
            self.embed(O, TGL)

        e("s_getreg_b32 s59, hwreg(HW_REG_XCC_ID, 0, 4)")
        e(f"v_mov_b32 v{ST}, s59")
        e(f"v_mov_b32 v{ST + 2}, s59")
        for r in range(3):
            local_stats(r)
        publish_stats(WS_STA, 6, 4)
        self.wait_lds(L_FIT, 24 + self.it_st, VT, n=NS, sleep=8)
        gather_stats(WS_STA, 6, 4)
        e(f"v_cmp_ne_u32 vcc, s59, v{ST + 16}")
        e("s_nop 1")
        e("s_cmp_eq_u64 vcc, 0")
        e(f"s_cselect_b32 s59, {1 if self.local else 0}, 0")
        self.set_lds(L_LOC, "s59", VT)
        for r in range(3):
            finalize_p(r)
        self.stamp(7)
        local_stats(3)
        publish_stats(WS_STB, 4, 1)
        self.wait_lds(L_FIT, 32 + self.it_st + 2, VT, n=NS, sleep=8)
        gather_stats(WS_STB, 4, 1)
        finalize_p(3)
        e(f"v_lshrrev_b32 v{VQL}, 4, v0")
        e(f"v_lshlrev_b32 v{VQL}, 8, v{VQL}")
        e(f"v_lshl_add_u32 v{VQL}, v2, 5, v{VQL}")
        e(f"v_and_b32 v{T + 1}, 1, v1")
        e(f"v_lshl_add_u32 v{VQL}, v{T + 1}, 4, v{VQL}")
        for r in range(3):
            reduce_op(r)
        e(f"v_lshrrev_b32 v{T}, 4, v0")
        e(f"v_lshlrev_b32 v{T}, 13, v{T}")
        e(f"v_and_b32 v{T + 1}, 15, v0")
        e(f"v_lshl_add_u32 v{T}, v{T + 1}, 4, v{T}")
        e(f"s_mul_i32 s6, s{S_X}, {4 * 24576}")
        e(f"s_lshl_b32 s7, s{S_C}, 8")
        e("s_add_u32 s6, s6, s7")
        e(f"s_add_u32 s6, s6, {WS_OP}")
        e("s_mov_b32 exec_hi, 0xffff")
        e("s_cmp_lg_u32 s59, 0")
        e("s_cbranch_scc1 L_ha_local")
        for fl in (" sc1", ""):
            for r in range(3):
                e(f"buffer_store_dwordx4 v[{OPR + 4 * r}:{OPR + 4 * r + 3}], v{T}, s[{SWS}:{SWS + 3}], s6 offen{fl}")
                if r < 2:
                    e("s_add_u32 s6, s6, 24576")
            if fl:
                e("s_branch L_ha_end")
                e("L_ha_local:")
        e("L_ha_end:")
        self.stamp(8)
        self.prof_store(9)
        e("s_endpgm")
        return GQ + 60

    def controller(self, upto, vt, sws, marker=True):
        e = self.e
        dn = self.label("ctd")
        if self.xg and marker:
            lp = self.label("ct")
            e(f"s_cmp_lg_u32 s{S_C}, {self.rep_c}")
            e(f"s_cbranch_scc1 {dn}")
            e("s_mov_b32 s58, 8")
            e(f"s_mul_i32 s55, s{S_X}, {PR_STRIDE}")
            e(f"s_add_u32 s55, s55, {WS_PR + 252}")
            e(f"{lp}:")
            self.wait_lds(L_FIT, "s58", vt, n=self.NS, sleep=1)
            e(f"s_mul_i32 s59, s58, {PR_STRIDE}")
            e(f"s_add_u32 s59, s59, {WS_RK}")
            e("s_mov_b32 s6, 1")
            e(f"s_atomic_add s6, s[{P_WS}:{P_WS + 1}], s59 glc")
            e(f"s_add_u32 s7, s{S_TAG}, 0x1000")
            e("s_waitcnt lgkmcnt(0)")
            e("s_add_u32 s6, s6, s7")
            e(f"v_mov_b32 v{vt}, s6")
            e("s_mov_b64 exec, 1")
            e(f"buffer_store_dword v{vt}, v{vt + 4}, s[{sws}:{sws + 3}], s55 offen")
            e("s_mov_b64 exec, -1")
            e(f"s_add_u32 s58, s58, {self.xstep}")
            e(f"s_cmp_lt_u32 s58, {upto}")
            e(f"s_cbranch_scc1 {lp}")
        e(f"{dn}:")
        self.wait_lds(L_FIT, upto, vt, n=self.NS, sleep=8)

    def helperB(self):
        e = self.e
        NS = self.NS
        S_RB, S_CB = 40, 41
        SX, SA, SWS = 8, 12, 44
        SM = 84
        VA, VT = 3, 4
        G0, WK, YA = 12, 44, 76
        TGL, TGG, VP, VG = 84, 88, 92, 93
        W = 96
        e("L_helperB:")
        e(f"v_mul_u32_u24 v{VA}, 0x2800, v1")
        e(f"v_lshl_add_u32 v{VA}, v2, 4, v{VA}")
        for k in range(4):
            e(f"v_mov_b32 v{VT + k}, 0")
        for k in range(4):
            e(f"ds_write_b128 v{VT}, v[{VT}:{VT + 3}] offset:{16 * k}")
        e(f"s_mul_i32 s43, s{S_X}, {192 * 1280}")
        e(f"s_mul_i32 s6, s{S_CB}, {64 * 1280}")
        e("s_add_u32 s43, s43, s6")
        e(f"s_lshl_b32 s6, s{S_RB}, 7")
        e("s_add_u32 s43, s43, s6")
        e("s_waitcnt lgkmcnt(0)")
        self.srd(SA, P_WO, 6144 * 1280)
        e("s_barrier")
        e(f"s_cmp_ge_u32 s{S_C}, 30")
        e("s_cbranch_scc1 L_hb_tags")
        for i in range(40):
            n, ii = divmod(i, 8)
            if i == 32:
                self.srd(SA, P_D, 1536 * 1280)
            if ii % 4 == 0:
                e(f"s_add_u32 s42, s43, {(8 * 192 * 1280 * n if n < 4 else 0) + 1280 * ii}")
            if i >= self.capB:
                e(f"s_waitcnt vmcnt({self.capB - 1})")
            r = W + 4 * i
            e(f"buffer_load_dwordx4 v[{r}:{r + 3}], v{VA}, s[{SA}:{SA + 3}], s42 offen offset:{1280 * (ii % 4)} nt")
        self.stamp(1)
        e("L_hb_tags:")
        if self.prof:
            e("s_mov_b32 s78, 0")
        self.srd(SX, P_X, 1280)
        self.srd(SWS, P_WS, WS_SIZE)
        self.wait_lds(L_FLN, 1, VT, sleep=4)
        self.read_tag(VT)
        self.make_tags(TGL)
        e(f"s_cmp_ge_u32 s{S_C}, 30")
        e("s_cbranch_scc1 L_finisher")
        e(f"v_lshrrev_b32 v{VP}, 5, v0")
        e(f"v_lshlrev_b32 v{VP}, 7, v{VP}")
        e(f"v_lshl_add_u32 v{VP}, v2, 4, v{VP}")
        e(f"s_mul_i32 s54, s{S_RB}, 24")
        e(f"s_mul_i32 s7, s{S_X}, 3")
        e("s_add_u32 s54, s54, s7")
        e(f"s_add_u32 s54, s54, s{S_CB}")
        e("s_lshl_b32 s54, s54, 8")
        e(f"s_add_u32 s54, s54, {WS_YB}")
        e("s_mov_b32 s48, 0x05040100")
        e("s_mov_b32 s49, 0x07060302")

        def permute(n):
            for pr in range(4):
                for k in range(4):
                    lo, hi = W + 32 * n + 8 * pr + k, W + 32 * n + 8 * pr + 4 + k
                    e(f"v_perm_b32 v{WK + 8 * pr + 2 * k}, v{hi}, v{lo}, s48")
                    e(f"v_perm_b32 v{WK + 8 * pr + 2 * k + 1}, v{hi}, v{lo}, s49")

        OV = G0 + 24

        def gemv():
            for pr in range(4):
                for c_ in range(8):
                    e(f"v_dot2c_f32_bf16 v{YA + c_}, v{WK + 8 * pr + c_}, v{OV + pr}")

        self.c("ffn hidden slice")
        self.wait_lds(L_FLQ, 4, VT, sleep=8)
        e(f"v_lshlrev_b32 v{VG}, 4, v1")
        e(f"v_and_b32 v{VA}, 1, v2")
        e(f"v_mul_u32_u24 v{VA}, 7680, v{VA}")
        e(f"v_add_u32 v{VA}, v{VA}, v{VG}")
        e(f"s_mul_i32 s6, s{S_X}, 15360")
        e(f"s_lshl_b32 s7, s{S_CB}, 9")
        e("s_add_u32 s6, s6, s7")
        e(f"s_add_u32 s6, s6, {WS_PA1 + 9 * 512}")
        loads = [f"buffer_load_dwordx4 v[{G0 + 16 * m + 4 * q}:{G0 + 16 * m + 4 * q + 3}], v{VA}, "
                 f"s[{SWS}:{SWS + 3}], s6 offen offset:{1536 * m + 128 * q} sc1" for m in range(2) for q in range(4)]
        self.gather_tagged(loads, G0, 8, VT, sleep=32)
        GA, UA, Z = WK, WK + 8, WK + 16
        for k in range(16):
            e(f"v_add_f32_dpp v{GA + k}, v{G0 + 2 * k}, v{G0 + 2 * k} {X1}")
        for k in range(8):
            self.round_bf16(GA + k)
            self.round_bf16(UA + k)
        c2 = -2.0 * 0.7978845608028654 * 1.4426950408889634
        e(f"s_mov_b32 s6, {hex(f2u(0.044715))}")
        for k in range(8):
            e(f"v_mul_f32 v{Z + k}, v{GA + k}, v{GA + k}")
        for k in range(8):
            e(f"v_mul_f32 v{Z + k}, v{Z + k}, v{GA + k}")
        for k in range(8):
            e(f"v_fma_f32 v{Z + k}, v{Z + k}, s6, v{GA + k}")
        for k in range(8):
            e(f"v_mul_f32 v{Z + k}, {hex(f2u(c2))}, v{Z + k}")
        for k in range(8):
            e(f"v_exp_f32 v{Z + k}, v{Z + k}")
        for k in range(8):
            e(f"v_add_f32 v{Z + k}, 1.0, v{Z + k}")
        for k in range(8):
            e(f"v_rcp_f32 v{Z + k}, v{Z + k}")
        for k in range(8):
            e(f"v_mul_f32 v{Z + k}, v{Z + k}, v{GA + k}")
        for k in range(8):
            self.round_bf16(Z + k)
        for k in range(8):
            e(f"v_mul_f32 v{Z + k}, v{Z + k}, v{UA + k}")
        for k in range(4):
            e(f"v_cvt_pk_bf16_f32 v{OV + k}, v{Z + 2 * k}, v{Z + 2 * k + 1}")
        permute(4)
        for k in range(8):
            e(f"v_mov_b32 v{YA + k}, 0")
        e(f"v_lshl_add_u32 v{VG}, v2, 8, v{VG}")
        e(f"s_mul_i32 s52, s{S_X}, {4 * 24576}")
        e(f"s_lshl_b32 s7, s{S_CB}, 13")
        e("s_add_u32 s52, s52, s7")
        e(f"s_add_u32 s52, s52, {WS_OP}")
        e("s_mov_b32 s50, -1")
        e("s_branch L_hb_gemv")

        self.c("s50 = head round; each pass multiplies one 64-row vector slice with its weight block")
        e("L_hb_round:")
        for r in range(4):
            nx = self.label("hbr")
            e(f"s_cmp_lg_u32 s50, {r}")
            e(f"s_cbranch_scc1 {nx}")
            permute(r)
            if r == 0:
                self.controller(56 + self.it_op, VT, SWS)
            if r == 3:
                self.stamp(3)
                self.wait_lds(L_FIT, 64, VT, n=NS, sleep=1)
                self.stamp(4)
            e(f"{nx}:")
        e("s_add_u32 s53, s52, 4096")
        e("s_sub_u32 s51, 3, s50")
        groups = []
        for j in range(4):
            groups.append(([f"buffer_load_dwordx4 v[{G0 + 8 * j + 4 * q}:{G0 + 8 * j + 4 * q + 3}], v{VG}, "
                            f"s[{SWS}:{SWS + 3}], s{52 + j // 2} offen offset:{2048 * (j % 2) + 128 * q} sc1"
                            for q in range(2)], G0 + 8 * j, 2))
        self.gather_emb(groups, TGL, VT, SM, sleep="s51")
        self.stamp(5)
        for k in range(8):
            e(f"v_add_f32 v{G0 + k}, v{G0 + k}, v{G0 + 8 + k}")
            e(f"v_add_f32 v{G0 + 16 + k}, v{G0 + 16 + k}, v{G0 + 24 + k}")
        for k in range(8):
            e(f"v_add_f32 v{G0 + k}, v{G0 + k}, v{G0 + 16 + k}")
        for pat in (X1, X2, HM):
            for k in range(8):
                e(f"v_add_f32_dpp v{G0 + k}, v{G0 + k}, v{G0 + k} {pat}")
        for k in range(4):
            e(f"v_cvt_pk_bf16_f32 v{OV + k}, v{G0 + 2 * k}, v{G0 + 2 * k + 1}")
        e("s_add_u32 s52, s52, 24576")
        e("L_hb_gemv:")
        gemv()
        e("s_add_u32 s50, s50, 1")
        e("s_and_b32 s51, s50, 3")
        e("s_cbranch_scc1 L_hb_round")
        self.reduce_g(YA, G0, G0 + 4)
        self.embed(G0, TGL)
        e("s_mov_b32 exec_lo, 0xff")
        e("s_mov_b32 exec_hi, 0xff")
        e(f"buffer_store_dwordx4 v[{G0}:{G0 + 3}], v{VP}, s[{SWS}:{SWS + 3}], s54 offen sc1")
        e("s_mov_b64 exec, -1")
        e("s_cmp_lg_u32 s50, 0")
        e("s_cbranch_scc1 L_hb_done")
        self.stamp(2)
        e(f"s_sub_u32 s54, s54, {WS_YB - WS_YA}")
        for k in range(8):
            e(f"v_mov_b32 v{YA + k}, 0")
        e("s_branch L_hb_round")
        e("L_hb_done:")
        self.stamp(6)
        self.prof_store(8)
        e("s_endpgm")

        self.c("finisher: sums the projection partials of one 64-column block and writes the output")
        e("L_finisher:")
        e(f"s_sub_u32 s56, s{S_C}, 30")
        e("s_lshl_b32 s56, s56, 3")
        e(f"s_add_u32 s56, s56, s{S_X}")
        XV, BV = 64, 72
        e(f"v_lshlrev_b32 v{VG}, 4, v0")
        e(f"v_and_b32 v{VA}, 1, v1")
        e(f"v_lshlrev_b32 v{VA}, 3, v{VA}")
        e(f"v_lshl_add_u32 v{VA}, v2, 4, v{VA}")
        e("s_lshl_b32 s57, s56, 7")
        e(f"buffer_load_dwordx2 v[{XV}:{XV + 1}], v{VA}, s[{SX}:{SX + 3}], s57 offen")
        self.srd(SA, P_OUT, 1280)
        e("s_mul_i32 s52, s56, 6144")
        e(f"s_add_u32 s52, s52, {WS_YB}")
        if self.xg:
            e("s_cmp_lg_u32 s56, 15")
            e("s_cbranch_scc1 L_norank")
            e(f"v_mul_u32_u24 v{VT}, {PR_STRIDE}, v0")
            e(f"v_mov_b32 v{VT + 1}, 0")
            e(f"s_mov_b32 s6, {WS_RK}")
            e(f"buffer_store_dword v{VT + 1}, v{VT}, s[{SWS}:{SWS + 3}], s6 offen sc1")
            e("L_norank:")
        e("s_cmp_ge_u32 s56, 10")
        e("s_cbranch_scc1 L_exit")
        e("s_mov_b32 s50, 16")
        e("s_mov_b32 s51, 1")
        e("L_fin_pass:")
        self.wait_lds(L_FIT, "s50", VT, n=NS, sleep=1)
        self.stamp(4)
        e("s_add_u32 s53, s52, 4096")
        groups = [([f"buffer_load_dwordx4 v[{G0 + 4 * i}:{G0 + 4 * i + 3}], v{VG}, s[{SWS}:{SWS + 3}], "
                    f"s{52 + i // 4} offen offset:{1024 * (i % 4)} sc1"], G0 + 4 * i, 1) for i in range(6)]
        self.gather_emb(groups, TGL, VT, SM, sleep="s51", whole=True)
        self.stamp(5)
        for i in (0, 2, 4):
            for k in range(4):
                e(f"v_add_f32 v{G0 + 4 * i + k}, v{G0 + 4 * i + k}, v{G0 + 4 * i + 4 + k}")
        for i in (2, 4):
            for k in range(4):
                e(f"v_add_f32 v{G0 + k}, v{G0 + k}, v{G0 + 4 * i + k}")
        for sw in ("v_permlane16_swap_b32", "v_permlane32_swap_b32"):
            for k in range(4):
                e(f"v_mov_b32 v{G0 + 4 + k}, v{G0 + k}")
            e("s_nop 0")
            for k in range(4):
                e(f"{sw} v{G0 + k}, v{G0 + 4 + k}")
            e("s_nop 0")
            for k in range(4):
                e(f"v_add_f32 v{G0 + k}, v{G0 + k}, v{G0 + 4 + k}")
        for k in range(4):
            self.round_bf16(G0 + k)
        e("s_cmp_lg_u32 s51, 0")
        e("s_cbranch_scc1 L_fin_first")
        for k in range(4):
            e(f"v_add_f32 v{G0 + k}, v{G0 + k}, v{XV + 2 + k}")
        for k in range(4):
            self.round_bf16(G0 + k)
        for k in range(4):
            e(f"v_add_f32 v{G0 + k}, v{G0 + k}, v{BV + k}")
        e(f"v_cvt_pk_bf16_f32 v{G0}, v{G0}, v{G0 + 1}")
        e(f"v_cvt_pk_bf16_f32 v{G0 + 1}, v{G0 + 2}, v{G0 + 3}")
        e("s_mov_b64 exec, 0xffff")
        e(f"buffer_store_dwordx2 v[{G0}:{G0 + 1}], v{VA}, s[{SA}:{SA + 3}], s57 offen")
        e("s_cmp_lg_u32 s56, 0")
        e("s_cbranch_scc1 L_fin_done")
        self.c("the next launch derives a different tag from this word")
        e(f"v_mov_b32 v{VT}, s{S_TAG}")
        e(f"v_mov_b32 v{VT + 1}, {WS_EPOCH}")
        e("s_mov_b64 exec, 1")
        e(f"buffer_store_dword v{VT}, v{VT + 1}, s[{SWS}:{SWS + 3}], 0 offen")
        e("L_fin_done:")
        if self.diag_dbg:
            e("s_memrealtime s[66:67]")
            e("s_waitcnt lgkmcnt(0)")
            e("s_sub_u32 s66, s66, s64")
            self.srd(48, P_DBG, 256)
            e(f"v_mov_b32 v{VT}, s66")
            e("s_lshl_b32 s6, s56, 2")
            e(f"v_mov_b32 v{VT + 1}, s6")
            e("s_mov_b64 exec, 1")
            e(f"buffer_store_dword v{VT}, v{VT + 1}, s[48:51], 0 offen")
        self.stamp(6)
        self.prof_store(7)
        e("L_exit:")
        e("s_endpgm")
        e("L_fin_first:")
        for k in range(4):
            e(f"v_mov_b32 v{BV + k}, v{G0 + k}")
        e(f"v_lshlrev_b32 v{XV + 2}, 16, v{XV}")
        e(f"v_and_b32 v{XV + 3}, 0xffff0000, v{XV}")
        e(f"v_lshlrev_b32 v{XV + 4}, 16, v{XV + 1}")
        e(f"v_and_b32 v{XV + 5}, 0xffff0000, v{XV + 1}")
        e(f"s_sub_u32 s52, s52, {WS_YB - WS_YA}")
        e("s_mov_b32 s50, 64")
        e("s_mov_b32 s51, 0")
        self.stamp(3)
        e("s_branch L_fin_pass")
        return W + 160

    def build(self):
        self.entry()
        nv = max(self.streamer(), self.helperA(), self.helperB())
        assert nv <= 256
        body = "\n".join(l if l.endswith(":") or l.startswith(";") else "    " + l for l in self.o)
        return (HEADER.format(block=64 * (self.NS + 2), lds=self.lds, name=NAME) + body
                + FOOTER.format(name=NAME, vgpr=nv, acc=(nv + 3) // 4 * 4))


def gen(**kw):
    return Gen(**kw).build()


if __name__ == "__main__":
    out = sys.argv[1] if len(sys.argv) > 1 else f"cdna_kernels/{NAME}.s"
    kw = eval("dict(" + (sys.argv[2] if len(sys.argv) > 2 else "") + ")")
    open(out, "w").write(gen(**kw))
```

```python
import struct
import sys

NAME = "parallel_sum__mha_block_cached__geglu_ffn__decode"
HEAD = 32768 * 384
KV_BYTES = 32 * HEAD
SENT = 0xFFFFFFFF

WS_PA0 = 0x000000
WS_PA1 = 0x020000
WS_STA = 0x040000
WS_STB = 0x044000
WS_YA = 0x050000
WS_YB = 0x060000
WS_OP = 0x070000
WS_PR = 0x140000
PR_STRIDE = 4352
WS_RK = 0x150000
WS_EPOCH = 0x1A0000
WS_PROF = 0x200000
WS_SIZE = 0x400000
NONCE_STEP = 0x9E3779B9

L_FLS = 0
L_FIT = 8
L_FLQ = 16
L_FLP = 20
L_FLN = 24
L_FLG = 28
L_TAG = 32
L_PCN = 36
L_PD = 40
L_LOC = 48
L_Q = 64
L_XN = 1664
L_SC = 3072
L_PAIR = L_SC + 8192
L_DUMP = L_PAIR + 2048
S_TAG = 60


def f2u(x):
    return struct.unpack("<I", struct.pack("<f", x))[0]


LOG2E = f2u(1.4426950408889634)
SCALE = f2u(192 ** -0.5)

HEADER = """; Kernarg layout for this problem (96 bytes, ptrs only, base s[0:1]):
; @launch grid=(256,1,1) block=({block},1,1) lds={lds}
.amdgcn_target "amdgcn-amd-amdhsa--gfx950"
.text
.globl {name}_kernel
.p2align 8
.type {name}_kernel,@function
{name}_kernel:
"""
FOOTER = """
.section .rodata,"a"
.p2align 6
.amdhsa_kernel {name}_kernel
  .amdhsa_next_free_vgpr {vgpr}
  .amdhsa_next_free_sgpr 96
  .amdhsa_accum_offset {acc}
  .amdhsa_group_segment_fixed_size 0
  .amdhsa_kernarg_size 96
  .amdhsa_user_sgpr_count 2
  .amdhsa_user_sgpr_kernarg_segment_ptr 1
  .amdhsa_system_sgpr_workgroup_id_x 1
.end_amdhsa_kernel
"""

DPP_ALL = "row_mask:0xf bank_mask:0xf"
X1 = "quad_perm:[1,0,3,2] " + DPP_ALL
X2 = "quad_perm:[2,3,0,1] " + DPP_ALL
HM = "row_half_mirror " + DPP_ALL
RM = "row_mirror " + DPP_ALL
R8 = "row_ror:8 " + DPP_ALL

S_WAVE, S_X, S_C = 3, 4, 5
P_X, P_K, P_V, P_WQ, P_WO, P_G, P_U, P_D, P_OUT, P_DBG, P_WS = 16, 18, 20, 22, 24, 28, 30, 32, 34, 36, 38
SPIN_G = 400000
SPIN_L = 4000000


class Gen:
    def __init__(self, R=24, L=23, cap=12, cap0=11, capA=22, capB=22, a_early=0, s_early=0, gran=1, rot=0, warm=True, fsets=3, ya_fl="sc1", go_at=39, cap_tail=None,
                 tail_iters=1, caps=(9, 11, 12, 14, 16), thr=(38, 60), rep_c=7, xg=3, xstep=2, local=True, it_q=3, it_st=4, it_op=3, prof=False, diag_hold=0, diag_dbg=False):
        NS = 2
        self.NS, self.R, self.L = NS, R, L
        self.cap, self.cap0, self.capA, self.capB = cap, cap0, capA, capB
        self.a_early, self.go_at, self.s_early = a_early, go_at, s_early
        self.gran, self.rot = gran, rot
        self.warm, self.fsets, self.ya_fl = warm, fsets, ya_fl
        self.cap_tail = cap_tail or cap
        self.tail_iters = tail_iters
        self.caps, self.thr, self.rep_c = caps, thr, rep_c
        self.xg, self.xstep, self.local = xg, xstep, local
        self.it_q, self.it_st, self.it_op = it_q, it_st, it_op
        self.prof = prof
        self.diag_hold, self.diag_dbg = diag_hold, diag_dbg
        self.o = []
        self.uid = 0
        self.steps = 32768 // (32 * NS * 16)
        self.tpi = R // 6
        assert R == 24 and L < R
        assert max(cap, cap0, self.cap_tail) <= L
        self.ipr = self.steps // self.tpi
        self.step_bytes = 32 * NS * 6144
        self.big_step = gran * self.step_bytes - (gran - 1) * 6144
        self.dump_bytes = 8 * NS * 768
        self.lds = L_DUMP + 3 * self.dump_bytes

    def e(self, s):
        self.o.append(s)

    def c(self, s):
        self.o.append("; " + s)

    def label(self, base):
        self.uid += 1
        return f"L_{base}_{self.uid}"

    def srd(self, d, p, size):
        self.e(f"s_mov_b32 s{d}, s{p}")
        self.e(f"s_mov_b32 s{d+1}, s{p+1}")
        self.e(f"s_mov_b32 s{d+2}, {size}")
        self.e(f"s_mov_b32 s{d+3}, 0x20000")

    def stamp(self, k):
        if self.prof:
            self.e(f"s_memrealtime s[{64 + 2 * k}:{65 + 2 * k}]")
            self.e("s_waitcnt lgkmcnt(0)")

    def stamp_round(self, sreg, base):
        if not self.prof:
            return
        for r in range(4):
            lb = self.label("st")
            self.e(f"s_cmp_lg_u32 s{sreg}, {r}")
            self.e(f"s_cbranch_scc1 {lb}")
            self.stamp(base + r)
            self.e(f"{lb}:")

    def prof_store(self, n):
        if not self.prof:
            return
        e = self.e
        e("s_mov_b64 exec, -1")
        e("s_waitcnt vmcnt(0) lgkmcnt(0)")
        self.srd(12, P_WS, WS_SIZE)
        e("s_lshl_b32 s6, s2, 2")
        e(f"s_add_u32 s6, s6, s{S_WAVE}")
        e("s_lshl_b32 s6, s6, 6")
        e(f"s_add_u32 s6, s6, {WS_PROF}")
        e("v_mov_b32 v1, 0")
        e("s_getreg_b32 s7, hwreg(HW_REG_XCC_ID)")
        e("v_mov_b32 v2, s7")
        e("s_mov_b64 exec, 1")
        e("buffer_store_dword v2, v1, s[12:15], s6 offen offset:60")
        for k in range(n):
            e(f"v_mov_b32 v{4 + k}, s{64 + 2 * k}")
            e(f"buffer_store_dword v{4 + k}, v1, s[12:15], s6 offen offset:{4 * k}")
        e("s_waitcnt vmcnt(0)")

    def allreduce(self, op, v, t):
        e = self.e
        for pat in (X1, X2, HM, RM):
            e("s_nop 1")
            e(f"{op}_dpp v{v}, v{v}, v{v} {pat}")
        for sw in ("v_permlane16_swap_b32", "v_permlane32_swap_b32"):
            e(f"v_mov_b32 v{t}, v{v}")
            e("s_nop 1")
            e(f"{sw} v{v}, v{t}")
            e("s_nop 1")
            e(f"{op} v{v}, v{v}, v{t}")

    def round_bf16(self, v):
        self.e(f"v_cvt_pk_bf16_f32 v{v}, v{v}, v{v}")
        self.e(f"v_and_b32 v{v}, 0xffff0000, v{v}")

    def expand(self, src, dst):
        e = self.e
        for k in range(4):
            e(f"v_and_b32 v{dst + 4 * k}, 0xffff, v{src + k}")
            e(f"v_lshlrev_b32 v{dst + 4 * k + 1}, 16, v{src + k}")
            e(f"v_lshrrev_b32 v{dst + 4 * k + 2}, 16, v{src + k}")
            e(f"v_and_b32 v{dst + 4 * k + 3}, 0xffff0000, v{src + k}")

    def gemv_row(self, w, xop, acc):
        for k in range(4):
            self.e(f"v_dot2c_f32_bf16 v{acc + 2 * k}, v{w + k}, v{xop}")
            self.e(f"v_dot2c_f32_bf16 v{acc + 2 * k + 1}, v{w + k}, v{xop + 1}")

    def reduce_g(self, acc, res, t):
        e = self.e
        e("s_nop 2")
        for k in range(4):
            e(f"v_permlane32_swap_b32 v{acc + k}, v{acc + k + 4}")
        e("s_nop 0")
        for k in range(4):
            e(f"v_add_f32 v{res + k}, v{acc + k}, v{acc + k + 4}")
        for k in range(4):
            e(f"v_mov_b32 v{t + k}, v{res + k}")
        e("s_nop 0")
        for k in range(4):
            e(f"v_permlane16_swap_b32 v{res + k}, v{t + k}")
        e("s_nop 0")
        for k in range(4):
            e(f"v_add_f32 v{res + k}, v{res + k}, v{t + k}")
        e("s_nop 0")
        for k in range(4):
            e(f"v_add_f32_dpp v{res + k}, v{res + k}, v{res + k} {R8}")

    def tag_regs(self, res):
        self.e(f"v_mov_b32 v{res + 1}, s{S_TAG}")
        self.e(f"v_mov_b32 v{res + 3}, s{S_TAG}")

    def reduce_g2(self, acc, res):
        e = self.e
        e("s_nop 2")
        for k in range(4):
            e(f"v_permlane32_swap_b32 v{acc + k}, v{acc + k + 4}")
        e("s_nop 0")
        for k in range(4):
            e(f"v_add_f32 v{acc + k}, v{acc + k}, v{acc + k + 4}")
        e("s_nop 1")
        for k in range(2):
            e(f"v_permlane16_swap_b32 v{acc + k}, v{acc + k + 2}")
        e("s_nop 0")
        for k in range(2):
            e(f"v_add_f32 v{acc + k}, v{acc + k}, v{acc + k + 2}")
        e("s_nop 1")
        for k in range(2):
            e(f"v_add_f32_dpp v{res + 2 * k}, v{acc + k}, v{acc + k} {R8}")

    def exec_tagged(self):
        self.e("s_mov_b32 exec_lo, 0x00ff00ff")
        self.e("s_mov_b32 exec_hi, 0x00ff00ff")

    def make_tags(self, dst):
        self.e("s_movk_i32 s61, 0xff")
        for k in range(4):
            self.e(f"v_bfe_u32 v{dst + k}, s{S_TAG}, {8 * k}, 8")

    def embed(self, v, tg):
        for k in range(4):
            self.e(f"v_bfi_b32 v{v + k}, s61, v{tg + k}, v{v + k}")

    def read_tag(self, vt):
        e = self.e
        e(f"v_mov_b32 v{vt + 4}, 0")
        e(f"ds_read_b32 v{vt}, v{vt + 4} offset:{L_TAG}")
        e("s_waitcnt lgkmcnt(0)")
        e(f"v_readfirstlane_b32 s{S_TAG}, v{vt}")
        e("s_nop 1")

    def gather_emb(self, groups, tg, vt, sm, lanes=64, sleep=1, between=None, whole=False):
        e = self.e
        lp, ok, mid = self.label("ge"), self.label("geok"), self.label("gemid")
        n = len(groups)
        e(f"s_mov_b32 s62, {SPIN_G}")
        for j in range(n):
            e(f"s_mov_b32 s{sm + 2 * j}, -1")
            e(f"s_mov_b32 s{sm + 2 * j + 1}, {hex((1 << (lanes - 32)) - 1)}")
        if between:
            e(f"s_mov_b64 exec, s[{sm}:{sm + 1}]")
            for loads, _, _ in groups:
                for s_ in loads:
                    e(s_)
            e("s_mov_b64 exec, -1")
            between()
            e(f"s_branch {mid}")
        e(f"{lp}:")
        for j, (loads, _, _) in enumerate(groups):
            sk = self.label("gs")
            e(f"s_mov_b64 exec, s[{sm + 2 * j}:{sm + 2 * j + 1}]")
            e(f"s_cbranch_execz {sk}")
            for s_ in loads:
                e(s_)
            e(f"{sk}:")
        e(f"{mid}:")
        e("s_mov_b64 vcc, 0")
        e("s_waitcnt vmcnt(0)")
        for j, (_, first, nrec) in enumerate(groups):
            sk = self.label("gs")
            e(f"s_mov_b64 exec, s[{sm + 2 * j}:{sm + 2 * j + 1}]")
            e(f"s_cbranch_execz {sk}")
            for k in range(4 * nrec):
                e(f"v_xor_b32 v{first + k}, v{first + k}, v{tg + k % 4}")
            e(f"v_or_b32 v{vt}, v{first}, v{first + 1}")
            for k in range(2, 4 * nrec, 2):
                e(f"v_or3_b32 v{vt}, v{vt}, v{first + k}, v{first + k + 1}")
            e(f"v_and_b32 v{vt}, s61, v{vt}")
            e(f"v_cmp_ne_u32 s[{sm + 2 * j}:{sm + 2 * j + 1}], 0, v{vt}")
            e("s_nop 0")
            e(f"s_or_b64 vcc, vcc, s[{sm + 2 * j}:{sm + 2 * j + 1}]")
            if whole:
                e(f"s_cmp_lg_u64 s[{sm + 2 * j}:{sm + 2 * j + 1}], 0")
                e(f"s_cselect_b64 s[{sm + 2 * j}:{sm + 2 * j + 1}], -1, 0")
            e(f"{sk}:")
        e("s_mov_b64 exec, -1")
        e("s_cmp_eq_u64 vcc, 0")
        e(f"s_cbranch_scc1 {ok}")
        if isinstance(sleep, str):
            sk = self.label("gs")
            e(f"s_cmp_eq_u32 {sleep}, 0")
            e(f"s_cbranch_scc1 {sk}")
            e("s_sleep 32")
            e(f"{sk}:")
        elif sleep:
            e(f"s_sleep {sleep}")
        e("s_sub_u32 s62, s62, 1")
        e("s_cmp_lg_u32 s62, 0")
        e(f"s_cbranch_scc1 {lp}")
        e("s_endpgm")
        e(f"{ok}:")

    def gather_tagged(self, loads, first, nrec, vt, sleep=1, skip=None, between=None):
        e = self.e
        lp, ok, mid = self.label("gt"), self.label("gtok"), self.label("gtmid")
        e(f"s_mov_b32 s62, {SPIN_G}")
        if between:
            for s_ in loads:
                e(s_)
            between()
            e(f"s_branch {mid}")
        e(f"{lp}:")
        for s_ in loads:
            e(s_)
        e(f"{mid}:")
        e(f"v_mov_b32 v{vt}, 0")
        e(f"v_mov_b32 v{vt + 1}, 0")
        e("s_waitcnt vmcnt(0)")
        for k in range(nrec):
            t = vt + 1 if skip and k in skip[0] else vt
            e(f"v_bitop3_b32 v{t}, v{t}, v{first + 4 * k + 1}, s{S_TAG} bitop3:0xf6")
            e(f"v_bitop3_b32 v{t}, v{t}, v{first + 4 * k + 3}, s{S_TAG} bitop3:0xf6")
        if skip:
            e(f"v_cndmask_b32 v{vt + 1}, 0, v{vt + 1}, s[{skip[1]}:{skip[1] + 1}]")
            e(f"v_or_b32 v{vt}, v{vt}, v{vt + 1}")
        e(f"v_cmp_ne_u32 vcc, 0, v{vt}")
        e("s_nop 4")
        e(f"s_cbranch_vccz {ok}")
        if sleep:
            e(f"s_sleep {sleep}")
        e("s_sub_u32 s62, s62, 1")
        e("s_cmp_lg_u32 s62, 0")
        e(f"s_cbranch_scc1 {lp}")
        e("s_endpgm")
        e(f"{ok}:")

    def reduce_sub(self, v, n):
        for pat in (X1, X2, HM):
            self.e("s_nop 1")
            for k in range(n):
                self.e(f"v_add_f32_dpp v{v + k}, v{v + k}, v{v + k} {pat}")

    def wait_lds(self, addr, val, vt, n=1, sleep=2, val_is_sreg=False):
        e = self.e
        lp, ok = self.label("wl"), self.label("wlok")
        e(f"s_mov_b32 s62, {SPIN_L}")
        e(f"v_mov_b32 v{vt + 4}, 0")
        e(f"{lp}:")
        if n == 1:
            e(f"ds_read_b32 v{vt}, v{vt + 4} offset:{addr}")
            e("s_waitcnt lgkmcnt(0)")
        elif n == 2:
            e(f"ds_read_b64 v[{vt}:{vt + 1}], v{vt + 4} offset:{addr}")
            e("s_waitcnt lgkmcnt(0)")
            e(f"v_min_u32 v{vt}, v{vt}, v{vt + 1}")
        else:
            e(f"ds_read_b128 v[{vt}:{vt + 3}], v{vt + 4} offset:{addr}")
            e("s_waitcnt lgkmcnt(0)")
            e(f"v_min_u32 v{vt}, v{vt}, v{vt + 1}")
            e(f"v_min3_u32 v{vt}, v{vt}, v{vt + 2}, v{vt + 3}")
        e("s_nop 0")
        e(f"v_readfirstlane_b32 s63, v{vt}")
        e(f"s_cmp_ge_u32 s63, {val}")
        e(f"s_cbranch_scc1 {ok}")
        if sleep:
            e(f"s_sleep {sleep}")
        e("s_sub_u32 s62, s62, 1")
        e("s_cmp_lg_u32 s62, 0")
        e(f"s_cbranch_scc1 {lp}")
        e("s_endpgm")
        e(f"{ok}:")

    def set_lds(self, addr, val, vt):
        e = self.e
        e("s_waitcnt lgkmcnt(0)")
        e(f"v_mov_b32 v{vt}, {addr}")
        e(f"v_mov_b32 v{vt + 1}, {val}")
        e(f"ds_write_b32 v{vt}, v{vt + 1}")

    def layernorm(self, xa, f):
        e = self.e

        def unpack():
            for k in range(5):
                e(f"v_lshlrev_b32 v{f + 2 * k}, 16, v{xa + k}")
                e(f"v_and_b32 v{f + 2 * k + 1}, 0xffff0000, v{xa + k}")

        def pack():
            for k in range(5):
                e(f"v_cvt_pk_bf16_f32 v{xa + k}, v{f + 2 * k}, v{f + 2 * k + 1}")

        unpack()
        m, t, var, d = f + 10, f + 11, f + 12, f + 13
        e(f"v_add_f32 v{m}, v{f}, v{f + 1}")
        for k in range(2, 10):
            e(f"v_add_f32 v{m}, v{m}, v{f + k}")
        self.allreduce("v_add_f32", m, t)
        e(f"v_mul_f32 v{m}, {hex(f2u(1.0 / 640))}, v{m}")
        e(f"v_mov_b32 v{var}, 0")
        for k in range(10):
            e(f"v_sub_f32 v{d}, v{f + k}, v{m}")
            e(f"v_fmac_f32 v{var}, v{d}, v{d}")
        self.allreduce("v_add_f32", var, t)
        e(f"v_mul_f32 v{var}, {hex(f2u(1.0 / 640))}, v{var}")
        self.round_bf16(var)
        self.round_bf16(m)
        e(f"v_add_f32 v{var}, {hex(f2u(1e-5))}, v{var}")
        self.round_bf16(var)
        e(f"v_sqrt_f32 v{var}, v{var}")
        for k in range(10):
            e(f"v_sub_f32 v{f + k}, v{f + k}, v{m}")
        self.round_bf16(var)
        e(f"v_rcp_f32 v{var}, v{var}")
        pack()
        unpack()
        for k in range(10):
            e(f"v_mul_f32 v{f + k}, v{f + k}, v{var}")
        pack()

    def entry(self):
        e = self.e
        self.c("roles: waves 0..NS-1 stream K then V; wave NS does q/softmax exchanges; wave NS+1 does weight GEMVs")
        if self.prof or self.diag_hold or self.diag_dbg:
            e("s_memrealtime s[64:65]")
        e("s_cmp_ge_u32 s2, 256")
        e("s_cbranch_scc1 L_exit")
        e("s_load_dwordx16 s[16:31], s[0:1], 0")
        e("s_load_dwordx8 s[32:39], s[0:1], 64")
        e("v_lshrrev_b32 v1, 6, v0")
        e("v_and_b32 v0, 63, v0")
        e(f"v_readfirstlane_b32 s{S_WAVE}, v1")
        e(f"s_and_b32 s{S_X}, s2, 7")
        e(f"s_lshr_b32 s{S_C}, s2, 3")
        e("v_lshrrev_b32 v1, 3, v0")
        e("v_and_b32 v2, 7, v0")
        e(f"s_mul_i32 s40, s{S_C}, 43691")
        e("s_lshr_b32 s40, s40, 17")
        e("s_mul_i32 s41, s40, 3")
        e(f"s_sub_u32 s41, s{S_C}, s41")
        e(f"s_cmp_eq_u32 s{S_WAVE}, {self.NS}")
        e("s_cbranch_scc1 L_helperA")
        e(f"s_cmp_eq_u32 s{S_WAVE}, {self.NS + 1}")
        e("s_cbranch_scc1 L_helperB")

    def streamer(self):
        e = self.e
        NS, R, L = self.NS, self.R, self.L
        VOFF, VSC, VQ, VDUMP, VT = 3, 4, 5, 6, 8
        VIT = 13
        A = 14
        VO, VPR, TG = 18, 19, 24
        VSM, VPB, VPA, VL4 = 56, 57, 58, 59
        SC = 20
        Q = 20 + 8
        PN, PX = 52, 60
        RING = 64
        S_OFF, S_DELTA, S_B0, S_B1, S_IT, S_R = 44, 45, 46, 47, 48, 49
        offs = [(i // 3) * 3072 + (i % 3) * 128 for i in range(6)]
        cand = [j for j in range(R) if (j + L) % 6 == 5 and ((j + L + 1) // 6) % self.tpi == 0]
        assert len(cand) == 1
        self.c("streamer")
        if self.warm:
            self.c("each streamer reads 1 KiB slices of this kernel's code so that later instruction fetches hit in L2")
            e("s_getpc_b64 s[12:13]")
            e("L_pc:")
            e(f"s_lshl_b32 s6, s{S_C}, 1")
            e(f"s_add_u32 s6, s6, s{S_WAVE}")
            e("s_lshl_b32 s6, s6, 10")
            e("v_lshl_add_u32 v8, v0, 4, s6")
            e("v_min_u32 v8, L_code_end-L_pc-16, v8")
            e("v_mov_b32 v9, s13")
            e("v_add_co_u32 v8, vcc, s12, v8")
            e("s_nop 1")
            e("v_addc_co_u32 v9, vcc, 0, v9, vcc")
            e("global_load_dwordx4 v[64:67], v[8:9], off")
        e(f"v_mul_u32_u24 v{VOFF}, 384, v1")
        e(f"v_lshl_add_u32 v{VOFF}, v2, 4, v{VOFF}")
        tb = 4 * self.tpi
        e(f"s_mul_i32 s6, s{S_WAVE}, {8 * tb}")
        e(f"s_add_u32 s6, s6, {L_SC}")
        e(f"v_mul_u32_u24 v{VSC}, {tb}, v1")
        e(f"v_add_u32 v{VSC}, s6, v{VSC}")
        e(f"v_lshlrev_b32 v{VQ}, 4, v2")
        e(f"s_mul_i32 s6, s{S_WAVE}, {8 * 768}")
        e(f"s_add_u32 s6, s6, {L_DUMP}")
        e(f"v_mul_u32_u24 v{VDUMP}, 768, v1")
        e(f"v_lshl_add_u32 v{VDUMP}, v2, 5, v{VDUMP}")
        e(f"v_add_u32 v{VDUMP}, s6, v{VDUMP}")
        e(f"s_mul_i32 s{S_OFF}, s{S_X}, {HEAD}")
        e(f"s_mul_i32 s6, s{S_C}, {NS}")
        e(f"s_add_u32 s6, s6, s{S_WAVE}")
        e(f"s_mul_i32 s6, s6, {6144 * self.gran}")
        e(f"s_add_u32 s{S_OFF}, s{S_OFF}, s6")
        e(f"s_mul_i32 s43, s{S_X}, {self.rot}")
        e("s_and_b32 s43, s43, 7")
        e(f"s_mul_i32 s6, s43, {4 * self.step_bytes}")
        e(f"s_add_u32 s{S_OFF}, s{S_OFF}, s6")
        e("s_add_u32 s43, s43, 1")
        e(f"s_lshl_b32 s7, s{S_WAVE}, 2")
        e(f"v_mov_b32 v7, s7")
        e(f"v_mov_b32 v{VIT}, 0")
        e("s_waitcnt lgkmcnt(0)")
        self.srd(8, P_K, KV_BYTES)
        e("s_barrier")

        def issue(p, boundary=False):
            r = RING + (p % R) * 4
            e(f"buffer_load_dwordx4 v[{r}:{r + 3}], v{VOFF}, s[8:11], s{S_OFF} offen offset:{offs[p % 6]} nt")
            if p % 6 == 5:
                if boundary:
                    e(f"s_add_u32 s{S_OFF}, s{S_OFF}, s{S_DELTA}")
                    e(f"s_mov_b32 s8, s{S_B0}")
                    e(f"s_mov_b32 s9, s{S_B1}")
                else:
                    inc = 6144 if (p // 6 + 1) % self.gran else self.big_step
                    e(f"s_add_u32 s{S_OFF}, s{S_OFF}, {inc}")

        for p in range(self.s_early):
            issue(p)
        assert not (self.warm and self.s_early)
        e(f"s_mov_b32 s{S_R}, 0")
        e(f"s_mov_b32 s53, {len(self.caps) // 2 if self.caps else 0}")
        e(f"s_mov_b32 s{S_B0}, s{P_K}")
        e(f"s_mov_b32 s{S_B1}, s{P_K + 1}")
        e(f"s_mov_b32 s56, {self.big_step + 8 * HEAD}")

        self.c("addresses of the final publish")
        e(f"v_and_b32 v{VT}, 1, v1")
        e(f"v_bfe_u32 v{VO}, v0, 4, 1")
        e(f"v_cmp_eq_u32 vcc, 1, v{VT}")
        e(f"v_lshrrev_b32 v{VT + 1}, 5, v0")
        e(f"v_lshlrev_b32 v{VPR}, 4, v0")
        e(f"v_cndmask_b32 v{VO}, v{VO}, 2, vcc")
        e(f"v_lshlrev_b32 v{VO}, 13, v{VO}")
        e(f"v_lshl_add_u32 v{VO}, v{VT + 1}, 7, v{VO}")
        e(f"v_lshl_add_u32 v{VO}, v2, 4, v{VO}")
        e(f"s_mul_i32 s57, s{S_X}, {4 * 24576}")
        e(f"s_lshl_b32 s7, s{S_C}, 8")
        e("s_add_u32 s57, s57, s7")
        e(f"s_add_u32 s57, s57, {WS_OP + 3 * 24576}")
        self.srd(12, P_WS, WS_SIZE)
        if self.caps:
            e(f"v_lshlrev_b32 v{VL4}, 2, v0")
            e(f"v_lshlrev_b32 v{VPA}, 24, v0")
            e(f"s_mul_i32 s59, s{S_X}, {PR_STRIDE}")
            e(f"s_add_u32 s59, s59, {WS_PR}")
            e(f"s_lshl_b32 s6, s{S_C}, 1")
            e(f"s_add_u32 s6, s6, s{S_WAVE}")
            e("s_lshl_b32 s6, s6, 2")
            e("s_add_u32 s58, s59, s6")
            if self.xg:
                e("s_cmp_eq_u32 s6, 252")
                e(f"s_cselect_b32 s58, {WS_SIZE}, s58")
            if self.prof:
                e("s_mov_b32 s92, 0")
        self.wait_lds(L_FLN, 1, VT, sleep=1)
        self.read_tag(VT)
        self.make_tags(TG)
        e(f"s_add_u32 s55, s{S_TAG}, 0x1000")

        if self.go_at is not None:
            self.wait_lds(L_FLG, 1, VT, sleep=1)
        if self.warm:
            e("s_waitcnt vmcnt(0)")
        for p in range(self.s_early, L):
            if p >= self.cap0:
                e(f"s_waitcnt vmcnt({self.cap0 - 1})")
            issue(p)
        self.stamp(1)

        e("L_kround:")
        e(f"s_add_u32 s50, s{S_R}, 1")
        self.wait_lds(L_FLQ, "s50", VT, sleep=0)
        for s in range(3):
            e(f"ds_read_b128 v[{Q + 4 * s}:{Q + 4 * s + 3}], v{VQ} offset:{L_Q + 128 * s}")
        e(f"v_add_u32 v{VQ}, 384, v{VQ}")
        if self.prof:
            e(f"s_cmp_lg_u32 s{S_R}, 0")
            e("s_cbranch_scc1 L_nostamp2")
            self.stamp(2)
            e("L_nostamp2:")
        e(f"s_mov_b32 s{S_IT}, {self.ipr}")
        e("s_waitcnt lgkmcnt(0)")
        e("L_kloop:")
        e(f"s_cmp_eq_u32 s{S_R}, 3")
        e(f"s_cselect_b32 s50, {hex((self.big_step - 24 * HEAD) & 0xffffffff)}, s56")
        e(f"s_cselect_b32 s51, 1, 0")
        e(f"s_cmp_eq_u32 s{S_IT}, 1")
        e(f"s_cselect_b32 s{S_DELTA}, s50, {self.big_step}")
        e(f"s_cmp_eq_u32 s{S_IT}, s43")
        e(f"s_cselect_b32 s42, {HEAD}, 0")
        e(f"s_sub_u32 s{S_DELTA}, s{S_DELTA}, s42")
        e(f"s_cmp_eq_u32 s{S_IT}, s51")
        e(f"s_cselect_b32 s{S_B0}, s{P_V}, s{S_B0}")
        e(f"s_cselect_b32 s{S_B1}, s{P_V + 1}, s{S_B1}")
        nlev = len(self.caps) if self.caps else 0
        mid = nlev // 2

        def ctl_issue():
            e(f"v_add_u32 v{VPB}, s{S_TAG}, v{VIT}")
            e(f"buffer_store_dword v{VPB}, v{VPA}, s[12:15], s58 offen")
            e(f"buffer_load_dword v{VSM}, v{VL4}, s[12:15], s59 offen sc1")

        def ctl_ops():
            ops = [f"v_readlane_b32 s93, v{VSM}, 63"] if self.xg else []
            ops += [f"v_sub_u32 v{VSM}, v{VSM}, v{VPB}",
                   f"v_add_u32 v{VPB}, 8, v{VSM}",
                   f"v_cmp_gt_u32 vcc, 17, v{VPB}",
                   f"v_lshl_add_u32 v{VSM}, v{VSM}, 1, 1",
                   f"v_cndmask_b32 v{VSM}, 0, v{VSM}, vcc"]
            ops += [f"v_add_u32_dpp v{VSM}, v{VSM}, v{VSM} {pat}" for pat in (X1, X2, HM, RM)]
            ops += [f"v_readlane_b32 s{88 + k}, v{VSM}, {16 * k}" for k in range(4)]
            return ops

        def wait_count(cap, j, ctl):
            return cap - 1 + (2 if ctl and 0 < j <= cap else 0)

        def pick_level():
            if not self.caps:
                return
            e("s_add_u32 s88, s88, s89")
            e("s_add_u32 s90, s90, s91")
            e("s_add_u32 s88, s88, s90")
            if self.xg:
                e("s_sub_u32 s93, s93, s55")
                e(f"s_mul_i32 s89, s93, {2 * self.xg}")
                e(f"s_sub_u32 s89, s89, {7 * self.xg}")
                e("s_cmp_lt_u32 s93, 8")
                e("s_cselect_b32 s89, s89, 0")
                e("s_add_u32 s88, s88, s89")
            e(f"s_mov_b32 s53, {mid}")
            for k in range(1, mid + 1):
                e(f"s_cmp_gt_i32 s88, {self.thr[k - 1]}")
                e(f"s_cselect_b32 s53, {mid + k}, s53")
                e(f"s_cmp_lt_i32 s88, {-self.thr[k - 1]}")
                e(f"s_cselect_b32 s53, {mid - k}, s53")
            if self.prof:
                e("s_mul_i32 s7, s53, 6")
                e("s_lshl_b32 s7, 1, s7")
                e("s_add_u32 s92, s92, s7")

        def kbody(cap):
            pend = []
            pos = [0]
            side = ctl_ops()
            assert cap + 1 <= 17

            def main(s):
                e(s)
                pos[0] += 1
                if pend and pend[0][0] <= pos[0]:
                    _, ins, gap = pend.pop(0)
                    e(ins)
                    pos[0] += 1
                    if pend:
                        pend[0] = (max(pend[0][0], pos[0] + gap), pend[0][1], pend[0][2])

            for j in range(R):
                tile, jj = divmod(j, 6)
                kg, s = divmod(jj, 3)
                a = A + 2 * (tile % 2) + kg
                main(f"s_waitcnt vmcnt({wait_count(cap, j, nlev)})")
                n0 = len(self.o)
                issue(j + L, boundary=(j == cand[0]))
                if nlev and j == 0:
                    ctl_issue()
                if nlev and j >= 17 and side:
                    e(side.pop(0))
                pos[0] += len(self.o) - n0
                if s == 0:
                    main(f"v_mov_b32 v{a}, 0")
                r = RING + j * 4
                for k in range(4):
                    main(f"v_dot2c_f32_bf16 v{a}, v{r + k}, v{Q + 4 * s + k}")
                    if nlev and j >= 17 and k == 2 and side:
                        e(side.pop(0))
                        pos[0] += 1
                if s == 2:
                    first = pos[0] + 3
                    pend.append((first, f"v_add_f32_dpp v{a}, v{a}, v{a} {X1}", 2))
                    pend.append((0, f"v_add_f32_dpp v{a}, v{a}, v{a} {X2}", 2))
                    pend.append((0, f"v_add_f32_dpp v{a}, v{a}, v{a} {HM}", 0))
                    if kg == 1:
                        pend.append((0, f"v_cvt_pk_bf16_f32 v{SC + tile}, v{a - 1}, v{a}", 0))
            while pend:
                main("s_nop 0")

        def dispatch(name, fn):
            if not self.caps:
                fn(self.cap)
                return
            others = [k for k in range(nlev) if k != mid]
            e(f"s_cmp_eq_u32 s53, {mid}")
            e(f"s_cbranch_scc1 L_{name}{mid}")
            for code in others[1:]:
                e(f"s_cmp_eq_u32 s53, {code}")
                e(f"s_cbranch_scc1 L_{name}{code}")
            for code in others + [mid]:
                e(f"L_{name}{code}:")
                fn(self.caps[code])
                if code != mid:
                    e(f"s_branch L_{name}_end")
            e(f"L_{name}_end:")

        dispatch("kb", kbody)
        pick_level()
        for q4 in range(self.tpi // 4):
            e(f"ds_write_b128 v{VSC}, v[{SC + 4 * q4}:{SC + 4 * q4 + 3}] offset:{16 * q4}")
        e(f"v_add_u32 v{VIT}, 1, v{VIT}")
        e(f"v_add_u32 v{VSC}, {NS * 8 * tb}, v{VSC}")
        e(f"ds_write_b32 v7, v{VIT} offset:{L_FIT}")
        e(f"s_sub_u32 s{S_IT}, s{S_IT}, 1")
        e(f"s_cmp_lg_u32 s{S_IT}, 0")
        e("s_cbranch_scc1 L_kloop")
        self.stamp_round(S_R, 3)
        e(f"s_add_u32 s{S_R}, s{S_R}, 1")
        e(f"v_mov_b32 v{VT}, s{S_R}")
        e(f"ds_write_b32 v7, v{VT} offset:{L_FLS}")
        e(f"s_cmp_lt_u32 s{S_R}, 4")
        e("s_cbranch_scc1 L_kround")

        e(f"v_subrev_u32 v{VSC}, 8192, v{VSC}")
        self.wait_lds(L_FLP, 1, VT, sleep=0)
        e(f"ds_read_b32 v{A}, v{VT + 4} offset:{L_LOC}")
        for q4 in range(self.tpi // 4):
            e(f"ds_read_b128 v[{PN + 4 * q4}:{PN + 4 * q4 + 3}], v{VSC} offset:{16 * q4}")
        e(f"v_add_u32 v{VSC}, {NS * 8 * tb}, v{VSC}")
        e(f"s_mov_b32 s{S_R}, 0")

        def vbody(cap, last=False, ctl=True):
            ctl = ctl and nlev and not last
            side = ctl_ops() if ctl else []
            e("s_waitcnt lgkmcnt(0)")
            for j in range(R):
                tile, jj = divmod(j, 6)
                kg, s = divmod(jj, 3)
                if last and j + L >= R:
                    e(f"s_waitcnt vmcnt({R - 1 - j})")
                else:
                    e(f"s_waitcnt vmcnt({wait_count(cap, j, ctl)})")
                    issue(j + L, boundary=(j == cand[0]))
                if ctl and j == 0:
                    ctl_issue()
                if j >= 17 and side:
                    e(side.pop(0))
                if jj == 0:
                    e(f"v_and_b32 v{PX}, 0xffff, v{PN + tile}")
                    e(f"v_lshlrev_b32 v{PX + 1}, 16, v{PN + tile}")
                    e(f"v_lshrrev_b32 v{PX + 2}, 16, v{PN + tile}")
                    e(f"v_and_b32 v{PX + 3}, 0xffff0000, v{PN + tile}")
                    if tile == self.tpi - 1 and not last:
                        e(f"v_add_u32 v{VIT}, 1, v{VIT}")
                        e(f"ds_write_b32 v7, v{VIT} offset:{L_FIT}")
                        for q4 in range(self.tpi // 4):
                            e(f"ds_read_b128 v[{PN + 4 * q4}:{PN + 4 * q4 + 3}], v{VSC} offset:{16 * q4}")
                        e(f"v_add_u32 v{VSC}, {NS * 8 * tb}, v{VSC}")
                self.gemv_row(RING + 4 * j, PX + 2 * kg, Q + 8 * s)
                if j >= 17 and side:
                    e(side.pop(0))
            assert not side

        def dump():
            e("s_nop 2")
            for s in range(3):
                for hlf in range(2):
                    r = Q + 8 * s + 4 * hlf
                    e(f"ds_write_b128 v{VDUMP}, v[{r}:{r + 3}] offset:{256 * s + 16 * hlf}")
            e(f"v_add_u32 v{VDUMP}, {self.dump_bytes}, v{VDUMP}")
            e(f"s_add_u32 s50, s{S_R}, 5")
            e(f"v_mov_b32 v{VT}, s50")
            e(f"ds_write_b32 v7, v{VT} offset:{L_FLS}")

        e("L_vround:")
        e(f"s_add_u32 s50, s{S_R}, 2")
        e("s_min_u32 s50, s50, 4")
        self.wait_lds(L_FLP, "s50", VT, sleep=0)
        e(f"v_readfirstlane_b32 s54, v{A}")
        for k in range(24):
            e(f"v_mov_b32 v{Q + k}, 0")
        self.c("one streamer makes the last head's slots resident, with tags that cannot match")
        e(f"s_sub_u32 s50, 3, s{S_R}")
        e(f"s_or_b32 s50, s50, s{S_WAVE}")
        e("s_cmp_ge_u32 s50, s54")
        e("s_cbranch_scc1 L_notouch")
        for k in range(4):
            e(f"v_not_b32 v{PX + k}, v{TG + k}")
        e("s_mov_b32 exec_lo, 0xffffff")
        e("s_mov_b32 exec_hi, 0xffffff")
        e(f"buffer_store_dwordx4 v[{PX}:{PX + 3}], v{VO}, s[12:15], s57 offen")
        e("s_mov_b64 exec, -1")
        e("L_notouch:")
        e(f"s_cmp_eq_u32 s{S_R}, 3")
        e(f"s_cselect_b32 s52, {self.tail_iters}, 0")
        e(f"s_mov_b32 s{S_IT}, {self.ipr}")
        e("L_vloop:")
        e(f"s_cmp_eq_u32 s{S_IT}, 1")
        e(f"s_cselect_b32 s{S_DELTA}, s56, {self.big_step}")
        e(f"s_cmp_eq_u32 s{S_IT}, s43")
        e(f"s_cselect_b32 s42, {HEAD}, 0")
        e(f"s_sub_u32 s{S_DELTA}, s{S_DELTA}, s42")
        dispatch("vb", vbody)
        pick_level()
        e(f"s_sub_u32 s{S_IT}, s{S_IT}, 1")
        e(f"s_cmp_lg_u32 s{S_IT}, s52")
        e("s_cbranch_scc1 L_vloop")
        e(f"s_cmp_eq_u32 s{S_R}, 3")
        e("s_cbranch_scc1 L_vtail")
        self.stamp_round(S_R, 7)
        dump()
        e(f"s_add_u32 s{S_R}, s{S_R}, 1")
        e("s_branch L_vround")
        e("L_vtail:")
        if self.tail_iters > 1:
            e("L_vtloop:")
            e(f"s_cmp_eq_u32 s{S_IT}, s43")
            e(f"s_cselect_b32 s42, {HEAD}, 0")
            e(f"s_sub_u32 s{S_DELTA}, {self.big_step}, s42")
            vbody(self.cap_tail, ctl=False)
            e(f"s_sub_u32 s{S_IT}, s{S_IT}, 1")
            e(f"s_cmp_lg_u32 s{S_IT}, 1")
            e("s_cbranch_scc1 L_vtloop")
        vbody(self.cap_tail, last=True)
        self.stamp(10)
        self.c("last head: reduce over lane groups, combine the two streamers, publish")
        e(f"v_mov_b32 v{VIT}, 64")
        e(f"ds_write_b32 v7, v{VIT} offset:{L_FIT}")
        e(f"s_xor_b32 s50, s{S_WAVE}, 1")
        for s_ in range(3):
            for k in range(4):
                e(f"v_permlane32_swap_b32 v{Q + 8 * s_ + k}, v{Q + 8 * s_ + k + 4}")
        for s_ in range(3):
            for k in range(4):
                e(f"v_add_f32 v{Q + 8 * s_ + k}, v{Q + 8 * s_ + k}, v{Q + 8 * s_ + k + 4}")
        e("s_lshl_b32 s51, s50, 10")
        e(f"v_add_u32 v{VT + 2}, s51, v{VPR}")
        e(f"v_xor_b32 v{VT + 1}, 4, v7")
        for k in range(4):
            e(f"v_mov_b32 v{Q + 20 + k}, v{Q + 16 + k}")
        e(f"ds_read_b32 v{VT}, v{VT + 1} offset:{L_PD}")
        e(f"ds_read_b128 v[{PN}:{PN + 3}], v{VT + 2} offset:{L_PAIR}")
        for k in range(4):
            e(f"v_permlane16_swap_b32 v{Q + k}, v{Q + 8 + k}")
        for k in range(4):
            e(f"v_permlane16_swap_b32 v{Q + 16 + k}, v{Q + 20 + k}")
        for k in range(4):
            e(f"v_add_f32 v{Q + k}, v{Q + k}, v{Q + 8 + k}")
        for k in range(4):
            e(f"v_add_f32 v{Q + 16 + k}, v{Q + 16 + k}, v{Q + 20 + k}")
        for k in range(4):
            e(f"v_add_f32_dpp v{PX + k}, v{Q + k}, v{Q + k} row_ror:8 row_mask:0xf bank_mask:0x3")
        for k in range(4):
            e(f"v_add_f32_dpp v{PX + k}, v{Q + 16 + k}, v{Q + 16 + k} row_ror:8 row_mask:0xf bank_mask:0xc")
        e("s_waitcnt lgkmcnt(0)")
        e(f"v_readfirstlane_b32 s63, v{VT}")
        e("s_cmp_lg_u32 s63, 0")
        e("s_cbranch_scc1 L_spub")
        e(f"s_lshl_b32 s51, s{S_WAVE}, 10")
        e(f"v_add_u32 v{VT + 3}, s51, v{VPR}")
        e(f"v_mov_b32 v{VT}, 1")
        e(f"v_mov_b32 v{VT + 4}, 0")
        e(f"ds_write_b128 v{VT + 3}, v[{PX}:{PX + 3}] offset:{L_PAIR}")
        e(f"ds_write_b32 v7, v{VT} offset:{L_PD}")
        e("s_mov_b64 exec, 1")
        e(f"ds_add_rtn_u32 v{VT + 1}, v{VT + 4}, v{VT} offset:{L_PCN}")
        e("s_mov_b64 exec, -1")
        e(f"ds_read_b128 v[{PN}:{PN + 3}], v{VT + 2} offset:{L_PAIR}")
        e("s_waitcnt lgkmcnt(0)")
        e(f"v_readfirstlane_b32 s63, v{VT + 1}")
        e("s_cmp_eq_u32 s63, 0")
        e("s_cbranch_scc1 L_sdone")
        e("L_spub:")
        for k in range(4):
            e(f"v_add_f32 v{PX + k}, v{PX + k}, v{PN + k}")
        self.embed(PX, TG)
        e("s_mov_b32 exec_lo, 0xffffff")
        e("s_mov_b32 exec_hi, 0xffffff")
        e("s_cmp_eq_u32 s54, 0")
        e("s_cbranch_scc1 L_spub_far")
        e(f"buffer_store_dwordx4 v[{PX}:{PX + 3}], v{VO}, s[12:15], s57 offen")
        e("s_branch L_sdone")
        e("L_spub_far:")
        e(f"buffer_store_dwordx4 v[{PX}:{PX + 3}], v{VO}, s[12:15], s57 offen sc1")
        e("L_sdone:")
        self.stamp(11)
        if self.prof:
            e("s_mov_b32 s88, s92")
        self.prof_store(13)
        e("s_endpgm")
        return RING + 4 * R

    def helperA(self):
        e = self.e
        NS = self.NS
        S_RB, S_CB = 40, 41
        SX, SW, SWS, SJ = 8, 12, 44, 48
        SM = 84
        VW, VT, VQL = 3, 4, 9
        T, TGL, VP, VL16 = 10, 14, 18, 19
        XA, VW2, VXS, XC, F, XOP = 20, 25, 26, 28, 52, 68
        ACC, RES, RING, GQ = 84, 92, 96, 192
        VG0, VG1 = 66, 67
        e("L_helperA:")
        e("s_setprio 3")
        e(f"v_mul_u32_u24 v{VW}, 0x18000, v1")
        e(f"v_lshl_add_u32 v{VW}, v2, 4, v{VW}")
        e(f"v_lshlrev_b32 v{VL16}, 4, v0")
        e(f"v_lshlrev_b32 v{T}, 2, v0")
        e(f"s_mul_i32 s42, s{S_RB}, {64 * 12288}")
        e(f"s_mul_i32 s43, s{S_X}, 384")
        e("s_add_u32 s42, s42, s43")
        e(f"s_lshl_b32 s6, s{S_CB}, 7")
        e("s_add_u32 s42, s42, s6")
        e("s_waitcnt lgkmcnt(0)")
        self.srd(SX, P_X, 1280)
        self.srd(SW, P_WQ, 640 * 12288)
        e(f"buffer_load_dwordx4 v[{XA}:{XA + 3}], v{VL16}, s[{SX}:{SX + 3}], 0 offen")
        e(f"buffer_load_dword v{XA + 4}, v{T}, s[{SX}:{SX + 3}], 0 offen offset:1024")
        for i in range(8):
            e(f"buffer_load_dwordx4 v[{GQ + 4 * i}:{GQ + 4 * i + 3}], v{VW}, s[{SW}:{SW + 3}], s42 offen nt")
            if i < 7:
                e("s_add_u32 s42, s42, 12288")
        e(f"s_mov_b32 s6, {WS_EPOCH}")
        e(f"s_load_dword s{S_TAG}, s[{P_WS}:{P_WS + 1}], s6")
        e("s_barrier")
        self.srd(SWS, P_WS, WS_SIZE)
        self.c("second job: half of the rows of one 64-column block of wq (heads 1..3), gate or up")
        e(f"s_lshr_b32 s52, s{S_C}, 1")
        e(f"s_and_b32 s53, s{S_C}, 1")
        e("s_mul_i32 s54, s52, 43691")
        e("s_lshr_b32 s54, s54, 17")
        e("s_mul_i32 s55, s54, 3")
        e("s_sub_u32 s55, s52, s55")
        e("s_cmp_eq_u32 s54, 3")
        e(f"s_cselect_b32 s{SJ}, s{P_G}, s{P_U}")
        e(f"s_cselect_b32 s{SJ + 1}, s{P_G + 1}, s{P_U + 1}")
        e("s_add_u32 s6, s54, 1")
        e("s_mul_i32 s6, s6, 3072")
        e("s_movk_i32 s56, 0xc00")
        e("s_cmp_lt_u32 s54, 3")
        e(f"s_cselect_b32 s{SJ}, s{P_WQ}, s{SJ}")
        e(f"s_cselect_b32 s{SJ + 1}, s{P_WQ + 1}, s{SJ + 1}")
        e("s_cselect_b32 s56, 12288, s56")
        e("s_cselect_b32 s6, s6, 0")
        e(f"s_mul_i32 s{SJ + 2}, s56, 640")
        e("s_cmp_lt_u32 s54, 5")
        e(f"s_cselect_b32 s{SJ + 2}, s{SJ + 2}, 0")
        e(f"s_mov_b32 s{SJ + 3}, 0x20000")
        e("s_add_u32 s42, s43, s6")
        e("s_lshl_b32 s6, s55, 7")
        e("s_add_u32 s42, s42, s6")
        e("s_mul_i32 s6, s56, 320")
        e("s_mul_i32 s6, s6, s53")
        e("s_add_u32 s42, s42, s6")
        e("s_mul_i32 s57, s56, 57")
        e("s_lshl_b32 s6, s56, 3")
        e(f"v_mul_u32_u24 v{VW2}, s6, v1")
        e(f"v_lshl_add_u32 v{VW2}, v2, 4, v{VW2}")
        e(f"v_lshrrev_b32 v{VP}, 4, v0")
        e(f"v_lshlrev_b32 v{VP}, 7, v{VP}")
        e(f"v_lshl_add_u32 v{VP}, v2, 4, v{VP}")
        e(f"v_and_b32 v{T + 1}, 3, v1")
        e(f"v_lshlrev_b32 v{VQL}, 4, v2")
        e(f"v_lshl_add_u32 v{VQL}, v{T + 1}, 2, v{VQL}")
        e(f"v_and_b32 v{T + 1}, 31, v0")
        e(f"v_lshlrev_b32 v{T + 1}, 4, v{T + 1}")
        e(f"v_lshrrev_b32 v{T + 2}, 5, v0")
        e(f"v_mul_u32_u24 v{VG0}, 1536, v{T + 2}")
        e(f"v_add_u32 v{VG0}, v{VG0}, v{T + 1}")
        e(f"v_mul_u32_u24 v{VG1}, 7680, v{T + 2}")
        e(f"v_add_u32 v{VG1}, v{VG1}, v{T + 1}")
        e(f"s_lshl_b32 s6, s{S_RB}, 7")
        e(f"v_lshl_add_u32 v{VXS}, v1, 4, s6")
        e("s_mul_i32 s6, s53, 640")
        e(f"v_lshl_add_u32 v{VXS + 1}, v1, 4, s6")
        for k in range(8):
            e(f"v_mov_b32 v{ACC + k}, 0")

        def job_load(i):
            r = RING + 4 * (i % 24)
            e(f"buffer_load_dwordx4 v[{r}:{r + 3}], v{VW2}, s[{SJ}:{SJ + 3}], s42 offen nt")
            if i < 39:
                e(f"s_add_u32 s42, s42, s{57 if i % 8 == 7 else 56}")
            if i == self.go_at:
                e(f"v_mov_b32 v{VT}, {L_FLG}")
                e(f"v_mov_b32 v{VT + 1}, 1")
                e(f"ds_write_b32 v{VT}, v{VT + 1}")

        ae = self.a_early
        e("s_waitcnt vmcnt(8)")
        self.stamp(1)
        for i in range(ae):
            job_load(i)
        self.layernorm(XA, F)
        e(f"ds_write_b128 v{VL16}, v[{XA}:{XA + 3}] offset:{L_XN}")
        e(f"ds_write_b32 v{T}, v{XA + 4} offset:{L_XN + 1024}")
        e(f"ds_read_b128 v[{XC}:{XC + 3}], v{VXS} offset:{L_XN}")
        for u in range(5):
            e(f"ds_read_b128 v[{XC + 4 + 4 * u}:{XC + 7 + 4 * u}], v{VXS + 1} offset:{L_XN + 128 * u}")
        e("s_waitcnt lgkmcnt(0)")
        e(f"s_add_u32 s{S_TAG}, s{S_TAG}, {hex(NONCE_STEP)}")
        self.expand(XC, XOP)
        self.tag_regs(RES)
        for i in range(8):
            e(f"s_waitcnt vmcnt({7 - i + ae})")
            self.gemv_row(GQ + 4 * i, XOP + 2 * i, ACC)
        self.reduce_g2(ACC, RES)
        e(f"s_mul_i32 s58, s{S_X}, 15360")
        e(f"s_lshl_b32 s6, s{S_C}, 9")
        e("s_add_u32 s6, s6, s58")
        e(f"s_cmp_lt_u32 s{S_C}, 30")
        e(f"s_cselect_b32 s6, s6, {WS_SIZE}")
        self.exec_tagged()
        e(f"buffer_store_dwordx4 v[{RES}:{RES + 3}], v{VP}, s[{SWS}:{SWS + 3}], s6 offen sc1")
        e("s_mov_b64 exec, -1")
        self.stamp(2)
        cap = self.capA
        assert ae <= cap <= 23

        def job_consume(j):
            if j % 8 == 0:
                self.expand(XC + 4 + 4 * (j // 8), XOP)
            self.gemv_row(RING + 4 * (j % 24), XOP + 2 * (j % 8), ACC)

        for i in range(ae, 40):
            if i >= cap:
                e(f"s_waitcnt vmcnt({cap - 1})")
            job_load(i)
            if i == max(ae, cap - 1):
                self.set_lds(L_TAG, f"s{S_TAG}", VT)
                self.set_lds(L_FLN, 1, VT)
                for k in range(8):
                    e(f"v_mov_b32 v{ACC + k}, 0")
            if i >= cap:
                job_consume(i - cap)
        self.stamp(3)

        def rest_of_job():
            for j in range(40 - cap, 40):
                e(f"s_waitcnt vmcnt({39 - j + 15})")
                job_consume(j)

        def finish_q(regs, lds0):
            for r in regs:
                e(f"v_mov_b32 v{r + 1}, v{r}")
                e(f"v_mov_b32 v{r + 3}, v{r + 2}")
            e("s_nop 0")
            for r in regs:
                e(f"v_permlane32_swap_b32 v{r}, v{r + 1}")
                e(f"v_permlane32_swap_b32 v{r + 2}, v{r + 3}")
            for r in regs:
                e(f"v_add_f32 v{r}, v{r}, v{r + 1}")
                e(f"v_add_f32 v{r + 2}, v{r + 2}, v{r + 3}")
            for i, r in enumerate(regs):
                e(f"v_cvt_pk_bf16_f32 v{r}, v{r}, v{r + 2}")
                e(f"ds_write_b32 v{VQL}, v{r} offset:{lds0 + 128 * i}")

        for k in range(5):
            e(f"s_add_u32 s{SM + k}, s58, {3072 * k}")
        loads = [f"buffer_load_dwordx4 v[{GQ + 12 * k + 4 * cb}:{GQ + 12 * k + 4 * cb + 3}], v{VG0}, s[{SWS}:{SWS + 3}], "
                 f"s{SM + k} offen offset:{512 * cb} sc1" for k in range(5) for cb in range(3)]
        self.gather_tagged(loads, GQ, 15, VT, sleep=4, between=rest_of_job)
        self.stamp(4)
        for k in range(1, 5):
            for j in range(0, 12, 2):
                e(f"v_add_f32 v{GQ + j}, v{GQ + j}, v{GQ + 12 * k + j}")
        finish_q([GQ, GQ + 4, GQ + 8], L_Q)
        self.set_lds(L_FLQ, 1, VT)
        self.stamp(5)
        e("s_setprio 0")
        self.reduce_g2(ACC, RES)
        e("s_mul_i32 s6, s53, 7680")
        e("s_lshl_b32 s7, s52, 9")
        e("s_add_u32 s6, s6, s7")
        e("s_add_u32 s6, s6, s58")
        e(f"s_add_u32 s6, s6, {WS_PA1}")
        e(f"s_cmp_lt_u32 s{S_C}, 30")
        e(f"s_cselect_b32 s6, s6, {WS_SIZE}")
        self.exec_tagged()
        e(f"buffer_store_dwordx4 v[{RES}:{RES + 3}], v{VP}, s[{SWS}:{SWS + 3}], s6 offen sc1")
        e("s_mov_b64 exec, -1")
        self.wait_lds(L_FIT, self.it_q, VT, n=NS, sleep=8)
        e(f"s_add_u32 s6, s58, {WS_PA1}")
        e("s_add_u32 s7, s6, 4096")
        loads = [f"buffer_load_dwordx4 v[{GQ + 4 * j}:{GQ + 4 * j + 3}], v{VG1}, s[{SWS}:{SWS + 3}], "
                 f"s{6 + j // 8} offen offset:{512 * (j % 8)} sc1" for j in range(9)]
        self.gather_tagged(loads, GQ, 9, VT, sleep=32)
        finish_q([GQ + 4 * j for j in range(9)], L_Q + 384)
        self.set_lds(L_FLQ, 4, VT)
        self.stamp(6)
        self.make_tags(TGL)
        SCR, ST, OPR = 128, 160, 180

        M, LS, VS32 = 20, 21, 22
        U = 24

        def unpack(r):
            for k in range(8):
                e(f"v_lshlrev_b32 v{U + 2 * k}, 16, v{SCR + 8 * r + k}")
                e(f"v_and_b32 v{U + 2 * k + 1}, 0xffff0000, v{SCR + 8 * r + k}")

        def local_stats(r):
            self.wait_lds(L_FLS, r + 1, VT, n=NS, sleep=8)
            e(f"v_lshlrev_b32 v{VS32}, 5, v0")
            b = SCR + 8 * r
            e(f"ds_read_b128 v[{b}:{b + 3}], v{VS32} offset:{L_SC + 2048 * r}")
            e(f"ds_read_b128 v[{b + 4}:{b + 7}], v{VS32} offset:{L_SC + 2048 * r + 16}")
            e("s_waitcnt lgkmcnt(0)")
            unpack(r)
            for k in range(16):
                e(f"v_mul_f32 v{U + k}, {hex(SCALE)}, v{U + k}")
            for k in range(8):
                e(f"v_cvt_pk_bf16_f32 v{b + k}, v{U + 2 * k}, v{U + 2 * k + 1}")
            unpack(r)
            e(f"v_max_f32 v{M}, v{U}, v{U + 1}")
            for k in range(2, 16, 2):
                e(f"v_max3_f32 v{M}, v{M}, v{U + k}, v{U + k + 1}")
            self.allreduce("v_max_f32", M, T)
            for k in range(16):
                e(f"v_sub_f32 v{U + k}, v{U + k}, v{M}")
            for k in range(16):
                e(f"v_mul_f32 v{U + k}, {hex(LOG2E)}, v{U + k}")
            for k in range(16):
                e(f"v_exp_f32 v{U + k}, v{U + k}")
            e("s_nop 0")
            e(f"v_add_f32 v{LS}, v{U}, v{U + 1}")
            for k in range(2, 16):
                e(f"v_add_f32 v{LS}, v{LS}, v{U + k}")
            self.allreduce("v_add_f32", LS, T)
            e(f"v_cmp_eq_u32 vcc, {r % 3}, v0")
            e("s_nop 1")
            e(f"v_cndmask_b32 v{ST}, v{ST}, v{M}, vcc")
            e(f"v_cndmask_b32 v{ST + 2}, v{ST + 2}, v{LS}, vcc")

        def publish_stats(base, shift, lanes):
            self.tag_regs(ST)
            e(f"s_lshl_b32 s6, s{S_X}, {shift + 5}")
            e(f"s_lshl_b32 s7, s{S_C}, {shift}")
            e("s_add_u32 s6, s6, s7")
            e(f"s_add_u32 s6, s6, {base}")
            e(f"s_mov_b64 exec, {(1 << lanes) - 1}")
            e(f"buffer_store_dwordx4 v[{ST}:{ST + 3}], v{VL16}, s[{SWS}:{SWS + 3}], s6 offen sc1")
            e("s_mov_b64 exec, -1")
            e("s_nop 1")

        def gather_stats(base, shift, n):
            e(f"v_and_b32 v{T + 1}, 31, v0")
            e(f"v_lshlrev_b32 v{T + 1}, {shift}, v{T + 1}")
            e(f"s_lshl_b32 s6, s{S_X}, {shift + 5}")
            e(f"s_add_u32 s6, s6, {base}")
            self.gather_tagged([f"buffer_load_dwordx4 v[{ST + 4 + 4 * k}:{ST + 7 + 4 * k}], v{T + 1}, s[{SWS}:{SWS + 3}], "
                                f"s6 offen offset:{16 * k} sc1" for k in range(n)], ST + 4, n, VT, sleep=32)

        def finalize_p(r):
            G = ST + 4 + 4 * (r % 3)
            e(f"v_mov_b32 v{M}, v{G}")
            self.allreduce("v_max_f32", M, T)
            e(f"v_sub_f32 v{G}, v{G}, v{M}")
            e(f"v_mul_f32 v{G}, {hex(LOG2E)}, v{G}")
            e(f"v_exp_f32 v{G}, v{G}")
            e("s_nop 0")
            e(f"v_mul_f32 v{LS}, v{G}, v{G + 2}")
            self.allreduce("v_add_f32", LS, T)
            e(f"v_mul_f32 v{LS}, 0.5, v{LS}")
            e(f"v_rcp_f32 v{LS}, v{LS}")
            unpack(r)
            for k in range(16):
                e(f"v_sub_f32 v{U + k}, v{U + k}, v{M}")
            for k in range(16):
                e(f"v_mul_f32 v{U + k}, {hex(LOG2E)}, v{U + k}")
            for k in range(16):
                e(f"v_exp_f32 v{U + k}, v{U + k}")
            e("s_nop 0")
            for k in range(16):
                e(f"v_mul_f32 v{U + k}, v{U + k}, v{LS}")
            b = SCR + 8 * r
            for k in range(8):
                e(f"v_cvt_pk_bf16_f32 v{b + k}, v{U + 2 * k}, v{U + 2 * k + 1}")
            e(f"ds_write_b128 v{VS32}, v[{b}:{b + 3}] offset:{L_SC + 2048 * r}")
            e(f"ds_write_b128 v{VS32}, v[{b + 4}:{b + 7}] offset:{L_SC + 2048 * r + 16}")
            self.set_lds(L_FLP, r + 1, VT)

        def reduce_op(r):
            self.wait_lds(L_FLS, r + 5, VT, n=NS, sleep=8)
            D, O = 40, OPR + 4 * r
            for i in range(16):
                d = D + 4 * i
                e(f"ds_read_b128 v[{d}:{d + 3}], v{VQL} offset:{L_DUMP + r * self.dump_bytes + 768 * i}")
                if i == 7:
                    e("s_waitcnt lgkmcnt(7)")
            for i in range(1, 16):
                e(f"s_waitcnt lgkmcnt({15 - i})")
                for k in range(4):
                    e(f"v_add_f32 v{O + k}, v{D + k if i == 1 else O + k}, v{D + 4 * i + k}")
            self.embed(O, TGL)

        e("s_getreg_b32 s59, hwreg(HW_REG_XCC_ID, 0, 4)")
        e(f"v_mov_b32 v{ST}, s59")
        e(f"v_mov_b32 v{ST + 2}, s59")
        for r in range(3):
            local_stats(r)
        publish_stats(WS_STA, 6, 4)
        self.wait_lds(L_FIT, 24 + self.it_st, VT, n=NS, sleep=8)
        gather_stats(WS_STA, 6, 4)
        e(f"v_cmp_ne_u32 vcc, s59, v{ST + 16}")
        e("s_nop 1")
        e("s_cmp_eq_u64 vcc, 0")
        e(f"s_cselect_b32 s59, {1 if self.local else 0}, 0")
        self.set_lds(L_LOC, "s59", VT)
        for r in range(3):
            finalize_p(r)
        self.stamp(7)
        local_stats(3)
        publish_stats(WS_STB, 4, 1)
        self.wait_lds(L_FIT, 32 + self.it_st + 2, VT, n=NS, sleep=8)
        gather_stats(WS_STB, 4, 1)
        finalize_p(3)
        e(f"v_lshrrev_b32 v{VQL}, 4, v0")
        e(f"v_lshlrev_b32 v{VQL}, 8, v{VQL}")
        e(f"v_lshl_add_u32 v{VQL}, v2, 5, v{VQL}")
        e(f"v_and_b32 v{T + 1}, 1, v1")
        e(f"v_lshl_add_u32 v{VQL}, v{T + 1}, 4, v{VQL}")
        for r in range(3):
            reduce_op(r)
        e(f"v_lshrrev_b32 v{T}, 4, v0")
        e(f"v_lshlrev_b32 v{T}, 13, v{T}")
        e(f"v_and_b32 v{T + 1}, 15, v0")
        e(f"v_lshl_add_u32 v{T}, v{T + 1}, 4, v{T}")
        e(f"s_mul_i32 s6, s{S_X}, {4 * 24576}")
        e(f"s_lshl_b32 s7, s{S_C}, 8")
        e("s_add_u32 s6, s6, s7")
        e(f"s_add_u32 s6, s6, {WS_OP}")
        e("s_mov_b32 exec_hi, 0xffff")
        e("s_cmp_lg_u32 s59, 0")
        e("s_cbranch_scc1 L_ha_local")
        for fl in (" sc1", ""):
            for r in range(3):
                e(f"buffer_store_dwordx4 v[{OPR + 4 * r}:{OPR + 4 * r + 3}], v{T}, s[{SWS}:{SWS + 3}], s6 offen{fl}")
                if r < 2:
                    e("s_add_u32 s6, s6, 24576")
            if fl:
                e("s_branch L_ha_end")
                e("L_ha_local:")
        e("L_ha_end:")
        self.stamp(8)
        self.prof_store(9)
        e("s_endpgm")
        return GQ + 60

    def controller(self, upto, vt, sws, marker=True):
        e = self.e
        dn = self.label("ctd")
        if self.xg and marker:
            lp = self.label("ct")
            e(f"s_cmp_lg_u32 s{S_C}, {self.rep_c}")
            e(f"s_cbranch_scc1 {dn}")
            e("s_mov_b32 s58, 8")
            e(f"s_mul_i32 s55, s{S_X}, {PR_STRIDE}")
            e(f"s_add_u32 s55, s55, {WS_PR + 252}")
            e(f"{lp}:")
            self.wait_lds(L_FIT, "s58", vt, n=self.NS, sleep=1)
            e(f"s_mul_i32 s59, s58, {PR_STRIDE}")
            e(f"s_add_u32 s59, s59, {WS_RK}")
            e("s_mov_b32 s6, 1")
            e(f"s_atomic_add s6, s[{P_WS}:{P_WS + 1}], s59 glc")
            e(f"s_add_u32 s7, s{S_TAG}, 0x1000")
            e("s_waitcnt lgkmcnt(0)")
            e("s_add_u32 s6, s6, s7")
            e(f"v_mov_b32 v{vt}, s6")
            e("s_mov_b64 exec, 1")
            e(f"buffer_store_dword v{vt}, v{vt + 4}, s[{sws}:{sws + 3}], s55 offen")
            e("s_mov_b64 exec, -1")
            e(f"s_add_u32 s58, s58, {self.xstep}")
            e(f"s_cmp_lt_u32 s58, {upto}")
            e(f"s_cbranch_scc1 {lp}")
        e(f"{dn}:")
        self.wait_lds(L_FIT, upto, vt, n=self.NS, sleep=8)

    def helperB(self):
        e = self.e
        NS = self.NS
        S_RB, S_CB = 40, 41
        SX, SA, SWS = 8, 12, 44
        SM = 84
        VA, VT = 3, 4
        G0, WK, YA = 12, 44, 76
        TGL, TGG, VP, VG = 84, 88, 92, 93
        W = 96
        e("L_helperB:")
        e(f"v_mul_u32_u24 v{VA}, 0x2800, v1")
        e(f"v_lshl_add_u32 v{VA}, v2, 4, v{VA}")
        for k in range(4):
            e(f"v_mov_b32 v{VT + k}, 0")
        for k in range(4):
            e(f"ds_write_b128 v{VT}, v[{VT}:{VT + 3}] offset:{16 * k}")
        e(f"s_mul_i32 s43, s{S_X}, {192 * 1280}")
        e(f"s_mul_i32 s6, s{S_CB}, {64 * 1280}")
        e("s_add_u32 s43, s43, s6")
        e(f"s_lshl_b32 s6, s{S_RB}, 7")
        e("s_add_u32 s43, s43, s6")
        e("s_waitcnt lgkmcnt(0)")
        self.srd(SA, P_WO, 6144 * 1280)
        e("s_barrier")
        e(f"s_cmp_ge_u32 s{S_C}, 30")
        e("s_cbranch_scc1 L_hb_tags")
        for i in range(40):
            n, ii = divmod(i, 8)
            if i == 32:
                self.srd(SA, P_D, 1536 * 1280)
            if ii % 4 == 0:
                e(f"s_add_u32 s42, s43, {(8 * 192 * 1280 * n if n < 4 else 0) + 1280 * ii}")
            if i >= self.capB:
                e(f"s_waitcnt vmcnt({self.capB - 1})")
            r = W + 4 * i
            e(f"buffer_load_dwordx4 v[{r}:{r + 3}], v{VA}, s[{SA}:{SA + 3}], s42 offen offset:{1280 * (ii % 4)} nt")
        self.stamp(1)
        e("L_hb_tags:")
        if self.prof:
            e("s_mov_b32 s78, 0")
        self.srd(SX, P_X, 1280)
        self.srd(SWS, P_WS, WS_SIZE)
        self.wait_lds(L_FLN, 1, VT, sleep=4)
        self.read_tag(VT)
        self.make_tags(TGL)
        e(f"s_cmp_ge_u32 s{S_C}, 30")
        e("s_cbranch_scc1 L_finisher")
        e(f"v_lshrrev_b32 v{VP}, 5, v0")
        e(f"v_lshlrev_b32 v{VP}, 7, v{VP}")
        e(f"v_lshl_add_u32 v{VP}, v2, 4, v{VP}")
        e(f"s_mul_i32 s54, s{S_RB}, 24")
        e(f"s_mul_i32 s7, s{S_X}, 3")
        e("s_add_u32 s54, s54, s7")
        e(f"s_add_u32 s54, s54, s{S_CB}")
        e("s_lshl_b32 s54, s54, 8")
        e(f"s_add_u32 s54, s54, {WS_YB}")
        e("s_mov_b32 s48, 0x05040100")
        e("s_mov_b32 s49, 0x07060302")

        def permute(n):
            for pr in range(4):
                for k in range(4):
                    lo, hi = W + 32 * n + 8 * pr + k, W + 32 * n + 8 * pr + 4 + k
                    e(f"v_perm_b32 v{WK + 8 * pr + 2 * k}, v{hi}, v{lo}, s48")
                    e(f"v_perm_b32 v{WK + 8 * pr + 2 * k + 1}, v{hi}, v{lo}, s49")

        OV = G0 + 24

        def gemv():
            for pr in range(4):
                for c_ in range(8):
                    e(f"v_dot2c_f32_bf16 v{YA + c_}, v{WK + 8 * pr + c_}, v{OV + pr}")

        self.c("ffn hidden slice")
        self.wait_lds(L_FLQ, 4, VT, sleep=8)
        e(f"v_lshlrev_b32 v{VG}, 4, v1")
        e(f"v_and_b32 v{VA}, 1, v2")
        e(f"v_mul_u32_u24 v{VA}, 7680, v{VA}")
        e(f"v_add_u32 v{VA}, v{VA}, v{VG}")
        e(f"s_mul_i32 s6, s{S_X}, 15360")
        e(f"s_lshl_b32 s7, s{S_CB}, 9")
        e("s_add_u32 s6, s6, s7")
        e(f"s_add_u32 s6, s6, {WS_PA1 + 9 * 512}")
        loads = [f"buffer_load_dwordx4 v[{G0 + 16 * m + 4 * q}:{G0 + 16 * m + 4 * q + 3}], v{VA}, "
                 f"s[{SWS}:{SWS + 3}], s6 offen offset:{1536 * m + 128 * q} sc1" for m in range(2) for q in range(4)]
        self.gather_tagged(loads, G0, 8, VT, sleep=32)
        GA, UA, Z = WK, WK + 8, WK + 16
        for k in range(16):
            e(f"v_add_f32_dpp v{GA + k}, v{G0 + 2 * k}, v{G0 + 2 * k} {X1}")
        for k in range(8):
            self.round_bf16(GA + k)
            self.round_bf16(UA + k)
        c2 = -2.0 * 0.7978845608028654 * 1.4426950408889634
        e(f"s_mov_b32 s6, {hex(f2u(0.044715))}")
        for k in range(8):
            e(f"v_mul_f32 v{Z + k}, v{GA + k}, v{GA + k}")
        for k in range(8):
            e(f"v_mul_f32 v{Z + k}, v{Z + k}, v{GA + k}")
        for k in range(8):
            e(f"v_fma_f32 v{Z + k}, v{Z + k}, s6, v{GA + k}")
        for k in range(8):
            e(f"v_mul_f32 v{Z + k}, {hex(f2u(c2))}, v{Z + k}")
        for k in range(8):
            e(f"v_exp_f32 v{Z + k}, v{Z + k}")
        for k in range(8):
            e(f"v_add_f32 v{Z + k}, 1.0, v{Z + k}")
        for k in range(8):
            e(f"v_rcp_f32 v{Z + k}, v{Z + k}")
        for k in range(8):
            e(f"v_mul_f32 v{Z + k}, v{Z + k}, v{GA + k}")
        for k in range(8):
            self.round_bf16(Z + k)
        for k in range(8):
            e(f"v_mul_f32 v{Z + k}, v{Z + k}, v{UA + k}")
        for k in range(4):
            e(f"v_cvt_pk_bf16_f32 v{OV + k}, v{Z + 2 * k}, v{Z + 2 * k + 1}")
        permute(4)
        for k in range(8):
            e(f"v_mov_b32 v{YA + k}, 0")
        e(f"v_lshl_add_u32 v{VG}, v2, 8, v{VG}")
        e(f"s_mul_i32 s52, s{S_X}, {4 * 24576}")
        e(f"s_lshl_b32 s7, s{S_CB}, 13")
        e("s_add_u32 s52, s52, s7")
        e(f"s_add_u32 s52, s52, {WS_OP}")
        e("s_mov_b32 s50, -1")
        e("s_branch L_hb_gemv")

        self.c("s50 = head round; each pass multiplies one 64-row vector slice with its weight block")
        e("L_hb_round:")
        for r in range(4):
            nx = self.label("hbr")
            e(f"s_cmp_lg_u32 s50, {r}")
            e(f"s_cbranch_scc1 {nx}")
            permute(r)
            if r == 0:
                self.controller(56 + self.it_op, VT, SWS)
            if r == 3:
                self.stamp(3)
                self.wait_lds(L_FIT, 64, VT, n=NS, sleep=1)
                self.stamp(4)
            e(f"{nx}:")
        e("s_add_u32 s53, s52, 4096")
        e("s_sub_u32 s51, 3, s50")
        groups = []
        for j in range(4):
            groups.append(([f"buffer_load_dwordx4 v[{G0 + 8 * j + 4 * q}:{G0 + 8 * j + 4 * q + 3}], v{VG}, "
                            f"s[{SWS}:{SWS + 3}], s{52 + j // 2} offen offset:{2048 * (j % 2) + 128 * q} sc1"
                            for q in range(2)], G0 + 8 * j, 2))
        self.gather_emb(groups, TGL, VT, SM, sleep="s51")
        self.stamp(5)
        for k in range(8):
            e(f"v_add_f32 v{G0 + k}, v{G0 + k}, v{G0 + 8 + k}")
            e(f"v_add_f32 v{G0 + 16 + k}, v{G0 + 16 + k}, v{G0 + 24 + k}")
        for k in range(8):
            e(f"v_add_f32 v{G0 + k}, v{G0 + k}, v{G0 + 16 + k}")
        for pat in (X1, X2, HM):
            for k in range(8):
                e(f"v_add_f32_dpp v{G0 + k}, v{G0 + k}, v{G0 + k} {pat}")
        for k in range(4):
            e(f"v_cvt_pk_bf16_f32 v{OV + k}, v{G0 + 2 * k}, v{G0 + 2 * k + 1}")
        e("s_add_u32 s52, s52, 24576")
        e("L_hb_gemv:")
        gemv()
        e("s_add_u32 s50, s50, 1")
        e("s_and_b32 s51, s50, 3")
        e("s_cbranch_scc1 L_hb_round")
        self.reduce_g(YA, G0, G0 + 4)
        self.embed(G0, TGL)
        e("s_mov_b32 exec_lo, 0xff")
        e("s_mov_b32 exec_hi, 0xff")
        e(f"buffer_store_dwordx4 v[{G0}:{G0 + 3}], v{VP}, s[{SWS}:{SWS + 3}], s54 offen {self.ya_fl}")
        e("s_mov_b64 exec, -1")
        e("s_cmp_lg_u32 s50, 0")
        e("s_cbranch_scc1 L_hb_done")
        self.stamp(2)
        e(f"s_sub_u32 s54, s54, {WS_YB - WS_YA}")
        for k in range(8):
            e(f"v_mov_b32 v{YA + k}, 0")
        e("s_branch L_hb_round")
        e("L_hb_done:")
        self.stamp(6)
        self.prof_store(8)
        e("s_endpgm")

        self.c("finisher: sums the projection partials of one 64-column block and writes the output")
        e("L_finisher:")
        e(f"s_sub_u32 s56, s{S_C}, 30")
        e("s_lshl_b32 s56, s56, 3")
        e(f"s_add_u32 s56, s56, s{S_X}")
        XV, BV = 64, 72
        e(f"v_lshlrev_b32 v{VG}, 4, v0")
        e(f"v_and_b32 v{VA}, 1, v1")
        e(f"v_lshlrev_b32 v{VA}, 3, v{VA}")
        e(f"v_lshl_add_u32 v{VA}, v2, 4, v{VA}")
        e("s_lshl_b32 s57, s56, 7")
        e(f"buffer_load_dwordx2 v[{XV}:{XV + 1}], v{VA}, s[{SX}:{SX + 3}], s57 offen")
        self.srd(SA, P_OUT, 1280)
        e("s_mul_i32 s52, s56, 6144")
        e(f"s_add_u32 s52, s52, {WS_YB}")
        if self.xg:
            e("s_cmp_lg_u32 s56, 15")
            e("s_cbranch_scc1 L_norank")
            e(f"v_mul_u32_u24 v{VT}, {PR_STRIDE}, v0")
            e(f"v_mov_b32 v{VT + 1}, 0")
            e(f"s_mov_b32 s6, {WS_RK}")
            e(f"buffer_store_dword v{VT + 1}, v{VT}, s[{SWS}:{SWS + 3}], s6 offen sc1")
            e("L_norank:")
        e("s_cmp_ge_u32 s56, 10")
        e("s_cbranch_scc1 L_exit")
        e("s_mov_b32 s50, 16")
        e("s_mov_b32 s51, 1")
        e("L_fin_pass:")
        self.wait_lds(L_FIT, "s50", VT, n=NS, sleep=1)
        self.stamp(4)
        e("s_add_u32 s53, s52, 4096")
        if not self.fsets:
            groups = [([f"buffer_load_dwordx4 v[{G0 + 4 * i}:{G0 + 4 * i + 3}], v{VG}, s[{SWS}:{SWS + 3}], "
                        f"s{52 + i // 4} offen offset:{1024 * (i % 4)} sc1"], G0 + 4 * i, 1) for i in range(6)]
            self.gather_emb(groups, TGL, VT, SM, sleep="s51", whole=True)
            self.stamp(5)
            for i in (0, 2, 4):
                for k in range(4):
                    e(f"v_add_f32 v{G0 + 4 * i + k}, v{G0 + 4 * i + k}, v{G0 + 4 * i + 4 + k}")
            for i in (2, 4):
                for k in range(4):
                    e(f"v_add_f32 v{G0 + k}, v{G0 + k}, v{G0 + 4 * i + k}")
        else:
            ns = self.fsets

            def poll(k):
                for i in range(6):
                    r = W + 24 * k + 4 * i
                    e(f"buffer_load_dwordx4 v[{r}:{r + 3}], v{VG}, s[{SWS}:{SWS + 3}], s{52 + i // 4} "
                      f"offen offset:{1024 * (i % 4)} sc1")

            e(f"s_mov_b32 s62, {SPIN_G}")
            e("s_waitcnt vmcnt(0)")
            for k in range(ns):
                poll(k)
            e("L_fin_poll:")
            for k in range(ns):
                r0 = W + 24 * k
                e(f"s_waitcnt vmcnt({6 * (ns - 1)})")
                for j in range(24):
                    e(f"v_xor_b32 v{r0 + j}, v{r0 + j}, v{TGL + j % 4}")
                e(f"v_or_b32 v{VT}, v{r0}, v{r0 + 1}")
                for j in range(2, 24, 2):
                    e(f"v_or3_b32 v{VT}, v{VT}, v{r0 + j}, v{r0 + j + 1}")
                e(f"v_and_b32 v{VT}, s61, v{VT}")
                e(f"v_cmp_ne_u32 vcc, 0, v{VT}")
                for j in range(4):
                    e(f"v_add_f32 v{G0 + j}, v{r0 + j}, v{r0 + 4 + j}")
                for i in range(2, 6):
                    for j in range(4):
                        e(f"v_add_f32 v{G0 + j}, v{G0 + j}, v{r0 + 4 * i + j}")
                e("s_cbranch_vccz L_fin_got")
                poll(k)
            e("s_cmp_eq_u32 s51, 0")
            e("s_cbranch_scc1 L_fin_nosleep")
            e("s_sleep 32")
            e("L_fin_nosleep:")
            e("s_sub_u32 s62, s62, 1")
            e("s_cmp_lg_u32 s62, 0")
            e("s_cbranch_scc1 L_fin_poll")
            e("s_endpgm")
            e("L_fin_got:")
            self.stamp(5)
        for sw in ("v_permlane16_swap_b32", "v_permlane32_swap_b32"):
            for k in range(4):
                e(f"v_mov_b32 v{G0 + 4 + k}, v{G0 + k}")
            e("s_nop 0")
            for k in range(4):
                e(f"{sw} v{G0 + k}, v{G0 + 4 + k}")
            e("s_nop 0")
            for k in range(4):
                e(f"v_add_f32 v{G0 + k}, v{G0 + k}, v{G0 + 4 + k}")
        for k in range(4):
            self.round_bf16(G0 + k)
        e("s_cmp_lg_u32 s51, 0")
        e("s_cbranch_scc1 L_fin_first")
        for k in range(4):
            e(f"v_add_f32 v{G0 + k}, v{G0 + k}, v{XV + 2 + k}")
        for k in range(4):
            self.round_bf16(G0 + k)
        for k in range(4):
            e(f"v_add_f32 v{G0 + k}, v{G0 + k}, v{BV + k}")
        e(f"v_cvt_pk_bf16_f32 v{G0}, v{G0}, v{G0 + 1}")
        e(f"v_cvt_pk_bf16_f32 v{G0 + 1}, v{G0 + 2}, v{G0 + 3}")
        e("s_mov_b64 exec, 0xffff")
        e(f"buffer_store_dwordx2 v[{G0}:{G0 + 1}], v{VA}, s[{SA}:{SA + 3}], s57 offen")
        e("s_cmp_lg_u32 s56, 0")
        e("s_cbranch_scc1 L_fin_done")
        self.c("the next launch derives a different tag from this word")
        e(f"v_mov_b32 v{VT}, s{S_TAG}")
        e(f"v_mov_b32 v{VT + 1}, {WS_EPOCH}")
        e("s_mov_b64 exec, 1")
        e(f"buffer_store_dword v{VT}, v{VT + 1}, s[{SWS}:{SWS + 3}], 0 offen")
        e("L_fin_done:")
        if self.diag_dbg:
            e("s_memrealtime s[66:67]")
            e("s_waitcnt lgkmcnt(0)")
            e("s_sub_u32 s66, s66, s64")
            self.srd(48, P_DBG, 256)
            e(f"v_mov_b32 v{VT}, s66")
            e("s_lshl_b32 s6, s56, 2")
            e(f"v_mov_b32 v{VT + 1}, s6")
            e("s_mov_b64 exec, 1")
            e(f"buffer_store_dword v{VT}, v{VT + 1}, s[48:51], 0 offen")
        self.stamp(6)
        self.prof_store(7)
        e("L_exit:")
        e("s_endpgm")
        e("L_fin_first:")
        for k in range(4):
            e(f"v_mov_b32 v{BV + k}, v{G0 + k}")
        e(f"v_lshlrev_b32 v{XV + 2}, 16, v{XV}")
        e(f"v_and_b32 v{XV + 3}, 0xffff0000, v{XV}")
        e(f"v_lshlrev_b32 v{XV + 4}, 16, v{XV + 1}")
        e(f"v_and_b32 v{XV + 5}, 0xffff0000, v{XV + 1}")
        e(f"s_sub_u32 s52, s52, {WS_YB - WS_YA}")
        e("s_mov_b32 s50, 64")
        e("s_mov_b32 s51, 0")
        self.stamp(3)
        e("s_branch L_fin_pass")
        e("L_code_end:")
        return W + 160

    def build(self):
        self.entry()
        nv = max(self.streamer(), self.helperA(), self.helperB())
        assert nv <= 256
        body = "\n".join(l if l.endswith(":") or l.startswith(";") else "    " + l for l in self.o)
        return (HEADER.format(block=64 * (self.NS + 2), lds=self.lds, name=NAME) + body
                + FOOTER.format(name=NAME, vgpr=nv, acc=(nv + 3) // 4 * 4))


def gen(**kw):
    return Gen(**kw).build()


if __name__ == "__main__":
    out = sys.argv[1] if len(sys.argv) > 1 else f"cdna_kernels/{NAME}.s"
    kw = eval("dict(" + (sys.argv[2] if len(sys.argv) > 2 else "") + ")")
    open(out, "w").write(gen(**kw))
```

```python
import struct
import sys

NAME = "parallel_sum__mha_block_cached__geglu_ffn__decode"
HEAD = 32768 * 384
KV_BYTES = 32 * HEAD
SENT = 0xFFFFFFFF

WS_PA0 = 0x000000
WS_PA1 = 0x020000
WS_STA = 0x040000
WS_STB = 0x044000
WS_YA = 0x050000
WS_YB = 0x060000
WS_OP = 0x070000
WS_PR = 0x140000
PR_STRIDE = 4352
WS_RK = 0x150000
WS_EPOCH = 0x1A0000
WS_PROF = 0x200000
WS_SIZE = 0x400000
NONCE_STEP = 0x9E3779B9

L_FLS = 0
L_FIT = 8
L_FLQ = 16
L_FLP = 20
L_FLN = 24
L_FLG = 28
L_TAG = 32
L_PCN = 36
L_PD = 40
L_LOC = 48
L_Q = 64
L_XN = 1664
L_SC = 3072
L_PAIR = L_SC + 8192
L_DUMP = L_PAIR + 2048
S_TAG = 60


def f2u(x):
    return struct.unpack("<I", struct.pack("<f", x))[0]


LOG2E = f2u(1.4426950408889634)
SCALE = f2u(192 ** -0.5)

HEADER = """; Kernarg layout for this problem (96 bytes, ptrs only, base s[0:1]):
; @launch grid=(256,1,1) block=({block},1,1) lds={lds}
.amdgcn_target "amdgcn-amd-amdhsa--gfx950"
.text
.globl {name}_kernel
.p2align 8
.type {name}_kernel,@function
{name}_kernel:
"""
FOOTER = """
.section .rodata,"a"
.p2align 6
.amdhsa_kernel {name}_kernel
  .amdhsa_next_free_vgpr {vgpr}
  .amdhsa_next_free_sgpr 96
  .amdhsa_accum_offset {acc}
  .amdhsa_group_segment_fixed_size 0
  .amdhsa_kernarg_size 96
  .amdhsa_user_sgpr_count 2
  .amdhsa_user_sgpr_kernarg_segment_ptr 1
  .amdhsa_system_sgpr_workgroup_id_x 1
.end_amdhsa_kernel
"""

DPP_ALL = "row_mask:0xf bank_mask:0xf"
X1 = "quad_perm:[1,0,3,2] " + DPP_ALL
X2 = "quad_perm:[2,3,0,1] " + DPP_ALL
HM = "row_half_mirror " + DPP_ALL
RM = "row_mirror " + DPP_ALL
R8 = "row_ror:8 " + DPP_ALL

S_WAVE, S_X, S_C = 3, 4, 5
P_X, P_K, P_V, P_WQ, P_WO, P_G, P_U, P_D, P_OUT, P_DBG, P_WS = 16, 18, 20, 22, 24, 28, 30, 32, 34, 36, 38
SPIN_G = 400000
SPIN_L = 4000000


class Gen:
    def __init__(self, R=24, L=23, cap=12, cap0=11, capA=22, capB=22, a_early=0, s_early=0, gran=1, rot=0, warm=True, fsets=3, ya_fl="sc1", go_at=39, cap_tail=None,
                 tail_iters=1, caps=(9, 11, 12, 14, 16), thr=(38, 60), rep_c=7, xg=3, xstep=2, local=True, it_q=3, it_st=4, it_op=3, prof=False, diag_hold=0, diag_dbg=False, diag_who=None):
        NS = 2
        self.NS, self.R, self.L = NS, R, L
        self.cap, self.cap0, self.capA, self.capB = cap, cap0, capA, capB
        self.a_early, self.go_at, self.s_early = a_early, go_at, s_early
        self.gran, self.rot = gran, rot
        self.warm, self.fsets, self.ya_fl = warm, fsets, ya_fl
        self.cap_tail = cap_tail or cap
        self.tail_iters = tail_iters
        self.caps, self.thr, self.rep_c = caps, thr, rep_c
        self.xg, self.xstep, self.local = xg, xstep, local
        self.it_q, self.it_st, self.it_op = it_q, it_st, it_op
        self.prof = prof
        self.diag_hold, self.diag_dbg, self.diag_who = diag_hold, diag_dbg, diag_who
        self.o = []
        self.uid = 0
        self.steps = 32768 // (32 * NS * 16)
        self.tpi = R // 6
        assert R == 24 and L < R
        assert max(cap, cap0, self.cap_tail) <= L
        self.ipr = self.steps // self.tpi
        self.step_bytes = 32 * NS * 6144
        self.big_step = gran * self.step_bytes - (gran - 1) * 6144
        self.dump_bytes = 8 * NS * 768
        self.lds = L_DUMP + 3 * self.dump_bytes

    def e(self, s):
        self.o.append(s)

    def c(self, s):
        self.o.append("; " + s)

    def label(self, base):
        self.uid += 1
        return f"L_{base}_{self.uid}"

    def srd(self, d, p, size):
        self.e(f"s_mov_b32 s{d}, s{p}")
        self.e(f"s_mov_b32 s{d+1}, s{p+1}")
        self.e(f"s_mov_b32 s{d+2}, {size}")
        self.e(f"s_mov_b32 s{d+3}, 0x20000")

    def stamp(self, k):
        if self.prof:
            self.e(f"s_memrealtime s[{64 + 2 * k}:{65 + 2 * k}]")
            self.e("s_waitcnt lgkmcnt(0)")

    def stamp_round(self, sreg, base):
        if not self.prof:
            return
        for r in range(4):
            lb = self.label("st")
            self.e(f"s_cmp_lg_u32 s{sreg}, {r}")
            self.e(f"s_cbranch_scc1 {lb}")
            self.stamp(base + r)
            self.e(f"{lb}:")

    def prof_store(self, n):
        if not self.prof:
            return
        e = self.e
        e("s_mov_b64 exec, -1")
        e("s_waitcnt vmcnt(0) lgkmcnt(0)")
        self.srd(12, P_WS, WS_SIZE)
        e("s_lshl_b32 s6, s2, 2")
        e(f"s_add_u32 s6, s6, s{S_WAVE}")
        e("s_lshl_b32 s6, s6, 6")
        e(f"s_add_u32 s6, s6, {WS_PROF}")
        e("v_mov_b32 v1, 0")
        e("s_getreg_b32 s7, hwreg(HW_REG_XCC_ID)")
        e("v_mov_b32 v2, s7")
        e("s_mov_b64 exec, 1")
        e("buffer_store_dword v2, v1, s[12:15], s6 offen offset:60")
        for k in range(n):
            e(f"v_mov_b32 v{4 + k}, s{64 + 2 * k}")
            e(f"buffer_store_dword v{4 + k}, v1, s[12:15], s6 offen offset:{4 * k}")
        e("s_waitcnt vmcnt(0)")

    def allreduce(self, op, v, t):
        e = self.e
        for pat in (X1, X2, HM, RM):
            e("s_nop 1")
            e(f"{op}_dpp v{v}, v{v}, v{v} {pat}")
        for sw in ("v_permlane16_swap_b32", "v_permlane32_swap_b32"):
            e(f"v_mov_b32 v{t}, v{v}")
            e("s_nop 1")
            e(f"{sw} v{v}, v{t}")
            e("s_nop 1")
            e(f"{op} v{v}, v{v}, v{t}")

    def round_bf16(self, v):
        self.e(f"v_cvt_pk_bf16_f32 v{v}, v{v}, v{v}")
        self.e(f"v_and_b32 v{v}, 0xffff0000, v{v}")

    def expand(self, src, dst):
        e = self.e
        for k in range(4):
            e(f"v_and_b32 v{dst + 4 * k}, 0xffff, v{src + k}")
            e(f"v_lshlrev_b32 v{dst + 4 * k + 1}, 16, v{src + k}")
            e(f"v_lshrrev_b32 v{dst + 4 * k + 2}, 16, v{src + k}")
            e(f"v_and_b32 v{dst + 4 * k + 3}, 0xffff0000, v{src + k}")

    def gemv_row(self, w, xop, acc):
        for k in range(4):
            self.e(f"v_dot2c_f32_bf16 v{acc + 2 * k}, v{w + k}, v{xop}")
            self.e(f"v_dot2c_f32_bf16 v{acc + 2 * k + 1}, v{w + k}, v{xop + 1}")

    def reduce_g(self, acc, res, t):
        e = self.e
        e("s_nop 2")
        for k in range(4):
            e(f"v_permlane32_swap_b32 v{acc + k}, v{acc + k + 4}")
        e("s_nop 0")
        for k in range(4):
            e(f"v_add_f32 v{res + k}, v{acc + k}, v{acc + k + 4}")
        for k in range(4):
            e(f"v_mov_b32 v{t + k}, v{res + k}")
        e("s_nop 0")
        for k in range(4):
            e(f"v_permlane16_swap_b32 v{res + k}, v{t + k}")
        e("s_nop 0")
        for k in range(4):
            e(f"v_add_f32 v{res + k}, v{res + k}, v{t + k}")
        e("s_nop 0")
        for k in range(4):
            e(f"v_add_f32_dpp v{res + k}, v{res + k}, v{res + k} {R8}")

    def tag_regs(self, res):
        self.e(f"v_mov_b32 v{res + 1}, s{S_TAG}")
        self.e(f"v_mov_b32 v{res + 3}, s{S_TAG}")

    def reduce_g2(self, acc, res):
        e = self.e
        e("s_nop 2")
        for k in range(4):
            e(f"v_permlane32_swap_b32 v{acc + k}, v{acc + k + 4}")
        e("s_nop 0")
        for k in range(4):
            e(f"v_add_f32 v{acc + k}, v{acc + k}, v{acc + k + 4}")
        e("s_nop 1")
        for k in range(2):
            e(f"v_permlane16_swap_b32 v{acc + k}, v{acc + k + 2}")
        e("s_nop 0")
        for k in range(2):
            e(f"v_add_f32 v{acc + k}, v{acc + k}, v{acc + k + 2}")
        e("s_nop 1")
        for k in range(2):
            e(f"v_add_f32_dpp v{res + 2 * k}, v{acc + k}, v{acc + k} {R8}")

    def exec_tagged(self):
        self.e("s_mov_b32 exec_lo, 0x00ff00ff")
        self.e("s_mov_b32 exec_hi, 0x00ff00ff")

    def make_tags(self, dst):
        self.e("s_movk_i32 s61, 0xff")
        for k in range(4):
            self.e(f"v_bfe_u32 v{dst + k}, s{S_TAG}, {8 * k}, 8")

    def embed(self, v, tg):
        for k in range(4):
            self.e(f"v_bfi_b32 v{v + k}, s61, v{tg + k}, v{v + k}")

    def read_tag(self, vt):
        e = self.e
        e(f"v_mov_b32 v{vt + 4}, 0")
        e(f"ds_read_b32 v{vt}, v{vt + 4} offset:{L_TAG}")
        e("s_waitcnt lgkmcnt(0)")
        e(f"v_readfirstlane_b32 s{S_TAG}, v{vt}")
        e("s_nop 1")

    def gather_emb(self, groups, tg, vt, sm, lanes=64, sleep=1, between=None, whole=False):
        e = self.e
        lp, ok, mid = self.label("ge"), self.label("geok"), self.label("gemid")
        n = len(groups)
        e(f"s_mov_b32 s62, {SPIN_G}")
        for j in range(n):
            e(f"s_mov_b32 s{sm + 2 * j}, -1")
            e(f"s_mov_b32 s{sm + 2 * j + 1}, {hex((1 << (lanes - 32)) - 1)}")
        if between:
            e(f"s_mov_b64 exec, s[{sm}:{sm + 1}]")
            for loads, _, _ in groups:
                for s_ in loads:
                    e(s_)
            e("s_mov_b64 exec, -1")
            between()
            e(f"s_branch {mid}")
        e(f"{lp}:")
        for j, (loads, _, _) in enumerate(groups):
            sk = self.label("gs")
            e(f"s_mov_b64 exec, s[{sm + 2 * j}:{sm + 2 * j + 1}]")
            e(f"s_cbranch_execz {sk}")
            for s_ in loads:
                e(s_)
            e(f"{sk}:")
        e(f"{mid}:")
        e("s_mov_b64 vcc, 0")
        e("s_waitcnt vmcnt(0)")
        for j, (_, first, nrec) in enumerate(groups):
            sk = self.label("gs")
            e(f"s_mov_b64 exec, s[{sm + 2 * j}:{sm + 2 * j + 1}]")
            e(f"s_cbranch_execz {sk}")
            for k in range(4 * nrec):
                e(f"v_xor_b32 v{first + k}, v{first + k}, v{tg + k % 4}")
            e(f"v_or_b32 v{vt}, v{first}, v{first + 1}")
            for k in range(2, 4 * nrec, 2):
                e(f"v_or3_b32 v{vt}, v{vt}, v{first + k}, v{first + k + 1}")
            e(f"v_and_b32 v{vt}, s61, v{vt}")
            e(f"v_cmp_ne_u32 s[{sm + 2 * j}:{sm + 2 * j + 1}], 0, v{vt}")
            e("s_nop 0")
            e(f"s_or_b64 vcc, vcc, s[{sm + 2 * j}:{sm + 2 * j + 1}]")
            if whole:
                e(f"s_cmp_lg_u64 s[{sm + 2 * j}:{sm + 2 * j + 1}], 0")
                e(f"s_cselect_b64 s[{sm + 2 * j}:{sm + 2 * j + 1}], -1, 0")
            e(f"{sk}:")
        e("s_mov_b64 exec, -1")
        e("s_cmp_eq_u64 vcc, 0")
        e(f"s_cbranch_scc1 {ok}")
        if isinstance(sleep, str):
            sk = self.label("gs")
            e(f"s_cmp_eq_u32 {sleep}, 0")
            e(f"s_cbranch_scc1 {sk}")
            e("s_sleep 32")
            e(f"{sk}:")
        elif sleep:
            e(f"s_sleep {sleep}")
        e("s_sub_u32 s62, s62, 1")
        e("s_cmp_lg_u32 s62, 0")
        e(f"s_cbranch_scc1 {lp}")
        e("s_endpgm")
        e(f"{ok}:")

    def gather_tagged(self, loads, first, nrec, vt, sleep=1, skip=None, between=None):
        e = self.e
        lp, ok, mid = self.label("gt"), self.label("gtok"), self.label("gtmid")
        e(f"s_mov_b32 s62, {SPIN_G}")
        if between:
            for s_ in loads:
                e(s_)
            between()
            e(f"s_branch {mid}")
        e(f"{lp}:")
        for s_ in loads:
            e(s_)
        e(f"{mid}:")
        e(f"v_mov_b32 v{vt}, 0")
        e(f"v_mov_b32 v{vt + 1}, 0")
        e("s_waitcnt vmcnt(0)")
        for k in range(nrec):
            t = vt + 1 if skip and k in skip[0] else vt
            e(f"v_bitop3_b32 v{t}, v{t}, v{first + 4 * k + 1}, s{S_TAG} bitop3:0xf6")
            e(f"v_bitop3_b32 v{t}, v{t}, v{first + 4 * k + 3}, s{S_TAG} bitop3:0xf6")
        if skip:
            e(f"v_cndmask_b32 v{vt + 1}, 0, v{vt + 1}, s[{skip[1]}:{skip[1] + 1}]")
            e(f"v_or_b32 v{vt}, v{vt}, v{vt + 1}")
        e(f"v_cmp_ne_u32 vcc, 0, v{vt}")
        e("s_nop 4")
        e(f"s_cbranch_vccz {ok}")
        if sleep:
            e(f"s_sleep {sleep}")
        e("s_sub_u32 s62, s62, 1")
        e("s_cmp_lg_u32 s62, 0")
        e(f"s_cbranch_scc1 {lp}")
        e("s_endpgm")
        e(f"{ok}:")

    def reduce_sub(self, v, n):
        for pat in (X1, X2, HM):
            self.e("s_nop 1")
            for k in range(n):
                self.e(f"v_add_f32_dpp v{v + k}, v{v + k}, v{v + k} {pat}")

    def wait_lds(self, addr, val, vt, n=1, sleep=2, val_is_sreg=False):
        e = self.e
        lp, ok = self.label("wl"), self.label("wlok")
        e(f"s_mov_b32 s62, {SPIN_L}")
        e(f"v_mov_b32 v{vt + 4}, 0")
        e(f"{lp}:")
        if n == 1:
            e(f"ds_read_b32 v{vt}, v{vt + 4} offset:{addr}")
            e("s_waitcnt lgkmcnt(0)")
        elif n == 2:
            e(f"ds_read_b64 v[{vt}:{vt + 1}], v{vt + 4} offset:{addr}")
            e("s_waitcnt lgkmcnt(0)")
            e(f"v_min_u32 v{vt}, v{vt}, v{vt + 1}")
        else:
            e(f"ds_read_b128 v[{vt}:{vt + 3}], v{vt + 4} offset:{addr}")
            e("s_waitcnt lgkmcnt(0)")
            e(f"v_min_u32 v{vt}, v{vt}, v{vt + 1}")
            e(f"v_min3_u32 v{vt}, v{vt}, v{vt + 2}, v{vt + 3}")
        e("s_nop 0")
        e(f"v_readfirstlane_b32 s63, v{vt}")
        e(f"s_cmp_ge_u32 s63, {val}")
        e(f"s_cbranch_scc1 {ok}")
        if sleep:
            e(f"s_sleep {sleep}")
        e("s_sub_u32 s62, s62, 1")
        e("s_cmp_lg_u32 s62, 0")
        e(f"s_cbranch_scc1 {lp}")
        e("s_endpgm")
        e(f"{ok}:")

    def set_lds(self, addr, val, vt):
        e = self.e
        e("s_waitcnt lgkmcnt(0)")
        e(f"v_mov_b32 v{vt}, {addr}")
        e(f"v_mov_b32 v{vt + 1}, {val}")
        e(f"ds_write_b32 v{vt}, v{vt + 1}")

    def layernorm(self, xa, f):
        e = self.e

        def unpack():
            for k in range(5):
                e(f"v_lshlrev_b32 v{f + 2 * k}, 16, v{xa + k}")
                e(f"v_and_b32 v{f + 2 * k + 1}, 0xffff0000, v{xa + k}")

        def pack():
            for k in range(5):
                e(f"v_cvt_pk_bf16_f32 v{xa + k}, v{f + 2 * k}, v{f + 2 * k + 1}")

        unpack()
        m, t, var, d = f + 10, f + 11, f + 12, f + 13
        e(f"v_add_f32 v{m}, v{f}, v{f + 1}")
        for k in range(2, 10):
            e(f"v_add_f32 v{m}, v{m}, v{f + k}")
        self.allreduce("v_add_f32", m, t)
        e(f"v_mul_f32 v{m}, {hex(f2u(1.0 / 640))}, v{m}")
        e(f"v_mov_b32 v{var}, 0")
        for k in range(10):
            e(f"v_sub_f32 v{d}, v{f + k}, v{m}")
            e(f"v_fmac_f32 v{var}, v{d}, v{d}")
        self.allreduce("v_add_f32", var, t)
        e(f"v_mul_f32 v{var}, {hex(f2u(1.0 / 640))}, v{var}")
        self.round_bf16(var)
        self.round_bf16(m)
        e(f"v_add_f32 v{var}, {hex(f2u(1e-5))}, v{var}")
        self.round_bf16(var)
        e(f"v_sqrt_f32 v{var}, v{var}")
        for k in range(10):
            e(f"v_sub_f32 v{f + k}, v{f + k}, v{m}")
        self.round_bf16(var)
        e(f"v_rcp_f32 v{var}, v{var}")
        pack()
        unpack()
        for k in range(10):
            e(f"v_mul_f32 v{f + k}, v{f + k}, v{var}")
        pack()

    def entry(self):
        e = self.e
        self.c("roles: waves 0..NS-1 stream K then V; wave NS does q/softmax exchanges; wave NS+1 does weight GEMVs")
        if self.prof or self.diag_hold or self.diag_dbg:
            e("s_memrealtime s[64:65]")
        e("s_cmp_ge_u32 s2, 256")
        e("s_cbranch_scc1 L_exit")
        e("s_load_dwordx16 s[16:31], s[0:1], 0")
        e("s_load_dwordx8 s[32:39], s[0:1], 64")
        e("v_lshrrev_b32 v1, 6, v0")
        e("v_and_b32 v0, 63, v0")
        e(f"v_readfirstlane_b32 s{S_WAVE}, v1")
        e(f"s_and_b32 s{S_X}, s2, 7")
        e(f"s_lshr_b32 s{S_C}, s2, 3")
        e("v_lshrrev_b32 v1, 3, v0")
        e("v_and_b32 v2, 7, v0")
        e(f"s_mul_i32 s40, s{S_C}, 43691")
        e("s_lshr_b32 s40, s40, 17")
        e("s_mul_i32 s41, s40, 3")
        e(f"s_sub_u32 s41, s{S_C}, s41")
        e(f"s_cmp_eq_u32 s{S_WAVE}, {self.NS}")
        e("s_cbranch_scc1 L_helperA")
        e(f"s_cmp_eq_u32 s{S_WAVE}, {self.NS + 1}")
        e("s_cbranch_scc1 L_helperB")

    def streamer(self):
        e = self.e
        NS, R, L = self.NS, self.R, self.L
        VOFF, VSC, VQ, VDUMP, VT = 3, 4, 5, 6, 8
        VIT = 13
        A = 14
        VO, VPR, TG = 18, 19, 24
        VSM, VPB, VPA, VL4 = 56, 57, 58, 59
        SC = 20
        Q = 20 + 8
        PN, PX = 52, 60
        RING = 64
        S_OFF, S_DELTA, S_B0, S_B1, S_IT, S_R = 44, 45, 46, 47, 48, 49
        offs = [(i // 3) * 3072 + (i % 3) * 128 for i in range(6)]
        cand = [j for j in range(R) if (j + L) % 6 == 5 and ((j + L + 1) // 6) % self.tpi == 0]
        assert len(cand) == 1
        self.c("streamer")
        if self.warm:
            self.c("each streamer reads 1 KiB slices of this kernel's code so that later instruction fetches hit in L2")
            e("s_getpc_b64 s[12:13]")
            e("L_pc:")
            e(f"s_lshl_b32 s6, s{S_C}, 1")
            e(f"s_add_u32 s6, s6, s{S_WAVE}")
            e("s_lshl_b32 s6, s6, 10")
            e("v_lshl_add_u32 v8, v0, 4, s6")
            e("v_min_u32 v8, L_code_end-L_pc-16, v8")
            e("v_mov_b32 v9, s13")
            e("v_add_co_u32 v8, vcc, s12, v8")
            e("s_nop 1")
            e("v_addc_co_u32 v9, vcc, 0, v9, vcc")
            e("global_load_dwordx4 v[64:67], v[8:9], off")
        e(f"v_mul_u32_u24 v{VOFF}, 384, v1")
        e(f"v_lshl_add_u32 v{VOFF}, v2, 4, v{VOFF}")
        tb = 4 * self.tpi
        e(f"s_mul_i32 s6, s{S_WAVE}, {8 * tb}")
        e(f"s_add_u32 s6, s6, {L_SC}")
        e(f"v_mul_u32_u24 v{VSC}, {tb}, v1")
        e(f"v_add_u32 v{VSC}, s6, v{VSC}")
        e(f"v_lshlrev_b32 v{VQ}, 4, v2")
        e(f"s_mul_i32 s6, s{S_WAVE}, {8 * 768}")
        e(f"s_add_u32 s6, s6, {L_DUMP}")
        e(f"v_mul_u32_u24 v{VDUMP}, 768, v1")
        e(f"v_lshl_add_u32 v{VDUMP}, v2, 5, v{VDUMP}")
        e(f"v_add_u32 v{VDUMP}, s6, v{VDUMP}")
        e(f"s_mul_i32 s{S_OFF}, s{S_X}, {HEAD}")
        e(f"s_mul_i32 s6, s{S_C}, {NS}")
        e(f"s_add_u32 s6, s6, s{S_WAVE}")
        e(f"s_mul_i32 s6, s6, {6144 * self.gran}")
        e(f"s_add_u32 s{S_OFF}, s{S_OFF}, s6")
        e(f"s_mul_i32 s43, s{S_X}, {self.rot}")
        e("s_and_b32 s43, s43, 7")
        e(f"s_mul_i32 s6, s43, {4 * self.step_bytes}")
        e(f"s_add_u32 s{S_OFF}, s{S_OFF}, s6")
        e("s_add_u32 s43, s43, 1")
        e(f"s_lshl_b32 s7, s{S_WAVE}, 2")
        e(f"v_mov_b32 v7, s7")
        e(f"v_mov_b32 v{VIT}, 0")
        e("s_waitcnt lgkmcnt(0)")
        self.srd(8, P_K, KV_BYTES)
        e("s_barrier")

        def issue(p, boundary=False):
            r = RING + (p % R) * 4
            e(f"buffer_load_dwordx4 v[{r}:{r + 3}], v{VOFF}, s[8:11], s{S_OFF} offen offset:{offs[p % 6]} nt")
            if p % 6 == 5:
                if boundary:
                    e(f"s_add_u32 s{S_OFF}, s{S_OFF}, s{S_DELTA}")
                    e(f"s_mov_b32 s8, s{S_B0}")
                    e(f"s_mov_b32 s9, s{S_B1}")
                else:
                    inc = 6144 if (p // 6 + 1) % self.gran else self.big_step
                    e(f"s_add_u32 s{S_OFF}, s{S_OFF}, {inc}")

        for p in range(self.s_early):
            issue(p)
        assert not (self.warm and self.s_early)
        e(f"s_mov_b32 s{S_R}, 0")
        e(f"s_mov_b32 s53, {len(self.caps) // 2 if self.caps else 0}")
        e(f"s_mov_b32 s{S_B0}, s{P_K}")
        e(f"s_mov_b32 s{S_B1}, s{P_K + 1}")
        e(f"s_mov_b32 s56, {self.big_step + 8 * HEAD}")

        self.c("addresses of the final publish")
        e(f"v_and_b32 v{VT}, 1, v1")
        e(f"v_bfe_u32 v{VO}, v0, 4, 1")
        e(f"v_cmp_eq_u32 vcc, 1, v{VT}")
        e(f"v_lshrrev_b32 v{VT + 1}, 5, v0")
        e(f"v_lshlrev_b32 v{VPR}, 4, v0")
        e(f"v_cndmask_b32 v{VO}, v{VO}, 2, vcc")
        e(f"v_lshlrev_b32 v{VO}, 13, v{VO}")
        e(f"v_lshl_add_u32 v{VO}, v{VT + 1}, 7, v{VO}")
        e(f"v_lshl_add_u32 v{VO}, v2, 4, v{VO}")
        e(f"s_mul_i32 s57, s{S_X}, {4 * 24576}")
        e(f"s_lshl_b32 s7, s{S_C}, 8")
        e("s_add_u32 s57, s57, s7")
        e(f"s_add_u32 s57, s57, {WS_OP + 3 * 24576}")
        self.srd(12, P_WS, WS_SIZE)
        if self.caps:
            e(f"v_lshlrev_b32 v{VL4}, 2, v0")
            e(f"v_lshlrev_b32 v{VPA}, 24, v0")
            e(f"s_mul_i32 s59, s{S_X}, {PR_STRIDE}")
            e(f"s_add_u32 s59, s59, {WS_PR}")
            e(f"s_lshl_b32 s6, s{S_C}, 1")
            e(f"s_add_u32 s6, s6, s{S_WAVE}")
            e("s_lshl_b32 s6, s6, 2")
            e("s_add_u32 s58, s59, s6")
            if self.xg:
                e("s_cmp_eq_u32 s6, 252")
                e(f"s_cselect_b32 s58, {WS_SIZE}, s58")
            if self.prof:
                e("s_mov_b32 s92, 0")
        self.wait_lds(L_FLN, 1, VT, sleep=1)
        self.read_tag(VT)
        self.make_tags(TG)
        e(f"s_add_u32 s55, s{S_TAG}, 0x1000")

        if self.go_at is not None:
            self.wait_lds(L_FLG, 1, VT, sleep=1)
        if self.warm:
            e("s_waitcnt vmcnt(0)")
        for p in range(self.s_early, L):
            if p >= self.cap0:
                e(f"s_waitcnt vmcnt({self.cap0 - 1})")
            issue(p)
        self.stamp(1)

        e("L_kround:")
        e(f"s_add_u32 s50, s{S_R}, 1")
        self.wait_lds(L_FLQ, "s50", VT, sleep=0)
        for s in range(3):
            e(f"ds_read_b128 v[{Q + 4 * s}:{Q + 4 * s + 3}], v{VQ} offset:{L_Q + 128 * s}")
        e(f"v_add_u32 v{VQ}, 384, v{VQ}")
        if self.prof:
            e(f"s_cmp_lg_u32 s{S_R}, 0")
            e("s_cbranch_scc1 L_nostamp2")
            self.stamp(2)
            e("L_nostamp2:")
        e(f"s_mov_b32 s{S_IT}, {self.ipr}")
        e("s_waitcnt lgkmcnt(0)")
        e("L_kloop:")
        e(f"s_cmp_eq_u32 s{S_R}, 3")
        e(f"s_cselect_b32 s50, {hex((self.big_step - 24 * HEAD) & 0xffffffff)}, s56")
        e(f"s_cselect_b32 s51, 1, 0")
        e(f"s_cmp_eq_u32 s{S_IT}, 1")
        e(f"s_cselect_b32 s{S_DELTA}, s50, {self.big_step}")
        e(f"s_cmp_eq_u32 s{S_IT}, s43")
        e(f"s_cselect_b32 s42, {HEAD}, 0")
        e(f"s_sub_u32 s{S_DELTA}, s{S_DELTA}, s42")
        e(f"s_cmp_eq_u32 s{S_IT}, s51")
        e(f"s_cselect_b32 s{S_B0}, s{P_V}, s{S_B0}")
        e(f"s_cselect_b32 s{S_B1}, s{P_V + 1}, s{S_B1}")
        nlev = len(self.caps) if self.caps else 0
        mid = nlev // 2

        def ctl_issue():
            e(f"v_add_u32 v{VPB}, s{S_TAG}, v{VIT}")
            e(f"buffer_store_dword v{VPB}, v{VPA}, s[12:15], s58 offen")
            e(f"buffer_load_dword v{VSM}, v{VL4}, s[12:15], s59 offen sc1")

        def ctl_ops():
            ops = [f"v_readlane_b32 s93, v{VSM}, 63"] if self.xg else []
            ops += [f"v_sub_u32 v{VSM}, v{VSM}, v{VPB}",
                   f"v_add_u32 v{VPB}, 8, v{VSM}",
                   f"v_cmp_gt_u32 vcc, 17, v{VPB}",
                   f"v_lshl_add_u32 v{VSM}, v{VSM}, 1, 1",
                   f"v_cndmask_b32 v{VSM}, 0, v{VSM}, vcc"]
            ops += [f"v_add_u32_dpp v{VSM}, v{VSM}, v{VSM} {pat}" for pat in (X1, X2, HM, RM)]
            ops += [f"v_readlane_b32 s{88 + k}, v{VSM}, {16 * k}" for k in range(4)]
            return ops

        def wait_count(cap, j, ctl):
            return cap - 1 + (2 if ctl and 0 < j <= cap else 0)

        def pick_level():
            if not self.caps:
                return
            e("s_add_u32 s88, s88, s89")
            e("s_add_u32 s90, s90, s91")
            e("s_add_u32 s88, s88, s90")
            if self.xg:
                e("s_sub_u32 s93, s93, s55")
                e(f"s_mul_i32 s89, s93, {2 * self.xg}")
                e(f"s_sub_u32 s89, s89, {7 * self.xg}")
                e("s_cmp_lt_u32 s93, 8")
                e("s_cselect_b32 s89, s89, 0")
                e("s_add_u32 s88, s88, s89")
            e(f"s_mov_b32 s53, {mid}")
            for k in range(1, mid + 1):
                e(f"s_cmp_gt_i32 s88, {self.thr[k - 1]}")
                e(f"s_cselect_b32 s53, {mid + k}, s53")
                e(f"s_cmp_lt_i32 s88, {-self.thr[k - 1]}")
                e(f"s_cselect_b32 s53, {mid - k}, s53")
            if self.prof:
                e("s_mul_i32 s7, s53, 6")
                e("s_lshl_b32 s7, 1, s7")
                e("s_add_u32 s92, s92, s7")

        def kbody(cap):
            pend = []
            pos = [0]
            side = ctl_ops()
            assert cap + 1 <= 17

            def main(s):
                e(s)
                pos[0] += 1
                if pend and pend[0][0] <= pos[0]:
                    _, ins, gap = pend.pop(0)
                    e(ins)
                    pos[0] += 1
                    if pend:
                        pend[0] = (max(pend[0][0], pos[0] + gap), pend[0][1], pend[0][2])

            for j in range(R):
                tile, jj = divmod(j, 6)
                kg, s = divmod(jj, 3)
                a = A + 2 * (tile % 2) + kg
                main(f"s_waitcnt vmcnt({wait_count(cap, j, nlev)})")
                n0 = len(self.o)
                issue(j + L, boundary=(j == cand[0]))
                if nlev and j == 0:
                    ctl_issue()
                if nlev and j >= 17 and side:
                    e(side.pop(0))
                pos[0] += len(self.o) - n0
                if s == 0:
                    main(f"v_mov_b32 v{a}, 0")
                r = RING + j * 4
                for k in range(4):
                    main(f"v_dot2c_f32_bf16 v{a}, v{r + k}, v{Q + 4 * s + k}")
                    if nlev and j >= 17 and k == 2 and side:
                        e(side.pop(0))
                        pos[0] += 1
                if s == 2:
                    first = pos[0] + 3
                    pend.append((first, f"v_add_f32_dpp v{a}, v{a}, v{a} {X1}", 2))
                    pend.append((0, f"v_add_f32_dpp v{a}, v{a}, v{a} {X2}", 2))
                    pend.append((0, f"v_add_f32_dpp v{a}, v{a}, v{a} {HM}", 0))
                    if kg == 1:
                        pend.append((0, f"v_cvt_pk_bf16_f32 v{SC + tile}, v{a - 1}, v{a}", 0))
            while pend:
                main("s_nop 0")

        def dispatch(name, fn):
            if not self.caps:
                fn(self.cap)
                return
            others = [k for k in range(nlev) if k != mid]
            e(f"s_cmp_eq_u32 s53, {mid}")
            e(f"s_cbranch_scc1 L_{name}{mid}")
            for code in others[1:]:
                e(f"s_cmp_eq_u32 s53, {code}")
                e(f"s_cbranch_scc1 L_{name}{code}")
            for code in others + [mid]:
                e(f"L_{name}{code}:")
                fn(self.caps[code])
                if code != mid:
                    e(f"s_branch L_{name}_end")
            e(f"L_{name}_end:")

        dispatch("kb", kbody)
        pick_level()
        for q4 in range(self.tpi // 4):
            e(f"ds_write_b128 v{VSC}, v[{SC + 4 * q4}:{SC + 4 * q4 + 3}] offset:{16 * q4}")
        e(f"v_add_u32 v{VIT}, 1, v{VIT}")
        e(f"v_add_u32 v{VSC}, {NS * 8 * tb}, v{VSC}")
        e(f"ds_write_b32 v7, v{VIT} offset:{L_FIT}")
        e(f"s_sub_u32 s{S_IT}, s{S_IT}, 1")
        e(f"s_cmp_lg_u32 s{S_IT}, 0")
        e("s_cbranch_scc1 L_kloop")
        self.stamp_round(S_R, 3)
        e(f"s_add_u32 s{S_R}, s{S_R}, 1")
        e(f"v_mov_b32 v{VT}, s{S_R}")
        e(f"ds_write_b32 v7, v{VT} offset:{L_FLS}")
        e(f"s_cmp_lt_u32 s{S_R}, 4")
        e("s_cbranch_scc1 L_kround")

        e(f"v_subrev_u32 v{VSC}, 8192, v{VSC}")
        self.wait_lds(L_FLP, 1, VT, sleep=0)
        e(f"ds_read_b32 v{A}, v{VT + 4} offset:{L_LOC}")
        for q4 in range(self.tpi // 4):
            e(f"ds_read_b128 v[{PN + 4 * q4}:{PN + 4 * q4 + 3}], v{VSC} offset:{16 * q4}")
        e(f"v_add_u32 v{VSC}, {NS * 8 * tb}, v{VSC}")
        e(f"s_mov_b32 s{S_R}, 0")

        def vbody(cap, last=False, ctl=True):
            ctl = ctl and nlev and not last
            side = ctl_ops() if ctl else []
            e("s_waitcnt lgkmcnt(0)")
            for j in range(R):
                tile, jj = divmod(j, 6)
                kg, s = divmod(jj, 3)
                if last and j + L >= R:
                    e(f"s_waitcnt vmcnt({R - 1 - j})")
                else:
                    e(f"s_waitcnt vmcnt({wait_count(cap, j, ctl)})")
                    issue(j + L, boundary=(j == cand[0]))
                if ctl and j == 0:
                    ctl_issue()
                if j >= 17 and side:
                    e(side.pop(0))
                if jj == 0:
                    e(f"v_and_b32 v{PX}, 0xffff, v{PN + tile}")
                    e(f"v_lshlrev_b32 v{PX + 1}, 16, v{PN + tile}")
                    e(f"v_lshrrev_b32 v{PX + 2}, 16, v{PN + tile}")
                    e(f"v_and_b32 v{PX + 3}, 0xffff0000, v{PN + tile}")
                    if tile == self.tpi - 1 and not last:
                        e(f"v_add_u32 v{VIT}, 1, v{VIT}")
                        e(f"ds_write_b32 v7, v{VIT} offset:{L_FIT}")
                        for q4 in range(self.tpi // 4):
                            e(f"ds_read_b128 v[{PN + 4 * q4}:{PN + 4 * q4 + 3}], v{VSC} offset:{16 * q4}")
                        e(f"v_add_u32 v{VSC}, {NS * 8 * tb}, v{VSC}")
                self.gemv_row(RING + 4 * j, PX + 2 * kg, Q + 8 * s)
                if j >= 17 and side:
                    e(side.pop(0))
            assert not side

        def dump():
            e("s_nop 2")
            for s in range(3):
                for hlf in range(2):
                    r = Q + 8 * s + 4 * hlf
                    e(f"ds_write_b128 v{VDUMP}, v[{r}:{r + 3}] offset:{256 * s + 16 * hlf}")
            e(f"v_add_u32 v{VDUMP}, {self.dump_bytes}, v{VDUMP}")
            e(f"s_add_u32 s50, s{S_R}, 5")
            e(f"v_mov_b32 v{VT}, s50")
            e(f"ds_write_b32 v7, v{VT} offset:{L_FLS}")

        e("L_vround:")
        e(f"s_add_u32 s50, s{S_R}, 2")
        e("s_min_u32 s50, s50, 4")
        self.wait_lds(L_FLP, "s50", VT, sleep=0)
        e(f"v_readfirstlane_b32 s54, v{A}")
        for k in range(24):
            e(f"v_mov_b32 v{Q + k}, 0")
        self.c("one streamer makes the last head's slots resident, with tags that cannot match")
        e(f"s_sub_u32 s50, 3, s{S_R}")
        e(f"s_or_b32 s50, s50, s{S_WAVE}")
        e("s_cmp_ge_u32 s50, s54")
        e("s_cbranch_scc1 L_notouch")
        for k in range(4):
            e(f"v_not_b32 v{PX + k}, v{TG + k}")
        e("s_mov_b32 exec_lo, 0xffffff")
        e("s_mov_b32 exec_hi, 0xffffff")
        e(f"buffer_store_dwordx4 v[{PX}:{PX + 3}], v{VO}, s[12:15], s57 offen")
        e("s_mov_b64 exec, -1")
        e("L_notouch:")
        e(f"s_cmp_eq_u32 s{S_R}, 3")
        e(f"s_cselect_b32 s52, {self.tail_iters}, 0")
        e(f"s_mov_b32 s{S_IT}, {self.ipr}")
        e("L_vloop:")
        e(f"s_cmp_eq_u32 s{S_IT}, 1")
        e(f"s_cselect_b32 s{S_DELTA}, s56, {self.big_step}")
        e(f"s_cmp_eq_u32 s{S_IT}, s43")
        e(f"s_cselect_b32 s42, {HEAD}, 0")
        e(f"s_sub_u32 s{S_DELTA}, s{S_DELTA}, s42")
        dispatch("vb", vbody)
        pick_level()
        e(f"s_sub_u32 s{S_IT}, s{S_IT}, 1")
        e(f"s_cmp_lg_u32 s{S_IT}, s52")
        e("s_cbranch_scc1 L_vloop")
        e(f"s_cmp_eq_u32 s{S_R}, 3")
        e("s_cbranch_scc1 L_vtail")
        self.stamp_round(S_R, 7)
        dump()
        e(f"s_add_u32 s{S_R}, s{S_R}, 1")
        e("s_branch L_vround")
        e("L_vtail:")
        if self.tail_iters > 1:
            e("L_vtloop:")
            e(f"s_cmp_eq_u32 s{S_IT}, s43")
            e(f"s_cselect_b32 s42, {HEAD}, 0")
            e(f"s_sub_u32 s{S_DELTA}, {self.big_step}, s42")
            vbody(self.cap_tail, ctl=False)
            e(f"s_sub_u32 s{S_IT}, s{S_IT}, 1")
            e(f"s_cmp_lg_u32 s{S_IT}, 1")
            e("s_cbranch_scc1 L_vtloop")
        vbody(self.cap_tail, last=True)
        self.stamp(10)
        self.c("last head: reduce over lane groups, combine the two streamers, publish")
        e(f"v_mov_b32 v{VIT}, 64")
        e(f"ds_write_b32 v7, v{VIT} offset:{L_FIT}")
        e(f"s_xor_b32 s50, s{S_WAVE}, 1")
        for s_ in range(3):
            for k in range(4):
                e(f"v_permlane32_swap_b32 v{Q + 8 * s_ + k}, v{Q + 8 * s_ + k + 4}")
        for s_ in range(3):
            for k in range(4):
                e(f"v_add_f32 v{Q + 8 * s_ + k}, v{Q + 8 * s_ + k}, v{Q + 8 * s_ + k + 4}")
        e("s_lshl_b32 s51, s50, 10")
        e(f"v_add_u32 v{VT + 2}, s51, v{VPR}")
        e(f"v_xor_b32 v{VT + 1}, 4, v7")
        for k in range(4):
            e(f"v_mov_b32 v{Q + 20 + k}, v{Q + 16 + k}")
        e(f"ds_read_b32 v{VT}, v{VT + 1} offset:{L_PD}")
        e(f"ds_read_b128 v[{PN}:{PN + 3}], v{VT + 2} offset:{L_PAIR}")
        for k in range(4):
            e(f"v_permlane16_swap_b32 v{Q + k}, v{Q + 8 + k}")
        for k in range(4):
            e(f"v_permlane16_swap_b32 v{Q + 16 + k}, v{Q + 20 + k}")
        for k in range(4):
            e(f"v_add_f32 v{Q + k}, v{Q + k}, v{Q + 8 + k}")
        for k in range(4):
            e(f"v_add_f32 v{Q + 16 + k}, v{Q + 16 + k}, v{Q + 20 + k}")
        for k in range(4):
            e(f"v_add_f32_dpp v{PX + k}, v{Q + k}, v{Q + k} row_ror:8 row_mask:0xf bank_mask:0x3")
        for k in range(4):
            e(f"v_add_f32_dpp v{PX + k}, v{Q + 16 + k}, v{Q + 16 + k} row_ror:8 row_mask:0xf bank_mask:0xc")
        e("s_waitcnt lgkmcnt(0)")
        e(f"v_readfirstlane_b32 s63, v{VT}")
        e("s_cmp_lg_u32 s63, 0")
        e("s_cbranch_scc1 L_spub")
        e(f"s_lshl_b32 s51, s{S_WAVE}, 10")
        e(f"v_add_u32 v{VT + 3}, s51, v{VPR}")
        e(f"v_mov_b32 v{VT}, 1")
        e(f"v_mov_b32 v{VT + 4}, 0")
        e(f"ds_write_b128 v{VT + 3}, v[{PX}:{PX + 3}] offset:{L_PAIR}")
        e(f"ds_write_b32 v7, v{VT} offset:{L_PD}")
        e("s_mov_b64 exec, 1")
        e(f"ds_add_rtn_u32 v{VT + 1}, v{VT + 4}, v{VT} offset:{L_PCN}")
        e("s_mov_b64 exec, -1")
        e(f"ds_read_b128 v[{PN}:{PN + 3}], v{VT + 2} offset:{L_PAIR}")
        e("s_waitcnt lgkmcnt(0)")
        e(f"v_readfirstlane_b32 s63, v{VT + 1}")
        e("s_cmp_eq_u32 s63, 0")
        e("s_cbranch_scc1 L_sdone")
        e("L_spub:")
        for k in range(4):
            e(f"v_add_f32 v{PX + k}, v{PX + k}, v{PN + k}")
        self.embed(PX, TG)
        e("s_mov_b32 exec_lo, 0xffffff")
        e("s_mov_b32 exec_hi, 0xffffff")
        e("s_cmp_eq_u32 s54, 0")
        e("s_cbranch_scc1 L_spub_far")
        e(f"buffer_store_dwordx4 v[{PX}:{PX + 3}], v{VO}, s[12:15], s57 offen")
        e("s_branch L_sdone")
        e("L_spub_far:")
        e(f"buffer_store_dwordx4 v[{PX}:{PX + 3}], v{VO}, s[12:15], s57 offen sc1")
        e("L_sdone:")
        self.stamp(11)
        if self.prof:
            e("s_mov_b32 s88, s92")
        self.prof_store(13)
        e("s_endpgm")
        return RING + 4 * R

    def helperA(self):
        e = self.e
        NS = self.NS
        S_RB, S_CB = 40, 41
        SX, SW, SWS, SJ = 8, 12, 44, 48
        SM = 84
        VW, VT, VQL = 3, 4, 9
        T, TGL, VP, VL16 = 10, 14, 18, 19
        XA, VW2, VXS, XC, F, XOP = 20, 25, 26, 28, 52, 68
        ACC, RES, RING, GQ = 84, 92, 96, 192
        VG0, VG1 = 66, 67
        e("L_helperA:")
        e("s_setprio 3")
        e(f"v_mul_u32_u24 v{VW}, 0x18000, v1")
        e(f"v_lshl_add_u32 v{VW}, v2, 4, v{VW}")
        e(f"v_lshlrev_b32 v{VL16}, 4, v0")
        e(f"v_lshlrev_b32 v{T}, 2, v0")
        e(f"s_mul_i32 s42, s{S_RB}, {64 * 12288}")
        e(f"s_mul_i32 s43, s{S_X}, 384")
        e("s_add_u32 s42, s42, s43")
        e(f"s_lshl_b32 s6, s{S_CB}, 7")
        e("s_add_u32 s42, s42, s6")
        e("s_waitcnt lgkmcnt(0)")
        self.srd(SX, P_X, 1280)
        self.srd(SW, P_WQ, 640 * 12288)
        e(f"buffer_load_dwordx4 v[{XA}:{XA + 3}], v{VL16}, s[{SX}:{SX + 3}], 0 offen")
        e(f"buffer_load_dword v{XA + 4}, v{T}, s[{SX}:{SX + 3}], 0 offen offset:1024")
        for i in range(8):
            e(f"buffer_load_dwordx4 v[{GQ + 4 * i}:{GQ + 4 * i + 3}], v{VW}, s[{SW}:{SW + 3}], s42 offen nt")
            if i < 7:
                e("s_add_u32 s42, s42, 12288")
        e(f"s_mov_b32 s6, {WS_EPOCH}")
        e(f"s_load_dword s{S_TAG}, s[{P_WS}:{P_WS + 1}], s6")
        e("s_barrier")
        self.srd(SWS, P_WS, WS_SIZE)
        self.c("second job: half of the rows of one 64-column block of wq (heads 1..3), gate or up")
        e(f"s_lshr_b32 s52, s{S_C}, 1")
        e(f"s_and_b32 s53, s{S_C}, 1")
        e("s_mul_i32 s54, s52, 43691")
        e("s_lshr_b32 s54, s54, 17")
        e("s_mul_i32 s55, s54, 3")
        e("s_sub_u32 s55, s52, s55")
        e("s_cmp_eq_u32 s54, 3")
        e(f"s_cselect_b32 s{SJ}, s{P_G}, s{P_U}")
        e(f"s_cselect_b32 s{SJ + 1}, s{P_G + 1}, s{P_U + 1}")
        e("s_add_u32 s6, s54, 1")
        e("s_mul_i32 s6, s6, 3072")
        e("s_movk_i32 s56, 0xc00")
        e("s_cmp_lt_u32 s54, 3")
        e(f"s_cselect_b32 s{SJ}, s{P_WQ}, s{SJ}")
        e(f"s_cselect_b32 s{SJ + 1}, s{P_WQ + 1}, s{SJ + 1}")
        e("s_cselect_b32 s56, 12288, s56")
        e("s_cselect_b32 s6, s6, 0")
        e(f"s_mul_i32 s{SJ + 2}, s56, 640")
        e("s_cmp_lt_u32 s54, 5")
        e(f"s_cselect_b32 s{SJ + 2}, s{SJ + 2}, 0")
        e(f"s_mov_b32 s{SJ + 3}, 0x20000")
        e("s_add_u32 s42, s43, s6")
        e("s_lshl_b32 s6, s55, 7")
        e("s_add_u32 s42, s42, s6")
        e("s_mul_i32 s6, s56, 320")
        e("s_mul_i32 s6, s6, s53")
        e("s_add_u32 s42, s42, s6")
        e("s_mul_i32 s57, s56, 57")
        e("s_lshl_b32 s6, s56, 3")
        e(f"v_mul_u32_u24 v{VW2}, s6, v1")
        e(f"v_lshl_add_u32 v{VW2}, v2, 4, v{VW2}")
        e(f"v_lshrrev_b32 v{VP}, 4, v0")
        e(f"v_lshlrev_b32 v{VP}, 7, v{VP}")
        e(f"v_lshl_add_u32 v{VP}, v2, 4, v{VP}")
        e(f"v_and_b32 v{T + 1}, 3, v1")
        e(f"v_lshlrev_b32 v{VQL}, 4, v2")
        e(f"v_lshl_add_u32 v{VQL}, v{T + 1}, 2, v{VQL}")
        e(f"v_and_b32 v{T + 1}, 31, v0")
        e(f"v_lshlrev_b32 v{T + 1}, 4, v{T + 1}")
        e(f"v_lshrrev_b32 v{T + 2}, 5, v0")
        e(f"v_mul_u32_u24 v{VG0}, 1536, v{T + 2}")
        e(f"v_add_u32 v{VG0}, v{VG0}, v{T + 1}")
        e(f"v_mul_u32_u24 v{VG1}, 7680, v{T + 2}")
        e(f"v_add_u32 v{VG1}, v{VG1}, v{T + 1}")
        e(f"s_lshl_b32 s6, s{S_RB}, 7")
        e(f"v_lshl_add_u32 v{VXS}, v1, 4, s6")
        e("s_mul_i32 s6, s53, 640")
        e(f"v_lshl_add_u32 v{VXS + 1}, v1, 4, s6")
        for k in range(8):
            e(f"v_mov_b32 v{ACC + k}, 0")

        def job_load(i):
            r = RING + 4 * (i % 24)
            e(f"buffer_load_dwordx4 v[{r}:{r + 3}], v{VW2}, s[{SJ}:{SJ + 3}], s42 offen nt")
            if i < 39:
                e(f"s_add_u32 s42, s42, s{57 if i % 8 == 7 else 56}")
            if i == self.go_at:
                e(f"v_mov_b32 v{VT}, {L_FLG}")
                e(f"v_mov_b32 v{VT + 1}, 1")
                e(f"ds_write_b32 v{VT}, v{VT + 1}")

        ae = self.a_early
        e("s_waitcnt vmcnt(8)")
        self.stamp(1)
        for i in range(ae):
            job_load(i)
        self.layernorm(XA, F)
        e(f"ds_write_b128 v{VL16}, v[{XA}:{XA + 3}] offset:{L_XN}")
        e(f"ds_write_b32 v{T}, v{XA + 4} offset:{L_XN + 1024}")
        e(f"ds_read_b128 v[{XC}:{XC + 3}], v{VXS} offset:{L_XN}")
        for u in range(5):
            e(f"ds_read_b128 v[{XC + 4 + 4 * u}:{XC + 7 + 4 * u}], v{VXS + 1} offset:{L_XN + 128 * u}")
        e("s_waitcnt lgkmcnt(0)")
        e(f"s_add_u32 s{S_TAG}, s{S_TAG}, {hex(NONCE_STEP)}")
        self.expand(XC, XOP)
        self.tag_regs(RES)
        for i in range(8):
            e(f"s_waitcnt vmcnt({7 - i + ae})")
            self.gemv_row(GQ + 4 * i, XOP + 2 * i, ACC)
        self.reduce_g2(ACC, RES)
        e(f"s_mul_i32 s58, s{S_X}, 15360")
        e(f"s_lshl_b32 s6, s{S_C}, 9")
        e("s_add_u32 s6, s6, s58")
        e(f"s_cmp_lt_u32 s{S_C}, 30")
        e(f"s_cselect_b32 s6, s6, {WS_SIZE}")
        self.exec_tagged()
        e(f"buffer_store_dwordx4 v[{RES}:{RES + 3}], v{VP}, s[{SWS}:{SWS + 3}], s6 offen sc1")
        e("s_mov_b64 exec, -1")
        self.stamp(2)
        cap = self.capA
        assert ae <= cap <= 23

        def job_consume(j):
            if j % 8 == 0:
                self.expand(XC + 4 + 4 * (j // 8), XOP)
            self.gemv_row(RING + 4 * (j % 24), XOP + 2 * (j % 8), ACC)

        for i in range(ae, 40):
            if i >= cap:
                e(f"s_waitcnt vmcnt({cap - 1})")
            job_load(i)
            if i == max(ae, cap - 1):
                self.set_lds(L_TAG, f"s{S_TAG}", VT)
                self.set_lds(L_FLN, 1, VT)
                for k in range(8):
                    e(f"v_mov_b32 v{ACC + k}, 0")
            if i >= cap:
                job_consume(i - cap)
        self.stamp(3)

        def rest_of_job():
            for j in range(40 - cap, 40):
                e(f"s_waitcnt vmcnt({39 - j + 15})")
                job_consume(j)

        def finish_q(regs, lds0):
            for r in regs:
                e(f"v_mov_b32 v{r + 1}, v{r}")
                e(f"v_mov_b32 v{r + 3}, v{r + 2}")
            e("s_nop 0")
            for r in regs:
                e(f"v_permlane32_swap_b32 v{r}, v{r + 1}")
                e(f"v_permlane32_swap_b32 v{r + 2}, v{r + 3}")
            for r in regs:
                e(f"v_add_f32 v{r}, v{r}, v{r + 1}")
                e(f"v_add_f32 v{r + 2}, v{r + 2}, v{r + 3}")
            for i, r in enumerate(regs):
                e(f"v_cvt_pk_bf16_f32 v{r}, v{r}, v{r + 2}")
                e(f"ds_write_b32 v{VQL}, v{r} offset:{lds0 + 128 * i}")

        for k in range(5):
            e(f"s_add_u32 s{SM + k}, s58, {3072 * k}")
        loads = [f"buffer_load_dwordx4 v[{GQ + 12 * k + 4 * cb}:{GQ + 12 * k + 4 * cb + 3}], v{VG0}, s[{SWS}:{SWS + 3}], "
                 f"s{SM + k} offen offset:{512 * cb} sc1" for k in range(5) for cb in range(3)]
        self.gather_tagged(loads, GQ, 15, VT, sleep=4, between=rest_of_job)
        self.stamp(4)
        for k in range(1, 5):
            for j in range(0, 12, 2):
                e(f"v_add_f32 v{GQ + j}, v{GQ + j}, v{GQ + 12 * k + j}")
        finish_q([GQ, GQ + 4, GQ + 8], L_Q)
        self.set_lds(L_FLQ, 1, VT)
        self.stamp(5)
        e("s_setprio 0")
        self.reduce_g2(ACC, RES)
        e("s_mul_i32 s6, s53, 7680")
        e("s_lshl_b32 s7, s52, 9")
        e("s_add_u32 s6, s6, s7")
        e("s_add_u32 s6, s6, s58")
        e(f"s_add_u32 s6, s6, {WS_PA1}")
        e(f"s_cmp_lt_u32 s{S_C}, 30")
        e(f"s_cselect_b32 s6, s6, {WS_SIZE}")
        self.exec_tagged()
        e(f"buffer_store_dwordx4 v[{RES}:{RES + 3}], v{VP}, s[{SWS}:{SWS + 3}], s6 offen sc1")
        e("s_mov_b64 exec, -1")
        self.wait_lds(L_FIT, self.it_q, VT, n=NS, sleep=8)
        e(f"s_add_u32 s6, s58, {WS_PA1}")
        e("s_add_u32 s7, s6, 4096")
        loads = [f"buffer_load_dwordx4 v[{GQ + 4 * j}:{GQ + 4 * j + 3}], v{VG1}, s[{SWS}:{SWS + 3}], "
                 f"s{6 + j // 8} offen offset:{512 * (j % 8)} sc1" for j in range(9)]
        self.gather_tagged(loads, GQ, 9, VT, sleep=32)
        finish_q([GQ + 4 * j for j in range(9)], L_Q + 384)
        self.set_lds(L_FLQ, 4, VT)
        self.stamp(6)
        self.make_tags(TGL)
        SCR, ST, OPR = 128, 160, 180

        M, LS, VS32 = 20, 21, 22
        U = 24

        def unpack(r):
            for k in range(8):
                e(f"v_lshlrev_b32 v{U + 2 * k}, 16, v{SCR + 8 * r + k}")
                e(f"v_and_b32 v{U + 2 * k + 1}, 0xffff0000, v{SCR + 8 * r + k}")

        def local_stats(r):
            self.wait_lds(L_FLS, r + 1, VT, n=NS, sleep=8)
            e(f"v_lshlrev_b32 v{VS32}, 5, v0")
            b = SCR + 8 * r
            e(f"ds_read_b128 v[{b}:{b + 3}], v{VS32} offset:{L_SC + 2048 * r}")
            e(f"ds_read_b128 v[{b + 4}:{b + 7}], v{VS32} offset:{L_SC + 2048 * r + 16}")
            e("s_waitcnt lgkmcnt(0)")
            unpack(r)
            for k in range(16):
                e(f"v_mul_f32 v{U + k}, {hex(SCALE)}, v{U + k}")
            for k in range(8):
                e(f"v_cvt_pk_bf16_f32 v{b + k}, v{U + 2 * k}, v{U + 2 * k + 1}")
            unpack(r)
            e(f"v_max_f32 v{M}, v{U}, v{U + 1}")
            for k in range(2, 16, 2):
                e(f"v_max3_f32 v{M}, v{M}, v{U + k}, v{U + k + 1}")
            self.allreduce("v_max_f32", M, T)
            for k in range(16):
                e(f"v_sub_f32 v{U + k}, v{U + k}, v{M}")
            for k in range(16):
                e(f"v_mul_f32 v{U + k}, {hex(LOG2E)}, v{U + k}")
            for k in range(16):
                e(f"v_exp_f32 v{U + k}, v{U + k}")
            e("s_nop 0")
            e(f"v_add_f32 v{LS}, v{U}, v{U + 1}")
            for k in range(2, 16):
                e(f"v_add_f32 v{LS}, v{LS}, v{U + k}")
            self.allreduce("v_add_f32", LS, T)
            e(f"v_cmp_eq_u32 vcc, {r % 3}, v0")
            e("s_nop 1")
            e(f"v_cndmask_b32 v{ST}, v{ST}, v{M}, vcc")
            e(f"v_cndmask_b32 v{ST + 2}, v{ST + 2}, v{LS}, vcc")

        def publish_stats(base, shift, lanes):
            self.tag_regs(ST)
            e(f"s_lshl_b32 s6, s{S_X}, {shift + 5}")
            e(f"s_lshl_b32 s7, s{S_C}, {shift}")
            e("s_add_u32 s6, s6, s7")
            e(f"s_add_u32 s6, s6, {base}")
            e(f"s_mov_b64 exec, {(1 << lanes) - 1}")
            e(f"buffer_store_dwordx4 v[{ST}:{ST + 3}], v{VL16}, s[{SWS}:{SWS + 3}], s6 offen sc1")
            e("s_mov_b64 exec, -1")
            e("s_nop 1")

        def gather_stats(base, shift, n):
            e(f"v_and_b32 v{T + 1}, 31, v0")
            e(f"v_lshlrev_b32 v{T + 1}, {shift}, v{T + 1}")
            e(f"s_lshl_b32 s6, s{S_X}, {shift + 5}")
            e(f"s_add_u32 s6, s6, {base}")
            self.gather_tagged([f"buffer_load_dwordx4 v[{ST + 4 + 4 * k}:{ST + 7 + 4 * k}], v{T + 1}, s[{SWS}:{SWS + 3}], "
                                f"s6 offen offset:{16 * k} sc1" for k in range(n)], ST + 4, n, VT, sleep=32)

        def finalize_p(r):
            G = ST + 4 + 4 * (r % 3)
            e(f"v_mov_b32 v{M}, v{G}")
            self.allreduce("v_max_f32", M, T)
            e(f"v_sub_f32 v{G}, v{G}, v{M}")
            e(f"v_mul_f32 v{G}, {hex(LOG2E)}, v{G}")
            e(f"v_exp_f32 v{G}, v{G}")
            e("s_nop 0")
            e(f"v_mul_f32 v{LS}, v{G}, v{G + 2}")
            self.allreduce("v_add_f32", LS, T)
            e(f"v_mul_f32 v{LS}, 0.5, v{LS}")
            e(f"v_rcp_f32 v{LS}, v{LS}")
            unpack(r)
            for k in range(16):
                e(f"v_sub_f32 v{U + k}, v{U + k}, v{M}")
            for k in range(16):
                e(f"v_mul_f32 v{U + k}, {hex(LOG2E)}, v{U + k}")
            for k in range(16):
                e(f"v_exp_f32 v{U + k}, v{U + k}")
            e("s_nop 0")
            for k in range(16):
                e(f"v_mul_f32 v{U + k}, v{U + k}, v{LS}")
            b = SCR + 8 * r
            for k in range(8):
                e(f"v_cvt_pk_bf16_f32 v{b + k}, v{U + 2 * k}, v{U + 2 * k + 1}")
            e(f"ds_write_b128 v{VS32}, v[{b}:{b + 3}] offset:{L_SC + 2048 * r}")
            e(f"ds_write_b128 v{VS32}, v[{b + 4}:{b + 7}] offset:{L_SC + 2048 * r + 16}")
            self.set_lds(L_FLP, r + 1, VT)

        def reduce_op(r):
            self.wait_lds(L_FLS, r + 5, VT, n=NS, sleep=8)
            D, O = 40, OPR + 4 * r
            for i in range(16):
                d = D + 4 * i
                e(f"ds_read_b128 v[{d}:{d + 3}], v{VQL} offset:{L_DUMP + r * self.dump_bytes + 768 * i}")
                if i == 7:
                    e("s_waitcnt lgkmcnt(7)")
            for i in range(1, 16):
                e(f"s_waitcnt lgkmcnt({15 - i})")
                for k in range(4):
                    e(f"v_add_f32 v{O + k}, v{D + k if i == 1 else O + k}, v{D + 4 * i + k}")
            self.embed(O, TGL)

        e("s_getreg_b32 s59, hwreg(HW_REG_XCC_ID, 0, 4)")
        e(f"v_mov_b32 v{ST}, s59")
        e(f"v_mov_b32 v{ST + 2}, s59")
        for r in range(3):
            local_stats(r)
        publish_stats(WS_STA, 6, 4)
        self.wait_lds(L_FIT, 24 + self.it_st, VT, n=NS, sleep=8)
        gather_stats(WS_STA, 6, 4)
        e(f"v_cmp_ne_u32 vcc, s59, v{ST + 16}")
        e("s_nop 1")
        e("s_cmp_eq_u64 vcc, 0")
        e(f"s_cselect_b32 s59, {1 if self.local else 0}, 0")
        self.set_lds(L_LOC, "s59", VT)
        for r in range(3):
            finalize_p(r)
        self.stamp(7)
        local_stats(3)
        publish_stats(WS_STB, 4, 1)
        self.wait_lds(L_FIT, 32 + self.it_st + 2, VT, n=NS, sleep=8)
        gather_stats(WS_STB, 4, 1)
        finalize_p(3)
        e(f"v_lshrrev_b32 v{VQL}, 4, v0")
        e(f"v_lshlrev_b32 v{VQL}, 8, v{VQL}")
        e(f"v_lshl_add_u32 v{VQL}, v2, 5, v{VQL}")
        e(f"v_and_b32 v{T + 1}, 1, v1")
        e(f"v_lshl_add_u32 v{VQL}, v{T + 1}, 4, v{VQL}")
        for r in range(3):
            reduce_op(r)
        e(f"v_lshrrev_b32 v{T}, 4, v0")
        e(f"v_lshlrev_b32 v{T}, 13, v{T}")
        e(f"v_and_b32 v{T + 1}, 15, v0")
        e(f"v_lshl_add_u32 v{T}, v{T + 1}, 4, v{T}")
        e(f"s_mul_i32 s6, s{S_X}, {4 * 24576}")
        e(f"s_lshl_b32 s7, s{S_C}, 8")
        e("s_add_u32 s6, s6, s7")
        e(f"s_add_u32 s6, s6, {WS_OP}")
        e("s_mov_b32 exec_hi, 0xffff")
        e("s_cmp_lg_u32 s59, 0")
        e("s_cbranch_scc1 L_ha_local")
        for fl in (" sc1", ""):
            for r in range(3):
                e(f"buffer_store_dwordx4 v[{OPR + 4 * r}:{OPR + 4 * r + 3}], v{T}, s[{SWS}:{SWS + 3}], s6 offen{fl}")
                if r < 2:
                    e("s_add_u32 s6, s6, 24576")
            if fl:
                e("s_branch L_ha_end")
                e("L_ha_local:")
        e("L_ha_end:")
        self.stamp(8)
        self.prof_store(9)
        e("s_endpgm")
        return GQ + 60

    def controller(self, upto, vt, sws, marker=True):
        e = self.e
        dn = self.label("ctd")
        if self.xg and marker:
            lp = self.label("ct")
            e(f"s_cmp_lg_u32 s{S_C}, {self.rep_c}")
            e(f"s_cbranch_scc1 {dn}")
            e("s_mov_b32 s58, 8")
            e(f"s_mul_i32 s55, s{S_X}, {PR_STRIDE}")
            e(f"s_add_u32 s55, s55, {WS_PR + 252}")
            e(f"{lp}:")
            self.wait_lds(L_FIT, "s58", vt, n=self.NS, sleep=1)
            e(f"s_mul_i32 s59, s58, {PR_STRIDE}")
            e(f"s_add_u32 s59, s59, {WS_RK}")
            e("s_mov_b32 s6, 1")
            e(f"s_atomic_add s6, s[{P_WS}:{P_WS + 1}], s59 glc")
            e(f"s_add_u32 s7, s{S_TAG}, 0x1000")
            e("s_waitcnt lgkmcnt(0)")
            e("s_add_u32 s6, s6, s7")
            e(f"v_mov_b32 v{vt}, s6")
            e("s_mov_b64 exec, 1")
            e(f"buffer_store_dword v{vt}, v{vt + 4}, s[{sws}:{sws + 3}], s55 offen")
            e("s_mov_b64 exec, -1")
            e(f"s_add_u32 s58, s58, {self.xstep}")
            e(f"s_cmp_lt_u32 s58, {upto}")
            e(f"s_cbranch_scc1 {lp}")
        e(f"{dn}:")
        self.wait_lds(L_FIT, upto, vt, n=self.NS, sleep=8)

    def helperB(self):
        e = self.e
        NS = self.NS
        S_RB, S_CB = 40, 41
        SX, SA, SWS = 8, 12, 44
        SM = 84
        VA, VT = 3, 4
        G0, WK, YA = 12, 44, 76
        TGL, TGG, VP, VG = 84, 88, 92, 93
        W = 96
        e("L_helperB:")
        e(f"v_mul_u32_u24 v{VA}, 0x2800, v1")
        e(f"v_lshl_add_u32 v{VA}, v2, 4, v{VA}")
        for k in range(4):
            e(f"v_mov_b32 v{VT + k}, 0")
        for k in range(4):
            e(f"ds_write_b128 v{VT}, v[{VT}:{VT + 3}] offset:{16 * k}")
        e(f"s_mul_i32 s43, s{S_X}, {192 * 1280}")
        e(f"s_mul_i32 s6, s{S_CB}, {64 * 1280}")
        e("s_add_u32 s43, s43, s6")
        e(f"s_lshl_b32 s6, s{S_RB}, 7")
        e("s_add_u32 s43, s43, s6")
        e("s_waitcnt lgkmcnt(0)")
        self.srd(SA, P_WO, 6144 * 1280)
        e("s_barrier")
        e(f"s_cmp_ge_u32 s{S_C}, 30")
        e("s_cbranch_scc1 L_hb_tags")
        for i in range(40):
            n, ii = divmod(i, 8)
            if i == 32:
                self.srd(SA, P_D, 1536 * 1280)
            if ii % 4 == 0:
                e(f"s_add_u32 s42, s43, {(8 * 192 * 1280 * n if n < 4 else 0) + 1280 * ii}")
            if i >= self.capB:
                e(f"s_waitcnt vmcnt({self.capB - 1})")
            r = W + 4 * i
            e(f"buffer_load_dwordx4 v[{r}:{r + 3}], v{VA}, s[{SA}:{SA + 3}], s42 offen offset:{1280 * (ii % 4)} nt")
        self.stamp(1)
        e("L_hb_tags:")
        if self.prof:
            e("s_mov_b32 s78, 0")
        self.srd(SX, P_X, 1280)
        self.srd(SWS, P_WS, WS_SIZE)
        self.wait_lds(L_FLN, 1, VT, sleep=4)
        self.read_tag(VT)
        self.make_tags(TGL)
        e(f"s_cmp_ge_u32 s{S_C}, 30")
        e("s_cbranch_scc1 L_finisher")
        e(f"v_lshrrev_b32 v{VP}, 5, v0")
        e(f"v_lshlrev_b32 v{VP}, 7, v{VP}")
        e(f"v_lshl_add_u32 v{VP}, v2, 4, v{VP}")
        e(f"s_mul_i32 s54, s{S_RB}, 24")
        e(f"s_mul_i32 s7, s{S_X}, 3")
        e("s_add_u32 s54, s54, s7")
        e(f"s_add_u32 s54, s54, s{S_CB}")
        e("s_lshl_b32 s54, s54, 8")
        e(f"s_add_u32 s54, s54, {WS_YB}")
        e("s_mov_b32 s48, 0x05040100")
        e("s_mov_b32 s49, 0x07060302")

        def permute(n):
            for pr in range(4):
                for k in range(4):
                    lo, hi = W + 32 * n + 8 * pr + k, W + 32 * n + 8 * pr + 4 + k
                    e(f"v_perm_b32 v{WK + 8 * pr + 2 * k}, v{hi}, v{lo}, s48")
                    e(f"v_perm_b32 v{WK + 8 * pr + 2 * k + 1}, v{hi}, v{lo}, s49")

        OV = G0 + 24

        def gemv():
            for pr in range(4):
                for c_ in range(8):
                    e(f"v_dot2c_f32_bf16 v{YA + c_}, v{WK + 8 * pr + c_}, v{OV + pr}")

        self.c("ffn hidden slice")
        self.wait_lds(L_FLQ, 4, VT, sleep=8)
        e(f"v_lshlrev_b32 v{VG}, 4, v1")
        e(f"v_and_b32 v{VA}, 1, v2")
        e(f"v_mul_u32_u24 v{VA}, 7680, v{VA}")
        e(f"v_add_u32 v{VA}, v{VA}, v{VG}")
        e(f"s_mul_i32 s6, s{S_X}, 15360")
        e(f"s_lshl_b32 s7, s{S_CB}, 9")
        e("s_add_u32 s6, s6, s7")
        e(f"s_add_u32 s6, s6, {WS_PA1 + 9 * 512}")
        loads = [f"buffer_load_dwordx4 v[{G0 + 16 * m + 4 * q}:{G0 + 16 * m + 4 * q + 3}], v{VA}, "
                 f"s[{SWS}:{SWS + 3}], s6 offen offset:{1536 * m + 128 * q} sc1" for m in range(2) for q in range(4)]
        self.gather_tagged(loads, G0, 8, VT, sleep=32)
        GA, UA, Z = WK, WK + 8, WK + 16
        for k in range(16):
            e(f"v_add_f32_dpp v{GA + k}, v{G0 + 2 * k}, v{G0 + 2 * k} {X1}")
        for k in range(8):
            self.round_bf16(GA + k)
            self.round_bf16(UA + k)
        c2 = -2.0 * 0.7978845608028654 * 1.4426950408889634
        e(f"s_mov_b32 s6, {hex(f2u(0.044715))}")
        for k in range(8):
            e(f"v_mul_f32 v{Z + k}, v{GA + k}, v{GA + k}")
        for k in range(8):
            e(f"v_mul_f32 v{Z + k}, v{Z + k}, v{GA + k}")
        for k in range(8):
            e(f"v_fma_f32 v{Z + k}, v{Z + k}, s6, v{GA + k}")
        for k in range(8):
            e(f"v_mul_f32 v{Z + k}, {hex(f2u(c2))}, v{Z + k}")
        for k in range(8):
            e(f"v_exp_f32 v{Z + k}, v{Z + k}")
        for k in range(8):
            e(f"v_add_f32 v{Z + k}, 1.0, v{Z + k}")
        for k in range(8):
            e(f"v_rcp_f32 v{Z + k}, v{Z + k}")
        for k in range(8):
            e(f"v_mul_f32 v{Z + k}, v{Z + k}, v{GA + k}")
        for k in range(8):
            self.round_bf16(Z + k)
        for k in range(8):
            e(f"v_mul_f32 v{Z + k}, v{Z + k}, v{UA + k}")
        for k in range(4):
            e(f"v_cvt_pk_bf16_f32 v{OV + k}, v{Z + 2 * k}, v{Z + 2 * k + 1}")
        permute(4)
        for k in range(8):
            e(f"v_mov_b32 v{YA + k}, 0")
        e(f"v_lshl_add_u32 v{VG}, v2, 8, v{VG}")
        e(f"s_mul_i32 s52, s{S_X}, {4 * 24576}")
        e(f"s_lshl_b32 s7, s{S_CB}, 13")
        e("s_add_u32 s52, s52, s7")
        e(f"s_add_u32 s52, s52, {WS_OP}")
        e("s_mov_b32 s50, -1")
        e("s_branch L_hb_gemv")

        self.c("s50 = head round; each pass multiplies one 64-row vector slice with its weight block")
        e("L_hb_round:")
        for r in range(4):
            nx = self.label("hbr")
            e(f"s_cmp_lg_u32 s50, {r}")
            e(f"s_cbranch_scc1 {nx}")
            permute(r)
            if r == 0:
                self.controller(56 + self.it_op, VT, SWS)
            if r == 3:
                self.stamp(3)
                self.wait_lds(L_FIT, 64, VT, n=NS, sleep=1)
                self.stamp(4)
            e(f"{nx}:")
        e("s_add_u32 s53, s52, 4096")
        e("s_sub_u32 s51, 3, s50")
        groups = []
        for j in range(4):
            groups.append(([f"buffer_load_dwordx4 v[{G0 + 8 * j + 4 * q}:{G0 + 8 * j + 4 * q + 3}], v{VG}, "
                            f"s[{SWS}:{SWS + 3}], s{52 + j // 2} offen offset:{2048 * (j % 2) + 128 * q} sc1"
                            for q in range(2)], G0 + 8 * j, 2))
        self.gather_emb(groups, TGL, VT, SM, sleep="s51")
        self.stamp(5)
        for k in range(8):
            e(f"v_add_f32 v{G0 + k}, v{G0 + k}, v{G0 + 8 + k}")
            e(f"v_add_f32 v{G0 + 16 + k}, v{G0 + 16 + k}, v{G0 + 24 + k}")
        for k in range(8):
            e(f"v_add_f32 v{G0 + k}, v{G0 + k}, v{G0 + 16 + k}")
        for pat in (X1, X2, HM):
            for k in range(8):
                e(f"v_add_f32_dpp v{G0 + k}, v{G0 + k}, v{G0 + k} {pat}")
        for k in range(4):
            e(f"v_cvt_pk_bf16_f32 v{OV + k}, v{G0 + 2 * k}, v{G0 + 2 * k + 1}")
        e("s_add_u32 s52, s52, 24576")
        e("L_hb_gemv:")
        gemv()
        e("s_add_u32 s50, s50, 1")
        e("s_and_b32 s51, s50, 3")
        e("s_cbranch_scc1 L_hb_round")
        self.reduce_g(YA, G0, G0 + 4)
        self.embed(G0, TGL)
        e("s_mov_b32 exec_lo, 0xff")
        e("s_mov_b32 exec_hi, 0xff")
        e(f"buffer_store_dwordx4 v[{G0}:{G0 + 3}], v{VP}, s[{SWS}:{SWS + 3}], s54 offen {self.ya_fl}")
        e("s_mov_b64 exec, -1")
        e("s_cmp_lg_u32 s50, 0")
        e("s_cbranch_scc1 L_hb_done")
        self.stamp(2)
        e(f"s_sub_u32 s54, s54, {WS_YB - WS_YA}")
        for k in range(8):
            e(f"v_mov_b32 v{YA + k}, 0")
        e("s_branch L_hb_round")
        e("L_hb_done:")
        self.stamp(6)
        self.prof_store(8)
        e("s_endpgm")

        self.c("finisher: sums the projection partials of one 64-column block and writes the output")
        e("L_finisher:")
        e(f"s_sub_u32 s56, s{S_C}, 30")
        e("s_lshl_b32 s56, s56, 3")
        e(f"s_add_u32 s56, s56, s{S_X}")
        XV, BV = 64, 72
        e(f"v_lshlrev_b32 v{VG}, 4, v0")
        e(f"v_and_b32 v{VA}, 1, v1")
        e(f"v_lshlrev_b32 v{VA}, 3, v{VA}")
        e(f"v_lshl_add_u32 v{VA}, v2, 4, v{VA}")
        e("s_lshl_b32 s57, s56, 7")
        e(f"buffer_load_dwordx2 v[{XV}:{XV + 1}], v{VA}, s[{SX}:{SX + 3}], s57 offen")
        self.srd(SA, P_OUT, 1280)
        e("s_mul_i32 s52, s56, 6144")
        e(f"s_add_u32 s52, s52, {WS_YB}")
        if self.xg:
            e("s_cmp_lg_u32 s56, 15")
            e("s_cbranch_scc1 L_norank")
            e(f"v_mul_u32_u24 v{VT}, {PR_STRIDE}, v0")
            e(f"v_mov_b32 v{VT + 1}, 0")
            e(f"s_mov_b32 s6, {WS_RK}")
            e(f"buffer_store_dword v{VT + 1}, v{VT}, s[{SWS}:{SWS + 3}], s6 offen sc1")
            e("L_norank:")
        e("s_cmp_ge_u32 s56, 10")
        e("s_cbranch_scc1 L_exit")
        e("s_mov_b32 s50, 16")
        e("s_mov_b32 s51, 1")
        e("L_fin_pass:")
        self.wait_lds(L_FIT, "s50", VT, n=NS, sleep=1)
        self.stamp(4)
        e("s_add_u32 s53, s52, 4096")
        if not self.fsets:
            groups = [([f"buffer_load_dwordx4 v[{G0 + 4 * i}:{G0 + 4 * i + 3}], v{VG}, s[{SWS}:{SWS + 3}], "
                        f"s{52 + i // 4} offen offset:{1024 * (i % 4)} sc1"], G0 + 4 * i, 1) for i in range(6)]
            self.gather_emb(groups, TGL, VT, SM, sleep="s51", whole=True)
            self.stamp(5)
            for i in (0, 2, 4):
                for k in range(4):
                    e(f"v_add_f32 v{G0 + 4 * i + k}, v{G0 + 4 * i + k}, v{G0 + 4 * i + 4 + k}")
            for i in (2, 4):
                for k in range(4):
                    e(f"v_add_f32 v{G0 + k}, v{G0 + k}, v{G0 + 4 * i + k}")
        else:
            ns = self.fsets

            def poll(k):
                for i in range(6):
                    r = W + 24 * k + 4 * i
                    e(f"buffer_load_dwordx4 v[{r}:{r + 3}], v{VG}, s[{SWS}:{SWS + 3}], s{52 + i // 4} "
                      f"offen offset:{1024 * (i % 4)} sc1")

            e(f"s_mov_b32 s62, {SPIN_G}")
            e("s_waitcnt vmcnt(0)")
            for k in range(ns):
                poll(k)
            e("L_fin_poll:")
            for k in range(ns):
                r0 = W + 24 * k
                e(f"s_waitcnt vmcnt({6 * (ns - 1)})")
                for j in range(24):
                    e(f"v_xor_b32 v{r0 + j}, v{r0 + j}, v{TGL + j % 4}")
                e(f"v_or_b32 v{VT}, v{r0}, v{r0 + 1}")
                for j in range(2, 24, 2):
                    e(f"v_or3_b32 v{VT}, v{VT}, v{r0 + j}, v{r0 + j + 1}")
                e(f"v_and_b32 v{VT}, s61, v{VT}")
                e(f"v_cmp_ne_u32 vcc, 0, v{VT}")
                for j in range(4):
                    e(f"v_add_f32 v{G0 + j}, v{r0 + j}, v{r0 + 4 + j}")
                for i in range(2, 6):
                    for j in range(4):
                        e(f"v_add_f32 v{G0 + j}, v{G0 + j}, v{r0 + 4 * i + j}")
                e("s_cbranch_vccz L_fin_got")
                poll(k)
            e("s_cmp_eq_u32 s51, 0")
            e("s_cbranch_scc1 L_fin_nosleep")
            e("s_sleep 32")
            e("L_fin_nosleep:")
            e("s_sub_u32 s62, s62, 1")
            e("s_cmp_lg_u32 s62, 0")
            e("s_cbranch_scc1 L_fin_poll")
            e("s_endpgm")
            e("L_fin_got:")
            self.stamp(5)
        for sw in ("v_permlane16_swap_b32", "v_permlane32_swap_b32"):
            for k in range(4):
                e(f"v_mov_b32 v{G0 + 4 + k}, v{G0 + k}")
            e("s_nop 0")
            for k in range(4):
                e(f"{sw} v{G0 + k}, v{G0 + 4 + k}")
            e("s_nop 0")
            for k in range(4):
                e(f"v_add_f32 v{G0 + k}, v{G0 + k}, v{G0 + 4 + k}")
        for k in range(4):
            self.round_bf16(G0 + k)
        e("s_cmp_lg_u32 s51, 0")
        e("s_cbranch_scc1 L_fin_first")
        for k in range(4):
            e(f"v_add_f32 v{G0 + k}, v{G0 + k}, v{XV + 2 + k}")
        for k in range(4):
            self.round_bf16(G0 + k)
        for k in range(4):
            e(f"v_add_f32 v{G0 + k}, v{G0 + k}, v{BV + k}")
        e(f"v_cvt_pk_bf16_f32 v{G0}, v{G0}, v{G0 + 1}")
        e(f"v_cvt_pk_bf16_f32 v{G0 + 1}, v{G0 + 2}, v{G0 + 3}")
        e("s_mov_b64 exec, 0xffff")
        e(f"buffer_store_dwordx2 v[{G0}:{G0 + 1}], v{VA}, s[{SA}:{SA + 3}], s57 offen")
        e("s_cmp_lg_u32 s56, 0")
        e("s_cbranch_scc1 L_fin_done")
        self.c("the next launch derives a different tag from this word")
        e(f"v_mov_b32 v{VT}, s{S_TAG}")
        e(f"v_mov_b32 v{VT + 1}, {WS_EPOCH}")
        e("s_mov_b64 exec, 1")
        e(f"buffer_store_dword v{VT}, v{VT + 1}, s[{SWS}:{SWS + 3}], 0 offen")
        e("L_fin_done:")
        if self.diag_dbg:
            e("s_memrealtime s[66:67]")
            e("s_waitcnt lgkmcnt(0)")
            e("s_sub_u32 s66, s66, s64")
            self.srd(48, P_DBG, 256)
            e(f"v_mov_b32 v{VT}, s66")
            e("s_lshl_b32 s6, s56, 2")
            e(f"v_mov_b32 v{VT + 1}, s6")
            e("s_mov_b64 exec, 1")
            e(f"buffer_store_dword v{VT}, v{VT + 1}, s[48:51], 0 offen")
        if self.diag_hold:
            if self.diag_who is not None:
                e("s_getreg_b32 s6, hwreg(HW_REG_XCC_ID, 0, 4)")
                e(f"s_cmp_lg_u32 s6, {self.diag_who}")
                e("s_cbranch_scc1 L_exit")
            e("L_hold:")
            e("s_memrealtime s[66:67]")
            e("s_waitcnt lgkmcnt(0)")
            e("s_sub_u32 s66, s66, s64")
            e(f"s_cmp_lt_u32 s66, {self.diag_hold}")
            e("s_cbranch_scc1 L_hold")
        self.stamp(6)
        self.prof_store(7)
        e("L_exit:")
        e("s_endpgm")
        e("L_fin_first:")
        for k in range(4):
            e(f"v_mov_b32 v{BV + k}, v{G0 + k}")
        e(f"v_lshlrev_b32 v{XV + 2}, 16, v{XV}")
        e(f"v_and_b32 v{XV + 3}, 0xffff0000, v{XV}")
        e(f"v_lshlrev_b32 v{XV + 4}, 16, v{XV + 1}")
        e(f"v_and_b32 v{XV + 5}, 0xffff0000, v{XV + 1}")
        e(f"s_sub_u32 s52, s52, {WS_YB - WS_YA}")
        e("s_mov_b32 s50, 64")
        e("s_mov_b32 s51, 0")
        self.stamp(3)
        e("s_branch L_fin_pass")
        e("L_code_end:")
        return W + 160

    def build(self):
        self.entry()
        nv = max(self.streamer(), self.helperA(), self.helperB())
        assert nv <= 256
        body = "\n".join(l if l.endswith(":") or l.startswith(";") else "    " + l for l in self.o)
        return (HEADER.format(block=64 * (self.NS + 2), lds=self.lds, name=NAME) + body
                + FOOTER.format(name=NAME, vgpr=nv, acc=(nv + 3) // 4 * 4))


def gen(**kw):
    return Gen(**kw).build()


if __name__ == "__main__":
    out = sys.argv[1] if len(sys.argv) > 1 else f"cdna_kernels/{NAME}.s"
    kw = eval("dict(" + (sys.argv[2] if len(sys.argv) > 2 else "") + ")")
    open(out, "w").write(gen(**kw))
```

```python
import struct
import sys

NAME = "parallel_sum__mha_block_cached__geglu_ffn__decode"
HEAD = 32768 * 384
KV_BYTES = 32 * HEAD
SENT = 0xFFFFFFFF

WS_PA0 = 0x000000
WS_PA1 = 0x020000
WS_STA = 0x040000
WS_STB = 0x044000
WS_YA = 0x050000
WS_YB = 0x060000
WS_OP = 0x070000
WS_PR = 0x140000
PR_STRIDE = 4352
WS_RK = 0x150000
WS_EPOCH = 0x1A0000
WS_PROF = 0x200000
WS_SIZE = 0x400000
NONCE_STEP = 0x9E3779B9

L_FLS = 0
L_FIT = 8
L_FLQ = 16
L_FLP = 20
L_FLN = 24
L_FLG = 28
L_TAG = 32
L_PCN = 36
L_PD = 40
L_LOC = 48
L_Q = 64
L_XN = 1664
L_SC = 3072
L_PAIR = L_SC + 8192
L_DUMP = L_PAIR + 2048
S_TAG = 60


def f2u(x):
    return struct.unpack("<I", struct.pack("<f", x))[0]


LOG2E = f2u(1.4426950408889634)
SCALE = f2u(192 ** -0.5)

HEADER = """; Kernarg layout for this problem (96 bytes, ptrs only, base s[0:1]):
; @launch grid=(256,1,1) block=({block},1,1) lds={lds}
.amdgcn_target "amdgcn-amd-amdhsa--gfx950"
.text
.globl {name}_kernel
.p2align 8
.type {name}_kernel,@function
{name}_kernel:
"""
FOOTER = """
.section .rodata,"a"
.p2align 6
.amdhsa_kernel {name}_kernel
  .amdhsa_next_free_vgpr {vgpr}
  .amdhsa_next_free_sgpr 96
  .amdhsa_accum_offset {acc}
  .amdhsa_group_segment_fixed_size 0
  .amdhsa_kernarg_size 96
  .amdhsa_user_sgpr_count 2
  .amdhsa_user_sgpr_kernarg_segment_ptr 1
  .amdhsa_system_sgpr_workgroup_id_x 1
.end_amdhsa_kernel
"""

DPP_ALL = "row_mask:0xf bank_mask:0xf"
X1 = "quad_perm:[1,0,3,2] " + DPP_ALL
X2 = "quad_perm:[2,3,0,1] " + DPP_ALL
HM = "row_half_mirror " + DPP_ALL
RM = "row_mirror " + DPP_ALL
R8 = "row_ror:8 " + DPP_ALL

S_WAVE, S_X, S_C = 3, 4, 5
P_X, P_K, P_V, P_WQ, P_WO, P_G, P_U, P_D, P_OUT, P_DBG, P_WS = 16, 18, 20, 22, 24, 28, 30, 32, 34, 36, 38
SPIN_G = 400000
SPIN_L = 4000000


class Gen:
    def __init__(self, R=24, L=23, cap=12, cap0=11, capA=22, capB=22, a_early=18, s_early=0, gran=1, rot=0, warm=True, fsets=3, ya_fl="sc1", go_at=39, cap_tail=23, nlate=3, poll_at=4, cev=1, xi=1, xb=60, q_late=False, oplay=1, caps_tail=(12, 16, 20, 23, 23), xend=62, xfrom=2,
                 tail_iters=1, caps=(9, 11, 12, 14, 16), thr=(38, 60), rep_c=7, xg=4, xstep=2, local=True, it_q=3, it_st=4, it_op=3, prof=False, diag_hold=0, diag_dbg=False, diag_who=None):
        NS = 2
        self.NS, self.R, self.L = NS, R, L
        self.cap, self.cap0, self.capA, self.capB = cap, cap0, capA, capB
        self.a_early, self.go_at, self.s_early = a_early, go_at, s_early
        self.gran, self.rot = gran, rot
        self.cev, self.xi, self.xb = cev, xi, xb
        self.sh_q, self.sh_g, self.sh_p = (10, 7, 4) if oplay else (7, 4, 8)
        self.caps_tail, self.xend, self.xfrom = caps_tail, xend, xfrom
        self.nlate, self.poll_at, self.q_late = nlate, poll_at, q_late
        self.warm, self.fsets, self.ya_fl = warm, fsets, ya_fl
        self.cap_tail = cap_tail or cap
        self.tail_iters = tail_iters
        self.caps, self.thr, self.rep_c = caps, thr, rep_c
        self.xg, self.xstep, self.local = xg, xstep, local
        self.it_q, self.it_st, self.it_op = it_q, it_st, it_op
        self.prof = prof
        self.diag_hold, self.diag_dbg, self.diag_who = diag_hold, diag_dbg, diag_who
        self.o = []
        self.uid = 0
        self.steps = 32768 // (32 * NS * 16)
        self.tpi = R // 6
        assert R == 24 and L < R
        assert max(cap, cap0, self.cap_tail) <= L
        self.ipr = self.steps // self.tpi
        self.step_bytes = 32 * NS * 6144
        self.big_step = gran * self.step_bytes - (gran - 1) * 6144
        self.dump_bytes = 8 * NS * 768
        self.lds = L_DUMP + 3 * self.dump_bytes

    def e(self, s):
        self.o.append(s)

    def c(self, s):
        self.o.append("; " + s)

    def label(self, base):
        self.uid += 1
        return f"L_{base}_{self.uid}"

    def srd(self, d, p, size):
        self.e(f"s_mov_b32 s{d}, s{p}")
        self.e(f"s_mov_b32 s{d+1}, s{p+1}")
        self.e(f"s_mov_b32 s{d+2}, {size}")
        self.e(f"s_mov_b32 s{d+3}, 0x20000")

    def stamp(self, k, tail=False):
        if self.prof and not (tail and self.prof == 2):
            self.e(f"s_memrealtime s[{64 + 2 * k}:{65 + 2 * k}]")
            self.e("s_waitcnt lgkmcnt(0)")

    def stamp_round(self, sreg, base):
        if not self.prof:
            return
        for r in range(4):
            lb = self.label("st")
            self.e(f"s_cmp_lg_u32 s{sreg}, {r}")
            self.e(f"s_cbranch_scc1 {lb}")
            self.stamp(base + r)
            self.e(f"{lb}:")

    def prof_store(self, n):
        if not self.prof:
            return
        e = self.e
        e("s_mov_b64 exec, -1")
        e("s_sleep 127")
        e("s_sleep 127")
        e("s_waitcnt vmcnt(0) lgkmcnt(0)")
        self.srd(12, P_WS, WS_SIZE)
        e("s_lshl_b32 s6, s2, 2")
        e(f"s_add_u32 s6, s6, s{S_WAVE}")
        e("s_lshl_b32 s6, s6, 6")
        e(f"s_add_u32 s6, s6, {WS_PROF}")
        e("v_mov_b32 v1, 0")
        e("s_getreg_b32 s7, hwreg(HW_REG_XCC_ID)")
        e("v_mov_b32 v2, s7")
        e("s_mov_b64 exec, 1")
        e("buffer_store_dword v2, v1, s[12:15], s6 offen offset:60")
        for k in range(n):
            e(f"v_mov_b32 v{4 + k}, s{64 + 2 * k}")
            e(f"buffer_store_dword v{4 + k}, v1, s[12:15], s6 offen offset:{4 * k}")
        e("s_waitcnt vmcnt(0)")

    def allreduce(self, op, v, t):
        e = self.e
        for pat in (X1, X2, HM, RM):
            e("s_nop 1")
            e(f"{op}_dpp v{v}, v{v}, v{v} {pat}")
        for sw in ("v_permlane16_swap_b32", "v_permlane32_swap_b32"):
            e(f"v_mov_b32 v{t}, v{v}")
            e("s_nop 1")
            e(f"{sw} v{v}, v{t}")
            e("s_nop 1")
            e(f"{op} v{v}, v{v}, v{t}")

    def round_bf16(self, v):
        self.e(f"v_cvt_pk_bf16_f32 v{v}, v{v}, v{v}")
        self.e(f"v_and_b32 v{v}, 0xffff0000, v{v}")

    def expand(self, src, dst):
        e = self.e
        for k in range(4):
            e(f"v_and_b32 v{dst + 4 * k}, 0xffff, v{src + k}")
            e(f"v_lshlrev_b32 v{dst + 4 * k + 1}, 16, v{src + k}")
            e(f"v_lshrrev_b32 v{dst + 4 * k + 2}, 16, v{src + k}")
            e(f"v_and_b32 v{dst + 4 * k + 3}, 0xffff0000, v{src + k}")

    def gemv_row(self, w, xop, acc):
        for k in range(4):
            self.e(f"v_dot2c_f32_bf16 v{acc + 2 * k}, v{w + k}, v{xop}")
            self.e(f"v_dot2c_f32_bf16 v{acc + 2 * k + 1}, v{w + k}, v{xop + 1}")

    def reduce_g(self, acc, res, t):
        e = self.e
        e("s_nop 2")
        for k in range(4):
            e(f"v_permlane32_swap_b32 v{acc + k}, v{acc + k + 4}")
        e("s_nop 0")
        for k in range(4):
            e(f"v_add_f32 v{res + k}, v{acc + k}, v{acc + k + 4}")
        for k in range(4):
            e(f"v_mov_b32 v{t + k}, v{res + k}")
        e("s_nop 0")
        for k in range(4):
            e(f"v_permlane16_swap_b32 v{res + k}, v{t + k}")
        e("s_nop 0")
        for k in range(4):
            e(f"v_add_f32 v{res + k}, v{res + k}, v{t + k}")
        e("s_nop 0")
        for k in range(4):
            e(f"v_add_f32_dpp v{res + k}, v{res + k}, v{res + k} {R8}")

    def tag_regs(self, res):
        self.e(f"v_mov_b32 v{res + 1}, s{S_TAG}")
        self.e(f"v_mov_b32 v{res + 3}, s{S_TAG}")

    def reduce_g2(self, acc, res):
        e = self.e
        e("s_nop 2")
        for k in range(4):
            e(f"v_permlane32_swap_b32 v{acc + k}, v{acc + k + 4}")
        e("s_nop 0")
        for k in range(4):
            e(f"v_add_f32 v{acc + k}, v{acc + k}, v{acc + k + 4}")
        e("s_nop 1")
        for k in range(2):
            e(f"v_permlane16_swap_b32 v{acc + k}, v{acc + k + 2}")
        e("s_nop 0")
        for k in range(2):
            e(f"v_add_f32 v{acc + k}, v{acc + k}, v{acc + k + 2}")
        e("s_nop 1")
        for k in range(2):
            e(f"v_add_f32_dpp v{res + 2 * k}, v{acc + k}, v{acc + k} {R8}")

    def exec_tagged(self):
        self.e("s_mov_b32 exec_lo, 0x00ff00ff")
        self.e("s_mov_b32 exec_hi, 0x00ff00ff")

    def make_tags(self, dst):
        self.e("s_movk_i32 s61, 0xff")
        for k in range(4):
            self.e(f"v_bfe_u32 v{dst + k}, s{S_TAG}, {8 * k}, 8")

    def embed(self, v, tg):
        for k in range(4):
            self.e(f"v_bfi_b32 v{v + k}, s61, v{tg + k}, v{v + k}")

    def read_tag(self, vt):
        e = self.e
        e(f"v_mov_b32 v{vt + 4}, 0")
        e(f"ds_read_b32 v{vt}, v{vt + 4} offset:{L_TAG}")
        e("s_waitcnt lgkmcnt(0)")
        e(f"v_readfirstlane_b32 s{S_TAG}, v{vt}")
        e("s_nop 1")

    def gather_emb(self, groups, tg, vt, sm, lanes=64, sleep=1, between=None, whole=False, cond=None):
        e = self.e
        lp, ok, mid = self.label("ge"), self.label("geok"), self.label("gemid")
        n = len(groups)
        e(f"s_mov_b32 s62, {SPIN_G}")
        for j in range(n):
            e(f"s_mov_b32 s{sm + 2 * j}, -1")
            e(f"s_mov_b32 s{sm + 2 * j + 1}, {hex((1 << (lanes - 32)) - 1)}")
        if between:
            if cond:
                e(cond)
                e(f"s_cbranch_scc0 {lp}")
            e(f"s_mov_b64 exec, s[{sm}:{sm + 1}]")
            for loads, _, _ in groups:
                for s_ in loads:
                    e(s_)
            e("s_mov_b64 exec, -1")
            between()
            e(f"s_branch {mid}")
        e(f"{lp}:")
        for j, (loads, _, _) in enumerate(groups):
            sk = self.label("gs")
            e(f"s_mov_b64 exec, s[{sm + 2 * j}:{sm + 2 * j + 1}]")
            e(f"s_cbranch_execz {sk}")
            for s_ in loads:
                e(s_)
            e(f"{sk}:")
        e(f"{mid}:")
        e("s_mov_b64 vcc, 0")
        e("s_waitcnt vmcnt(0)")
        for j, (_, first, nrec) in enumerate(groups):
            sk = self.label("gs")
            e(f"s_mov_b64 exec, s[{sm + 2 * j}:{sm + 2 * j + 1}]")
            e(f"s_cbranch_execz {sk}")
            for k in range(4 * nrec):
                e(f"v_xor_b32 v{first + k}, v{first + k}, v{tg + k % 4}")
            e(f"v_or_b32 v{vt}, v{first}, v{first + 1}")
            for k in range(2, 4 * nrec, 2):
                e(f"v_or3_b32 v{vt}, v{vt}, v{first + k}, v{first + k + 1}")
            e(f"v_and_b32 v{vt}, s61, v{vt}")
            e(f"v_cmp_ne_u32 s[{sm + 2 * j}:{sm + 2 * j + 1}], 0, v{vt}")
            e("s_nop 0")
            e(f"s_or_b64 vcc, vcc, s[{sm + 2 * j}:{sm + 2 * j + 1}]")
            if whole:
                e(f"s_cmp_lg_u64 s[{sm + 2 * j}:{sm + 2 * j + 1}], 0")
                e(f"s_cselect_b64 s[{sm + 2 * j}:{sm + 2 * j + 1}], -1, 0")
            e(f"{sk}:")
        e("s_mov_b64 exec, -1")
        e("s_cmp_eq_u64 vcc, 0")
        e(f"s_cbranch_scc1 {ok}")
        if isinstance(sleep, str):
            sk = self.label("gs")
            e(f"s_cmp_eq_u32 {sleep}, 0")
            e(f"s_cbranch_scc1 {sk}")
            e("s_sleep 32")
            e(f"{sk}:")
        elif sleep:
            e(f"s_sleep {sleep}")
        e("s_sub_u32 s62, s62, 1")
        e("s_cmp_lg_u32 s62, 0")
        e(f"s_cbranch_scc1 {lp}")
        e("s_endpgm")
        e(f"{ok}:")

    def gather_tagged(self, loads, first, nrec, vt, sleep=1, skip=None, between=None):
        e = self.e
        lp, ok, mid = self.label("gt"), self.label("gtok"), self.label("gtmid")
        e(f"s_mov_b32 s62, {SPIN_G}")
        if between:
            for s_ in loads:
                e(s_)
            between()
            e(f"s_branch {mid}")
        e(f"{lp}:")
        for s_ in loads:
            e(s_)
        e(f"{mid}:")
        e(f"v_mov_b32 v{vt}, 0")
        e(f"v_mov_b32 v{vt + 1}, 0")
        e("s_waitcnt vmcnt(0)")
        for k in range(nrec):
            t = vt + 1 if skip and k in skip[0] else vt
            e(f"v_bitop3_b32 v{t}, v{t}, v{first + 4 * k + 1}, s{S_TAG} bitop3:0xf6")
            e(f"v_bitop3_b32 v{t}, v{t}, v{first + 4 * k + 3}, s{S_TAG} bitop3:0xf6")
        if skip:
            e(f"v_cndmask_b32 v{vt + 1}, 0, v{vt + 1}, s[{skip[1]}:{skip[1] + 1}]")
            e(f"v_or_b32 v{vt}, v{vt}, v{vt + 1}")
        e(f"v_cmp_ne_u32 vcc, 0, v{vt}")
        e("s_nop 4")
        e(f"s_cbranch_vccz {ok}")
        if sleep:
            e(f"s_sleep {sleep}")
        e("s_sub_u32 s62, s62, 1")
        e("s_cmp_lg_u32 s62, 0")
        e(f"s_cbranch_scc1 {lp}")
        e("s_endpgm")
        e(f"{ok}:")

    def reduce_sub(self, v, n):
        for pat in (X1, X2, HM):
            self.e("s_nop 1")
            for k in range(n):
                self.e(f"v_add_f32_dpp v{v + k}, v{v + k}, v{v + k} {pat}")

    def wait_lds(self, addr, val, vt, n=1, sleep=2, val_is_sreg=False):
        e = self.e
        lp, ok = self.label("wl"), self.label("wlok")
        e(f"s_mov_b32 s62, {SPIN_L}")
        e(f"v_mov_b32 v{vt + 4}, 0")
        e(f"{lp}:")
        if n == 1:
            e(f"ds_read_b32 v{vt}, v{vt + 4} offset:{addr}")
            e("s_waitcnt lgkmcnt(0)")
        elif n == 2:
            e(f"ds_read_b64 v[{vt}:{vt + 1}], v{vt + 4} offset:{addr}")
            e("s_waitcnt lgkmcnt(0)")
            e(f"v_min_u32 v{vt}, v{vt}, v{vt + 1}")
        else:
            e(f"ds_read_b128 v[{vt}:{vt + 3}], v{vt + 4} offset:{addr}")
            e("s_waitcnt lgkmcnt(0)")
            e(f"v_min_u32 v{vt}, v{vt}, v{vt + 1}")
            e(f"v_min3_u32 v{vt}, v{vt}, v{vt + 2}, v{vt + 3}")
        e("s_nop 0")
        e(f"v_readfirstlane_b32 s63, v{vt}")
        e(f"s_cmp_ge_u32 s63, {val}")
        e(f"s_cbranch_scc1 {ok}")
        if sleep:
            e(f"s_sleep {sleep}")
        e("s_sub_u32 s62, s62, 1")
        e("s_cmp_lg_u32 s62, 0")
        e(f"s_cbranch_scc1 {lp}")
        e("s_endpgm")
        e(f"{ok}:")

    def set_lds(self, addr, val, vt):
        e = self.e
        e("s_waitcnt lgkmcnt(0)")
        e(f"v_mov_b32 v{vt}, {addr}")
        e(f"v_mov_b32 v{vt + 1}, {val}")
        e(f"ds_write_b32 v{vt}, v{vt + 1}")

    def layernorm(self, xa, f):
        e = self.e

        def unpack():
            for k in range(5):
                e(f"v_lshlrev_b32 v{f + 2 * k}, 16, v{xa + k}")
                e(f"v_and_b32 v{f + 2 * k + 1}, 0xffff0000, v{xa + k}")

        def pack():
            for k in range(5):
                e(f"v_cvt_pk_bf16_f32 v{xa + k}, v{f + 2 * k}, v{f + 2 * k + 1}")

        unpack()
        m, t, var, d = f + 10, f + 11, f + 12, f + 13
        e(f"v_add_f32 v{m}, v{f}, v{f + 1}")
        for k in range(2, 10):
            e(f"v_add_f32 v{m}, v{m}, v{f + k}")
        self.allreduce("v_add_f32", m, t)
        e(f"v_mul_f32 v{m}, {hex(f2u(1.0 / 640))}, v{m}")
        e(f"v_mov_b32 v{var}, 0")
        for k in range(10):
            e(f"v_sub_f32 v{d}, v{f + k}, v{m}")
            e(f"v_fmac_f32 v{var}, v{d}, v{d}")
        self.allreduce("v_add_f32", var, t)
        e(f"v_mul_f32 v{var}, {hex(f2u(1.0 / 640))}, v{var}")
        self.round_bf16(var)
        self.round_bf16(m)
        e(f"v_add_f32 v{var}, {hex(f2u(1e-5))}, v{var}")
        self.round_bf16(var)
        e(f"v_sqrt_f32 v{var}, v{var}")
        for k in range(10):
            e(f"v_sub_f32 v{f + k}, v{f + k}, v{m}")
        self.round_bf16(var)
        e(f"v_rcp_f32 v{var}, v{var}")
        pack()
        unpack()
        for k in range(10):
            e(f"v_mul_f32 v{f + k}, v{f + k}, v{var}")
        pack()

    def entry(self):
        e = self.e
        self.c("roles: waves 0..NS-1 stream K then V; wave NS does q/softmax exchanges; wave NS+1 does weight GEMVs")
        if self.prof or self.diag_hold or self.diag_dbg:
            e("s_memrealtime s[64:65]")
        e("s_cmp_ge_u32 s2, 256")
        e("s_cbranch_scc1 L_exit")
        e("s_load_dwordx16 s[16:31], s[0:1], 0")
        e("s_load_dwordx8 s[32:39], s[0:1], 64")
        e("v_lshrrev_b32 v1, 6, v0")
        e("v_and_b32 v0, 63, v0")
        e(f"v_readfirstlane_b32 s{S_WAVE}, v1")
        e(f"s_and_b32 s{S_X}, s2, 7")
        e(f"s_lshr_b32 s{S_C}, s2, 3")
        e("v_lshrrev_b32 v1, 3, v0")
        e("v_and_b32 v2, 7, v0")
        e(f"s_mul_i32 s40, s{S_C}, 43691")
        e("s_lshr_b32 s40, s40, 17")
        e("s_mul_i32 s41, s40, 3")
        e(f"s_sub_u32 s41, s{S_C}, s41")
        e(f"s_cmp_eq_u32 s{S_WAVE}, {self.NS}")
        e("s_cbranch_scc1 L_helperA")
        e(f"s_cmp_eq_u32 s{S_WAVE}, {self.NS + 1}")
        e("s_cbranch_scc1 L_helperB")

    def streamer(self):
        e = self.e
        NS, R, L = self.NS, self.R, self.L
        VOFF, VSC, VQ, VDUMP, VT = 3, 4, 5, 6, 8
        VIT = 13
        A = 14
        VO, VPR, TG = 18, 19, 24
        VSM, VPB, VPA, VL4 = 56, 57, 58, 59
        SC = 20
        Q = 20 + 8
        PN, PX = 52, 60
        RING = 64
        S_OFF, S_DELTA, S_B0, S_B1, S_IT, S_R = 44, 45, 46, 47, 48, 49
        offs = [(i // 3) * 3072 + (i % 3) * 128 for i in range(6)]
        cand = [j for j in range(R) if (j + L) % 6 == 5 and ((j + L + 1) // 6) % self.tpi == 0]
        assert len(cand) == 1
        self.c("streamer")
        if self.warm:
            self.c("each streamer reads 1 KiB slices of this kernel's code so that later instruction fetches hit in L2")
            e("s_getpc_b64 s[12:13]")
            e("L_pc:")
            e(f"s_lshl_b32 s6, s{S_C}, 1")
            e(f"s_add_u32 s6, s6, s{S_WAVE}")
            e("s_lshl_b32 s6, s6, 10")
            e("v_lshl_add_u32 v8, v0, 4, s6")
            e("v_min_u32 v8, L_code_end-L_pc-16, v8")
            e("v_mov_b32 v9, s13")
            e("v_add_co_u32 v8, vcc, s12, v8")
            e("s_nop 1")
            e("v_addc_co_u32 v9, vcc, 0, v9, vcc")
            e("global_load_dwordx4 v[64:67], v[8:9], off")
        e(f"v_mul_u32_u24 v{VOFF}, 384, v1")
        e(f"v_lshl_add_u32 v{VOFF}, v2, 4, v{VOFF}")
        tb = 4 * self.tpi
        e(f"s_mul_i32 s6, s{S_WAVE}, {8 * tb}")
        e(f"s_add_u32 s6, s6, {L_SC}")
        e(f"v_mul_u32_u24 v{VSC}, {tb}, v1")
        e(f"v_add_u32 v{VSC}, s6, v{VSC}")
        e(f"v_lshlrev_b32 v{VQ}, 4, v2")
        e(f"s_mul_i32 s6, s{S_WAVE}, {8 * 768}")
        e(f"s_add_u32 s6, s6, {L_DUMP}")
        e(f"v_mul_u32_u24 v{VDUMP}, 768, v1")
        e(f"v_lshl_add_u32 v{VDUMP}, v2, 5, v{VDUMP}")
        e(f"v_add_u32 v{VDUMP}, s6, v{VDUMP}")
        e(f"s_mul_i32 s{S_OFF}, s{S_X}, {HEAD}")
        e(f"s_mul_i32 s6, s{S_C}, {NS}")
        e(f"s_add_u32 s6, s6, s{S_WAVE}")
        e(f"s_mul_i32 s6, s6, {6144 * self.gran}")
        e(f"s_add_u32 s{S_OFF}, s{S_OFF}, s6")
        e(f"s_mul_i32 s43, s{S_X}, {self.rot}")
        e("s_and_b32 s43, s43, 7")
        e(f"s_mul_i32 s6, s43, {4 * self.step_bytes}")
        e(f"s_add_u32 s{S_OFF}, s{S_OFF}, s6")
        e("s_add_u32 s43, s43, 1")
        e(f"s_lshl_b32 s7, s{S_WAVE}, 2")
        e(f"v_mov_b32 v7, s7")
        e(f"v_mov_b32 v{VIT}, 0")
        e("s_waitcnt lgkmcnt(0)")
        self.srd(8, P_K, KV_BYTES)
        e("s_barrier")

        def issue(p, boundary=False):
            r = RING + (p % R) * 4
            e(f"buffer_load_dwordx4 v[{r}:{r + 3}], v{VOFF}, s[8:11], s{S_OFF} offen offset:{offs[p % 6]} nt")
            if p % 6 == 5:
                if boundary:
                    e(f"s_add_u32 s{S_OFF}, s{S_OFF}, s{S_DELTA}")
                    e(f"s_mov_b32 s8, s{S_B0}")
                    e(f"s_mov_b32 s9, s{S_B1}")
                else:
                    inc = 6144 if (p // 6 + 1) % self.gran else self.big_step
                    e(f"s_add_u32 s{S_OFF}, s{S_OFF}, {inc}")

        for p in range(self.s_early):
            issue(p)
        assert not (self.warm and self.s_early)
        e(f"s_mov_b32 s{S_R}, 0")
        e(f"s_mov_b32 s53, {len(self.caps) // 2 if self.caps else 0}")
        e(f"s_mov_b32 s{S_B0}, s{P_K}")
        e(f"s_mov_b32 s{S_B1}, s{P_K + 1}")
        e(f"s_mov_b32 s56, {self.big_step + 8 * HEAD}")

        self.c("addresses of the final publish")
        e(f"v_and_b32 v{VT}, 1, v1")
        e(f"v_bfe_u32 v{VO}, v0, 4, 1")
        e(f"v_cmp_eq_u32 vcc, 1, v{VT}")
        e(f"v_lshrrev_b32 v{VT + 1}, 5, v0")
        e(f"v_lshlrev_b32 v{VPR}, 4, v0")
        e(f"v_cndmask_b32 v{VO}, v{VO}, 2, vcc")
        e(f"v_lshlrev_b32 v{VO}, 13, v{VO}")
        e(f"v_lshl_add_u32 v{VO}, v{VT + 1}, {self.sh_q}, v{VO}")
        e(f"v_lshl_add_u32 v{VO}, v2, {self.sh_g}, v{VO}")
        e(f"s_mul_i32 s57, s{S_X}, {4 * 24576}")
        e(f"s_lshr_b32 s7, s{S_C}, 3")
        e("s_lshl_b32 s7, s7, 11")
        e("s_add_u32 s57, s57, s7")
        e(f"s_and_b32 s7, s{S_C}, 7")
        e(f"s_lshl_b32 s7, s7, {self.sh_p}")
        e("s_add_u32 s57, s57, s7")
        e(f"s_add_u32 s57, s57, {WS_OP + 3 * 24576}")
        self.srd(12, P_WS, WS_SIZE)
        if self.caps:
            e(f"v_lshlrev_b32 v{VL4}, 2, v0")
            e(f"v_lshlrev_b32 v{VPA}, 24, v0")
            e(f"s_mul_i32 s59, s{S_X}, {PR_STRIDE}")
            e(f"s_add_u32 s59, s59, {WS_PR}")
            e(f"s_lshl_b32 s6, s{S_C}, 1")
            e(f"s_add_u32 s6, s6, s{S_WAVE}")
            e("s_lshl_b32 s6, s6, 2")
            e("s_add_u32 s58, s59, s6")
            if self.xg:
                e("s_cmp_eq_u32 s6, 252")
                e(f"s_cselect_b32 s58, {WS_SIZE}, s58")
            if self.prof:
                e("s_mov_b32 s92, 0")
        self.wait_lds(L_FLN, 1, VT, sleep=1)
        self.read_tag(VT)
        self.make_tags(TG)
        e(f"s_add_u32 s55, s{S_TAG}, 0x1000")

        if self.go_at is not None:
            self.wait_lds(L_FLG, 1, VT, sleep=1)
        if self.warm:
            e("s_waitcnt vmcnt(0)")
        for p in range(self.s_early, L):
            if p >= self.cap0:
                e(f"s_waitcnt vmcnt({self.cap0 - 1})")
            issue(p)
        self.stamp(1)

        e("L_kround:")
        e(f"s_add_u32 s50, s{S_R}, 1")
        self.wait_lds(L_FLQ, "s50", VT, sleep=0)
        for s in range(3):
            e(f"ds_read_b128 v[{Q + 4 * s}:{Q + 4 * s + 3}], v{VQ} offset:{L_Q + 128 * s}")
        e(f"v_add_u32 v{VQ}, 384, v{VQ}")
        if self.prof:
            e(f"s_cmp_lg_u32 s{S_R}, 0")
            e("s_cbranch_scc1 L_nostamp2")
            self.stamp(2)
            e("L_nostamp2:")
        e(f"s_mov_b32 s{S_IT}, {self.ipr}")
        e("s_waitcnt lgkmcnt(0)")
        e("L_kloop:")
        e(f"s_cmp_eq_u32 s{S_R}, 3")
        e(f"s_cselect_b32 s50, {hex((self.big_step - 24 * HEAD) & 0xffffffff)}, s56")
        e(f"s_cselect_b32 s51, 1, 0")
        e(f"s_cmp_eq_u32 s{S_IT}, 1")
        e(f"s_cselect_b32 s{S_DELTA}, s50, {self.big_step}")
        e(f"s_cmp_eq_u32 s{S_IT}, s43")
        e(f"s_cselect_b32 s42, {HEAD}, 0")
        e(f"s_sub_u32 s{S_DELTA}, s{S_DELTA}, s42")
        e(f"s_cmp_eq_u32 s{S_IT}, s51")
        e(f"s_cselect_b32 s{S_B0}, s{P_V}, s{S_B0}")
        e(f"s_cselect_b32 s{S_B1}, s{P_V + 1}, s{S_B1}")
        nlev = len(self.caps) if self.caps else 0
        mid = nlev // 2

        def ctl_issue():
            e(f"v_add_u32 v{VPB}, s{S_TAG}, v{VIT}")
            sa, sb = (58, 59) if self.cev == 1 else (94, 95)
            e(f"buffer_store_dword v{VPB}, v{VPA}, s[12:15], s{sa} offen")
            e(f"buffer_load_dword v{VSM}, v{VL4}, s[12:15], s{sb} offen sc1")

        def ctl_ops():
            ops = [f"v_readlane_b32 s93, v{VSM}, 63"] if self.xg else []
            ops += [f"v_sub_u32 v{VSM}, v{VSM}, v{VPB}",
                   f"v_add_u32 v{VPB}, 8, v{VSM}",
                   f"v_cmp_gt_u32 vcc, 17, v{VPB}",
                   f"v_lshl_add_u32 v{VSM}, v{VSM}, 1, {self.cev}",
                   f"v_cndmask_b32 v{VSM}, 0, v{VSM}, vcc"]
            ops += [f"v_add_u32_dpp v{VSM}, v{VSM}, v{VSM} {pat}" for pat in (X1, X2, HM, RM)]
            ops += [f"v_readlane_b32 s{88 + k}, v{VSM}, {16 * k}" for k in range(4)]
            return ops

        def wait_count(cap, j, ctl):
            return cap - 1 + (2 if ctl and 0 < j <= cap else 0)

        def pick_level():
            if not self.caps:
                return
            skip = self.label("nolevel")
            if self.cev > 1:
                e(f"s_cmp_eq_u32 s95, {WS_SIZE}")
                e(f"s_cbranch_scc1 {skip}")
            e("s_add_u32 s88, s88, s89")
            e("s_add_u32 s90, s90, s91")
            e("s_add_u32 s88, s88, s90")
            if self.cev > 1:
                e(f"s_ashr_i32 s88, s88, {self.cev.bit_length() - 1}")
            if self.xg:
                e("s_sub_u32 s93, s93, s55")
                e("s_sub_u32 s89, s93, 128")
                e("s_cmp_lt_u32 s93, 256")
                e("s_cselect_b32 s89, s89, 0")
                e("s_add_u32 s88, s88, s89")
            e(f"s_mov_b32 s53, {mid}")
            for k in range(1, mid + 1):
                e(f"s_cmp_gt_i32 s88, {self.thr[k - 1]}")
                e(f"s_cselect_b32 s53, {mid + k}, s53")
                e(f"s_cmp_lt_i32 s88, {-self.thr[k - 1]}")
                e(f"s_cselect_b32 s53, {mid - k}, s53")
            e(f"{skip}:")
            if self.prof:
                e("s_mul_i32 s7, s53, 6")
                e("s_lshl_b32 s7, 1, s7")
                e("s_add_u32 s92, s92, s7")

        def kbody(cap):
            pend = []
            pos = [0]
            side = ctl_ops()
            assert cap + 1 <= 17

            def main(s):
                e(s)
                pos[0] += 1
                if pend and pend[0][0] <= pos[0]:
                    _, ins, gap = pend.pop(0)
                    e(ins)
                    pos[0] += 1
                    if pend:
                        pend[0] = (max(pend[0][0], pos[0] + gap), pend[0][1], pend[0][2])

            for j in range(R):
                tile, jj = divmod(j, 6)
                kg, s = divmod(jj, 3)
                a = A + 2 * (tile % 2) + kg
                main(f"s_waitcnt vmcnt({wait_count(cap, j, nlev)})")
                n0 = len(self.o)
                issue(j + L, boundary=(j == cand[0]))
                if nlev and j == 0:
                    ctl_issue()
                if nlev and j >= 17 and side:
                    e(side.pop(0))
                pos[0] += len(self.o) - n0
                if s == 0:
                    main(f"v_mov_b32 v{a}, 0")
                r = RING + j * 4
                for k in range(4):
                    main(f"v_dot2c_f32_bf16 v{a}, v{r + k}, v{Q + 4 * s + k}")
                    if nlev and j >= 17 and k == 2 and side:
                        e(side.pop(0))
                        pos[0] += 1
                if s == 2:
                    first = pos[0] + 3
                    pend.append((first, f"v_add_f32_dpp v{a}, v{a}, v{a} {X1}", 2))
                    pend.append((0, f"v_add_f32_dpp v{a}, v{a}, v{a} {X2}", 2))
                    pend.append((0, f"v_add_f32_dpp v{a}, v{a}, v{a} {HM}", 0))
                    if kg == 1:
                        pend.append((0, f"v_cvt_pk_bf16_f32 v{SC + tile}, v{a - 1}, v{a}", 0))
            while pend:
                main("s_nop 0")

        def dispatch(name, fn, caps=None):
            if not self.caps:
                fn(self.cap)
                return
            if self.cev > 1 and not caps:
                e(f"s_and_b32 s7, s{S_IT}, {self.cev - 1}")
                e(f"s_cselect_b32 s94, {WS_SIZE}, s58")
                e(f"s_cselect_b32 s95, {WS_SIZE}, s59")
            others = [k for k in range(nlev) if k != mid]
            e(f"s_cmp_eq_u32 s53, {mid}")
            e(f"s_cbranch_scc1 L_{name}{mid}")
            for code in others[1:]:
                e(f"s_cmp_eq_u32 s53, {code}")
                e(f"s_cbranch_scc1 L_{name}{code}")
            for code in others + [mid]:
                e(f"L_{name}{code}:")
                fn((caps or self.caps)[code])
                if code != mid:
                    e(f"s_branch L_{name}_end")
            e(f"L_{name}_end:")

        dispatch("kb", kbody)
        pick_level()
        for q4 in range(self.tpi // 4):
            e(f"ds_write_b128 v{VSC}, v[{SC + 4 * q4}:{SC + 4 * q4 + 3}] offset:{16 * q4}")
        e(f"v_add_u32 v{VIT}, 1, v{VIT}")
        e(f"v_add_u32 v{VSC}, {NS * 8 * tb}, v{VSC}")
        e(f"ds_write_b32 v7, v{VIT} offset:{L_FIT}")
        e(f"s_sub_u32 s{S_IT}, s{S_IT}, 1")
        e(f"s_cmp_lg_u32 s{S_IT}, 0")
        e("s_cbranch_scc1 L_kloop")
        self.stamp_round(S_R, 3)
        e(f"s_add_u32 s{S_R}, s{S_R}, 1")
        e(f"v_mov_b32 v{VT}, s{S_R}")
        e(f"ds_write_b32 v7, v{VT} offset:{L_FLS}")
        e(f"s_cmp_lt_u32 s{S_R}, 4")
        e("s_cbranch_scc1 L_kround")

        e(f"v_subrev_u32 v{VSC}, 8192, v{VSC}")
        self.wait_lds(L_FLP, 1, VT, sleep=0)
        e(f"ds_read_b32 v{A}, v{VT + 4} offset:{L_LOC}")
        for q4 in range(self.tpi // 4):
            e(f"ds_read_b128 v[{PN + 4 * q4}:{PN + 4 * q4 + 3}], v{VSC} offset:{16 * q4}")
        e(f"v_add_u32 v{VSC}, {NS * 8 * tb}, v{VSC}")
        e(f"s_mov_b32 s{S_R}, 0")

        def vbody(cap, last=False, ctl=True):
            ctl = ctl and nlev and not last
            side = ctl_ops() if ctl else []
            e("s_waitcnt lgkmcnt(0)")
            for j in range(R):
                tile, jj = divmod(j, 6)
                kg, s = divmod(jj, 3)
                if last and j + L >= R:
                    e(f"s_waitcnt vmcnt({R - 1 - j})")
                else:
                    e(f"s_waitcnt vmcnt({wait_count(cap, j, ctl)})")
                    issue(j + L, boundary=(j == cand[0]))
                if ctl and j == 0:
                    ctl_issue()
                if last and j == R - L - 1:
                    e(f"v_mov_b32 v{VIT}, 64")
                    e(f"ds_write_b32 v7, v{VIT} offset:{L_FIT}")
                if j >= 17 and side:
                    e(side.pop(0))
                if jj == 0:
                    e(f"v_and_b32 v{PX}, 0xffff, v{PN + tile}")
                    e(f"v_lshlrev_b32 v{PX + 1}, 16, v{PN + tile}")
                    e(f"v_lshrrev_b32 v{PX + 2}, 16, v{PN + tile}")
                    e(f"v_and_b32 v{PX + 3}, 0xffff0000, v{PN + tile}")
                    if tile == self.tpi - 1 and not last:
                        e(f"v_add_u32 v{VIT}, 1, v{VIT}")
                        e(f"ds_write_b32 v7, v{VIT} offset:{L_FIT}")
                        for q4 in range(self.tpi // 4):
                            e(f"ds_read_b128 v[{PN + 4 * q4}:{PN + 4 * q4 + 3}], v{VSC} offset:{16 * q4}")
                        e(f"v_add_u32 v{VSC}, {NS * 8 * tb}, v{VSC}")
                self.gemv_row(RING + 4 * j, PX + 2 * kg, Q + 8 * s)
                if j >= 17 and side:
                    e(side.pop(0))
            assert not side

        def dump():
            e("s_nop 2")
            for s in range(3):
                for hlf in range(2):
                    r = Q + 8 * s + 4 * hlf
                    e(f"ds_write_b128 v{VDUMP}, v[{r}:{r + 3}] offset:{256 * s + 16 * hlf}")
            e(f"v_add_u32 v{VDUMP}, {self.dump_bytes}, v{VDUMP}")
            e(f"s_add_u32 s50, s{S_R}, 5")
            e(f"v_mov_b32 v{VT}, s50")
            e(f"ds_write_b32 v7, v{VT} offset:{L_FLS}")

        e("L_vround:")
        e(f"s_add_u32 s50, s{S_R}, 2")
        e("s_min_u32 s50, s50, 4")
        self.wait_lds(L_FLP, "s50", VT, sleep=0)
        e(f"v_readfirstlane_b32 s54, v{A}")
        for k in range(24):
            e(f"v_mov_b32 v{Q + k}, 0")
        e(f"s_cmp_eq_u32 s{S_R}, 3")
        e(f"s_cselect_b32 s52, {self.tail_iters}, 0")
        e(f"s_mov_b32 s{S_IT}, {self.ipr}")
        e("L_vloop:")
        e(f"s_cmp_eq_u32 s{S_IT}, 1")
        e(f"s_cselect_b32 s{S_DELTA}, s56, {self.big_step}")
        e(f"s_cmp_eq_u32 s{S_IT}, s43")
        e(f"s_cselect_b32 s42, {HEAD}, 0")
        e(f"s_sub_u32 s{S_DELTA}, s{S_DELTA}, s42")
        dispatch("vb", vbody)
        pick_level()
        e(f"s_sub_u32 s{S_IT}, s{S_IT}, 1")
        e(f"s_cmp_lg_u32 s{S_IT}, s52")
        e("s_cbranch_scc1 L_vloop")
        e(f"s_cmp_eq_u32 s{S_R}, 3")
        e("s_cbranch_scc1 L_vtail")
        self.stamp_round(S_R, 7)
        dump()
        e(f"s_add_u32 s{S_R}, s{S_R}, 1")
        e("s_branch L_vround")
        e("L_vtail:")
        if self.tail_iters > 1:
            e("L_vtloop:")
            e(f"s_cmp_eq_u32 s{S_IT}, s43")
            e(f"s_cselect_b32 s42, {HEAD}, 0")
            e(f"s_sub_u32 s{S_DELTA}, {self.big_step}, s42")
            if self.caps_tail:
                dispatch("vt", lambda c_: vbody(c_, ctl=False), self.caps_tail)
            else:
                vbody(self.cap_tail, ctl=False)
            e(f"s_sub_u32 s{S_IT}, s{S_IT}, 1")
            e(f"s_cmp_lg_u32 s{S_IT}, 1")
            e("s_cbranch_scc1 L_vtloop")
        vbody(self.cap_tail, last=True)
        self.stamp(10)
        self.c("last head: reduce over lane groups, combine the two streamers, publish")
        e(f"v_mov_b32 v{VIT}, 65")
        e(f"ds_write_b32 v7, v{VIT} offset:{L_FIT}")
        e(f"s_xor_b32 s50, s{S_WAVE}, 1")
        for s_ in range(3):
            for k in range(4):
                e(f"v_permlane32_swap_b32 v{Q + 8 * s_ + k}, v{Q + 8 * s_ + k + 4}")
        for s_ in range(3):
            for k in range(4):
                e(f"v_add_f32 v{Q + 8 * s_ + k}, v{Q + 8 * s_ + k}, v{Q + 8 * s_ + k + 4}")
        e("s_lshl_b32 s51, s50, 10")
        e(f"v_add_u32 v{VT + 2}, s51, v{VPR}")
        e(f"v_xor_b32 v{VT + 1}, 4, v7")
        for k in range(4):
            e(f"v_mov_b32 v{Q + 20 + k}, v{Q + 16 + k}")
        e(f"ds_read_b32 v{VT}, v{VT + 1} offset:{L_PD}")
        e(f"ds_read_b128 v[{PN}:{PN + 3}], v{VT + 2} offset:{L_PAIR}")
        for k in range(4):
            e(f"v_permlane16_swap_b32 v{Q + k}, v{Q + 8 + k}")
        for k in range(4):
            e(f"v_permlane16_swap_b32 v{Q + 16 + k}, v{Q + 20 + k}")
        for k in range(4):
            e(f"v_add_f32 v{Q + k}, v{Q + k}, v{Q + 8 + k}")
        for k in range(4):
            e(f"v_add_f32 v{Q + 16 + k}, v{Q + 16 + k}, v{Q + 20 + k}")
        for k in range(4):
            e(f"v_add_f32_dpp v{PX + k}, v{Q + k}, v{Q + k} row_ror:8 row_mask:0xf bank_mask:0x3")
        for k in range(4):
            e(f"v_add_f32_dpp v{PX + k}, v{Q + 16 + k}, v{Q + 16 + k} row_ror:8 row_mask:0xf bank_mask:0xc")
        e("s_waitcnt lgkmcnt(0)")
        e(f"v_readfirstlane_b32 s63, v{VT}")
        e("s_cmp_lg_u32 s63, 0")
        e("s_cbranch_scc1 L_spub")
        e(f"s_lshl_b32 s51, s{S_WAVE}, 10")
        e(f"v_add_u32 v{VT + 3}, s51, v{VPR}")
        e(f"v_mov_b32 v{VT}, 1")
        e(f"v_mov_b32 v{VT + 4}, 0")
        e(f"ds_write_b128 v{VT + 3}, v[{PX}:{PX + 3}] offset:{L_PAIR}")
        e(f"ds_write_b32 v7, v{VT} offset:{L_PD}")
        e("s_mov_b64 exec, 1")
        e(f"ds_add_rtn_u32 v{VT + 1}, v{VT + 4}, v{VT} offset:{L_PCN}")
        e("s_mov_b64 exec, -1")
        e(f"ds_read_b128 v[{PN}:{PN + 3}], v{VT + 2} offset:{L_PAIR}")
        e("s_waitcnt lgkmcnt(0)")
        e(f"v_readfirstlane_b32 s63, v{VT + 1}")
        e("s_cmp_eq_u32 s63, 0")
        e("s_cbranch_scc1 L_sdone")
        e("L_spub:")
        for k in range(4):
            e(f"v_add_f32 v{PX + k}, v{PX + k}, v{PN + k}")
        self.embed(PX, TG)
        e("s_mov_b32 exec_lo, 0xffffff")
        e("s_mov_b32 exec_hi, 0xffffff")
        e("s_cmp_eq_u32 s54, 0")
        e("s_cbranch_scc1 L_spub_far")
        e(f"buffer_store_dwordx4 v[{PX}:{PX + 3}], v{VO}, s[12:15], s57 offen")
        e("s_branch L_sdone")
        e("L_spub_far:")
        e(f"buffer_store_dwordx4 v[{PX}:{PX + 3}], v{VO}, s[12:15], s57 offen sc1")
        e("L_sdone:")
        self.stamp(11, True)
        if self.prof:
            e("s_mov_b32 s88, s92")
        self.prof_store(13)
        e("s_endpgm")
        return RING + 4 * R

    def helperA(self):
        e = self.e
        NS = self.NS
        S_RB, S_CB = 40, 41
        SX, SW, SWS, SJ = 8, 12, 44, 48
        SM = 84
        VW, VT, VQL = 3, 4, 9
        T, TGL, VP, VL16 = 10, 14, 18, 19
        XA, VW2, VXS, XC, F, XOP = 20, 25, 26, 28, 52, 68
        ACC, RES, RING, GQ = 84, 92, 96, 192
        VG0, VG1 = 66, 67
        e("L_helperA:")
        e("s_setprio 3")
        e(f"v_mul_u32_u24 v{VW}, 0x18000, v1")
        e(f"v_lshl_add_u32 v{VW}, v2, 4, v{VW}")
        e(f"v_lshlrev_b32 v{VL16}, 4, v0")
        e(f"v_lshlrev_b32 v{T}, 2, v0")
        e(f"s_mul_i32 s42, s{S_RB}, {64 * 12288}")
        e(f"s_mul_i32 s43, s{S_X}, 384")
        e("s_add_u32 s42, s42, s43")
        e(f"s_lshl_b32 s6, s{S_CB}, 7")
        e("s_add_u32 s42, s42, s6")
        e("s_waitcnt lgkmcnt(0)")
        self.srd(SX, P_X, 1280)
        self.srd(SW, P_WQ, 640 * 12288)
        e(f"buffer_load_dwordx4 v[{XA}:{XA + 3}], v{VL16}, s[{SX}:{SX + 3}], 0 offen")
        e(f"buffer_load_dword v{XA + 4}, v{T}, s[{SX}:{SX + 3}], 0 offen offset:1024")
        for i in range(8):
            e(f"buffer_load_dwordx4 v[{GQ + 4 * i}:{GQ + 4 * i + 3}], v{VW}, s[{SW}:{SW + 3}], s42 offen nt")
            if i < 7:
                e("s_add_u32 s42, s42, 12288")
        e(f"s_mov_b32 s6, {WS_EPOCH}")
        e(f"s_load_dword s{S_TAG}, s[{P_WS}:{P_WS + 1}], s6")
        e("s_barrier")
        self.srd(SWS, P_WS, WS_SIZE)
        self.c("second job: half of the rows of one 64-column block of wq (heads 1..3), gate or up")
        e(f"s_lshr_b32 s52, s{S_C}, 1")
        e(f"s_and_b32 s53, s{S_C}, 1")
        e("s_mul_i32 s54, s52, 43691")
        e("s_lshr_b32 s54, s54, 17")
        e("s_mul_i32 s55, s54, 3")
        e("s_sub_u32 s55, s52, s55")
        e("s_cmp_eq_u32 s54, 3")
        e(f"s_cselect_b32 s{SJ}, s{P_G}, s{P_U}")
        e(f"s_cselect_b32 s{SJ + 1}, s{P_G + 1}, s{P_U + 1}")
        e("s_add_u32 s6, s54, 1")
        e("s_mul_i32 s6, s6, 3072")
        e("s_movk_i32 s56, 0xc00")
        e("s_cmp_lt_u32 s54, 3")
        e(f"s_cselect_b32 s{SJ}, s{P_WQ}, s{SJ}")
        e(f"s_cselect_b32 s{SJ + 1}, s{P_WQ + 1}, s{SJ + 1}")
        e("s_cselect_b32 s56, 12288, s56")
        e("s_cselect_b32 s6, s6, 0")
        e(f"s_mul_i32 s{SJ + 2}, s56, 640")
        e("s_cmp_lt_u32 s54, 5")
        e(f"s_cselect_b32 s{SJ + 2}, s{SJ + 2}, 0")
        e(f"s_mov_b32 s{SJ + 3}, 0x20000")
        e("s_add_u32 s42, s43, s6")
        e("s_lshl_b32 s6, s55, 7")
        e("s_add_u32 s42, s42, s6")
        e("s_mul_i32 s6, s56, 320")
        e("s_mul_i32 s6, s6, s53")
        e("s_add_u32 s42, s42, s6")
        e("s_mul_i32 s57, s56, 57")
        e("s_lshl_b32 s6, s56, 3")
        e(f"v_mul_u32_u24 v{VW2}, s6, v1")
        e(f"v_lshl_add_u32 v{VW2}, v2, 4, v{VW2}")
        e(f"v_lshrrev_b32 v{VP}, 4, v0")
        e(f"v_lshlrev_b32 v{VP}, 7, v{VP}")
        e(f"v_lshl_add_u32 v{VP}, v2, 4, v{VP}")
        e(f"v_and_b32 v{T + 1}, 3, v1")
        e(f"v_lshlrev_b32 v{VQL}, 4, v2")
        e(f"v_lshl_add_u32 v{VQL}, v{T + 1}, 2, v{VQL}")
        e(f"v_and_b32 v{T + 1}, 31, v0")
        e(f"v_lshlrev_b32 v{T + 1}, 4, v{T + 1}")
        e(f"v_lshrrev_b32 v{T + 2}, 5, v0")
        e(f"v_mul_u32_u24 v{VG0}, 1536, v{T + 2}")
        e(f"v_add_u32 v{VG0}, v{VG0}, v{T + 1}")
        e(f"v_mul_u32_u24 v{VG1}, 7680, v{T + 2}")
        e(f"v_add_u32 v{VG1}, v{VG1}, v{T + 1}")
        e(f"s_lshl_b32 s6, s{S_RB}, 7")
        e(f"v_lshl_add_u32 v{VXS}, v1, 4, s6")
        e("s_mul_i32 s6, s53, 640")
        e(f"v_lshl_add_u32 v{VXS + 1}, v1, 4, s6")
        for k in range(8):
            e(f"v_mov_b32 v{ACC + k}, 0")

        def job_load(i):
            r = RING + 4 * (i % 24)
            e(f"buffer_load_dwordx4 v[{r}:{r + 3}], v{VW2}, s[{SJ}:{SJ + 3}], s42 offen nt")
            if i < 39:
                e(f"s_add_u32 s42, s42, s{57 if i % 8 == 7 else 56}")
            if i == self.go_at:
                e(f"v_mov_b32 v{VT}, {L_FLG}")
                e(f"v_mov_b32 v{VT + 1}, 1")
                e(f"ds_write_b32 v{VT}, v{VT + 1}")

        ae = self.a_early
        e("s_waitcnt vmcnt(8)")
        self.stamp(1)
        for i in range(ae):
            job_load(i)
        self.layernorm(XA, F)
        e(f"ds_write_b128 v{VL16}, v[{XA}:{XA + 3}] offset:{L_XN}")
        e(f"ds_write_b32 v{T}, v{XA + 4} offset:{L_XN + 1024}")
        e(f"ds_read_b128 v[{XC}:{XC + 3}], v{VXS} offset:{L_XN}")
        for u in range(5):
            e(f"ds_read_b128 v[{XC + 4 + 4 * u}:{XC + 7 + 4 * u}], v{VXS + 1} offset:{L_XN + 128 * u}")
        e("s_waitcnt lgkmcnt(0)")
        e(f"s_add_u32 s{S_TAG}, s{S_TAG}, {hex(NONCE_STEP)}")
        self.expand(XC, XOP)
        self.tag_regs(RES)
        for i in range(8):
            e(f"s_waitcnt vmcnt({7 - i + ae})")
            self.gemv_row(GQ + 4 * i, XOP + 2 * i, ACC)
        self.reduce_g2(ACC, RES)
        e(f"s_mul_i32 s58, s{S_X}, 15360")
        e(f"s_lshl_b32 s6, s{S_C}, 9")
        e("s_add_u32 s6, s6, s58")
        e(f"s_cmp_lt_u32 s{S_C}, 30")
        e(f"s_cselect_b32 s6, s6, {WS_SIZE}")
        self.exec_tagged()
        e(f"buffer_store_dwordx4 v[{RES}:{RES + 3}], v{VP}, s[{SWS}:{SWS + 3}], s6 offen sc1")
        e("s_mov_b64 exec, -1")
        self.stamp(2)
        cap = self.capA
        assert ae <= cap <= 23

        def job_consume(j):
            if j % 8 == 0:
                self.expand(XC + 4 + 4 * (j // 8), XOP)
            self.gemv_row(RING + 4 * (j % 24), XOP + 2 * (j % 8), ACC)

        for i in range(ae, 40):
            if i >= cap:
                e(f"s_waitcnt vmcnt({cap - 1})")
            job_load(i)
            if i == max(ae, cap - 1):
                self.set_lds(L_TAG, f"s{S_TAG}", VT)
                self.set_lds(L_FLN, 1, VT)
                for k in range(8):
                    e(f"v_mov_b32 v{ACC + k}, 0")
            if i >= cap:
                job_consume(i - cap)
        self.stamp(3)

        def rest_of_job(extra=15):
            for j in range(40 - cap, 40):
                e(f"s_waitcnt vmcnt({39 - j + extra})")
                job_consume(j)

        def finish_q(regs, lds0):
            for r in regs:
                e(f"v_mov_b32 v{r + 1}, v{r}")
                e(f"v_mov_b32 v{r + 3}, v{r + 2}")
            e("s_nop 0")
            for r in regs:
                e(f"v_permlane32_swap_b32 v{r}, v{r + 1}")
                e(f"v_permlane32_swap_b32 v{r + 2}, v{r + 3}")
            for r in regs:
                e(f"v_add_f32 v{r}, v{r}, v{r + 1}")
                e(f"v_add_f32 v{r + 2}, v{r + 2}, v{r + 3}")
            for i, r in enumerate(regs):
                e(f"v_cvt_pk_bf16_f32 v{r}, v{r}, v{r + 2}")
                e(f"ds_write_b32 v{VQL}, v{r} offset:{lds0 + 128 * i}")

        for k in range(5):
            e(f"s_add_u32 s{SM + k}, s58, {3072 * k}")
        loads = [f"buffer_load_dwordx4 v[{GQ + 12 * k + 4 * cb}:{GQ + 12 * k + 4 * cb + 3}], v{VG0}, s[{SWS}:{SWS + 3}], "
                 f"s{SM + k} offen offset:{512 * cb} sc1" for k in range(5) for cb in range(3)]
        if self.q_late:
            rest_of_job(0)
            self.gather_tagged(loads, GQ, 15, VT, sleep=4)
        else:
            self.gather_tagged(loads, GQ, 15, VT, sleep=4, between=rest_of_job)
        self.stamp(4)
        for k in range(1, 5):
            for j in range(0, 12, 2):
                e(f"v_add_f32 v{GQ + j}, v{GQ + j}, v{GQ + 12 * k + j}")
        finish_q([GQ, GQ + 4, GQ + 8], L_Q)
        self.set_lds(L_FLQ, 1, VT)
        self.stamp(5)
        e("s_setprio 0")
        self.reduce_g2(ACC, RES)
        e("s_mul_i32 s6, s53, 7680")
        e("s_lshl_b32 s7, s52, 9")
        e("s_add_u32 s6, s6, s7")
        e("s_add_u32 s6, s6, s58")
        e(f"s_add_u32 s6, s6, {WS_PA1}")
        e(f"s_cmp_lt_u32 s{S_C}, 30")
        e(f"s_cselect_b32 s6, s6, {WS_SIZE}")
        self.exec_tagged()
        e(f"buffer_store_dwordx4 v[{RES}:{RES + 3}], v{VP}, s[{SWS}:{SWS + 3}], s6 offen sc1")
        e("s_mov_b64 exec, -1")
        self.wait_lds(L_FIT, self.it_q, VT, n=NS, sleep=8)
        e(f"s_add_u32 s6, s58, {WS_PA1}")
        e("s_add_u32 s7, s6, 4096")
        loads = [f"buffer_load_dwordx4 v[{GQ + 4 * j}:{GQ + 4 * j + 3}], v{VG1}, s[{SWS}:{SWS + 3}], "
                 f"s{6 + j // 8} offen offset:{512 * (j % 8)} sc1" for j in range(9)]
        self.gather_tagged(loads, GQ, 9, VT, sleep=32)
        finish_q([GQ + 4 * j for j in range(9)], L_Q + 384)
        self.set_lds(L_FLQ, 4, VT)
        self.stamp(6)
        self.make_tags(TGL)
        SCR, ST, OPR = 128, 160, 180

        M, LS, VS32 = 20, 21, 22
        U = 24

        def unpack(r):
            for k in range(8):
                e(f"v_lshlrev_b32 v{U + 2 * k}, 16, v{SCR + 8 * r + k}")
                e(f"v_and_b32 v{U + 2 * k + 1}, 0xffff0000, v{SCR + 8 * r + k}")

        def local_stats(r):
            self.wait_lds(L_FLS, r + 1, VT, n=NS, sleep=8)
            e(f"v_lshlrev_b32 v{VS32}, 5, v0")
            b = SCR + 8 * r
            e(f"ds_read_b128 v[{b}:{b + 3}], v{VS32} offset:{L_SC + 2048 * r}")
            e(f"ds_read_b128 v[{b + 4}:{b + 7}], v{VS32} offset:{L_SC + 2048 * r + 16}")
            e("s_waitcnt lgkmcnt(0)")
            unpack(r)
            for k in range(16):
                e(f"v_mul_f32 v{U + k}, {hex(SCALE)}, v{U + k}")
            for k in range(8):
                e(f"v_cvt_pk_bf16_f32 v{b + k}, v{U + 2 * k}, v{U + 2 * k + 1}")
            unpack(r)
            e(f"v_max_f32 v{M}, v{U}, v{U + 1}")
            for k in range(2, 16, 2):
                e(f"v_max3_f32 v{M}, v{M}, v{U + k}, v{U + k + 1}")
            self.allreduce("v_max_f32", M, T)
            for k in range(16):
                e(f"v_sub_f32 v{U + k}, v{U + k}, v{M}")
            for k in range(16):
                e(f"v_mul_f32 v{U + k}, {hex(LOG2E)}, v{U + k}")
            for k in range(16):
                e(f"v_exp_f32 v{U + k}, v{U + k}")
            e("s_nop 0")
            e(f"v_add_f32 v{LS}, v{U}, v{U + 1}")
            for k in range(2, 16):
                e(f"v_add_f32 v{LS}, v{LS}, v{U + k}")
            self.allreduce("v_add_f32", LS, T)
            e(f"v_cmp_eq_u32 vcc, {r % 3}, v0")
            e("s_nop 1")
            e(f"v_cndmask_b32 v{ST}, v{ST}, v{M}, vcc")
            e(f"v_cndmask_b32 v{ST + 2}, v{ST + 2}, v{LS}, vcc")

        def publish_stats(base, shift, lanes):
            self.tag_regs(ST)
            e(f"s_lshl_b32 s6, s{S_X}, {shift + 5}")
            e(f"s_lshl_b32 s7, s{S_C}, {shift}")
            e("s_add_u32 s6, s6, s7")
            e(f"s_add_u32 s6, s6, {base}")
            e(f"s_mov_b64 exec, {(1 << lanes) - 1}")
            e(f"buffer_store_dwordx4 v[{ST}:{ST + 3}], v{VL16}, s[{SWS}:{SWS + 3}], s6 offen sc1")
            e("s_mov_b64 exec, -1")
            e("s_nop 1")

        def gather_stats(base, shift, n):
            e(f"v_and_b32 v{T + 1}, 31, v0")
            e(f"v_lshlrev_b32 v{T + 1}, {shift}, v{T + 1}")
            e(f"s_lshl_b32 s6, s{S_X}, {shift + 5}")
            e(f"s_add_u32 s6, s6, {base}")
            self.gather_tagged([f"buffer_load_dwordx4 v[{ST + 4 + 4 * k}:{ST + 7 + 4 * k}], v{T + 1}, s[{SWS}:{SWS + 3}], "
                                f"s6 offen offset:{16 * k} sc1" for k in range(n)], ST + 4, n, VT, sleep=32)

        def finalize_p(r):
            G = ST + 4 + 4 * (r % 3)
            e(f"v_mov_b32 v{M}, v{G}")
            self.allreduce("v_max_f32", M, T)
            e(f"v_sub_f32 v{G}, v{G}, v{M}")
            e(f"v_mul_f32 v{G}, {hex(LOG2E)}, v{G}")
            e(f"v_exp_f32 v{G}, v{G}")
            e("s_nop 0")
            e(f"v_mul_f32 v{LS}, v{G}, v{G + 2}")
            self.allreduce("v_add_f32", LS, T)
            e(f"v_mul_f32 v{LS}, 0.5, v{LS}")
            e(f"v_rcp_f32 v{LS}, v{LS}")
            unpack(r)
            for k in range(16):
                e(f"v_sub_f32 v{U + k}, v{U + k}, v{M}")
            for k in range(16):
                e(f"v_mul_f32 v{U + k}, {hex(LOG2E)}, v{U + k}")
            for k in range(16):
                e(f"v_exp_f32 v{U + k}, v{U + k}")
            e("s_nop 0")
            for k in range(16):
                e(f"v_mul_f32 v{U + k}, v{U + k}, v{LS}")
            b = SCR + 8 * r
            for k in range(8):
                e(f"v_cvt_pk_bf16_f32 v{b + k}, v{U + 2 * k}, v{U + 2 * k + 1}")
            e(f"ds_write_b128 v{VS32}, v[{b}:{b + 3}] offset:{L_SC + 2048 * r}")
            e(f"ds_write_b128 v{VS32}, v[{b + 4}:{b + 7}] offset:{L_SC + 2048 * r + 16}")
            self.set_lds(L_FLP, r + 1, VT)

        def reduce_op(r):
            self.wait_lds(L_FLS, r + 5, VT, n=NS, sleep=8)
            D, O = 40, OPR + 4 * r
            for i in range(16):
                d = D + 4 * i
                e(f"ds_read_b128 v[{d}:{d + 3}], v{VQL} offset:{L_DUMP + r * self.dump_bytes + 768 * i}")
                if i == 7:
                    e("s_waitcnt lgkmcnt(7)")
            for i in range(1, 16):
                e(f"s_waitcnt lgkmcnt({15 - i})")
                for k in range(4):
                    e(f"v_add_f32 v{O + k}, v{D + k if i == 1 else O + k}, v{D + 4 * i + k}")
            self.embed(O, TGL)

        e("s_getreg_b32 s59, hwreg(HW_REG_XCC_ID, 0, 4)")
        e(f"v_mov_b32 v{ST}, s59")
        e(f"v_mov_b32 v{ST + 2}, s59")
        for r in range(3):
            local_stats(r)
        publish_stats(WS_STA, 6, 4)
        self.wait_lds(L_FIT, 24 + self.it_st, VT, n=NS, sleep=8)
        gather_stats(WS_STA, 6, 4)
        e(f"v_cmp_ne_u32 vcc, s59, v{ST + 16}")
        e("s_nop 1")
        e("s_cmp_eq_u64 vcc, 0")
        e(f"s_cselect_b32 s59, {1 if self.local else 0}, 0")
        self.set_lds(L_LOC, "s59", VT)
        for r in range(3):
            finalize_p(r)
        self.stamp(7)
        self.c("local groups write the last head's partial-sum lines whole once, with tags that cannot match;")
        self.c("the round-3 statistics, published afterwards, order this before every real publish")
        e("s_cmp_eq_u32 s59, 0")
        e("s_cbranch_scc1 L_ha_notouch")
        for k in range(4):
            e(f"v_not_b32 v{U + k}, v{TGL + k}")
        e(f"s_mul_i32 s6, s{S_X}, {4 * 24576}")
        e(f"s_mul_i32 s7, s{S_C}, 768")
        e("s_add_u32 s6, s6, s7")
        e(f"s_add_u32 s6, s6, {WS_OP + 3 * 24576}")
        e("s_mov_b32 exec_hi, 0xffff")
        e(f"buffer_store_dwordx4 v[{U}:{U + 3}], v{VL16}, s[{SWS}:{SWS + 3}], s6 offen")
        e("s_mov_b64 exec, -1")
        e("s_waitcnt vmcnt(0)")
        e("L_ha_notouch:")
        local_stats(3)
        publish_stats(WS_STB, 4, 1)
        self.wait_lds(L_FIT, 32 + self.it_st + 2, VT, n=NS, sleep=8)
        gather_stats(WS_STB, 4, 1)
        finalize_p(3)
        e(f"v_lshrrev_b32 v{VQL}, 4, v0")
        e(f"v_lshlrev_b32 v{VQL}, 8, v{VQL}")
        e(f"v_lshl_add_u32 v{VQL}, v2, 5, v{VQL}")
        e(f"v_and_b32 v{T + 1}, 1, v1")
        e(f"v_lshl_add_u32 v{VQL}, v{T + 1}, 4, v{VQL}")
        for r in range(3):
            reduce_op(r)
        e(f"v_lshrrev_b32 v{T}, 4, v0")
        e(f"v_lshlrev_b32 v{T}, 13, v{T}")
        e(f"v_and_b32 v{T + 1}, 15, v0")
        e(f"v_lshl_add_u32 v{T}, v{T + 1}, 4, v{T}")
        e(f"s_mul_i32 s6, s{S_X}, {4 * 24576}")
        e(f"s_lshl_b32 s7, s{S_C}, 8")
        e("s_add_u32 s6, s6, s7")
        e(f"s_add_u32 s6, s6, {WS_OP}")
        e("s_mov_b32 exec_hi, 0xffff")
        e("s_cmp_lg_u32 s59, 0")
        e("s_cbranch_scc1 L_ha_local")
        for fl in (" sc1", ""):
            for r in range(3):
                e(f"buffer_store_dwordx4 v[{OPR + 4 * r}:{OPR + 4 * r + 3}], v{T}, s[{SWS}:{SWS + 3}], s6 offen{fl}")
                if r < 2:
                    e("s_add_u32 s6, s6, 24576")
            if fl:
                e("s_branch L_ha_end")
                e("L_ha_local:")
        e("L_ha_end:")
        e("s_mov_b64 exec, -1")
        e(f"s_sub_u32 s56, s{S_C}, 29")
        e("s_lshl_b32 s56, s56, 3")
        e(f"s_add_u32 s56, s56, s{S_X}")
        e("s_sub_u32 s6, s56, 8")
        e("s_cmp_lt_u32 s6, 12")
        e("s_cbranch_scc1 L_fin_entry")
        self.stamp(8)
        self.prof_store(9)
        e("s_endpgm")
        return GQ + 60

    def marker(self, vt, sws):
        e = self.e
        if not self.xg:
            return
        lp = self.label("ct")
        e(f"s_cmp_lg_u32 s{S_X}, 7")
        e("s_cbranch_scc1 L_norank")
        e(f"v_mul_u32_u24 v{vt}, {PR_STRIDE}, v0")
        e(f"v_mov_b32 v{vt + 1}, 0")
        e(f"s_mov_b32 s6, {WS_RK}")
        e(f"buffer_store_dword v{vt + 1}, v{vt}, s[{sws}:{sws + 3}], s6 offen sc1")
        e("L_norank:")
        e("s_mov_b32 s57, 0")
        e(f"s_mov_b32 s58, {self.xfrom}")
        e(f"s_mul_i32 s55, s{S_X}, {PR_STRIDE}")
        e(f"s_add_u32 s55, s55, {WS_PR + 252}")
        e(f"{lp}:")
        self.wait_lds(L_FIT, "s58", vt, n=self.NS, sleep=1)
        e(f"s_mul_i32 s59, s58, {PR_STRIDE}")
        e(f"s_add_u32 s59, s59, {WS_RK}")
        e("s_mov_b32 s6, 1")
        e(f"s_atomic_add s6, s[{P_WS}:{P_WS + 1}], s59 glc")
        e("s_waitcnt lgkmcnt(0)")
        e("s_min_u32 s6, s6, 7")
        e("s_lshl_b32 s6, s6, 1")
        e("s_sub_u32 s6, s6, 7")
        e(f"s_mul_i32 s7, s6, {self.xi}")
        e("s_add_u32 s57, s57, s7")
        e(f"s_min_i32 s57, s57, {self.xb}")
        e(f"s_max_i32 s57, s57, {-self.xb}")
        e(f"s_mul_i32 s6, s6, {self.xg}")
        e("s_add_u32 s6, s6, s57")
        e(f"s_add_u32 s7, s{S_TAG}, 0x1080")
        e("s_add_u32 s6, s6, s7")
        e(f"v_mov_b32 v{vt}, s6")
        e("s_mov_b64 exec, 1")
        e(f"buffer_store_dword v{vt}, v{vt + 4}, s[{sws}:{sws + 3}], s55 offen")
        e("s_mov_b64 exec, -1")
        e(f"s_add_u32 s58, s58, {self.xstep}")
        e(f"s_cmp_lt_u32 s58, {self.xend}")
        e(f"s_cbranch_scc1 {lp}")

    def helperB(self):
        e = self.e
        NS = self.NS
        S_RB, S_CB = 40, 41
        SX, SA, SWS = 8, 12, 44
        SM = 84
        VA, VT = 3, 4
        G0, WK, YA = 12, 44, 76
        TGL, TGG, VP, VG = 84, 88, 92, 93
        W = 96
        e("L_helperB:")
        e(f"v_mul_u32_u24 v{VA}, 0x2800, v1")
        e(f"v_lshl_add_u32 v{VA}, v2, 4, v{VA}")
        for k in range(4):
            e(f"v_mov_b32 v{VT + k}, 0")
        for k in range(4):
            e(f"ds_write_b128 v{VT}, v[{VT}:{VT + 3}] offset:{16 * k}")
        e(f"s_mul_i32 s43, s{S_X}, {192 * 1280}")
        e(f"s_mul_i32 s6, s{S_CB}, {64 * 1280}")
        e("s_add_u32 s43, s43, s6")
        e(f"s_lshl_b32 s6, s{S_RB}, 7")
        e("s_add_u32 s43, s43, s6")
        e("s_waitcnt lgkmcnt(0)")
        self.srd(SA, P_WO, 6144 * 1280)
        e("s_barrier")
        e(f"s_cmp_ge_u32 s{S_C}, 30")
        e("s_cbranch_scc1 L_hb_tags")
        def wload(i):
            n, ii = divmod(i, 8)
            if ii % 4 == 0:
                e(f"s_add_u32 s42, s43, {(8 * 192 * 1280 * n if n < 4 else 0) + 1280 * ii}")
            r = W + 4 * i
            e(f"buffer_load_dwordx4 v[{r}:{r + 3}], v{VA}, s[{SA}:{SA + 3}], s42 offen offset:{1280 * (ii % 4)} nt")

        for cnt, i in enumerate(range(8 * self.nlate, 40)):
            if i == 32:
                self.srd(SA, P_D, 1536 * 1280)
            if cnt >= self.capB:
                e(f"s_waitcnt vmcnt({self.capB - 1})")
            wload(i)
        self.stamp(1)
        e("L_hb_tags:")
        if self.prof:
            e("s_mov_b32 s78, 0")
        self.srd(SX, P_X, 1280)
        self.srd(SWS, P_WS, WS_SIZE)
        self.wait_lds(L_FLN, 1, VT, sleep=4)
        self.read_tag(VT)
        self.make_tags(TGL)
        e(f"s_cmp_ge_u32 s{S_C}, 30")
        e("s_cbranch_scc1 L_finisher")
        e(f"v_lshrrev_b32 v{VP}, 5, v0")
        e(f"v_lshlrev_b32 v{VP}, 7, v{VP}")
        e(f"v_lshl_add_u32 v{VP}, v2, 4, v{VP}")
        e(f"s_mul_i32 s54, s{S_RB}, 24")
        e(f"s_mul_i32 s7, s{S_X}, 3")
        e("s_add_u32 s54, s54, s7")
        e(f"s_add_u32 s54, s54, s{S_CB}")
        e("s_lshl_b32 s54, s54, 8")
        e(f"s_add_u32 s54, s54, {WS_YB}")
        e("s_mov_b32 s48, 0x05040100")
        e("s_mov_b32 s49, 0x07060302")

        def permute(n):
            for pr in range(4):
                for k in range(4):
                    lo, hi = W + 32 * n + 8 * pr + k, W + 32 * n + 8 * pr + 4 + k
                    e(f"v_perm_b32 v{WK + 8 * pr + 2 * k}, v{hi}, v{lo}, s48")
                    e(f"v_perm_b32 v{WK + 8 * pr + 2 * k + 1}, v{hi}, v{lo}, s49")

        OV = G0 + 24

        def gemv():
            for pr in range(4):
                for c_ in range(8):
                    e(f"v_dot2c_f32_bf16 v{YA + c_}, v{WK + 8 * pr + c_}, v{OV + pr}")

        self.c("ffn hidden slice")
        self.wait_lds(L_FLQ, 4, VT, sleep=8)
        e(f"v_lshlrev_b32 v{VG}, 4, v1")
        VF = 88
        e(f"v_and_b32 v{VF}, 1, v2")
        e(f"v_mul_u32_u24 v{VF}, 7680, v{VF}")
        e(f"v_add_u32 v{VF}, v{VF}, v{VG}")
        e(f"s_mul_i32 s6, s{S_X}, 15360")
        e(f"s_lshl_b32 s7, s{S_CB}, 9")
        e("s_add_u32 s6, s6, s7")
        e(f"s_add_u32 s6, s6, {WS_PA1 + 9 * 512}")
        loads = [f"buffer_load_dwordx4 v[{G0 + 16 * m + 4 * q}:{G0 + 16 * m + 4 * q + 3}], v{VF}, "
                 f"s[{SWS}:{SWS + 3}], s6 offen offset:{1536 * m + 128 * q} sc1" for m in range(2) for q in range(4)]
        self.gather_tagged(loads, G0, 8, VT, sleep=32)
        GA, UA, Z = WK, WK + 8, WK + 16
        for k in range(16):
            e(f"v_add_f32_dpp v{GA + k}, v{G0 + 2 * k}, v{G0 + 2 * k} {X1}")
        for k in range(8):
            self.round_bf16(GA + k)
            self.round_bf16(UA + k)
        c2 = -2.0 * 0.7978845608028654 * 1.4426950408889634
        e(f"s_mov_b32 s6, {hex(f2u(0.044715))}")
        for k in range(8):
            e(f"v_mul_f32 v{Z + k}, v{GA + k}, v{GA + k}")
        for k in range(8):
            e(f"v_mul_f32 v{Z + k}, v{Z + k}, v{GA + k}")
        for k in range(8):
            e(f"v_fma_f32 v{Z + k}, v{Z + k}, s6, v{GA + k}")
        for k in range(8):
            e(f"v_mul_f32 v{Z + k}, {hex(f2u(c2))}, v{Z + k}")
        for k in range(8):
            e(f"v_exp_f32 v{Z + k}, v{Z + k}")
        for k in range(8):
            e(f"v_add_f32 v{Z + k}, 1.0, v{Z + k}")
        for k in range(8):
            e(f"v_rcp_f32 v{Z + k}, v{Z + k}")
        for k in range(8):
            e(f"v_mul_f32 v{Z + k}, v{Z + k}, v{GA + k}")
        for k in range(8):
            self.round_bf16(Z + k)
        for k in range(8):
            e(f"v_mul_f32 v{Z + k}, v{Z + k}, v{UA + k}")
        for k in range(4):
            e(f"v_cvt_pk_bf16_f32 v{OV + k}, v{Z + 2 * k}, v{Z + 2 * k + 1}")
        permute(4)
        for k in range(8):
            e(f"v_mov_b32 v{YA + k}, 0")
        e(f"v_lshl_add_u32 v{VG}, v2, 8, v{VG}")
        e(f"v_add_u32 v{VG + 1}, 128, v{VG}")
        e(f"s_mul_i32 s52, s{S_X}, {4 * 24576}")
        e(f"s_lshl_b32 s7, s{S_CB}, 13")
        e("s_add_u32 s52, s52, s7")
        e(f"s_add_u32 s52, s52, {WS_OP}")
        e("s_mov_b32 s50, -1")
        e("s_branch L_hb_gemv")

        self.c("s50 = head round; each pass gathers one 64-row slice of the attention output")
        XOP = W + 96
        nl = 8 * self.nlate
        pa = min(self.poll_at, nl)
        e("L_hb_round:")
        e("s_cmp_lg_u32 s50, 3")
        e("s_cbranch_scc1 L_hb_gather")
        for i in range(nl, 24):
            self.gemv_row(W + 4 * i, XOP + 2 * i, YA)
        self.srd(SA, P_WO, 6144 * 1280)
        e(f"v_lshlrev_b32 v{VG}, {self.sh_g}, v1")
        e(f"v_lshl_add_u32 v{VG}, v2, {self.sh_p}, v{VG}")
        e(f"v_add_u32 v{VG + 1}, {1 << self.sh_q}, v{VG}")
        self.stamp(3)
        self.wait_lds(L_FIT, 64 if nl else 65, VT, n=NS, sleep=1)
        for i in range(nl):
            wload(i)
        for i in range(nl - pa):
            e(f"s_waitcnt vmcnt({nl - 1 - i})")
            self.gemv_row(W + 4 * i, XOP + 2 * i, YA)
        self.stamp(4, True)
        e("L_hb_gather:")
        e("s_add_u32 s53, s52, 4096")
        e("s_sub_u32 s51, 3, s50")
        groups = []
        for j in range(4):
            groups.append(([f"buffer_load_dwordx4 v[{G0 + 8 * j + 4 * q}:{G0 + 8 * j + 4 * q + 3}], v{VG + q}, "
                            f"s[{SWS}:{SWS + 3}], s{52 + j // 2} offen offset:{2048 * (j % 2)} sc1"
                            for q in range(2)], G0 + 8 * j, 2))

        def last_rows():
            for i in range(nl - pa, nl):
                e(f"s_waitcnt vmcnt({nl - 1 - i + 8})")
                self.gemv_row(W + 4 * i, XOP + 2 * i, YA)

        self.gather_emb(groups, TGL, VT, SM, sleep="s51", between=last_rows if pa else None, cond="s_cmp_eq_u32 s50, 3")
        self.stamp(5, True)
        for k in range(8):
            e(f"v_add_f32 v{G0 + k}, v{G0 + k}, v{G0 + 8 + k}")
            e(f"v_add_f32 v{G0 + 16 + k}, v{G0 + 16 + k}, v{G0 + 24 + k}")
        for k in range(8):
            e(f"v_add_f32 v{G0 + k}, v{G0 + k}, v{G0 + 16 + k}")
        for pat in (X1, X2, HM):
            for k in range(8):
                e(f"v_add_f32_dpp v{G0 + k}, v{G0 + k}, v{G0 + k} {pat}")
        for k in range(4):
            e(f"v_cvt_pk_bf16_f32 v{OV + k}, v{G0 + 2 * k}, v{G0 + 2 * k + 1}")
        e("s_cmp_lg_u32 s50, 3")
        e("s_cbranch_scc1 L_hb_keep")
        e("L_hb_gemv:")
        gemv()
        self.reduce_g(YA, G0, G0 + 4)
        self.embed(G0, TGL)
        e("s_mov_b32 exec_lo, 0xff")
        e("s_mov_b32 exec_hi, 0xff")
        e(f"buffer_store_dwordx4 v[{G0}:{G0 + 3}], v{VP}, s[{SWS}:{SWS + 3}], s54 offen {self.ya_fl}")
        e("s_mov_b64 exec, -1")
        e("s_cmp_eq_u32 s50, 3")
        e("s_cbranch_scc1 L_hb_done")
        self.stamp(2)
        e(f"s_sub_u32 s54, s54, {WS_YB - WS_YA}")
        for k in range(8):
            e(f"v_mov_b32 v{YA + k}, 0")
        permute(3)
        self.wait_lds(L_FIT, 56 + self.it_op, VT, n=NS, sleep=8)
        e("s_mov_b32 s50, 0")
        e("s_branch L_hb_round")
        e("L_hb_keep:")
        for r in range(3):
            nx = self.label("hbk")
            e(f"s_cmp_lg_u32 s50, {r}")
            e(f"s_cbranch_scc1 {nx}")
            self.expand(OV, XOP + 16 * r)
            e(f"{nx}:")
        e("s_add_u32 s52, s52, 24576")
        e("s_add_u32 s50, s50, 1")
        e("s_branch L_hb_round")
        e("L_hb_done:")
        self.stamp(6, True)
        self.prof_store(8)
        e("s_endpgm")

        e("L_finisher:")
        e(f"s_mov_b32 s56, s{S_X}")
        e(f"s_cmp_eq_u32 s{S_C}, 30")
        e("s_cbranch_scc1 L_fin_entry")
        self.marker(VT, SWS)
        e("s_endpgm")
        self.c("finisher s56 (0..19): sums the projection partials of 32 columns and writes them out")
        e("L_fin_entry:")
        XV, BV = 64, 72
        self.make_tags(TGL)
        e(f"v_lshlrev_b32 v{VA}, 4, v2")
        e(f"v_lshl_add_u32 v{VG}, v1, 8, v{VA}")
        e("s_lshr_b32 s6, s56, 1")
        e("s_and_b32 s7, s56, 1")
        e("s_lshl_b32 s57, s6, 7")
        e("s_mul_i32 s52, s6, 6144")
        e("s_lshl_b32 s6, s7, 3")
        e("s_add_u32 s57, s57, s6")
        e("s_lshl_b32 s6, s7, 7")
        e("s_add_u32 s52, s52, s6")
        e(f"s_add_u32 s52, s52, {WS_YB}")
        e(f"buffer_load_dwordx2 v[{XV}:{XV + 1}], v{VA}, s[{SX}:{SX + 3}], s57 offen")
        self.srd(SA, P_OUT, 1280)
        e("s_mov_b32 s50, 16")
        e("s_mov_b32 s51, 1")
        e("L_fin_pass:")
        self.wait_lds(L_FIT, "s50", VT, n=NS, sleep=1)
        self.stamp(4, True)
        e("s_add_u32 s53, s52, 4096")
        ns = self.fsets

        def poll(k):
            for i in range(3):
                r = W + 12 * k + 4 * i
                e(f"buffer_load_dwordx4 v[{r}:{r + 3}], v{VG}, s[{SWS}:{SWS + 3}], s{52 + i // 2} "
                  f"offen offset:{2048 * (i % 2)} sc1")

        e(f"s_mov_b32 s62, {SPIN_G}")
        e("s_waitcnt vmcnt(0)")
        for k in range(ns):
            poll(k)
        e("L_fin_poll:")
        for k in range(ns):
            r0 = W + 12 * k
            e(f"s_waitcnt vmcnt({3 * (ns - 1)})")
            for j in range(12):
                e(f"v_xor_b32 v{r0 + j}, v{r0 + j}, v{TGL + j % 4}")
            e(f"v_or_b32 v{VT}, v{r0}, v{r0 + 1}")
            for j in range(2, 12, 2):
                e(f"v_or3_b32 v{VT}, v{VT}, v{r0 + j}, v{r0 + j + 1}")
            e(f"v_and_b32 v{VT}, s61, v{VT}")
            e(f"v_cmp_ne_u32 vcc, 0, v{VT}")
            for j in range(4):
                e(f"v_add_f32 v{G0 + j}, v{r0 + j}, v{r0 + 4 + j}")
            for j in range(4):
                e(f"v_add_f32 v{G0 + j}, v{G0 + j}, v{r0 + 8 + j}")
            e("s_cbranch_vccz L_fin_got")
            poll(k)
        e("s_cmp_eq_u32 s51, 0")
        e("s_cbranch_scc1 L_fin_nosleep")
        e("s_sleep 32")
        e("L_fin_nosleep:")
        e("s_sub_u32 s62, s62, 1")
        e("s_cmp_lg_u32 s62, 0")
        e("s_cbranch_scc1 L_fin_poll")
        e("s_endpgm")
        e("L_fin_got:")
        self.stamp(5, True)
        for k in range(4):
            e(f"v_add_f32_dpp v{G0 + k}, v{G0 + k}, v{G0 + k} {R8}")
        for sw in ("v_permlane16_swap_b32", "v_permlane32_swap_b32"):
            for k in range(4):
                e(f"v_mov_b32 v{G0 + 4 + k}, v{G0 + k}")
            e("s_nop 0")
            for k in range(4):
                e(f"{sw} v{G0 + k}, v{G0 + 4 + k}")
            e("s_nop 0")
            for k in range(4):
                e(f"v_add_f32 v{G0 + k}, v{G0 + k}, v{G0 + 4 + k}")
        for k in range(4):
            self.round_bf16(G0 + k)
        e("s_cmp_lg_u32 s51, 0")
        e("s_cbranch_scc1 L_fin_first")
        for k in range(4):
            e(f"v_add_f32 v{G0 + k}, v{G0 + k}, v{XV + 2 + k}")
        for k in range(4):
            self.round_bf16(G0 + k)
        for k in range(4):
            e(f"v_add_f32 v{G0 + k}, v{G0 + k}, v{BV + k}")
        e(f"v_cvt_pk_bf16_f32 v{G0}, v{G0}, v{G0 + 1}")
        e(f"v_cvt_pk_bf16_f32 v{G0 + 1}, v{G0 + 2}, v{G0 + 3}")
        e("s_mov_b64 exec, 0xff")
        e(f"buffer_store_dwordx2 v[{G0}:{G0 + 1}], v{VA}, s[{SA}:{SA + 3}], s57 offen")
        e("s_cmp_lg_u32 s56, 0")
        e("s_cbranch_scc1 L_fin_done")
        self.c("the next launch derives a different tag from this word")
        e(f"v_mov_b32 v{VT}, s{S_TAG}")
        e(f"v_mov_b32 v{VT + 1}, {WS_EPOCH}")
        e("s_mov_b64 exec, 1")
        e(f"buffer_store_dword v{VT}, v{VT + 1}, s[{SWS}:{SWS + 3}], 0 offen")
        e("L_fin_done:")
        if self.diag_dbg:
            e("s_memrealtime s[66:67]")
            e("s_waitcnt lgkmcnt(0)")
            e("s_sub_u32 s66, s66, s64")
            self.srd(48, P_DBG, 256)
            e(f"v_mov_b32 v{VT}, s66")
            e("s_lshl_b32 s6, s56, 2")
            e(f"v_mov_b32 v{VT + 1}, s6")
            e("s_mov_b64 exec, 1")
            e(f"buffer_store_dword v{VT}, v{VT + 1}, s[48:51], 0 offen")
        if self.diag_hold:
            if self.diag_who is not None:
                e("s_getreg_b32 s6, hwreg(HW_REG_XCC_ID, 0, 4)")
                e(f"s_cmp_lg_u32 s6, {self.diag_who}")
                e("s_cbranch_scc1 L_exit")
            e("L_hold:")
            e("s_memrealtime s[66:67]")
            e("s_waitcnt lgkmcnt(0)")
            e("s_sub_u32 s66, s66, s64")
            e(f"s_cmp_lt_u32 s66, {self.diag_hold}")
            e("s_cbranch_scc1 L_hold")
        self.stamp(6)
        self.prof_store(7)
        e("L_exit:")
        e("s_endpgm")
        e("L_fin_first:")
        for k in range(4):
            e(f"v_mov_b32 v{BV + k}, v{G0 + k}")
        e(f"v_lshlrev_b32 v{XV + 2}, 16, v{XV}")
        e(f"v_and_b32 v{XV + 3}, 0xffff0000, v{XV}")
        e(f"v_lshlrev_b32 v{XV + 4}, 16, v{XV + 1}")
        e(f"v_and_b32 v{XV + 5}, 0xffff0000, v{XV + 1}")
        e(f"s_sub_u32 s52, s52, {WS_YB - WS_YA}")
        e("s_mov_b32 s50, 65")
        e("s_mov_b32 s51, 0")
        self.stamp(3)
        e("s_branch L_fin_pass")
        e("L_code_end:")
        return W + 160

    def build(self):
        self.entry()
        nv = max(self.streamer(), self.helperA(), self.helperB())
        assert nv <= 256
        body = "\n".join(l if l.endswith(":") or l.startswith(";") else "    " + l for l in self.o)
        return (HEADER.format(block=64 * (self.NS + 2), lds=self.lds, name=NAME) + body
                + FOOTER.format(name=NAME, vgpr=nv, acc=(nv + 3) // 4 * 4))


def gen(**kw):
    return Gen(**kw).build()


if __name__ == "__main__":
    out = sys.argv[1] if len(sys.argv) > 1 else f"cdna_kernels/{NAME}.s"
    kw = eval("dict(" + (sys.argv[2] if len(sys.argv) > 2 else "") + ")")
    open(out, "w").write(gen(**kw))
```

```python
import struct
import sys

NAME = "parallel_sum__mha_block_cached__geglu_ffn__decode"
HEAD = 32768 * 384
KV_BYTES = 32 * HEAD
SENT = 0xFFFFFFFF

WS_PA0 = 0x000000
WS_PA1 = 0x020000
WS_STA = 0x040000
WS_STB = 0x044000
WS_YA = 0x050000
WS_YB = 0x060000
WS_OP = 0x070000
WS_PR = 0x140000
PR_STRIDE = 4352
WS_RK = 0x150000
WS_EPOCH = 0x1A0000
WS_PROF = 0x200000
WS_SIZE = 0x400000
NONCE_STEP = 0x9E3779B9

L_FLS = 0
L_FIT = 8
L_FLQ = 16
L_FLP = 20
L_FLN = 24
L_FLG = 28
L_TAG = 32
L_PCN = 36
L_PD = 40
L_LOC = 48
L_Q = 64
L_XN = 1664
L_SC = 3072
L_PAIR = L_SC + 8192
L_DUMP = L_PAIR + 2048
S_TAG = 60


def f2u(x):
    return struct.unpack("<I", struct.pack("<f", x))[0]


LOG2E = f2u(1.4426950408889634)
SCALE = f2u(192 ** -0.5)

HEADER = """; Kernarg layout for this problem (96 bytes, ptrs only, base s[0:1]):
; @launch grid=(256,1,1) block=({block},1,1) lds={lds}
.amdgcn_target "amdgcn-amd-amdhsa--gfx950"
.text
.globl {name}_kernel
.p2align 8
.type {name}_kernel,@function
{name}_kernel:
"""
FOOTER = """
.section .rodata,"a"
.p2align 6
.amdhsa_kernel {name}_kernel
  .amdhsa_next_free_vgpr {vgpr}
  .amdhsa_next_free_sgpr 96
  .amdhsa_accum_offset {acc}
  .amdhsa_group_segment_fixed_size 0
  .amdhsa_kernarg_size 96
  .amdhsa_user_sgpr_count 2
  .amdhsa_user_sgpr_kernarg_segment_ptr 1
  .amdhsa_system_sgpr_workgroup_id_x 1
.end_amdhsa_kernel
"""

DPP_ALL = "row_mask:0xf bank_mask:0xf"
X1 = "quad_perm:[1,0,3,2] " + DPP_ALL
X2 = "quad_perm:[2,3,0,1] " + DPP_ALL
HM = "row_half_mirror " + DPP_ALL
RM = "row_mirror " + DPP_ALL
R8 = "row_ror:8 " + DPP_ALL

S_WAVE, S_X, S_C = 3, 4, 5
P_X, P_K, P_V, P_WQ, P_WO, P_G, P_U, P_D, P_OUT, P_DBG, P_WS = 16, 18, 20, 22, 24, 28, 30, 32, 34, 36, 38
SPIN_G = 400000
SPIN_L = 4000000


class Gen:
    def __init__(self, R=24, L=21, cap=12, cap0=11, capA=22, capB=22, a_early=10, s_early=0, gran=1, rot=0, warm=True, fsets=3, ya_fl="sc1", go_at=39, cap_tail=21, nlate=2, poll_at=4, cev=1, hsets=2, hfull=True, pre_out=0, out_fl="", burst=3, tg=False, preread=False, yl_fl="sc1", dg="", xi=0, xb=60, xg0=2, xsw=44, q_late=False, oplay=1, caps_tail=None, xend=62, xfrom=2,
                 tail_iters=1, caps=(9, 12, 15), thr=(45,), rep_c=7, xg=4, xstep=2, local=True, it_q=3, it_st=4, it_op=3, prof=False, diag_hold=0, diag_dbg=False, diag_who=None):
        NS = 2
        self.NS, self.R, self.L = NS, R, L
        self.cap, self.cap0, self.capA, self.capB = cap, cap0, capA, capB
        self.a_early, self.go_at, self.s_early = a_early, go_at, s_early
        self.gran, self.rot, self.burst, self.dg, self.tg = gran, rot, burst, dg, tg
        self.preread, self.yl_fl = preread, yl_fl
        assert L % burst == 0 and L <= R - burst
        self.cev, self.xi, self.xb, self.xg0, self.xsw = cev, xi, xb, xg0, xsw
        self.pre_out, self.out_fl, self.hsets, self.hfull = pre_out, out_fl, hsets, hfull
        self.sh_q, self.sh_g, self.sh_p = (10, 7, 4) if oplay else (7, 4, 8)
        self.caps_tail, self.xend, self.xfrom = caps_tail, xend, xfrom
        self.nlate, self.poll_at, self.q_late = nlate, poll_at, q_late
        self.warm, self.fsets, self.ya_fl = warm, fsets, ya_fl
        self.cap_tail = cap_tail or cap
        self.tail_iters = tail_iters
        self.caps, self.thr, self.rep_c = caps, thr, rep_c
        self.xg, self.xstep, self.local = xg, xstep, local
        self.it_q, self.it_st, self.it_op = it_q, it_st, it_op
        self.prof = prof
        self.diag_hold, self.diag_dbg, self.diag_who = diag_hold, diag_dbg, diag_who
        self.o = []
        self.uid = 0
        self.steps = 32768 // (32 * NS * 16)
        self.tpi = R // 6
        assert R == 24 and L < R
        assert max(cap, cap0, self.cap_tail) <= L
        self.ipr = self.steps // self.tpi
        self.step_bytes = 32 * NS * 6144
        self.big_step = gran * self.step_bytes - (gran - 1) * 6144
        self.dump_bytes = 8 * NS * 768
        self.lds = L_DUMP + 3 * self.dump_bytes

    def e(self, s):
        self.o.append(s)

    def c(self, s):
        self.o.append("; " + s)

    def label(self, base):
        self.uid += 1
        return f"L_{base}_{self.uid}"

    def srd(self, d, p, size):
        self.e(f"s_mov_b32 s{d}, s{p}")
        self.e(f"s_mov_b32 s{d+1}, s{p+1}")
        self.e(f"s_mov_b32 s{d+2}, {size}")
        self.e(f"s_mov_b32 s{d+3}, 0x20000")

    def stamp(self, k, tail=False):
        if self.prof and not (tail and self.prof == 2):
            self.e(f"s_memrealtime s[{64 + 2 * k}:{65 + 2 * k}]")
            self.e("s_waitcnt lgkmcnt(0)")

    def stamp_round(self, sreg, base):
        if not self.prof:
            return
        for r in range(4):
            lb = self.label("st")
            self.e(f"s_cmp_lg_u32 s{sreg}, {r}")
            self.e(f"s_cbranch_scc1 {lb}")
            self.stamp(base + r)
            self.e(f"{lb}:")

    def prof_store(self, n):
        if not self.prof:
            return
        e = self.e
        e("s_mov_b64 exec, -1")
        e("s_sleep 127")
        e("s_sleep 127")
        e("s_waitcnt vmcnt(0) lgkmcnt(0)")
        self.srd(12, P_WS, WS_SIZE)
        e("s_lshl_b32 s6, s2, 2")
        e(f"s_add_u32 s6, s6, s{S_WAVE}")
        e("s_lshl_b32 s6, s6, 6")
        e(f"s_add_u32 s6, s6, {WS_PROF}")
        e("v_mov_b32 v1, 0")
        e("s_getreg_b32 s7, hwreg(HW_REG_XCC_ID)")
        e("v_mov_b32 v2, s7")
        e("s_mov_b64 exec, 1")
        e("buffer_store_dword v2, v1, s[12:15], s6 offen offset:60")
        for k in range(n):
            e(f"v_mov_b32 v{4 + k}, s{64 + 2 * k}")
            e(f"buffer_store_dword v{4 + k}, v1, s[12:15], s6 offen offset:{4 * k}")
        e("s_waitcnt vmcnt(0)")

    def allreduce(self, op, v, t):
        e = self.e
        for pat in (X1, X2, HM, RM):
            e("s_nop 1")
            e(f"{op}_dpp v{v}, v{v}, v{v} {pat}")
        for sw in ("v_permlane16_swap_b32", "v_permlane32_swap_b32"):
            e(f"v_mov_b32 v{t}, v{v}")
            e("s_nop 1")
            e(f"{sw} v{v}, v{t}")
            e("s_nop 1")
            e(f"{op} v{v}, v{v}, v{t}")

    def round_bf16(self, v):
        self.e(f"v_cvt_pk_bf16_f32 v{v}, v{v}, v{v}")
        self.e(f"v_and_b32 v{v}, 0xffff0000, v{v}")

    def expand(self, src, dst):
        e = self.e
        for k in range(4):
            e(f"v_and_b32 v{dst + 4 * k}, 0xffff, v{src + k}")
            e(f"v_lshlrev_b32 v{dst + 4 * k + 1}, 16, v{src + k}")
            e(f"v_lshrrev_b32 v{dst + 4 * k + 2}, 16, v{src + k}")
            e(f"v_and_b32 v{dst + 4 * k + 3}, 0xffff0000, v{src + k}")

    def gemv_row(self, w, xop, acc):
        for k in range(4):
            self.e(f"v_dot2c_f32_bf16 v{acc + 2 * k}, v{w + k}, v{xop}")
            self.e(f"v_dot2c_f32_bf16 v{acc + 2 * k + 1}, v{w + k}, v{xop + 1}")

    def addn(self, d, a, b, n):
        assert d % 2 == 0 and a % 2 == 0 and b % 2 == 0 and n % 2 == 0
        for k in range(0, n, 2):
            self.e(f"v_pk_add_f32 v[{d + k}:{d + k + 1}], v[{a + k}:{a + k + 1}], v[{b + k}:{b + k + 1}]")

    def reduce_g(self, acc, res, t):
        e = self.e
        e("s_nop 2")
        for k in range(4):
            e(f"v_permlane32_swap_b32 v{acc + k}, v{acc + k + 4}")
        self.addn(res, acc, acc + 4, 4)
        self.addn(t, acc, acc + 4, 4)
        e("s_nop 0")
        for k in range(4):
            e(f"v_permlane16_swap_b32 v{res + k}, v{t + k}")
        self.addn(res, res, t, 4)
        e("s_nop 0")
        for k in range(4):
            e(f"v_add_f32_dpp v{res + k}, v{res + k}, v{res + k} {R8}")

    def tag_regs(self, res):
        self.e(f"v_mov_b32 v{res + 1}, s{S_TAG}")
        self.e(f"v_mov_b32 v{res + 3}, s{S_TAG}")

    def reduce_g2(self, acc, res):
        e = self.e
        e("s_nop 2")
        for k in range(4):
            e(f"v_permlane32_swap_b32 v{acc + k}, v{acc + k + 4}")
        e("s_nop 0")
        for k in range(4):
            e(f"v_add_f32 v{acc + k}, v{acc + k}, v{acc + k + 4}")
        e("s_nop 1")
        for k in range(2):
            e(f"v_permlane16_swap_b32 v{acc + k}, v{acc + k + 2}")
        e("s_nop 0")
        for k in range(2):
            e(f"v_add_f32 v{acc + k}, v{acc + k}, v{acc + k + 2}")
        e("s_nop 1")
        for k in range(2):
            e(f"v_add_f32_dpp v{res + 2 * k}, v{acc + k}, v{acc + k} {R8}")

    def exec_tagged(self):
        self.e("s_mov_b32 exec_lo, 0x00ff00ff")
        self.e("s_mov_b32 exec_hi, 0x00ff00ff")

    def make_tags(self, dst):
        self.e("s_movk_i32 s61, 0xff")
        for k in range(4):
            self.e(f"v_bfe_u32 v{dst + k}, s{S_TAG}, {8 * k}, 8")

    def embed(self, v, tg):
        for k in range(4):
            self.e(f"v_bfi_b32 v{v + k}, s61, v{tg + k}, v{v + k}")

    def read_tag(self, vt):
        e = self.e
        e(f"v_mov_b32 v{vt + 4}, 0")
        e(f"ds_read_b32 v{vt}, v{vt + 4} offset:{L_TAG}")
        e("s_waitcnt lgkmcnt(0)")
        e(f"v_readfirstlane_b32 s{S_TAG}, v{vt}")
        e("s_nop 1")

    def gather_emb(self, groups, tg, vt, sm, lanes=64, sleep=1, between=None, whole=False, cond=None):
        e = self.e
        lp, ok, mid = self.label("ge"), self.label("geok"), self.label("gemid")
        n = len(groups)
        e(f"s_mov_b32 s62, {SPIN_G}")
        for j in range(n):
            e(f"s_mov_b32 s{sm + 2 * j}, -1")
            e(f"s_mov_b32 s{sm + 2 * j + 1}, {hex((1 << (lanes - 32)) - 1)}")
        if between:
            if cond:
                e(cond)
                e(f"s_cbranch_scc0 {lp}")
            e(f"s_mov_b64 exec, s[{sm}:{sm + 1}]")
            for loads, _, _ in groups:
                for s_ in loads:
                    e(s_)
            e("s_mov_b64 exec, -1")
            between()
            e(f"s_branch {mid}")
        e(f"{lp}:")
        for j, (loads, _, _) in enumerate(groups):
            sk = self.label("gs")
            e(f"s_mov_b64 exec, s[{sm + 2 * j}:{sm + 2 * j + 1}]")
            e(f"s_cbranch_execz {sk}")
            for s_ in loads:
                e(s_)
            e(f"{sk}:")
        e(f"{mid}:")
        e("s_mov_b64 vcc, 0")
        e("s_waitcnt vmcnt(0)")
        for j, (_, first, nrec) in enumerate(groups):
            sk = self.label("gs")
            e(f"s_mov_b64 exec, s[{sm + 2 * j}:{sm + 2 * j + 1}]")
            e(f"s_cbranch_execz {sk}")
            for k in range(4 * nrec):
                e(f"v_xor_b32 v{first + k}, v{first + k}, v{tg + k % 4}")
            e(f"v_or_b32 v{vt}, v{first}, v{first + 1}")
            for k in range(2, 4 * nrec, 2):
                e(f"v_or3_b32 v{vt}, v{vt}, v{first + k}, v{first + k + 1}")
            e(f"v_and_b32 v{vt}, s61, v{vt}")
            e(f"v_cmp_ne_u32 s[{sm + 2 * j}:{sm + 2 * j + 1}], 0, v{vt}")
            e("s_nop 0")
            e(f"s_or_b64 vcc, vcc, s[{sm + 2 * j}:{sm + 2 * j + 1}]")
            if whole:
                e(f"s_cmp_lg_u64 s[{sm + 2 * j}:{sm + 2 * j + 1}], 0")
                e(f"s_cselect_b64 s[{sm + 2 * j}:{sm + 2 * j + 1}], -1, 0")
            e(f"{sk}:")
        e("s_mov_b64 exec, -1")
        e("s_cmp_eq_u64 vcc, 0")
        e(f"s_cbranch_scc1 {ok}")
        if isinstance(sleep, str):
            sk = self.label("gs")
            e(f"s_cmp_eq_u32 {sleep}, 0")
            e(f"s_cbranch_scc1 {sk}")
            e("s_sleep 32")
            e(f"{sk}:")
        elif sleep:
            e(f"s_sleep {sleep}")
        e("s_sub_u32 s62, s62, 1")
        e("s_cmp_lg_u32 s62, 0")
        e(f"s_cbranch_scc1 {lp}")
        e("s_endpgm")
        e(f"{ok}:")

    def gather_tagged(self, loads, first, nrec, vt, sleep=1, skip=None, between=None):
        e = self.e
        lp, ok, mid = self.label("gt"), self.label("gtok"), self.label("gtmid")
        e(f"s_mov_b32 s62, {SPIN_G}")
        if between:
            for s_ in loads:
                e(s_)
            between()
            e(f"s_branch {mid}")
        e(f"{lp}:")
        for s_ in loads:
            e(s_)
        e(f"{mid}:")
        e(f"v_mov_b32 v{vt}, 0")
        e(f"v_mov_b32 v{vt + 1}, 0")
        e("s_waitcnt vmcnt(0)")
        for k in range(nrec):
            t = vt + 1 if skip and k in skip[0] else vt
            e(f"v_bitop3_b32 v{t}, v{t}, v{first + 4 * k + 1}, s{S_TAG} bitop3:0xf6")
            e(f"v_bitop3_b32 v{t}, v{t}, v{first + 4 * k + 3}, s{S_TAG} bitop3:0xf6")
        if skip:
            e(f"v_cndmask_b32 v{vt + 1}, 0, v{vt + 1}, s[{skip[1]}:{skip[1] + 1}]")
            e(f"v_or_b32 v{vt}, v{vt}, v{vt + 1}")
        e(f"v_cmp_ne_u32 vcc, 0, v{vt}")
        e("s_nop 4")
        e(f"s_cbranch_vccz {ok}")
        if sleep:
            e(f"s_sleep {sleep}")
        e("s_sub_u32 s62, s62, 1")
        e("s_cmp_lg_u32 s62, 0")
        e(f"s_cbranch_scc1 {lp}")
        e("s_endpgm")
        e(f"{ok}:")

    def reduce_sub(self, v, n):
        for pat in (X1, X2, HM):
            self.e("s_nop 1")
            for k in range(n):
                self.e(f"v_add_f32_dpp v{v + k}, v{v + k}, v{v + k} {pat}")

    def wait_lds(self, addr, val, vt, n=1, sleep=2, val_is_sreg=False):
        e = self.e
        lp, ok = self.label("wl"), self.label("wlok")
        e(f"s_mov_b32 s62, {SPIN_L}")
        e(f"v_mov_b32 v{vt + 4}, 0")
        e(f"{lp}:")
        if n == 1:
            e(f"ds_read_b32 v{vt}, v{vt + 4} offset:{addr}")
            e("s_waitcnt lgkmcnt(0)")
        elif n == 2:
            e(f"ds_read_b64 v[{vt}:{vt + 1}], v{vt + 4} offset:{addr}")
            e("s_waitcnt lgkmcnt(0)")
            e(f"v_min_u32 v{vt}, v{vt}, v{vt + 1}")
        else:
            e(f"ds_read_b128 v[{vt}:{vt + 3}], v{vt + 4} offset:{addr}")
            e("s_waitcnt lgkmcnt(0)")
            e(f"v_min_u32 v{vt}, v{vt}, v{vt + 1}")
            e(f"v_min3_u32 v{vt}, v{vt}, v{vt + 2}, v{vt + 3}")
        e("s_nop 0")
        e(f"v_readfirstlane_b32 s63, v{vt}")
        e(f"s_cmp_ge_u32 s63, {val}")
        e(f"s_cbranch_scc1 {ok}")
        if sleep:
            e(f"s_sleep {sleep}")
        e("s_sub_u32 s62, s62, 1")
        e("s_cmp_lg_u32 s62, 0")
        e(f"s_cbranch_scc1 {lp}")
        e("s_endpgm")
        e(f"{ok}:")

    def set_lds(self, addr, val, vt):
        e = self.e
        e("s_waitcnt lgkmcnt(0)")
        e(f"v_mov_b32 v{vt}, {addr}")
        e(f"v_mov_b32 v{vt + 1}, {val}")
        e(f"ds_write_b32 v{vt}, v{vt + 1}")

    def layernorm(self, xa, f):
        e = self.e

        def unpack():
            for k in range(5):
                e(f"v_lshlrev_b32 v{f + 2 * k}, 16, v{xa + k}")
                e(f"v_and_b32 v{f + 2 * k + 1}, 0xffff0000, v{xa + k}")

        def pack():
            for k in range(5):
                e(f"v_cvt_pk_bf16_f32 v{xa + k}, v{f + 2 * k}, v{f + 2 * k + 1}")

        unpack()
        m, t, var, d = f + 10, f + 11, f + 12, f + 13
        e(f"v_add_f32 v{m}, v{f}, v{f + 1}")
        for k in range(2, 10):
            e(f"v_add_f32 v{m}, v{m}, v{f + k}")
        self.allreduce("v_add_f32", m, t)
        e(f"v_mul_f32 v{m}, {hex(f2u(1.0 / 640))}, v{m}")
        e(f"v_mov_b32 v{var}, 0")
        for k in range(10):
            e(f"v_sub_f32 v{d}, v{f + k}, v{m}")
            e(f"v_fmac_f32 v{var}, v{d}, v{d}")
        self.allreduce("v_add_f32", var, t)
        e(f"v_mul_f32 v{var}, {hex(f2u(1.0 / 640))}, v{var}")
        self.round_bf16(var)
        self.round_bf16(m)
        e(f"v_add_f32 v{var}, {hex(f2u(1e-5))}, v{var}")
        self.round_bf16(var)
        e(f"v_sqrt_f32 v{var}, v{var}")
        for k in range(10):
            e(f"v_sub_f32 v{f + k}, v{f + k}, v{m}")
        self.round_bf16(var)
        e(f"v_rcp_f32 v{var}, v{var}")
        pack()
        unpack()
        for k in range(10):
            e(f"v_mul_f32 v{f + k}, v{f + k}, v{var}")
        pack()

    def entry(self):
        e = self.e
        self.c("roles: waves 0..NS-1 stream K then V; wave NS does q/softmax exchanges; wave NS+1 does weight GEMVs")
        if self.prof or self.diag_hold or self.diag_dbg:
            e("s_memrealtime s[64:65]")
        e("s_cmp_ge_u32 s2, 256")
        e("s_cbranch_scc1 L_exit")
        e("s_load_dwordx16 s[16:31], s[0:1], 0")
        e("s_load_dwordx8 s[32:39], s[0:1], 64")
        e("v_lshrrev_b32 v1, 6, v0")
        e("v_and_b32 v0, 63, v0")
        e(f"v_readfirstlane_b32 s{S_WAVE}, v1")
        e(f"s_and_b32 s{S_X}, s2, 7")
        e(f"s_lshr_b32 s{S_C}, s2, 3")
        e("v_lshrrev_b32 v1, 3, v0")
        e("v_and_b32 v2, 7, v0")
        e(f"s_mul_i32 s40, s{S_C}, 43691")
        e("s_lshr_b32 s40, s40, 17")
        e("s_mul_i32 s41, s40, 3")
        e(f"s_sub_u32 s41, s{S_C}, s41")
        e(f"s_cmp_eq_u32 s{S_WAVE}, {self.NS}")
        e("s_cbranch_scc1 L_helperA")
        e(f"s_cmp_eq_u32 s{S_WAVE}, {self.NS + 1}")
        e("s_cbranch_scc1 L_helperB")

    def streamer(self):
        e = self.e
        NS, R, L = self.NS, self.R, self.L
        VOFF, VSC, VQ, VDUMP, VT = 3, 4, 5, 6, 8
        VIT = 13
        A = 14
        VO, VPR, TG = 18, 19, 24
        VSM, VPB, VPA, VL4 = 56, 57, 58, 59
        SC = 20
        Q = 20 + 8
        PN, PX = 52, 60
        RING = 64
        S_OFF, S_DELTA, S_B0, S_B1, S_IT, S_R = 44, 45, 46, 47, 48, 49
        offs = [(i // 3) * 3072 + (i % 3) * 128 for i in range(6)]
        cand = [j for j in range(R) if (j + L) % 6 == 5 and ((j + L + 1) // 6) % self.tpi == 0]
        assert len(cand) == 1
        self.c("streamer")
        if self.warm:
            self.c("each streamer reads 1 KiB slices of this kernel's code so that later instruction fetches hit in L2")
            e("s_getpc_b64 s[12:13]")
            e("L_pc:")
            e(f"s_lshl_b32 s6, s{S_C}, 1")
            e(f"s_add_u32 s6, s6, s{S_WAVE}")
            e("s_lshl_b32 s6, s6, 10")
            e("v_lshl_add_u32 v8, v0, 4, s6")
            e("v_min_u32 v8, L_code_end-L_pc-16, v8")
            e("v_mov_b32 v9, s13")
            e("v_add_co_u32 v8, vcc, s12, v8")
            e("s_nop 1")
            e("v_addc_co_u32 v9, vcc, 0, v9, vcc")
            e("global_load_dwordx4 v[64:67], v[8:9], off")
        e(f"v_mul_u32_u24 v{VOFF}, 384, v1")
        e(f"v_lshl_add_u32 v{VOFF}, v2, 4, v{VOFF}")
        tb = 4 * self.tpi
        e(f"s_mul_i32 s6, s{S_WAVE}, {8 * tb}")
        e(f"s_add_u32 s6, s6, {L_SC}")
        e(f"v_mul_u32_u24 v{VSC}, {tb}, v1")
        e(f"v_add_u32 v{VSC}, s6, v{VSC}")
        e(f"v_lshlrev_b32 v{VQ}, 4, v2")
        e(f"s_mul_i32 s6, s{S_WAVE}, {8 * 768}")
        e(f"s_add_u32 s6, s6, {L_DUMP}")
        e(f"v_mul_u32_u24 v{VDUMP}, 768, v1")
        e(f"v_lshl_add_u32 v{VDUMP}, v2, 5, v{VDUMP}")
        e(f"v_add_u32 v{VDUMP}, s6, v{VDUMP}")
        e(f"s_mul_i32 s{S_OFF}, s{S_X}, {HEAD}")
        e(f"s_mul_i32 s6, s{S_C}, {NS}")
        e(f"s_add_u32 s6, s6, s{S_WAVE}")
        e(f"s_mul_i32 s6, s6, {6144 * self.gran}")
        e(f"s_add_u32 s{S_OFF}, s{S_OFF}, s6")
        e(f"s_mul_i32 s43, s{S_X}, {self.rot}")
        e("s_and_b32 s43, s43, 7")
        e(f"s_mul_i32 s6, s43, {4 * self.step_bytes}")
        e(f"s_add_u32 s{S_OFF}, s{S_OFF}, s6")
        e("s_add_u32 s43, s43, 1")
        e(f"s_lshl_b32 s7, s{S_WAVE}, 2")
        e(f"v_mov_b32 v7, s7")
        e(f"v_mov_b32 v{VIT}, 0")
        e("s_waitcnt lgkmcnt(0)")
        self.srd(8, P_K, KV_BYTES)
        e("s_barrier")

        def issue(p, boundary=False):
            r = RING + (p % R) * 4
            e(f"buffer_load_dwordx4 v[{r}:{r + 3}], v{VOFF}, s[8:11], s{S_OFF} offen offset:{offs[p % 6]} nt")
            if p % 6 == 5:
                if boundary:
                    e(f"s_add_u32 s{S_OFF}, s{S_OFF}, s{S_DELTA}")
                    e(f"s_mov_b32 s8, s{S_B0}")
                    e(f"s_mov_b32 s9, s{S_B1}")
                else:
                    inc = 6144 if (p // 6 + 1) % self.gran else self.big_step
                    e(f"s_add_u32 s{S_OFF}, s{S_OFF}, {inc}")

        for p in range(self.s_early):
            issue(p)
        assert not (self.warm and self.s_early)
        e(f"s_mov_b32 s{S_R}, 0")
        e(f"s_mov_b32 s53, {len(self.caps) // 2 if self.caps else 0}")
        e(f"s_mov_b32 s{S_B0}, s{P_K}")
        e(f"s_mov_b32 s{S_B1}, s{P_K + 1}")
        e(f"s_mov_b32 s56, {self.big_step + 8 * HEAD}")

        self.c("addresses of the final publish")
        e(f"v_and_b32 v{VT}, 1, v1")
        e(f"v_bfe_u32 v{VO}, v0, 4, 1")
        e(f"v_cmp_eq_u32 vcc, 1, v{VT}")
        e(f"v_lshrrev_b32 v{VT + 1}, 5, v0")
        e(f"v_lshlrev_b32 v{VPR}, 4, v0")
        e(f"v_cndmask_b32 v{VO}, v{VO}, 2, vcc")
        e(f"v_lshlrev_b32 v{VO}, 13, v{VO}")
        e(f"v_lshl_add_u32 v{VO}, v{VT + 1}, {self.sh_q}, v{VO}")
        e(f"v_lshl_add_u32 v{VO}, v2, {self.sh_g}, v{VO}")
        e(f"s_mul_i32 s57, s{S_X}, {4 * 24576}")
        e(f"s_lshr_b32 s7, s{S_C}, 3")
        e("s_lshl_b32 s7, s7, 11")
        e("s_add_u32 s57, s57, s7")
        e(f"s_and_b32 s7, s{S_C}, 7")
        e(f"s_lshl_b32 s7, s7, {self.sh_p}")
        e("s_add_u32 s57, s57, s7")
        e(f"s_add_u32 s57, s57, {WS_OP + 3 * 24576}")
        self.srd(12, P_WS, WS_SIZE)
        if self.caps:
            e(f"v_lshlrev_b32 v{VL4}, 2, v0")
            e(f"v_lshlrev_b32 v{VPA}, 24, v0")
            e(f"s_mul_i32 s59, s{S_X}, {PR_STRIDE}")
            e(f"s_add_u32 s59, s59, {WS_PR}")
            e(f"s_lshl_b32 s6, s{S_C}, 1")
            e(f"s_add_u32 s6, s6, s{S_WAVE}")
            e("s_lshl_b32 s6, s6, 2")
            e("s_add_u32 s58, s59, s6")
            if self.xg:
                e("s_cmp_eq_u32 s6, 252")
                e(f"s_cselect_b32 s58, {WS_SIZE}, s58")
            if self.prof:
                e("s_mov_b32 s92, 0")
        if "g" not in self.dg:
            self.wait_lds(L_FLN, 1, VT, sleep=1)
        self.read_tag(VT)
        e(f"s_lshl_b32 s6, s{S_WAVE}, 10")
        e(f"v_add_u32 v{TG}, s6, v{VPR}")
        e(f"v_xor_b32 v{TG + 1}, 0x400, v{TG}")
        e(f"v_xor_b32 v{TG + 2}, 4, v7")
        e(f"v_mov_b32 v{TG + 3}, 1")
        e(f"v_mov_b32 v{VPR}, 65")
        e(f"s_add_u32 s55, s{S_TAG}, 0x1000")

        if self.go_at is not None and "g" not in self.dg:
            self.wait_lds(L_FLG, 1, VT, sleep=1)
        if self.warm and "g" not in self.dg:
            e("s_waitcnt vmcnt(0)")
        for p in range(self.s_early, L):
            if p >= self.cap0:
                e(f"s_waitcnt vmcnt({self.cap0 - 1})")
            issue(p)
        self.stamp(1)

        e("L_kround:")
        e(f"s_add_u32 s50, s{S_R}, 1")
        if "q" not in self.dg:
            self.wait_lds(L_FLQ, "s50", VT, sleep=0)
        for s in range(3):
            e(f"ds_read_b128 v[{Q + 4 * s}:{Q + 4 * s + 3}], v{VQ} offset:{L_Q + 128 * s}")
        e(f"v_add_u32 v{VQ}, 384, v{VQ}")
        if self.prof:
            e(f"s_cmp_lg_u32 s{S_R}, 0")
            e("s_cbranch_scc1 L_nostamp2")
            self.stamp(2)
            e("L_nostamp2:")
        e(f"s_mov_b32 s{S_IT}, {self.ipr}")
        e("s_waitcnt lgkmcnt(0)")
        e("L_kloop:")
        e(f"s_cmp_eq_u32 s{S_R}, 3")
        e(f"s_cselect_b32 s50, {hex((self.big_step - 24 * HEAD) & 0xffffffff)}, s56")
        e(f"s_cselect_b32 s51, 1, 0")
        e(f"s_cmp_eq_u32 s{S_IT}, 1")
        e(f"s_cselect_b32 s{S_DELTA}, s50, {self.big_step}")
        e(f"s_cmp_eq_u32 s{S_IT}, s43")
        e(f"s_cselect_b32 s42, {HEAD}, 0")
        e(f"s_sub_u32 s{S_DELTA}, s{S_DELTA}, s42")
        e(f"s_cmp_eq_u32 s{S_IT}, s51")
        e(f"s_cselect_b32 s{S_B0}, s{P_V}, s{S_B0}")
        e(f"s_cselect_b32 s{S_B1}, s{P_V + 1}, s{S_B1}")
        nlev = len(self.caps) if self.caps else 0
        B = self.burst
        mid = nlev // 2

        def ctl_issue():
            e(f"v_add_u32 v{VPB}, s{S_TAG}, v{VIT}")
            sa, sb = (58, 59) if self.cev == 1 else (94, 95)
            e(f"buffer_store_dword v{VPB}, v{VPA}, s[12:15], s{sa} offen")
            e(f"buffer_load_dword v{VSM}, v{VL4}, s[12:15], s{sb} offen sc1")

        def ctl_ops():
            ops = [f"v_readlane_b32 s93, v{VSM}, 63"] if self.xg else []
            ops += [f"v_sub_u32 v{VSM}, v{VSM}, v{VPB}",
                   f"v_add_u32 v{VPB}, 8, v{VSM}",
                   f"v_cmp_gt_u32 vcc, 17, v{VPB}",
                   f"v_lshl_add_u32 v{VSM}, v{VSM}, 1, {self.cev}",
                   f"v_cndmask_b32 v{VSM}, 0, v{VSM}, vcc"]
            ops += [f"v_add_u32_dpp v{VSM}, v{VSM}, v{VSM} {pat}" for pat in (X1, X2, HM, RM)]
            ops += [f"v_readlane_b32 s{88 + k}, v{VSM}, {16 * k}" for k in range(4)]
            return ops

        def wait_count(cap, j, ctl):
            return cap - self.burst + (2 if ctl and 0 < j <= cap else 0)

        def pick_level():
            if not self.caps:
                return
            skip = self.label("nolevel")
            if self.cev > 1:
                e(f"s_cmp_eq_u32 s95, {WS_SIZE}")
                e(f"s_cbranch_scc1 {skip}")
            e("s_add_u32 s88, s88, s89")
            e("s_add_u32 s90, s90, s91")
            e("s_add_u32 s88, s88, s90")
            if self.cev > 1:
                e(f"s_ashr_i32 s88, s88, {self.cev.bit_length() - 1}")
            if self.xg:
                e("s_sub_u32 s93, s93, s55")
                e("s_sub_u32 s89, s93, 128")
                e("s_cmp_lt_u32 s93, 256")
                e("s_cselect_b32 s89, s89, 0")
                e("s_add_u32 s88, s88, s89")
            e(f"s_mov_b32 s53, {mid}")
            for k in range(1, mid + 1):
                e(f"s_cmp_gt_i32 s88, {self.thr[k - 1]}")
                e(f"s_cselect_b32 s53, {mid + k}, s53")
                e(f"s_cmp_lt_i32 s88, {-self.thr[k - 1]}")
                e(f"s_cselect_b32 s53, {mid - k}, s53")
            e(f"{skip}:")
            if self.prof:
                e("s_mul_i32 s7, s53, 6")
                e("s_lshl_b32 s7, 1, s7")
                e("s_add_u32 s92, s92, s7")

        def kbody(cap):
            pend = []
            pos = [0]
            side = ctl_ops()
            assert cap + 1 <= 17 or B > 1

            def main(s):
                e(s)
                pos[0] += 1
                if pend and pend[0][0] <= pos[0]:
                    _, ins, gap = pend.pop(0)
                    e(ins)
                    pos[0] += 1
                    if pend:
                        pend[0] = (max(pend[0][0], pos[0] + gap), pend[0][1], pend[0][2])

            for j in range(R):
                tile, jj = divmod(j, 6)
                kg, s = divmod(jj, 3)
                a = A + 2 * (tile % 2) + kg
                if j % B == 0:
                    main(f"s_waitcnt vmcnt({wait_count(cap, j, nlev)})")
                n0 = len(self.o)
                if j % B == 0:
                    for jb in range(j, j + B):
                        issue(jb + L, boundary=(jb == cand[0]))
                if B > 1 and nlev and j == 17:
                    e(f"s_waitcnt vmcnt({18 - B})")
                elif B > 1 and nlev and j > 17 and j % B:
                    e("s_nop 0")
                if nlev and j == 0:
                    ctl_issue()
                if nlev and j >= 17 and side:
                    e(side.pop(0))
                pos[0] += len(self.o) - n0
                if s == 0:
                    main(f"v_mov_b32 v{a}, 0")
                r = RING + j * 4
                for k in range(4):
                    main(f"v_dot2c_f32_bf16 v{a}, v{r + k}, v{Q + 4 * s + k}")
                    if nlev and j >= 17 and k == 2 and side:
                        e(side.pop(0))
                        pos[0] += 1
                if s == 2:
                    first = pos[0] + 3
                    pend.append((first, f"v_add_f32_dpp v{a}, v{a}, v{a} {X1}", 2))
                    pend.append((0, f"v_add_f32_dpp v{a}, v{a}, v{a} {X2}", 2))
                    pend.append((0, f"v_add_f32_dpp v{a}, v{a}, v{a} {HM}", 0))
                    if kg == 1:
                        pend.append((0, f"v_cvt_pk_bf16_f32 v{SC + tile}, v{a - 1}, v{a}", 0))
            while pend:
                main("s_nop 0")

        def dispatch(name, fn, caps=None):
            if not self.caps:
                fn(self.cap)
                return
            if self.cev > 1 and not caps:
                e(f"s_and_b32 s7, s{S_IT}, {self.cev - 1}")
                e(f"s_cselect_b32 s94, {WS_SIZE}, s58")
                e(f"s_cselect_b32 s95, {WS_SIZE}, s59")
            others = [k for k in range(nlev) if k != mid]
            e(f"s_cmp_eq_u32 s53, {mid}")
            e(f"s_cbranch_scc1 L_{name}{mid}")
            for code in others[1:]:
                e(f"s_cmp_eq_u32 s53, {code}")
                e(f"s_cbranch_scc1 L_{name}{code}")
            for code in others + [mid]:
                e(f"L_{name}{code}:")
                fn((caps or self.caps)[code])
                if code != mid:
                    e(f"s_branch L_{name}_end")
            e(f"L_{name}_end:")

        dispatch("kb", kbody)
        pick_level()
        for q4 in range(self.tpi // 4):
            e(f"ds_write_b128 v{VSC}, v[{SC + 4 * q4}:{SC + 4 * q4 + 3}] offset:{16 * q4}")
        e(f"v_add_u32 v{VIT}, 1, v{VIT}")
        e(f"v_add_u32 v{VSC}, {NS * 8 * tb}, v{VSC}")
        e(f"ds_write_b32 v7, v{VIT} offset:{L_FIT}")
        e(f"s_sub_u32 s{S_IT}, s{S_IT}, 1")
        e(f"s_cmp_lg_u32 s{S_IT}, 0")
        e("s_cbranch_scc1 L_kloop")
        self.stamp_round(S_R, 3)
        e(f"s_add_u32 s{S_R}, s{S_R}, 1")
        e(f"v_mov_b32 v{VT}, s{S_R}")
        e(f"ds_write_b32 v7, v{VT} offset:{L_FLS}")
        e(f"s_cmp_lt_u32 s{S_R}, 4")
        e("s_cbranch_scc1 L_kround")

        e(f"v_subrev_u32 v{VSC}, 8192, v{VSC}")
        self.wait_lds(L_FLP, 1, VT, sleep=0)
        e(f"ds_read_b32 v{A}, v{VT + 4} offset:{L_LOC}")
        for q4 in range(self.tpi // 4):
            e(f"ds_read_b128 v[{PN + 4 * q4}:{PN + 4 * q4 + 3}], v{VSC} offset:{16 * q4}")
        e(f"v_add_u32 v{VSC}, {NS * 8 * tb}, v{VSC}")
        e(f"s_mov_b32 s{S_R}, 0")

        def vbody(cap, last=False, ctl=True):
            ctl = ctl and nlev and not last
            side = ctl_ops() if ctl else []
            e("s_waitcnt lgkmcnt(0)")
            for j in range(R):
                tile, jj = divmod(j, 6)
                kg, s = divmod(jj, 3)
                if last and j + L >= R:
                    e(f"s_waitcnt vmcnt({R - 1 - j})")
                elif j % B == 0:
                    e(f"s_waitcnt vmcnt({wait_count(cap, j, ctl)})")
                    for jb in range(j, j + B):
                        issue(jb + L, boundary=(jb == cand[0]))
                if B > 1 and ctl and j == 17:
                    e(f"s_waitcnt vmcnt({18 - B})")
                elif B > 1 and ctl and j > 17 and j % B:
                    e("s_nop 1")
                if ctl and j == 0:
                    ctl_issue()
                if last and j == R - L - B:
                    e(f"v_mov_b32 v{VIT}, 64")
                    e(f"ds_write_b32 v7, v{VIT} offset:{L_FIT}")
                if j >= 17 and side:
                    e(side.pop(0))
                if jj == 0:
                    e(f"v_and_b32 v{PX}, 0xffff, v{PN + tile}")
                    e(f"v_lshlrev_b32 v{PX + 1}, 16, v{PN + tile}")
                    e(f"v_lshrrev_b32 v{PX + 2}, 16, v{PN + tile}")
                    e(f"v_and_b32 v{PX + 3}, 0xffff0000, v{PN + tile}")
                    if tile == self.tpi - 1 and not last:
                        e(f"v_add_u32 v{VIT}, 1, v{VIT}")
                        e(f"ds_write_b32 v7, v{VIT} offset:{L_FIT}")
                        for q4 in range(self.tpi // 4):
                            e(f"ds_read_b128 v[{PN + 4 * q4}:{PN + 4 * q4 + 3}], v{VSC} offset:{16 * q4}")
                        e(f"v_add_u32 v{VSC}, {NS * 8 * tb}, v{VSC}")
                self.gemv_row(RING + 4 * j, PX + 2 * kg, Q + 8 * s)
                if j >= 17 and side:
                    e(side.pop(0))
            assert not side

        def dump():
            e("s_nop 2")
            for s in range(3):
                for hlf in range(2):
                    r = Q + 8 * s + 4 * hlf
                    e(f"ds_write_b128 v{VDUMP}, v[{r}:{r + 3}] offset:{256 * s + 16 * hlf}")
            e(f"v_add_u32 v{VDUMP}, {self.dump_bytes}, v{VDUMP}")
            e(f"s_add_u32 s50, s{S_R}, 5")
            e(f"v_mov_b32 v{VT}, s50")
            e(f"ds_write_b32 v7, v{VT} offset:{L_FLS}")

        e("L_vround:")
        e(f"s_add_u32 s50, s{S_R}, 2")
        e("s_min_u32 s50, s50, 4")
        self.wait_lds(L_FLP, "s50", VT, sleep=0)
        e(f"v_readfirstlane_b32 s54, v{A}")
        for k in range(24):
            e(f"v_mov_b32 v{Q + k}, 0")
        e(f"s_cmp_eq_u32 s{S_R}, 3")
        e(f"s_cselect_b32 s52, {self.tail_iters}, 0")
        e(f"s_mov_b32 s{S_IT}, {self.ipr}")
        e("L_vloop:")
        e(f"s_cmp_eq_u32 s{S_IT}, 1")
        e(f"s_cselect_b32 s{S_DELTA}, s56, {self.big_step}")
        e(f"s_cmp_eq_u32 s{S_IT}, s43")
        e(f"s_cselect_b32 s42, {HEAD}, 0")
        e(f"s_sub_u32 s{S_DELTA}, s{S_DELTA}, s42")
        dispatch("vb", vbody)
        pick_level()
        e(f"s_sub_u32 s{S_IT}, s{S_IT}, 1")
        e(f"s_cmp_lg_u32 s{S_IT}, s52")
        e("s_cbranch_scc1 L_vloop")
        e(f"s_cmp_eq_u32 s{S_R}, 3")
        e("s_cbranch_scc1 L_vtail")
        self.stamp_round(S_R, 7)
        dump()
        e(f"s_add_u32 s{S_R}, s{S_R}, 1")
        e("s_branch L_vround")
        e("L_vtail:")
        if self.tail_iters > 1:
            e("L_vtloop:")
            e(f"s_cmp_eq_u32 s{S_IT}, s43")
            e(f"s_cselect_b32 s42, {HEAD}, 0")
            e(f"s_sub_u32 s{S_DELTA}, {self.big_step}, s42")
            if self.caps_tail:
                dispatch("vt", lambda c_: vbody(c_, ctl=False), self.caps_tail)
            else:
                vbody(self.cap_tail, ctl=False)
            e(f"s_sub_u32 s{S_IT}, s{S_IT}, 1")
            e(f"s_cmp_lg_u32 s{S_IT}, 1")
            e("s_cbranch_scc1 L_vtloop")
        vbody(self.cap_tail, last=True)
        self.stamp(10)
        self.c("last head: reduce over lane groups, combine the two streamers, publish")
        e(f"ds_write_b32 v7, v{VPR} offset:{L_FIT}")
        for s_ in range(3):
            for k in range(4):
                e(f"v_permlane32_swap_b32 v{Q + 8 * s_ + k}, v{Q + 8 * s_ + k + 4}")
        for s_ in range(2):
            self.addn(Q + 8 * s_, Q + 8 * s_, Q + 8 * s_ + 4, 4)
        self.addn(Q + 4, Q + 16, Q + 20, 4)
        self.addn(Q + 16, Q + 16, Q + 20, 4)
        e(f"ds_read_b32 v{VT}, v{TG + 2} offset:{L_PD}")
        e(f"ds_read_b128 v[{PN}:{PN + 3}], v{TG + 1} offset:{L_PAIR}")
        for k in range(4):
            e(f"v_permlane16_swap_b32 v{Q + k}, v{Q + 8 + k}")
        for k in range(4):
            e(f"v_permlane16_swap_b32 v{Q + 16 + k}, v{Q + 4 + k}")
        self.addn(Q, Q, Q + 8, 4)
        self.addn(Q + 16, Q + 16, Q + 4, 4)
        for k in range(4):
            e(f"v_add_f32_dpp v{PX + k}, v{Q + k}, v{Q + k} row_ror:8 row_mask:0xf bank_mask:0x3")
        for k in range(4):
            e(f"v_add_f32_dpp v{PX + k}, v{Q + 16 + k}, v{Q + 16 + k} row_ror:8 row_mask:0xf bank_mask:0xc")
        e("s_waitcnt lgkmcnt(0)")
        e(f"v_readfirstlane_b32 s63, v{VT}")
        e("s_cmp_lg_u32 s63, 0")
        e("s_cbranch_scc1 L_spub")
        e(f"ds_write_b128 v{TG}, v[{PX}:{PX + 3}] offset:{L_PAIR}")
        e(f"ds_write_b32 v7, v{TG + 3} offset:{L_PD}")
        e("s_mov_b64 exec, 1")
        e(f"ds_add_rtn_u32 v{VT + 1}, v{VT + 4}, v{TG + 3} offset:{L_PCN}")
        e("s_mov_b64 exec, -1")
        e(f"ds_read_b128 v[{PN}:{PN + 3}], v{TG + 1} offset:{L_PAIR}")
        e("s_waitcnt lgkmcnt(0)")
        e(f"v_readfirstlane_b32 s63, v{VT + 1}")
        e("s_cmp_eq_u32 s63, 0")
        e("s_cbranch_scc1 L_sdone")
        e("L_spub:")
        self.addn(PX, PX, PN, 4)
        for k in range(4):
            e(f"v_min_u32 v{PX + k}, -2, v{PX + k}")
        e("s_mov_b32 exec_lo, 0xffffff")
        e("s_mov_b32 exec_hi, 0xffffff")
        e("s_cmp_eq_u32 s54, 0")
        e("s_cbranch_scc1 L_spub_far")
        e(f"buffer_store_dwordx4 v[{PX}:{PX + 3}], v{VO}, s[12:15], s57 offen")
        e("s_branch L_sdone")
        e("L_spub_far:")
        e(f"buffer_store_dwordx4 v[{PX}:{PX + 3}], v{VO}, s[12:15], s57 offen sc1")
        e("L_sdone:")
        self.stamp(11, True)
        if self.prof:
            e("s_mov_b32 s88, s92")
        self.prof_store(13)
        e("s_endpgm")
        return RING + 4 * R

    def helperA(self):
        e = self.e
        NS = self.NS
        S_RB, S_CB = 40, 41
        SX, SW, SWS, SJ = 8, 12, 44, 48
        SM = 84
        VW, VT, VQL = 3, 4, 9
        T, TGL, VP, VL16 = 10, 14, 18, 19
        XA, VW2, VXS, XC, F, XOP = 20, 25, 26, 28, 52, 68
        ACC, RES, RING, GQ = 84, 92, 96, 192
        VG0, VG1 = 66, 67
        e("L_helperA:")
        e("s_setprio 3")
        e(f"v_mul_u32_u24 v{VW}, 0x18000, v1")
        e(f"v_lshl_add_u32 v{VW}, v2, 4, v{VW}")
        e(f"v_lshlrev_b32 v{VL16}, 4, v0")
        e(f"v_lshlrev_b32 v{T}, 2, v0")
        e(f"s_mul_i32 s42, s{S_RB}, {64 * 12288}")
        e(f"s_mul_i32 s43, s{S_X}, 384")
        e("s_add_u32 s42, s42, s43")
        e(f"s_lshl_b32 s6, s{S_CB}, 7")
        e("s_add_u32 s42, s42, s6")
        e("s_waitcnt lgkmcnt(0)")
        self.srd(SX, P_X, 1280)
        self.srd(SW, P_WQ, 640 * 12288)
        e(f"buffer_load_dwordx4 v[{XA}:{XA + 3}], v{VL16}, s[{SX}:{SX + 3}], 0 offen")
        e(f"buffer_load_dword v{XA + 4}, v{T}, s[{SX}:{SX + 3}], 0 offen offset:1024")
        for i in range(8):
            e(f"buffer_load_dwordx4 v[{GQ + 4 * i}:{GQ + 4 * i + 3}], v{VW}, s[{SW}:{SW + 3}], s42 offen nt")
            if i < 7:
                e("s_add_u32 s42, s42, 12288")
        e(f"s_mov_b32 s6, {WS_EPOCH}")
        e(f"s_load_dword s{S_TAG}, s[{P_WS}:{P_WS + 1}], s6")
        e("s_barrier")
        self.srd(SWS, P_WS, WS_SIZE)
        self.c("second job: half of the rows of one 64-column block of wq (heads 1..3), gate or up")
        e(f"s_lshr_b32 s52, s{S_C}, 1")
        e(f"s_and_b32 s53, s{S_C}, 1")
        e("s_mul_i32 s54, s52, 43691")
        e("s_lshr_b32 s54, s54, 17")
        e("s_mul_i32 s55, s54, 3")
        e("s_sub_u32 s55, s52, s55")
        e("s_cmp_eq_u32 s54, 3")
        e(f"s_cselect_b32 s{SJ}, s{P_G}, s{P_U}")
        e(f"s_cselect_b32 s{SJ + 1}, s{P_G + 1}, s{P_U + 1}")
        e("s_add_u32 s6, s54, 1")
        e("s_mul_i32 s6, s6, 3072")
        e("s_movk_i32 s56, 0xc00")
        e("s_cmp_lt_u32 s54, 3")
        e(f"s_cselect_b32 s{SJ}, s{P_WQ}, s{SJ}")
        e(f"s_cselect_b32 s{SJ + 1}, s{P_WQ + 1}, s{SJ + 1}")
        e("s_cselect_b32 s56, 12288, s56")
        e("s_cselect_b32 s6, s6, 0")
        e(f"s_mul_i32 s{SJ + 2}, s56, 640")
        e(f"s_cmp_lt_u32 s54, {0 if 'a' in self.dg else 5}")
        e(f"s_cselect_b32 s{SJ + 2}, s{SJ + 2}, 0")
        e(f"s_mov_b32 s{SJ + 3}, 0x20000")
        e("s_add_u32 s42, s43, s6")
        e("s_lshl_b32 s6, s55, 7")
        e("s_add_u32 s42, s42, s6")
        e("s_mul_i32 s6, s56, 320")
        e("s_mul_i32 s6, s6, s53")
        e("s_add_u32 s42, s42, s6")
        e("s_mul_i32 s57, s56, 57")
        e("s_lshl_b32 s6, s56, 3")
        e(f"v_mul_u32_u24 v{VW2}, s6, v1")
        e(f"v_lshl_add_u32 v{VW2}, v2, 4, v{VW2}")
        e(f"v_lshrrev_b32 v{VP}, 4, v0")
        e(f"v_lshlrev_b32 v{VP}, 7, v{VP}")
        e(f"v_lshl_add_u32 v{VP}, v2, 4, v{VP}")
        e(f"v_and_b32 v{T + 1}, 3, v1")
        e(f"v_lshlrev_b32 v{VQL}, 4, v2")
        e(f"v_lshl_add_u32 v{VQL}, v{T + 1}, 2, v{VQL}")
        e(f"v_and_b32 v{T + 1}, 31, v0")
        e(f"v_lshlrev_b32 v{T + 1}, 4, v{T + 1}")
        e(f"v_lshrrev_b32 v{T + 2}, 5, v0")
        e(f"v_mul_u32_u24 v{VG0}, 1536, v{T + 2}")
        e(f"v_add_u32 v{VG0}, v{VG0}, v{T + 1}")
        e(f"v_mul_u32_u24 v{VG1}, 7680, v{T + 2}")
        e(f"v_add_u32 v{VG1}, v{VG1}, v{T + 1}")
        e(f"s_lshl_b32 s6, s{S_RB}, 7")
        e(f"v_lshl_add_u32 v{VXS}, v1, 4, s6")
        e("s_mul_i32 s6, s53, 640")
        e(f"v_lshl_add_u32 v{VXS + 1}, v1, 4, s6")
        for k in range(8):
            e(f"v_mov_b32 v{ACC + k}, 0")

        def job_load(i):
            r = RING + 4 * (i % 24)
            e(f"buffer_load_dwordx4 v[{r}:{r + 3}], v{VW2}, s[{SJ}:{SJ + 3}], s42 offen nt")
            if i < 39:
                e(f"s_add_u32 s42, s42, s{57 if i % 8 == 7 else 56}")
            if i == self.go_at:
                e(f"v_mov_b32 v{VT}, {L_FLG}")
                e(f"v_mov_b32 v{VT + 1}, 1")
                e(f"ds_write_b32 v{VT}, v{VT + 1}")

        ae = self.a_early
        e("s_waitcnt vmcnt(8)")
        self.stamp(1)
        for i in range(ae):
            job_load(i)
        self.layernorm(XA, F)
        e(f"ds_write_b128 v{VL16}, v[{XA}:{XA + 3}] offset:{L_XN}")
        e(f"ds_write_b32 v{T}, v{XA + 4} offset:{L_XN + 1024}")
        e(f"ds_read_b128 v[{XC}:{XC + 3}], v{VXS} offset:{L_XN}")
        for u in range(5):
            e(f"ds_read_b128 v[{XC + 4 + 4 * u}:{XC + 7 + 4 * u}], v{VXS + 1} offset:{L_XN + 128 * u}")
        e("s_waitcnt lgkmcnt(0)")
        e(f"s_add_u32 s{S_TAG}, s{S_TAG}, {hex(NONCE_STEP)}")
        self.expand(XC, XOP)
        self.tag_regs(RES)
        for i in range(8):
            e(f"s_waitcnt vmcnt({7 - i + ae})")
            self.gemv_row(GQ + 4 * i, XOP + 2 * i, ACC)
        self.reduce_g2(ACC, RES)
        e(f"s_mul_i32 s58, s{S_X}, 15360")
        e(f"s_lshl_b32 s6, s{S_C}, 9")
        e("s_add_u32 s6, s6, s58")
        e(f"s_cmp_lt_u32 s{S_C}, 30")
        e(f"s_cselect_b32 s6, s6, {WS_SIZE}")
        self.exec_tagged()
        e(f"buffer_store_dwordx4 v[{RES}:{RES + 3}], v{VP}, s[{SWS}:{SWS + 3}], s6 offen sc1")
        e("s_mov_b64 exec, -1")
        self.stamp(2)
        cap = self.capA
        assert ae <= cap <= 23

        def job_consume(j):
            if j % 8 == 0:
                self.expand(XC + 4 + 4 * (j // 8), XOP)
            self.gemv_row(RING + 4 * (j % 24), XOP + 2 * (j % 8), ACC)

        for i in range(ae, 40):
            if i >= cap:
                e(f"s_waitcnt vmcnt({cap - 1})")
            job_load(i)
            if i == max(ae, cap - 1):
                self.set_lds(L_TAG, f"s{S_TAG}", VT)
                self.set_lds(L_FLN, 1, VT)
                for k in range(8):
                    e(f"v_mov_b32 v{ACC + k}, 0")
            if i >= cap:
                job_consume(i - cap)
        self.stamp(3)

        def rest_of_job(extra=15):
            for j in range(40 - cap, 40):
                e(f"s_waitcnt vmcnt({39 - j + extra})")
                job_consume(j)

        def finish_q(regs, lds0):
            for r in regs:
                e(f"v_mov_b32 v{r + 1}, v{r}")
                e(f"v_mov_b32 v{r + 3}, v{r + 2}")
            e("s_nop 0")
            for r in regs:
                e(f"v_permlane32_swap_b32 v{r}, v{r + 1}")
                e(f"v_permlane32_swap_b32 v{r + 2}, v{r + 3}")
            for r in regs:
                e(f"v_add_f32 v{r}, v{r}, v{r + 1}")
                e(f"v_add_f32 v{r + 2}, v{r + 2}, v{r + 3}")
            for i, r in enumerate(regs):
                e(f"v_cvt_pk_bf16_f32 v{r}, v{r}, v{r + 2}")
                e(f"ds_write_b32 v{VQL}, v{r} offset:{lds0 + 128 * i}")

        for k in range(5):
            e(f"s_add_u32 s{SM + k}, s58, {3072 * k}")
        loads = [f"buffer_load_dwordx4 v[{GQ + 12 * k + 4 * cb}:{GQ + 12 * k + 4 * cb + 3}], v{VG0}, s[{SWS}:{SWS + 3}], "
                 f"s{SM + k} offen offset:{512 * cb} sc1" for k in range(5) for cb in range(3)]
        if self.q_late:
            rest_of_job(0)
            self.gather_tagged(loads, GQ, 15, VT, sleep=4)
        else:
            self.gather_tagged(loads, GQ, 15, VT, sleep=4, between=rest_of_job)
        self.stamp(4)
        for k in range(1, 5):
            for j in range(0, 12, 2):
                e(f"v_add_f32 v{GQ + j}, v{GQ + j}, v{GQ + 12 * k + j}")
        finish_q([GQ, GQ + 4, GQ + 8], L_Q)
        self.set_lds(L_FLQ, 1, VT)
        self.stamp(5)
        e("s_setprio 0")
        self.reduce_g2(ACC, RES)
        e("s_mul_i32 s6, s53, 7680")
        e("s_lshl_b32 s7, s52, 9")
        e("s_add_u32 s6, s6, s7")
        e("s_add_u32 s6, s6, s58")
        e(f"s_add_u32 s6, s6, {WS_PA1}")
        e(f"s_cmp_lt_u32 s{S_C}, {0 if 's' in self.dg else 30}")
        e(f"s_cselect_b32 s6, s6, {WS_SIZE}")
        self.exec_tagged()
        e(f"buffer_store_dwordx4 v[{RES}:{RES + 3}], v{VP}, s[{SWS}:{SWS + 3}], s6 offen sc1")
        e("s_mov_b64 exec, -1")
        self.wait_lds(L_FIT, self.it_q, VT, n=NS, sleep=8)
        e(f"s_add_u32 s6, s58, {WS_PA1}")
        e("s_add_u32 s7, s6, 4096")
        loads = [f"buffer_load_dwordx4 v[{GQ + 4 * j}:{GQ + 4 * j + 3}], v{VG1}, s[{SWS}:{SWS + 3}], "
                 f"s{6 + j // 8} offen offset:{512 * (j % 8)} sc1" for j in range(9)]
        if "r" not in self.dg:
            self.gather_tagged(loads, GQ, 9, VT, sleep=32)
        finish_q([GQ + 4 * j for j in range(9)], L_Q + 384)
        self.set_lds(L_FLQ, 4, VT)
        self.stamp(6)
        self.make_tags(TGL)
        SCR, ST, OPR = 128, 160, 180

        M, LS, VS32 = 20, 21, 22
        U = 24

        def unpack(r):
            for k in range(8):
                e(f"v_lshlrev_b32 v{U + 2 * k}, 16, v{SCR + 8 * r + k}")
                e(f"v_and_b32 v{U + 2 * k + 1}, 0xffff0000, v{SCR + 8 * r + k}")

        def local_stats(r):
            self.wait_lds(L_FLS, r + 1, VT, n=NS, sleep=8)
            e(f"v_lshlrev_b32 v{VS32}, 5, v0")
            b = SCR + 8 * r
            e(f"ds_read_b128 v[{b}:{b + 3}], v{VS32} offset:{L_SC + 2048 * r}")
            e(f"ds_read_b128 v[{b + 4}:{b + 7}], v{VS32} offset:{L_SC + 2048 * r + 16}")
            e("s_waitcnt lgkmcnt(0)")
            unpack(r)
            for k in range(16):
                e(f"v_mul_f32 v{U + k}, {hex(SCALE)}, v{U + k}")
            for k in range(8):
                e(f"v_cvt_pk_bf16_f32 v{b + k}, v{U + 2 * k}, v{U + 2 * k + 1}")
            unpack(r)
            e(f"v_max_f32 v{M}, v{U}, v{U + 1}")
            for k in range(2, 16, 2):
                e(f"v_max3_f32 v{M}, v{M}, v{U + k}, v{U + k + 1}")
            self.allreduce("v_max_f32", M, T)
            for k in range(16):
                e(f"v_sub_f32 v{U + k}, v{U + k}, v{M}")
            for k in range(16):
                e(f"v_mul_f32 v{U + k}, {hex(LOG2E)}, v{U + k}")
            for k in range(16):
                e(f"v_exp_f32 v{U + k}, v{U + k}")
            e("s_nop 0")
            e(f"v_add_f32 v{LS}, v{U}, v{U + 1}")
            for k in range(2, 16):
                e(f"v_add_f32 v{LS}, v{LS}, v{U + k}")
            self.allreduce("v_add_f32", LS, T)
            e(f"v_cmp_eq_u32 vcc, {r % 3}, v0")
            e("s_nop 1")
            e(f"v_cndmask_b32 v{ST}, v{ST}, v{M}, vcc")
            e(f"v_cndmask_b32 v{ST + 2}, v{ST + 2}, v{LS}, vcc")

        def publish_stats(base, shift, lanes):
            self.tag_regs(ST)
            e(f"s_lshl_b32 s6, s{S_X}, {shift + 5}")
            e(f"s_lshl_b32 s7, s{S_C}, {shift}")
            e("s_add_u32 s6, s6, s7")
            e(f"s_add_u32 s6, s6, {base}")
            e(f"s_mov_b64 exec, {(1 << lanes) - 1}")
            e(f"buffer_store_dwordx4 v[{ST}:{ST + 3}], v{VL16}, s[{SWS}:{SWS + 3}], s6 offen sc1")
            e("s_mov_b64 exec, -1")
            e("s_nop 1")

        def gather_stats(base, shift, n):
            e(f"v_and_b32 v{T + 1}, 31, v0")
            e(f"v_lshlrev_b32 v{T + 1}, {shift}, v{T + 1}")
            e(f"s_lshl_b32 s6, s{S_X}, {shift + 5}")
            e(f"s_add_u32 s6, s6, {base}")
            self.gather_tagged([f"buffer_load_dwordx4 v[{ST + 4 + 4 * k}:{ST + 7 + 4 * k}], v{T + 1}, s[{SWS}:{SWS + 3}], "
                                f"s6 offen offset:{16 * k} sc1" for k in range(n)], ST + 4, n, VT, sleep=32)

        def finalize_p(r):
            G = ST + 4 + 4 * (r % 3)
            e(f"v_mov_b32 v{M}, v{G}")
            self.allreduce("v_max_f32", M, T)
            e(f"v_sub_f32 v{G}, v{G}, v{M}")
            e(f"v_mul_f32 v{G}, {hex(LOG2E)}, v{G}")
            e(f"v_exp_f32 v{G}, v{G}")
            e("s_nop 0")
            e(f"v_mul_f32 v{LS}, v{G}, v{G + 2}")
            self.allreduce("v_add_f32", LS, T)
            e(f"v_mul_f32 v{LS}, 0.5, v{LS}")
            e(f"v_rcp_f32 v{LS}, v{LS}")
            unpack(r)
            for k in range(16):
                e(f"v_sub_f32 v{U + k}, v{U + k}, v{M}")
            for k in range(16):
                e(f"v_mul_f32 v{U + k}, {hex(LOG2E)}, v{U + k}")
            for k in range(16):
                e(f"v_exp_f32 v{U + k}, v{U + k}")
            e("s_nop 0")
            for k in range(16):
                e(f"v_mul_f32 v{U + k}, v{U + k}, v{LS}")
            b = SCR + 8 * r
            for k in range(8):
                e(f"v_cvt_pk_bf16_f32 v{b + k}, v{U + 2 * k}, v{U + 2 * k + 1}")
            e(f"ds_write_b128 v{VS32}, v[{b}:{b + 3}] offset:{L_SC + 2048 * r}")
            e(f"ds_write_b128 v{VS32}, v[{b + 4}:{b + 7}] offset:{L_SC + 2048 * r + 16}")
            self.set_lds(L_FLP, r + 1, VT)

        def reduce_op(r):
            self.wait_lds(L_FLS, r + 5, VT, n=NS, sleep=8)
            D, O = 40, OPR + 4 * r
            for i in range(16):
                d = D + 4 * i
                e(f"ds_read_b128 v[{d}:{d + 3}], v{VQL} offset:{L_DUMP + r * self.dump_bytes + 768 * i}")
                if i == 7:
                    e("s_waitcnt lgkmcnt(7)")
            for i in range(1, 16):
                e(f"s_waitcnt lgkmcnt({15 - i})")
                for k in range(4):
                    e(f"v_add_f32 v{O + k}, v{D + k if i == 1 else O + k}, v{D + 4 * i + k}")
            self.embed(O, TGL)

        e("s_getreg_b32 s59, hwreg(HW_REG_XCC_ID, 0, 4)")
        e(f"v_mov_b32 v{ST}, s59")
        e(f"v_mov_b32 v{ST + 2}, s59")
        for r in range(3):
            local_stats(r)
        publish_stats(WS_STA, 6, 4)
        self.wait_lds(L_FIT, 24 + self.it_st, VT, n=NS, sleep=8)
        gather_stats(WS_STA, 6, 4)
        e(f"v_cmp_ne_u32 vcc, s59, v{ST + 16}")
        e("s_nop 1")
        e("s_cmp_eq_u64 vcc, 0")
        e(f"s_cselect_b32 s59, {1 if self.local else 0}, 0")
        self.set_lds(L_LOC, "s59", VT)
        for r in range(3):
            finalize_p(r)
        self.stamp(7)
        self.c("the last head's partial-sum slots are marked empty (all-ones words), whole lines at a time;")
        self.c("the round-3 statistics, published afterwards, order this before every real publish and poll")
        for k in range(4):
            e(f"v_mov_b32 v{U + k}, -1")
        e(f"s_mul_i32 s6, s{S_X}, {4 * 24576}")
        e(f"s_mul_i32 s7, s{S_C}, 768")
        e("s_add_u32 s6, s6, s7")
        e(f"s_add_u32 s6, s6, {WS_OP + 3 * 24576}")
        e("s_mov_b32 exec_hi, 0xffff")
        e("s_cmp_eq_u32 s59, 0")
        e("s_cbranch_scc1 L_ha_mark_far")
        e(f"buffer_store_dwordx4 v[{U}:{U + 3}], v{VL16}, s[{SWS}:{SWS + 3}], s6 offen")
        e("s_branch L_ha_marked")
        e("L_ha_mark_far:")
        e(f"buffer_store_dwordx4 v[{U}:{U + 3}], v{VL16}, s[{SWS}:{SWS + 3}], s6 offen sc1")
        e("L_ha_marked:")
        e("s_mov_b64 exec, -1")
        e("s_waitcnt vmcnt(0)")
        local_stats(3)
        publish_stats(WS_STB, 4, 1)
        self.wait_lds(L_FIT, 32 + self.it_st + 2, VT, n=NS, sleep=8)
        gather_stats(WS_STB, 4, 1)
        finalize_p(3)
        e(f"v_lshrrev_b32 v{VQL}, 4, v0")
        e(f"v_lshlrev_b32 v{VQL}, 8, v{VQL}")
        e(f"v_lshl_add_u32 v{VQL}, v2, 5, v{VQL}")
        e(f"v_and_b32 v{T + 1}, 1, v1")
        e(f"v_lshl_add_u32 v{VQL}, v{T + 1}, 4, v{VQL}")
        for r in range(3):
            reduce_op(r)
        e(f"v_lshrrev_b32 v{T}, 4, v0")
        e(f"v_lshlrev_b32 v{T}, 13, v{T}")
        e(f"v_and_b32 v{T + 1}, 15, v0")
        e(f"v_lshl_add_u32 v{T}, v{T + 1}, 4, v{T}")
        e(f"s_mul_i32 s6, s{S_X}, {4 * 24576}")
        e(f"s_lshl_b32 s7, s{S_C}, 8")
        e("s_add_u32 s6, s6, s7")
        e(f"s_add_u32 s6, s6, {WS_OP}")
        e("s_mov_b32 exec_hi, 0xffff")
        e("s_cmp_lg_u32 s59, 0")
        e("s_cbranch_scc1 L_ha_local")
        for fl in (" sc1", ""):
            for r in range(3):
                if "p" not in self.dg:
                    e(f"buffer_store_dwordx4 v[{OPR + 4 * r}:{OPR + 4 * r + 3}], v{T}, s[{SWS}:{SWS + 3}], s6 offen{fl}")
                if r < 2:
                    e("s_add_u32 s6, s6, 24576")
            if fl:
                e("s_branch L_ha_end")
                e("L_ha_local:")
        e("L_ha_end:")
        e("s_mov_b64 exec, -1")
        e(f"s_sub_u32 s56, s{S_C}, 29")
        e("s_lshl_b32 s56, s56, 3")
        e(f"s_add_u32 s56, s56, s{S_X}")
        e("s_sub_u32 s6, s56, 8")
        e("s_cmp_lt_u32 s6, 12")
        e("s_cbranch_scc1 L_fin_entry")
        self.stamp(8)
        self.prof_store(9)
        e("s_endpgm")
        return GQ + 60

    def marker(self, vt, sws):
        e = self.e
        if not self.xg:
            return
        lp = self.label("ct")
        e(f"s_cmp_lg_u32 s{S_X}, 7")
        e("s_cbranch_scc1 L_norank")
        e(f"v_mul_u32_u24 v{vt}, {PR_STRIDE}, v0")
        e(f"v_mov_b32 v{vt + 1}, 0")
        e(f"s_mov_b32 s6, {WS_RK}")
        e(f"buffer_store_dword v{vt + 1}, v{vt}, s[{sws}:{sws + 3}], s6 offen sc1")
        e("L_norank:")
        e("s_mov_b32 s57, 0")
        e(f"s_mov_b32 s58, {self.xfrom}")
        e(f"s_mul_i32 s55, s{S_X}, {PR_STRIDE}")
        e(f"s_add_u32 s55, s55, {WS_PR + 252}")
        e(f"{lp}:")
        self.wait_lds(L_FIT, "s58", vt, n=self.NS, sleep=1)
        e(f"s_mul_i32 s59, s58, {PR_STRIDE}")
        e(f"s_add_u32 s59, s59, {WS_RK}")
        e("s_mov_b32 s6, 1")
        e(f"s_atomic_add s6, s[{P_WS}:{P_WS + 1}], s59 glc")
        e("s_waitcnt lgkmcnt(0)")
        e("s_min_u32 s6, s6, 7")
        e("s_lshl_b32 s6, s6, 1")
        e("s_sub_u32 s6, s6, 7")
        e(f"s_mul_i32 s7, s6, {self.xi}")
        e("s_add_u32 s57, s57, s7")
        e(f"s_min_i32 s57, s57, {self.xb}")
        e(f"s_max_i32 s57, s57, {-self.xb}")
        e(f"s_cmp_lt_u32 s58, {self.xsw}")
        e(f"s_cselect_b32 s7, {self.xg0}, {self.xg}")
        e("s_mul_i32 s6, s6, s7")
        e("s_add_u32 s6, s6, s57")
        e(f"s_add_u32 s7, s{S_TAG}, 0x1080")
        e("s_add_u32 s6, s6, s7")
        e(f"v_mov_b32 v{vt}, s6")
        e("s_mov_b64 exec, 1")
        e(f"buffer_store_dword v{vt}, v{vt + 4}, s[{sws}:{sws + 3}], s55 offen")
        e("s_mov_b64 exec, -1")
        e(f"s_add_u32 s58, s58, {self.xstep}")
        e(f"s_cmp_lt_u32 s58, {self.xend}")
        e(f"s_cbranch_scc1 {lp}")

    def helperB(self):
        e = self.e
        NS = self.NS
        S_RB, S_CB = 40, 41
        SX, SA, SWS = 8, 12, 44
        SM = 84
        VA, VT = 3, 4
        G0, WK, YA = 12, 44, 76
        TGL, TGG, VP, VG = 84, 88, 92, 93
        W = 96
        e("L_helperB:")
        e(f"v_mul_u32_u24 v{VA}, 0x2800, v1")
        e(f"v_lshl_add_u32 v{VA}, v2, 4, v{VA}")
        for k in range(4):
            e(f"v_mov_b32 v{VT + k}, 0")
        for k in range(4):
            e(f"ds_write_b128 v{VT}, v[{VT}:{VT + 3}] offset:{16 * k}")
        e(f"s_mul_i32 s43, s{S_X}, {192 * 1280}")
        e(f"s_mul_i32 s6, s{S_CB}, {64 * 1280}")
        e("s_add_u32 s43, s43, s6")
        e(f"s_lshl_b32 s6, s{S_RB}, 7")
        e("s_add_u32 s43, s43, s6")
        e("s_waitcnt lgkmcnt(0)")
        self.srd(SA, P_WO, 6144 * 1280)
        e("s_barrier")
        e(f"s_cmp_ge_u32 s{S_C}, 30")
        e("s_cbranch_scc1 L_hb_tags")
        def wload(i):
            n, ii = divmod(i, 8)
            if ii % 4 == 0:
                e(f"s_add_u32 s42, s43, {(8 * 192 * 1280 * n if n < 4 else 0) + 1280 * ii}")
            r = W + 4 * i
            e(f"buffer_load_dwordx4 v[{r}:{r + 3}], v{VA}, s[{SA}:{SA + 3}], s42 offen offset:{1280 * (ii % 4)} nt")

        for cnt, i in enumerate(range(8 * self.nlate, 40)):
            if "b" in self.dg:
                continue
            if i == 32:
                self.srd(SA, P_D, 1536 * 1280)
            if cnt >= self.capB:
                e(f"s_waitcnt vmcnt({self.capB - 1})")
            wload(i)
        self.stamp(1)
        e("L_hb_tags:")
        if self.prof:
            e("s_mov_b32 s78, 0")
        self.srd(SX, P_X, 1280)
        self.srd(SWS, P_WS, WS_SIZE)
        self.wait_lds(L_FLN, 1, VT, sleep=4)
        self.read_tag(VT)
        self.make_tags(TGL)
        e(f"s_cmp_ge_u32 s{S_C}, 30")
        e("s_cbranch_scc1 L_finisher")
        e(f"v_lshrrev_b32 v{VP}, 5, v0")
        e(f"v_lshlrev_b32 v{VP}, 7, v{VP}")
        e(f"v_lshl_add_u32 v{VP}, v2, 4, v{VP}")
        e(f"s_mul_i32 s54, s{S_RB}, 24")
        e(f"s_mul_i32 s7, s{S_X}, 3")
        e("s_add_u32 s54, s54, s7")
        e(f"s_add_u32 s54, s54, s{S_CB}")
        e("s_lshl_b32 s54, s54, 8")
        e(f"s_add_u32 s54, s54, {WS_YB}")
        e("s_mov_b32 s48, 0x05040100")
        e("s_mov_b32 s49, 0x07060302")

        def permute(n):
            for pr in range(4):
                for k in range(4):
                    lo, hi = W + 32 * n + 8 * pr + k, W + 32 * n + 8 * pr + 4 + k
                    e(f"v_perm_b32 v{WK + 8 * pr + 2 * k}, v{hi}, v{lo}, s48")
                    e(f"v_perm_b32 v{WK + 8 * pr + 2 * k + 1}, v{hi}, v{lo}, s49")

        OV = G0 + 24

        def gemv():
            for pr in range(4):
                for c_ in range(8):
                    e(f"v_dot2c_f32_bf16 v{YA + c_}, v{WK + 8 * pr + c_}, v{OV + pr}")

        self.c("the attention slot is marked empty; the tagged ffn slot, published later, vouches for that")
        for k in range(4):
            e(f"v_mov_b32 v{G0 + k}, -1")
        e(f"s_sub_u32 s6, s54, {WS_YB - WS_YA}")
        e("s_mov_b32 exec_lo, 0xff")
        e("s_mov_b32 exec_hi, 0xff")
        e(f"buffer_store_dwordx4 v[{G0}:{G0 + 3}], v{VP}, s[{SWS}:{SWS + 3}], s6 offen sc1")
        e("s_mov_b64 exec, -1")
        self.c("ffn hidden slice")
        self.wait_lds(L_FLQ, 4, VT, sleep=8)
        e(f"v_lshlrev_b32 v{VG}, 4, v1")
        VF = 88
        e(f"v_and_b32 v{VF}, 1, v2")
        e(f"v_mul_u32_u24 v{VF}, 7680, v{VF}")
        e(f"v_add_u32 v{VF}, v{VF}, v{VG}")
        e(f"s_mul_i32 s6, s{S_X}, 15360")
        e(f"s_lshl_b32 s7, s{S_CB}, 9")
        e("s_add_u32 s6, s6, s7")
        e(f"s_add_u32 s6, s6, {WS_PA1 + 9 * 512}")
        loads = [f"buffer_load_dwordx4 v[{G0 + 16 * m + 4 * q}:{G0 + 16 * m + 4 * q + 3}], v{VF}, "
                 f"s[{SWS}:{SWS + 3}], s6 offen offset:{1536 * m + 128 * q} sc1" for m in range(2) for q in range(4)]
        if "r" not in self.dg:
            self.gather_tagged(loads, G0, 8, VT, sleep=32)
        else:
            e("s_waitcnt vmcnt(0)")
        GA, UA, Z = WK, WK + 8, WK + 16
        for k in range(16):
            e(f"v_add_f32_dpp v{GA + k}, v{G0 + 2 * k}, v{G0 + 2 * k} {X1}")
        for k in range(8):
            self.round_bf16(GA + k)
            self.round_bf16(UA + k)
        c2 = -2.0 * 0.7978845608028654 * 1.4426950408889634
        e(f"s_mov_b32 s6, {hex(f2u(0.044715))}")
        for k in range(8):
            e(f"v_mul_f32 v{Z + k}, v{GA + k}, v{GA + k}")
        for k in range(8):
            e(f"v_mul_f32 v{Z + k}, v{Z + k}, v{GA + k}")
        for k in range(8):
            e(f"v_fma_f32 v{Z + k}, v{Z + k}, s6, v{GA + k}")
        for k in range(8):
            e(f"v_mul_f32 v{Z + k}, {hex(f2u(c2))}, v{Z + k}")
        for k in range(8):
            e(f"v_exp_f32 v{Z + k}, v{Z + k}")
        for k in range(8):
            e(f"v_add_f32 v{Z + k}, 1.0, v{Z + k}")
        for k in range(8):
            e(f"v_rcp_f32 v{Z + k}, v{Z + k}")
        for k in range(8):
            e(f"v_mul_f32 v{Z + k}, v{Z + k}, v{GA + k}")
        for k in range(8):
            self.round_bf16(Z + k)
        for k in range(8):
            e(f"v_mul_f32 v{Z + k}, v{Z + k}, v{UA + k}")
        for k in range(4):
            e(f"v_cvt_pk_bf16_f32 v{OV + k}, v{Z + 2 * k}, v{Z + 2 * k + 1}")
        permute(4)
        for k in range(8):
            e(f"v_mov_b32 v{YA + k}, 0")
        if self.tg:
            e(f"v_lshlrev_b32 v{VG}, 4, v2")
            e(f"v_lshl_add_u32 v{VG}, v1, 8, v{VG}")
            e(f"v_lshlrev_b32 v{VF}, 3, v2")
            e(f"v_add_lshl_u32 v{VF}, v{VF}, v1, 2")
        else:
            e(f"v_lshl_add_u32 v{VG}, v2, 8, v{VG}")
        e(f"v_add_u32 v{VG + 1}, 128, v{VG}")
        e(f"s_mul_i32 s52, s{S_X}, {4 * 24576}")
        e(f"s_lshl_b32 s7, s{S_CB}, 13")
        e("s_add_u32 s52, s52, s7")
        e(f"s_add_u32 s52, s52, {WS_OP}")
        e("s_mov_b32 s50, -1")
        e("s_branch L_hb_gemv")

        self.c("s50 = head round; each pass gathers one 64-row slice of the attention output")
        XOP = W + 96
        nl = 8 * self.nlate
        pa = min(self.poll_at, nl)
        e("L_hb_round:")
        e("s_cmp_lg_u32 s50, 3")
        e("s_cbranch_scc1 L_hb_gather")
        for i in range(nl, 24):
            self.gemv_row(W + 4 * i, XOP + 2 * i, YA)
        self.srd(SA, P_WO, 6144 * 1280)
        e(f"v_lshlrev_b32 v{VG}, {self.sh_g}, v1")
        e(f"v_lshl_add_u32 v{VG}, v2, {self.sh_p}, v{VG}")
        e(f"v_add_u32 v{VG + 1}, {1 << self.sh_q}, v{VG}")
        if self.preread:
            self.c("one early read makes the last head's slots resident before they are published")
            e("s_add_u32 s53, s52, 4096")
            for j in range(4):
                for q in range(2):
                    r = G0 + 8 * j + 4 * q
                    e(f"buffer_load_dwordx4 v[{r}:{r + 3}], v{VG + q}, s[{SWS}:{SWS + 3}], s{52 + j // 2} "
                      f"offen offset:{2048 * (j % 2)} sc1")
            e("s_waitcnt vmcnt(0)")
        self.stamp(3)
        self.wait_lds(L_FIT, 64 if nl else 65, VT, n=NS, sleep=1)
        for i in range(nl):
            wload(i)
        for i in range(nl - pa):
            e(f"s_waitcnt vmcnt({nl - 1 - i})")
            self.gemv_row(W + 4 * i, XOP + 2 * i, YA)
        self.stamp(4, True)
        hs = self.hsets
        free = [b for b in range(3) if 8 * b + 8 <= nl - pa or 8 * b >= nl]
        assert len(free) >= hs
        sets = [W + 32 * b for b in free[:hs]]

        def poll3(r0):
            for j in range(4):
                for q in range(2):
                    r = r0 + 8 * j + 4 * q
                    e(f"buffer_load_dwordx4 v[{r}:{r + 3}], v{VG + q}, s[{SWS}:{SWS + 3}], s{52 + j // 2} "
                      f"offen offset:{2048 * (j % 2)} sc1")

        def sum3(r0):
            self.addn(G0, r0, r0 + 8, 8)
            self.addn(r0 + 16, r0 + 16, r0 + 24, 8)
            self.addn(G0, G0, r0 + 16, 8)

        e("s_add_u32 s53, s52, 4096")
        e(f"s_mov_b32 s62, {SPIN_G}")
        poll3(sets[0])
        for i in range(nl - pa, nl):
            e(f"s_waitcnt vmcnt({nl - 1 - i + 8})")
            self.gemv_row(W + 4 * i, XOP + 2 * i, YA)
        for r0 in sets[1:]:
            poll3(r0)
        e("L_hb_poll:")
        for k, r0 in enumerate(sets):
            e(f"s_waitcnt vmcnt({8 * (hs - 1)})")
            regs = list(range(r0, r0 + 32)) if self.hfull else list(range(r0 + 3, r0 + 32, 4))
            e(f"v_max_u32 v{VT}, v{regs[0]}, v{regs[1]}")
            for j in range(2, len(regs), 2):
                e(f"v_max3_u32 v{VT}, v{VT}, v{regs[j]}, v{regs[j + 1]}")
            e(f"v_cmp_eq_u32 vcc, -1, v{VT}")
            sum3(r0)
            e("s_cbranch_vccz L_hb_summed")
            poll3(r0)
        e("s_sub_u32 s62, s62, 1")
        e("s_cmp_lg_u32 s62, 0")
        e("s_cbranch_scc1 L_hb_poll")
        e("s_endpgm")
        e("L_hb_gather:")
        e("s_add_u32 s53, s52, 4096")
        groups = []
        for j in range(4):
            groups.append(([f"buffer_load_dwordx4 v[{G0 + 8 * j + 4 * q}:{G0 + 8 * j + 4 * q + 3}], v{VG + q}, "
                            f"s[{SWS}:{SWS + 3}], s{52 + j // 2} offen offset:{2048 * (j % 2)} sc1"
                            for q in range(2)], G0 + 8 * j, 2))
        if "o" not in self.dg:
            self.gather_emb(groups, TGL, VT, SM, sleep=32)
        sum3(G0)
        if self.tg:
            self.c("rounds 0..2 were read with lane group = producer: exchange the two lane coordinates")
            for k in range(8):
                e(f"ds_bpermute_b32 v{G0 + k}, v{VF}, v{G0 + k}")
            e("s_waitcnt lgkmcnt(0)")
        e("L_hb_summed:")
        self.stamp(5, True)
        for pat in (X1, X2, HM):
            for k in range(8):
                e(f"v_add_f32_dpp v{G0 + k}, v{G0 + k}, v{G0 + k} {pat}")
        for k in range(4):
            e(f"v_cvt_pk_bf16_f32 v{OV + k}, v{G0 + 2 * k}, v{G0 + 2 * k + 1}")
        e("s_cmp_lg_u32 s50, 3")
        e("s_cbranch_scc1 L_hb_keep")
        e("L_hb_gemv:")
        gemv()
        self.reduce_g(YA, G0, G0 + 4)
        e("s_cmp_eq_u32 s50, 3")
        e("s_cbranch_scc1 L_hb_plain")
        self.embed(G0, TGL)
        e("s_branch L_hb_pub")
        e("L_hb_plain:")
        for k in range(4):
            e(f"v_min_u32 v{G0 + k}, -2, v{G0 + k}")
        e("L_hb_pub:")
        e("s_mov_b32 exec_lo, 0xff")
        e("s_mov_b32 exec_hi, 0xff")
        e(f"buffer_store_dwordx4 v[{G0}:{G0 + 3}], v{VP}, s[{SWS}:{SWS + 3}], s54 offen {self.ya_fl}")
        e("s_mov_b64 exec, -1")
        e("s_cmp_eq_u32 s50, 3")
        e("s_cbranch_scc1 L_hb_done")
        self.stamp(2)
        e(f"s_sub_u32 s54, s54, {WS_YB - WS_YA}")
        for k in range(8):
            e(f"v_mov_b32 v{YA + k}, 0")
        permute(3)
        self.wait_lds(L_FIT, 56 + self.it_op, VT, n=NS, sleep=8)
        e("s_mov_b32 s50, 0")
        e("s_branch L_hb_round")
        e("L_hb_keep:")
        for r in range(3):
            nx = self.label("hbk")
            e(f"s_cmp_lg_u32 s50, {r}")
            e(f"s_cbranch_scc1 {nx}")
            self.expand(OV, XOP + 16 * r)
            e(f"{nx}:")
        e("s_add_u32 s52, s52, 24576")
        e("s_add_u32 s50, s50, 1")
        e("s_branch L_hb_round")
        e("L_hb_done:")
        self.stamp(6, True)
        self.prof_store(8)
        e("s_endpgm")

        e("L_finisher:")
        e(f"s_mov_b32 s56, s{S_X}")
        e(f"s_cmp_eq_u32 s{S_C}, 30")
        e("s_cbranch_scc1 L_fin_entry")
        self.marker(VT, SWS)
        e("s_endpgm")
        self.c("finisher s56 (0..19): sums the projection partials of 32 columns and writes them out")
        e("L_fin_entry:")
        XV, BV = 64, 65
        self.make_tags(TGL)
        e(f"v_lshlrev_b32 v{VA}, 4, v2")
        e(f"v_lshl_add_u32 v{VG}, v1, 8, v{VA}")
        e(f"v_lshrrev_b32 v{VT}, 4, v0")
        e(f"v_lshl_add_u32 v{VA}, v{VT}, 1, v{VA}")
        e("s_lshr_b32 s6, s56, 1")
        e("s_and_b32 s7, s56, 1")
        e("s_lshl_b32 s57, s6, 7")
        e("s_mul_i32 s52, s6, 6144")
        e("s_lshl_b32 s6, s7, 3")
        e("s_add_u32 s57, s57, s6")
        e("s_lshl_b32 s6, s7, 7")
        e("s_add_u32 s52, s52, s6")
        e(f"s_add_u32 s52, s52, {WS_YB}")
        e("s_add_u32 s53, s52, 4096")
        e(f"buffer_load_ushort v{XV}, v{VA}, s[{SX}:{SX + 3}], s57 offen")
        self.srd(SA, P_OUT, 1280)

        def yloads(r0):
            return [f"buffer_load_dwordx4 v[{r0 + 4 * i}:{r0 + 4 * i + 3}], v{VG}, s[{SWS}:{SWS + 3}], s{52 + i // 2} "
                    f"offen offset:{2048 * (i % 2)} {self.yl_fl}" for i in range(3)]

        def ysum(r0):
            self.addn(G0, r0, r0 + 4, 4)
            self.addn(G0, G0, r0 + 8, 4)
            e("s_nop 1")
            e(f"v_permlane32_swap_b32 v{G0}, v{G0 + 2}")
            e(f"v_permlane32_swap_b32 v{G0 + 1}, v{G0 + 3}")
            e("s_nop 0")
            self.addn(G0, G0, G0 + 2, 2)
            e("s_nop 1")
            e(f"v_permlane16_swap_b32 v{G0}, v{G0 + 1}")
            e("s_nop 0")
            e(f"v_add_f32 v{G0}, v{G0}, v{G0 + 1}")
            e("s_nop 1")
            e(f"v_add_f32_dpp v{G0}, v{G0}, v{G0} {R8}")
            self.round_bf16(G0)

        self.wait_lds(L_FIT, 16, VT, n=NS, sleep=8)
        self.gather_emb([(yloads(W), W, 3)], TGL, VT, SM, sleep=32, whole=True)
        ysum(W)
        e(f"v_mov_b32 v{BV}, v{G0}")
        e(f"v_lshlrev_b32 v{XV}, 16, v{XV}")
        e(f"s_sub_u32 s52, s52, {WS_YB - WS_YA}")
        e("s_add_u32 s53, s52, 4096")
        self.stamp(3)
        self.wait_lds(L_FIT, 60, VT, n=NS, sleep=8)
        self.wait_lds(L_FIT, 65, VT, n=NS, sleep=1)
        self.stamp(4, True)
        ns = self.fsets
        e(f"s_mov_b32 s62, {SPIN_G}")
        for k in range(ns):
            for s_ in yloads(W + 12 * k):
                e(s_)
        e("L_fin_poll:")
        for k in range(ns):
            r0 = W + 12 * k
            e(f"s_waitcnt vmcnt({3 * (ns - 1)})")
            e(f"v_max_u32 v{VT}, v{r0}, v{r0 + 1}")
            for j in range(2, 12, 2):
                e(f"v_max3_u32 v{VT}, v{VT}, v{r0 + j}, v{r0 + j + 1}")
            e(f"v_cmp_eq_u32 vcc, -1, v{VT}")
            ysum(r0)
            e(f"v_add_f32 v{G0}, v{G0}, v{XV}")
            self.round_bf16(G0)
            e(f"v_add_f32 v{G0}, v{G0}, v{BV}")
            e(f"v_cvt_pk_bf16_f32 v{G0}, v{G0}, v{G0}")
            e("s_cbranch_vccz L_fin_got")
            for s_ in yloads(r0):
                e(s_)
        e("s_sub_u32 s62, s62, 1")
        e("s_cmp_lg_u32 s62, 0")
        e("s_cbranch_scc1 L_fin_poll")
        e("s_endpgm")
        e("L_fin_got:")
        self.exec_tagged()
        e(f"buffer_store_short v{G0}, v{VA}, s[{SA}:{SA + 3}], s57 offen {self.out_fl}")
        self.stamp(5, True)
        e("s_cmp_lg_u32 s56, 0")
        e("s_cbranch_scc1 L_fin_done")
        self.c("the next launch derives a different tag from this word")
        e(f"v_mov_b32 v{VT}, s{S_TAG}")
        e(f"v_mov_b32 v{VT + 1}, {WS_EPOCH}")
        e("s_mov_b64 exec, 1")
        e(f"buffer_store_dword v{VT}, v{VT + 1}, s[{SWS}:{SWS + 3}], 0 offen")
        e("L_fin_done:")
        if self.diag_dbg:
            e("s_memrealtime s[66:67]")
            e("s_waitcnt lgkmcnt(0)")
            e("s_sub_u32 s66, s66, s64")
            self.srd(48, P_DBG, 256)
            e(f"v_mov_b32 v{VT}, s66")
            e("s_lshl_b32 s6, s56, 2")
            e(f"v_mov_b32 v{VT + 1}, s6")
            e("s_mov_b64 exec, 1")
            e(f"buffer_store_dword v{VT}, v{VT + 1}, s[48:51], 0 offen")
        if self.diag_hold:
            if self.diag_who is not None:
                e("s_getreg_b32 s6, hwreg(HW_REG_XCC_ID, 0, 4)")
                e(f"s_cmp_lg_u32 s6, {self.diag_who}")
                e("s_cbranch_scc1 L_exit")
            e("L_hold:")
            e("s_memrealtime s[66:67]")
            e("s_waitcnt lgkmcnt(0)")
            e("s_sub_u32 s66, s66, s64")
            e(f"s_cmp_lt_u32 s66, {self.diag_hold}")
            e("s_cbranch_scc1 L_hold")
        self.stamp(6)
        if self.prof:
            e("s_waitcnt vmcnt(0)")
        self.stamp(7)
        self.prof_store(8)
        e("L_exit:")
        e("s_endpgm")
        e("L_code_end:")
        return W + 160

    def build(self):
        self.entry()
        nv = max(self.streamer(), self.helperA(), self.helperB())
        assert nv <= 256
        body = "\n".join(l if l.endswith(":") or l.startswith(";") else "    " + l for l in self.o)
        return (HEADER.format(block=64 * (self.NS + 2), lds=self.lds, name=NAME) + body
                + FOOTER.format(name=NAME, vgpr=nv, acc=(nv + 3) // 4 * 4))


def gen(**kw):
    return Gen(**kw).build()


if __name__ == "__main__":
    out = sys.argv[1] if len(sys.argv) > 1 else f"cdna_kernels/{NAME}.s"
    kw = eval("dict(" + (sys.argv[2] if len(sys.argv) > 2 else "") + ")")
    open(out, "w").write(gen(**kw))
```

```python
import struct
import sys

NAME = "parallel_sum__mha_block_cached__geglu_ffn__decode"
HEAD = 32768 * 384
KV_BYTES = 32 * HEAD
SENT = 0xFFFFFFFF

WS_PA0 = 0x000000
WS_PA1 = 0x020000
WS_STA = 0x040000
WS_STB = 0x044000
WS_STC = 0x048000
WS_YA = 0x050000
WS_YB = 0x060000
WS_STG = 0x070000
WS_OPG = 0x071000
WS_QF = 0x07E000
WS_JD = 0x07F000
WS_PR = 0x080000
PR_STRIDE = 4352
WS_RK = 0x090000
WS_OP = 0x0E0000
OP_X = 11 * 24576
WS_EPOCH = 0x2F0000
WS_PROF = 0x300000
WS_SIZE = 0x400000
NONCE_STEP = 0x9E3779B9
USE_STEP = 0x01030507

L_FLS = 0
L_FIT = 8
L_FLQ = 16
L_FLP = 20
L_FLN = 24
L_FLG = 28
L_TAG = 32
L_PCN = 36
L_PD = 40
L_LOC = 48
L_FLV = 52
L_Q = 64
L_XN = 4352
L_SC = 5632
L_PAIR = L_SC + 8192
L_DUMP = L_PAIR + 2048
S_TAG = 60


def f2u(x):
    return struct.unpack("<I", struct.pack("<f", x))[0]


LOG2E = f2u(1.4426950408889634)
SCALE = f2u(192 ** -0.5)

HEADER = """; Kernarg layout for this problem (96 bytes, ptrs only, base s[0:1]):
; @launch grid=(256,1,1) block=({block},1,1) lds={lds}
.amdgcn_target "amdgcn-amd-amdhsa--gfx950"
.text
.globl {name}_kernel
.p2align 8
.type {name}_kernel,@function
{name}_kernel:
"""
FOOTER = """
.section .rodata,"a"
.p2align 6
.amdhsa_kernel {name}_kernel
  .amdhsa_next_free_vgpr {vgpr}
  .amdhsa_next_free_sgpr 96
  .amdhsa_accum_offset {acc}
  .amdhsa_group_segment_fixed_size 0
  .amdhsa_kernarg_size 96
  .amdhsa_user_sgpr_count 2
  .amdhsa_user_sgpr_kernarg_segment_ptr 1
  .amdhsa_system_sgpr_workgroup_id_x 1
.end_amdhsa_kernel
"""

DPP_ALL = "row_mask:0xf bank_mask:0xf"
X1 = "quad_perm:[1,0,3,2] " + DPP_ALL
X2 = "quad_perm:[2,3,0,1] " + DPP_ALL
HM = "row_half_mirror " + DPP_ALL
RM = "row_mirror " + DPP_ALL
R8 = "row_ror:8 " + DPP_ALL

S_WAVE, S_X, S_C = 3, 4, 5
P_X, P_K, P_V, P_WQ, P_WO, P_G, P_U, P_D, P_OUT, P_DBG, P_WS = 16, 18, 20, 22, 24, 28, 30, 32, 34, 36, 38
SPIN_G = 400000
SPIN_L = 4000000


class Gen:
    def __init__(self, R=24, L=21, cap=12, cap0=11, capA=22, capB=22, a_early=10, s_early=0, gran=1, rot=0, warm=True, fsets=3, ya_fl="sc1", go_at=39, cap_tail=21, nlate=2, poll_at=4, cev=1, hsets=2, hfull=True, pre_out=0, out_fl="", burst=3, tg=False, preread=False, yl_fl="sc1", dg="", xi=0, xb=60, xg0=2, xsw=44, q_late=False, oplay=1, caps_tail=None, xend=62, xfrom=2,
                 tail_iters=1, caps=(9, 12, 15), thr=(45,), rep_c=7, xg=4, xstep=2, local=True, it_q=3, it_st=4, it_op=1, ring=3, it_qf=9, it_job=1, it_sh=61, prof=False, diag_hold=0, diag_dbg=False, diag_who=None):
        NS = 2
        self.NS, self.R, self.L = NS, R, L
        self.cap, self.cap0, self.capA, self.capB = cap, cap0, capA, capB
        self.a_early, self.go_at, self.s_early = a_early, go_at, s_early
        self.gran, self.rot, self.burst, self.dg, self.tg = gran, rot, burst, dg, tg
        self.preread, self.yl_fl = preread, yl_fl
        assert L % burst == 0 and L <= R - burst
        self.cev, self.xi, self.xb, self.xg0, self.xsw = cev, xi, xb, xg0, xsw
        self.pre_out, self.out_fl, self.hsets, self.hfull = pre_out, out_fl, hsets, hfull
        self.sh_q, self.sh_g, self.sh_p = (10, 7, 4) if oplay else (7, 4, 8)
        self.caps_tail, self.xend, self.xfrom = caps_tail, xend, xfrom
        self.nlate, self.poll_at, self.q_late = nlate, poll_at, q_late
        self.warm, self.fsets, self.ya_fl = warm, fsets, ya_fl
        self.cap_tail = cap_tail or cap
        self.tail_iters = tail_iters
        self.caps, self.thr, self.rep_c = caps, thr, rep_c
        self.xg, self.xstep, self.local = xg, xstep, local
        self.it_q, self.it_st, self.it_op, self.it_job, self.it_sh = it_q, it_st, it_op, it_job, it_sh
        self.it_qf, self.ring = it_qf, ring
        self.prof = prof
        self.diag_hold, self.diag_dbg, self.diag_who = diag_hold, diag_dbg, diag_who
        self.o = []
        self.uid = 0
        self.steps = 32768 // (32 * NS * 16)
        self.tpi = R // 6
        assert R == 24 and L < R
        assert max(cap, cap0, self.cap_tail) <= L
        self.ipr = self.steps // self.tpi
        self.step_bytes = 32 * NS * 6144
        self.big_step = gran * self.step_bytes - (gran - 1) * 6144
        self.dump_bytes = 8 * NS * 768
        self.lds = L_DUMP + 3 * self.dump_bytes

    def e(self, s):
        self.o.append(s)

    def c(self, s):
        self.o.append("; " + s)

    def label(self, base):
        self.uid += 1
        return f"L_{base}_{self.uid}"

    def srd(self, d, p, size):
        self.e(f"s_mov_b32 s{d}, s{p}")
        self.e(f"s_mov_b32 s{d+1}, s{p+1}")
        self.e(f"s_mov_b32 s{d+2}, {size}")
        self.e(f"s_mov_b32 s{d+3}, 0x20000")

    def stamp(self, k, tail=False):
        if self.prof and not (tail and self.prof == 2):
            self.e(f"s_memrealtime s[{64 + 2 * k}:{65 + 2 * k}]")
            self.e("s_waitcnt lgkmcnt(0)")

    def stamp_round(self, sreg, base):
        if not self.prof:
            return
        for r in range(4):
            lb = self.label("st")
            self.e(f"s_cmp_lg_u32 s{sreg}, {r}")
            self.e(f"s_cbranch_scc1 {lb}")
            self.stamp(base + r)
            self.e(f"{lb}:")

    def prof_store(self, n):
        if not self.prof:
            return
        e = self.e
        e("s_mov_b64 exec, -1")
        e("s_sleep 127")
        e("s_sleep 127")
        e("s_waitcnt vmcnt(0) lgkmcnt(0)")
        self.srd(12, P_WS, WS_SIZE)
        e("s_lshl_b32 s6, s2, 2")
        e(f"s_add_u32 s6, s6, s{S_WAVE}")
        e("s_lshl_b32 s6, s6, 6")
        e(f"s_add_u32 s6, s6, {WS_PROF}")
        e("v_mov_b32 v1, 0")
        e("s_getreg_b32 s7, hwreg(HW_REG_XCC_ID)")
        e("v_mov_b32 v2, s7")
        e("s_mov_b64 exec, 1")
        e("buffer_store_dword v2, v1, s[12:15], s6 offen offset:60")
        for k in range(n):
            e(f"v_mov_b32 v{4 + k}, s{64 + 2 * k}")
            e(f"buffer_store_dword v{4 + k}, v1, s[12:15], s6 offen offset:{4 * k}")
        e("s_waitcnt vmcnt(0)")

    def allreduce(self, op, v, t, lanes=64):
        e = self.e
        for pat in (X1, X2, HM, RM)[:3 if lanes == 8 else 4]:
            e("s_nop 1")
            e(f"{op}_dpp v{v}, v{v}, v{v} {pat}")
        if lanes == 8:
            return
        for sw in ("v_permlane16_swap_b32", "v_permlane32_swap_b32"):
            e(f"v_mov_b32 v{t}, v{v}")
            e("s_nop 1")
            e(f"{sw} v{v}, v{t}")
            e("s_nop 1")
            e(f"{op} v{v}, v{v}, v{t}")

    def round_bf16(self, v):
        self.e(f"v_cvt_pk_bf16_f32 v{v}, v{v}, v{v}")
        self.e(f"v_and_b32 v{v}, 0xffff0000, v{v}")

    def expand(self, src, dst):
        e = self.e
        for k in range(4):
            e(f"v_and_b32 v{dst + 4 * k}, 0xffff, v{src + k}")
            e(f"v_lshlrev_b32 v{dst + 4 * k + 1}, 16, v{src + k}")
            e(f"v_lshrrev_b32 v{dst + 4 * k + 2}, 16, v{src + k}")
            e(f"v_and_b32 v{dst + 4 * k + 3}, 0xffff0000, v{src + k}")

    def gemv_row(self, w, xop, acc):
        for k in range(4):
            self.e(f"v_dot2c_f32_bf16 v{acc + 2 * k}, v{w + k}, v{xop}")
            self.e(f"v_dot2c_f32_bf16 v{acc + 2 * k + 1}, v{w + k}, v{xop + 1}")

    def addn(self, d, a, b, n):
        assert d % 2 == 0 and a % 2 == 0 and b % 2 == 0 and n % 2 == 0
        for k in range(0, n, 2):
            self.e(f"v_pk_add_f32 v[{d + k}:{d + k + 1}], v[{a + k}:{a + k + 1}], v[{b + k}:{b + k + 1}]")

    def reduce_g(self, acc, res, t):
        e = self.e
        e("s_nop 2")
        for k in range(4):
            e(f"v_permlane32_swap_b32 v{acc + k}, v{acc + k + 4}")
        self.addn(res, acc, acc + 4, 4)
        self.addn(t, acc, acc + 4, 4)
        e("s_nop 0")
        for k in range(4):
            e(f"v_permlane16_swap_b32 v{res + k}, v{t + k}")
        self.addn(res, res, t, 4)
        e("s_nop 0")
        for k in range(4):
            e(f"v_add_f32_dpp v{res + k}, v{res + k}, v{res + k} {R8}")

    def tag_regs(self, res):
        self.e(f"v_mov_b32 v{res + 1}, s{S_TAG}")
        self.e(f"v_mov_b32 v{res + 3}, s{S_TAG}")

    def reduce_g2(self, acc, res):
        e = self.e
        e("s_nop 2")
        for k in range(4):
            e(f"v_permlane32_swap_b32 v{acc + k}, v{acc + k + 4}")
        e("s_nop 0")
        for k in range(4):
            e(f"v_add_f32 v{acc + k}, v{acc + k}, v{acc + k + 4}")
        e("s_nop 1")
        for k in range(2):
            e(f"v_permlane16_swap_b32 v{acc + k}, v{acc + k + 2}")
        e("s_nop 0")
        for k in range(2):
            e(f"v_add_f32 v{acc + k}, v{acc + k}, v{acc + k + 2}")
        e("s_nop 1")
        for k in range(2):
            e(f"v_add_f32_dpp v{res + 2 * k}, v{acc + k}, v{acc + k} {R8}")

    def exec_tagged(self):
        self.e("s_mov_b32 exec_lo, 0x00ff00ff")
        self.e("s_mov_b32 exec_hi, 0x00ff00ff")

    def make_tags(self, dst, src=S_TAG):
        self.e("s_movk_i32 s61, 0xff")
        for k in range(4):
            self.e(f"v_bfe_u32 v{dst + k}, s{src}, {8 * k}, 8")

    def embed(self, v, tg):
        for k in range(4):
            self.e(f"v_bfi_b32 v{v + k}, s61, v{tg + k}, v{v + k}")

    def read_tag(self, vt):
        e = self.e
        e(f"v_mov_b32 v{vt + 4}, 0")
        e(f"ds_read_b32 v{vt}, v{vt + 4} offset:{L_TAG}")
        e("s_waitcnt lgkmcnt(0)")
        e(f"v_readfirstlane_b32 s{S_TAG}, v{vt}")
        e("s_nop 1")

    def gather_emb(self, groups, tg, vt, sm, lanes=64, sleep=1, between=None, whole=False, cond=None):
        e = self.e
        lp, ok, mid = self.label("ge"), self.label("geok"), self.label("gemid")
        n = len(groups)
        e(f"s_mov_b32 s62, {SPIN_G}")
        for j in range(n):
            e(f"s_mov_b32 s{sm + 2 * j}, -1")
            e(f"s_mov_b32 s{sm + 2 * j + 1}, {hex((1 << (lanes - 32)) - 1)}")
        if between:
            if cond:
                e(cond)
                e(f"s_cbranch_scc0 {lp}")
            e(f"s_mov_b64 exec, s[{sm}:{sm + 1}]")
            for loads, _, _ in groups:
                for s_ in loads:
                    e(s_)
            e("s_mov_b64 exec, -1")
            between()
            e(f"s_branch {mid}")
        e(f"{lp}:")
        for j, (loads, _, _) in enumerate(groups):
            sk = self.label("gs")
            e(f"s_mov_b64 exec, s[{sm + 2 * j}:{sm + 2 * j + 1}]")
            e(f"s_cbranch_execz {sk}")
            for s_ in loads:
                e(s_)
            e(f"{sk}:")
        e(f"{mid}:")
        e("s_mov_b64 vcc, 0")
        e("s_waitcnt vmcnt(0)")
        for j, (_, first, nrec) in enumerate(groups):
            sk = self.label("gs")
            e(f"s_mov_b64 exec, s[{sm + 2 * j}:{sm + 2 * j + 1}]")
            e(f"s_cbranch_execz {sk}")
            for k in range(4 * nrec):
                e(f"v_xor_b32 v{first + k}, v{first + k}, v{tg + k % 4}")
            e(f"v_or_b32 v{vt}, v{first}, v{first + 1}")
            for k in range(2, 4 * nrec, 2):
                e(f"v_or3_b32 v{vt}, v{vt}, v{first + k}, v{first + k + 1}")
            e(f"v_and_b32 v{vt}, s61, v{vt}")
            e(f"v_cmp_ne_u32 s[{sm + 2 * j}:{sm + 2 * j + 1}], 0, v{vt}")
            e("s_nop 0")
            e(f"s_or_b64 vcc, vcc, s[{sm + 2 * j}:{sm + 2 * j + 1}]")
            if whole:
                e(f"s_cmp_lg_u64 s[{sm + 2 * j}:{sm + 2 * j + 1}], 0")
                e(f"s_cselect_b64 s[{sm + 2 * j}:{sm + 2 * j + 1}], -1, 0")
            e(f"{sk}:")
        e("s_mov_b64 exec, -1")
        e("s_cmp_eq_u64 vcc, 0")
        e(f"s_cbranch_scc1 {ok}")
        if isinstance(sleep, str):
            sk = self.label("gs")
            e(f"s_cmp_eq_u32 {sleep}, 0")
            e(f"s_cbranch_scc1 {sk}")
            e("s_sleep 32")
            e(f"{sk}:")
        elif sleep:
            e(f"s_sleep {sleep}")
        e("s_sub_u32 s62, s62, 1")
        e("s_cmp_lg_u32 s62, 0")
        e(f"s_cbranch_scc1 {lp}")
        e("s_endpgm")
        e(f"{ok}:")

    def gather_tagged(self, loads, first, nrec, vt, sleep=1, skip=None, between=None, words=(1, 3)):
        e = self.e
        lp, ok, mid = self.label("gt"), self.label("gtok"), self.label("gtmid")
        e(f"s_mov_b32 s62, {SPIN_G}")
        if between:
            for s_ in loads:
                e(s_)
            between()
            e(f"s_branch {mid}")
        e(f"{lp}:")
        for s_ in loads:
            e(s_)
        e(f"{mid}:")
        e(f"v_mov_b32 v{vt}, 0")
        e(f"v_mov_b32 v{vt + 1}, 0")
        e("s_waitcnt vmcnt(0)")
        for k in range(nrec):
            t = vt + 1 if skip and k in skip[0] else vt
            for w in words:
                e(f"v_bitop3_b32 v{t}, v{t}, v{first + 4 * k + w}, s{S_TAG} bitop3:0xf6")
        if skip:
            e(f"v_cndmask_b32 v{vt + 1}, 0, v{vt + 1}, s[{skip[1]}:{skip[1] + 1}]")
            e(f"v_or_b32 v{vt}, v{vt}, v{vt + 1}")
        e(f"v_cmp_ne_u32 vcc, 0, v{vt}")
        e("s_nop 4")
        e(f"s_cbranch_vccz {ok}")
        if sleep:
            e(f"s_sleep {sleep}")
        e("s_sub_u32 s62, s62, 1")
        e("s_cmp_lg_u32 s62, 0")
        e(f"s_cbranch_scc1 {lp}")
        e("s_endpgm")
        e(f"{ok}:")

    def reduce_sub(self, v, n):
        for pat in (X1, X2, HM):
            self.e("s_nop 1")
            for k in range(n):
                self.e(f"v_add_f32_dpp v{v + k}, v{v + k}, v{v + k} {pat}")

    def wait_lds(self, addr, val, vt, n=1, sleep=2, val_is_sreg=False):
        e = self.e
        lp, ok = self.label("wl"), self.label("wlok")
        e(f"s_mov_b32 s62, {SPIN_L}")
        e(f"v_mov_b32 v{vt + 4}, 0")
        e(f"{lp}:")
        if n == 1:
            e(f"ds_read_b32 v{vt}, v{vt + 4} offset:{addr}")
            e("s_waitcnt lgkmcnt(0)")
        elif n == 2:
            e(f"ds_read_b64 v[{vt}:{vt + 1}], v{vt + 4} offset:{addr}")
            e("s_waitcnt lgkmcnt(0)")
            e(f"v_min_u32 v{vt}, v{vt}, v{vt + 1}")
        else:
            e(f"ds_read_b128 v[{vt}:{vt + 3}], v{vt + 4} offset:{addr}")
            e("s_waitcnt lgkmcnt(0)")
            e(f"v_min_u32 v{vt}, v{vt}, v{vt + 1}")
            e(f"v_min3_u32 v{vt}, v{vt}, v{vt + 2}, v{vt + 3}")
        e("s_nop 0")
        e(f"v_readfirstlane_b32 s63, v{vt}")
        e(f"s_cmp_ge_u32 s63, {val}")
        e(f"s_cbranch_scc1 {ok}")
        if sleep:
            e(f"s_sleep {sleep}")
        e("s_sub_u32 s62, s62, 1")
        e("s_cmp_lg_u32 s62, 0")
        e(f"s_cbranch_scc1 {lp}")
        e("s_endpgm")
        e(f"{ok}:")

    def set_lds(self, addr, val, vt):
        e = self.e
        e("s_waitcnt lgkmcnt(0)")
        e(f"v_mov_b32 v{vt}, {addr}")
        e(f"v_mov_b32 v{vt + 1}, {val}")
        e(f"ds_write_b32 v{vt}, v{vt + 1}")

    def layernorm(self, xa, f):
        e = self.e

        def unpack():
            for k in range(5):
                e(f"v_lshlrev_b32 v{f + 2 * k}, 16, v{xa + k}")
                e(f"v_and_b32 v{f + 2 * k + 1}, 0xffff0000, v{xa + k}")

        def pack():
            for k in range(5):
                e(f"v_cvt_pk_bf16_f32 v{xa + k}, v{f + 2 * k}, v{f + 2 * k + 1}")

        unpack()
        m, t, var, d = f + 10, f + 11, f + 12, f + 13
        e(f"v_add_f32 v{m}, v{f}, v{f + 1}")
        for k in range(2, 10):
            e(f"v_add_f32 v{m}, v{m}, v{f + k}")
        self.allreduce("v_add_f32", m, t)
        e(f"v_mul_f32 v{m}, {hex(f2u(1.0 / 640))}, v{m}")
        e(f"v_mov_b32 v{var}, 0")
        for k in range(10):
            e(f"v_sub_f32 v{d}, v{f + k}, v{m}")
            e(f"v_fmac_f32 v{var}, v{d}, v{d}")
        self.allreduce("v_add_f32", var, t)
        e(f"v_mul_f32 v{var}, {hex(f2u(1.0 / 640))}, v{var}")
        self.round_bf16(var)
        self.round_bf16(m)
        e(f"v_add_f32 v{var}, {hex(f2u(1e-5))}, v{var}")
        self.round_bf16(var)
        e(f"v_sqrt_f32 v{var}, v{var}")
        for k in range(10):
            e(f"v_sub_f32 v{f + k}, v{f + k}, v{m}")
        self.round_bf16(var)
        e(f"v_rcp_f32 v{var}, v{var}")
        pack()
        unpack()
        for k in range(10):
            e(f"v_mul_f32 v{f + k}, v{f + k}, v{var}")
        pack()

    def entry(self):
        e = self.e
        self.c("roles: waves 0..NS-1 stream K then V; wave NS does q/softmax exchanges; wave NS+1 does weight GEMVs")
        if self.prof or self.diag_hold or self.diag_dbg:
            e("s_memrealtime s[64:65]")
        e("s_cmp_ge_u32 s2, 256")
        e("s_cbranch_scc1 L_exit")
        e("s_load_dwordx16 s[16:31], s[0:1], 0")
        e("s_load_dwordx8 s[32:39], s[0:1], 64")
        e("v_lshrrev_b32 v1, 6, v0")
        e("v_and_b32 v0, 63, v0")
        e(f"v_readfirstlane_b32 s{S_WAVE}, v1")
        e(f"s_and_b32 s{S_X}, s2, 7")
        e(f"s_lshr_b32 s{S_C}, s2, 3")
        e("v_lshrrev_b32 v1, 3, v0")
        e("v_and_b32 v2, 7, v0")
        e(f"s_mul_i32 s40, s{S_C}, 43691")
        e("s_lshr_b32 s40, s40, 17")
        e("s_mul_i32 s41, s40, 3")
        e(f"s_sub_u32 s41, s{S_C}, s41")
        e(f"s_cmp_eq_u32 s{S_WAVE}, {self.NS}")
        e("s_cbranch_scc1 L_helperA")
        e(f"s_cmp_eq_u32 s{S_WAVE}, {self.NS + 1}")
        e("s_cbranch_scc1 L_helperB")

    def streamer(self):
        e = self.e
        NS, R, L = self.NS, self.R, self.L
        VOFF, VSC, VQ, VDUMP, VT = 3, 4, 5, 6, 8
        VIT = 13
        A = 14
        VO, VPR, TG = 18, 19, 24
        VSM, VPB, VPA, VL4 = 56, 57, 58, 59
        SC = 20
        Q = 20 + 8
        PN, PX = 52, 60
        RING = 64
        S_OFF, S_DELTA, S_N, S_DS = 44, 45, 48, 49
        VFV = 15
        step = self.step_bytes
        offs = [(i // 3) * 3072 + (i % 3) * 128 for i in range(6)]
        cand = [j for j in range(R) if (j + L) % 6 == 5 and ((j + L + 1) // 6) % self.tpi == 0]
        assert len(cand) == 1
        self.c("streamer")
        if self.warm:
            self.c("each streamer reads 1 KiB slices of this kernel's code so that later instruction fetches hit in L2")
            e("s_getpc_b64 s[12:13]")
            e("L_pc:")
            e(f"s_lshl_b32 s6, s{S_C}, 1")
            e(f"s_add_u32 s6, s6, s{S_WAVE}")
            e("s_lshl_b32 s6, s6, 10")
            e("v_lshl_add_u32 v8, v0, 4, s6")
            e("v_min_u32 v8, L_code_end-L_pc-16, v8")
            e("v_mov_b32 v9, s13")
            e("v_add_co_u32 v8, vcc, s12, v8")
            e("s_nop 1")
            e("v_addc_co_u32 v9, vcc, 0, v9, vcc")
            e("global_load_dwordx4 v[64:67], v[8:9], off")
        e(f"v_mul_u32_u24 v{VOFF}, 384, v1")
        e(f"v_lshl_add_u32 v{VOFF}, v2, 4, v{VOFF}")
        tb = 4 * self.tpi
        e(f"s_mul_i32 s6, s{S_WAVE}, {8 * tb}")
        e(f"s_add_u32 s6, s6, {L_SC}")
        e(f"v_mul_u32_u24 v{VSC}, {tb}, v1")
        e(f"v_add_u32 v{VSC}, s6, v{VSC}")
        e(f"v_lshlrev_b32 v{VQ}, 4, v2")
        e(f"s_mul_i32 s6, s{S_WAVE}, {8 * 768}")
        e(f"s_add_u32 s6, s6, {L_DUMP}")
        e(f"v_mul_u32_u24 v{VDUMP}, 768, v1")
        e(f"v_lshl_add_u32 v{VDUMP}, v2, 5, v{VDUMP}")
        e(f"v_add_u32 v{VDUMP}, s6, v{VDUMP}")
        e(f"s_mul_i32 s{S_OFF}, s{S_X}, {HEAD}")
        e(f"s_mul_i32 s6, s{S_C}, {NS}")
        e(f"s_add_u32 s6, s6, s{S_WAVE}")
        e("s_mul_i32 s6, s6, 6144")
        e(f"s_add_u32 s{S_OFF}, s{S_OFF}, s6")
        e(f"s_lshl_b32 s7, s{S_WAVE}, 2")
        e(f"v_mov_b32 v7, s7")
        e(f"v_mov_b32 v{VIT}, 0")
        e("s_waitcnt lgkmcnt(0)")
        self.srd(8, P_K, KV_BYTES)
        e("s_barrier")

        def issue(p, boundary=False):
            r = RING + (p % R) * 4
            e(f"buffer_load_dwordx4 v[{r}:{r + 3}], v{VOFF}, s[8:11], s{S_OFF} offen offset:{offs[p % 6]} nt")
            if p % 6 == 5:
                if boundary:
                    e(f"s_bitcmp1_b32 0x7f0000, s{S_N}")
                    e(f"s_cselect_b32 s{S_DELTA}, s46, {step}")
                    for n, sreg in ((7, 47), (15, 42), (23, 43)):
                        e(f"s_cmp_eq_u32 s{S_N}, {n}")
                        e(f"s_cselect_b32 s{S_DELTA}, s{sreg}, s{S_DELTA}")
                    if boundary == "k":
                        e(f"s_cmp_eq_u32 s{S_N}, 31")
                        e(f"s_cselect_b32 s{S_DELTA}, {hex((step - 25 * HEAD) & 0xffffffff)}, s{S_DELTA}")
                        e(f"s_cselect_b32 s8, s{P_V}, s8")
                        e(f"s_cselect_b32 s9, s{P_V + 1}, s9")
                    e(f"s_add_u32 s{S_OFF}, s{S_OFF}, s{S_DELTA}")
                else:
                    e(f"s_add_u32 s{S_OFF}, s{S_OFF}, {step}")

        self.c("iterations 0..15 and 24..31: the group sweeps its own head; 16..23: slice x of head n")
        e(f"s_mov_b32 s{S_N}, 0")
        e(f"s_mov_b32 s53, {len(self.caps) // 2}")
        e(f"s_mov_b32 s46, {HEAD - 3 * step}")
        e(f"s_mov_b32 s47, {7 * HEAD + step}")
        e(f"s_mul_i32 s6, s{S_X}, {HEAD - 4 * step}")
        e(f"s_sub_u32 s42, {8 * HEAD - 31 * step}, s6")
        e(f"s_add_u32 s43, s6, {HEAD - 3 * step}")

        self.c("addresses of the final publish")
        e(f"v_and_b32 v{VT}, 1, v1")
        e(f"v_bfe_u32 v{VO}, v0, 4, 1")
        e(f"v_cmp_eq_u32 vcc, 1, v{VT}")
        e(f"v_lshrrev_b32 v{VT + 1}, 5, v0")
        e(f"v_lshlrev_b32 v{VPR}, 4, v0")
        e(f"v_cndmask_b32 v{VO}, v{VO}, 2, vcc")
        e(f"v_lshlrev_b32 v{VO}, 13, v{VO}")
        e(f"v_lshl_add_u32 v{VO}, v{VT + 1}, {self.sh_q}, v{VO}")
        e(f"v_lshl_add_u32 v{VO}, v2, {self.sh_g}, v{VO}")
        e(f"s_mul_i32 s57, s{S_X}, {OP_X}")
        e(f"s_lshr_b32 s7, s{S_C}, 3")
        e("s_lshl_b32 s7, s7, 11")
        e("s_add_u32 s57, s57, s7")
        e(f"s_and_b32 s7, s{S_C}, 7")
        e(f"s_lshl_b32 s7, s7, {self.sh_p}")
        e("s_add_u32 s57, s57, s7")
        e(f"s_add_u32 s57, s57, {WS_OP + 10 * 24576}")
        self.srd(12, P_WS, WS_SIZE)
        if self.caps:
            e(f"v_lshlrev_b32 v{VL4}, 2, v0")
            e(f"v_lshlrev_b32 v{VPA}, 24, v0")
            e(f"s_mul_i32 s59, s{S_X}, {PR_STRIDE}")
            e(f"s_add_u32 s59, s59, {WS_PR}")
            e(f"s_lshl_b32 s6, s{S_C}, 1")
            e(f"s_add_u32 s6, s6, s{S_WAVE}")
            e("s_lshl_b32 s6, s6, 2")
            e("s_add_u32 s58, s59, s6")
            if self.xg:
                e("s_cmp_eq_u32 s6, 252")
                e(f"s_cselect_b32 s58, {WS_SIZE}, s58")
            if self.prof:
                e("s_mov_b32 s92, 0")
        if "g" not in self.dg:
            self.wait_lds(L_FLN, 1, VT, sleep=1)
        self.read_tag(VT)
        e(f"s_lshl_b32 s6, s{S_WAVE}, 10")
        e(f"v_add_u32 v{TG}, s6, v{VPR}")
        e(f"v_xor_b32 v{TG + 1}, 0x400, v{TG}")
        e(f"v_xor_b32 v{TG + 2}, 4, v7")
        e(f"v_mov_b32 v{TG + 3}, 1")
        e(f"v_mov_b32 v{VPR}, 65")
        e(f"s_add_u32 s55, s{S_TAG}, 0x1000")

        if self.go_at is not None and "g" not in self.dg:
            self.wait_lds(L_FLG, 1, VT, sleep=1)
        if self.warm and "g" not in self.dg:
            e("s_waitcnt vmcnt(0)")
        for p in range(self.s_early, L):
            if p >= self.cap0:
                e(f"s_waitcnt vmcnt({self.cap0 - 1})")
            issue(p)
        self.stamp(1)

        def load_q():
            for s in range(3):
                e(f"ds_read_b128 v[{Q + 4 * s}:{Q + 4 * s + 3}], v{VQ} offset:{L_Q + 128 * s}")
            e(f"v_add_u32 v{VQ}, 384, v{VQ}")

        def stamp_n(base):
            if self.prof:
                lb = self.label("sn")
                e(f"s_and_b32 s6, s{S_N}, 7")
                e("s_cmp_lg_u32 s6, 7")
                e(f"s_cbranch_scc1 {lb}")
                e(f"s_lshr_b32 s51, s{S_N}, 3")
                self.stamp_round(51, base)
                e(f"{lb}:")

        self.wait_lds(L_FLQ, 1, VT, sleep=0)
        load_q()
        self.stamp(2)
        e("L_kloop:")
        nlev = len(self.caps) if self.caps else 0
        B = self.burst
        mid = nlev // 2

        def ctl_issue():
            e(f"v_add_u32 v{VPB}, s{S_TAG}, v{VIT}")
            sa, sb = (58, 59) if self.cev == 1 else (94, 95)
            e(f"buffer_store_dword v{VPB}, v{VPA}, s[12:15], s{sa} offen")
            e(f"buffer_load_dword v{VSM}, v{VL4}, s[12:15], s{sb} offen sc1")

        def ctl_ops():
            ops = [f"v_readlane_b32 s93, v{VSM}, 63"] if self.xg else []
            ops += [f"v_sub_u32 v{VSM}, v{VSM}, v{VPB}",
                   f"v_add_u32 v{VPB}, 8, v{VSM}",
                   f"v_cmp_gt_u32 vcc, 17, v{VPB}",
                   f"v_lshl_add_u32 v{VSM}, v{VSM}, 1, {self.cev}",
                   f"v_cndmask_b32 v{VSM}, 0, v{VSM}, vcc"]
            ops += [f"v_add_u32_dpp v{VSM}, v{VSM}, v{VSM} {pat}" for pat in (X1, X2, HM, RM)]
            ops += [f"v_readlane_b32 s{88 + k}, v{VSM}, {16 * k}" for k in range(4)]
            return ops

        def wait_count(cap, j, ctl):
            return cap - self.burst + (2 if ctl and 0 < j <= cap else 0)

        def pick_level():
            if not self.caps:
                return
            skip = self.label("nolevel")
            if self.cev > 1:
                e(f"s_cmp_eq_u32 s95, {WS_SIZE}")
                e(f"s_cbranch_scc1 {skip}")
            e("s_add_u32 s88, s88, s89")
            e("s_add_u32 s90, s90, s91")
            e("s_add_u32 s88, s88, s90")
            if self.cev > 1:
                e(f"s_ashr_i32 s88, s88, {self.cev.bit_length() - 1}")
            if self.xg:
                e("s_sub_u32 s93, s93, s55")
                e("s_sub_u32 s89, s93, 128")
                e("s_cmp_lt_u32 s93, 256")
                e("s_cselect_b32 s89, s89, 0")
                e("s_add_u32 s88, s88, s89")
            e(f"s_mov_b32 s53, {mid}")
            for k in range(1, mid + 1):
                e(f"s_cmp_gt_i32 s88, {self.thr[k - 1]}")
                e(f"s_cselect_b32 s53, {mid + k}, s53")
                e(f"s_cmp_lt_i32 s88, {-self.thr[k - 1]}")
                e(f"s_cselect_b32 s53, {mid - k}, s53")
            e(f"{skip}:")
            if self.prof:
                e("s_mul_i32 s7, s53, 6")
                e("s_lshl_b32 s7, 1, s7")
                e("s_add_u32 s92, s92, s7")

        def kbody(cap):
            pend = []
            pos = [0]
            side = ctl_ops()
            assert cap + 1 <= 17 or B > 1

            def main(s):
                e(s)
                pos[0] += 1
                if pend and pend[0][0] <= pos[0]:
                    _, ins, gap = pend.pop(0)
                    e(ins)
                    pos[0] += 1
                    if pend:
                        pend[0] = (max(pend[0][0], pos[0] + gap), pend[0][1], pend[0][2])

            for j in range(R):
                tile, jj = divmod(j, 6)
                kg, s = divmod(jj, 3)
                a = A + 2 * (tile % 2) + kg
                if j % B == 0:
                    main(f"s_waitcnt vmcnt({wait_count(cap, j, nlev)})")
                n0 = len(self.o)
                if j % B == 0:
                    for jb in range(j, j + B):
                        issue(jb + L, boundary="k" if jb == cand[0] else None)
                if B > 1 and nlev and j == 17:
                    e(f"s_waitcnt vmcnt({18 - B})")
                elif B > 1 and nlev and j > 17 and j % B:
                    e("s_nop 0")
                if j == 0:
                    ctl_issue()
                    e("s_waitcnt lgkmcnt(0)")
                if nlev and j >= 17 and side:
                    e(side.pop(0))
                pos[0] += len(self.o) - n0
                if s == 0:
                    main(f"v_mov_b32 v{a}, 0")
                r = RING + j * 4
                for k in range(4):
                    main(f"v_dot2c_f32_bf16 v{a}, v{r + k}, v{Q + 4 * s + k}")
                    if nlev and j >= 17 and k == 2 and side:
                        e(side.pop(0))
                        pos[0] += 1
                if s == 2:
                    first = pos[0] + 3
                    pend.append((first, f"v_add_f32_dpp v{a}, v{a}, v{a} {X1}", 2))
                    pend.append((0, f"v_add_f32_dpp v{a}, v{a}, v{a} {X2}", 2))
                    pend.append((0, f"v_add_f32_dpp v{a}, v{a}, v{a} {HM}", 0))
                    if kg == 1:
                        pend.append((0, f"v_cvt_pk_bf16_f32 v{SC + tile}, v{a - 1}, v{a}", 0))
            while pend:
                main("s_nop 0")

        def dispatch(name, fn, caps=None):
            if not self.caps:
                fn(self.cap)
                return
            others = [k for k in range(nlev) if k != mid]
            e(f"s_cmp_eq_u32 s53, {mid}")
            e(f"s_cbranch_scc1 L_{name}{mid}")
            for code in others[1:]:
                e(f"s_cmp_eq_u32 s53, {code}")
                e(f"s_cbranch_scc1 L_{name}{code}")
            for code in others + [mid]:
                e(f"L_{name}{code}:")
                fn((caps or self.caps)[code])
                if code != mid:
                    e(f"s_branch L_{name}_end")
            e(f"L_{name}_end:")

        dispatch("kb", kbody)
        pick_level()
        for q4 in range(self.tpi // 4):
            e(f"ds_write_b128 v{VSC}, v[{SC + 4 * q4}:{SC + 4 * q4 + 3}] offset:{16 * q4}")
        e(f"v_add_u32 v{VIT}, 1, v{VIT}")
        e(f"v_add_u32 v{VSC}, {NS * 8 * tb}, v{VSC}")
        e(f"ds_write_b32 v7, v{VIT} offset:{L_FIT}")
        stamp_n(3)
        e(f"s_bitcmp1_b32 0xff8080, s{S_N}")
        e("s_cbranch_scc0 L_ksame")
        e(f"s_cmp_gt_u32 s{S_N}, 15")
        e("s_cbranch_scc1 L_kready")
        e(f"s_lshr_b32 s50, s{S_N}, 3")
        e("s_add_u32 s50, s50, 2")
        self.wait_lds(L_FLQ, "s50", VT, sleep=0)
        e("L_kready:")
        load_q()
        e("L_ksame:")
        e(f"s_add_u32 s{S_N}, s{S_N}, 1")
        e(f"s_cmp_lt_u32 s{S_N}, 32")
        e("s_cbranch_scc1 L_kloop")

        e(f"v_subrev_u32 v{VSC}, 8192, v{VSC}")
        self.wait_lds(L_FLP, 2, VT, sleep=0)
        e(f"ds_read_b32 v{A}, v{VT + 4} offset:{L_LOC}")
        e(f"ds_read_b128 v[{PN}:{PN + 3}], v{VSC}")
        e(f"v_add_u32 v{VSC}, {NS * 8 * tb}, v{VSC}")
        for k in range(24):
            e(f"v_mov_b32 v{Q + k}, 0")
        e(f"v_mov_b32 v{VFV}, 0")
        e(f"s_mov_b32 s{S_N}, 0")
        e(f"s_mov_b32 s{S_DS}, 0")
        e("s_mov_b32 s50, 0")
        e("s_mov_b32 s52, 0")

        def new_segment():
            ok, nd = self.label("vok"), self.label("vnd")
            e(f"v_readfirstlane_b32 s63, v{VFV}")
            e("s_cmp_ge_u32 s63, s52")
            e(f"s_cbranch_scc1 {ok}")
            self.wait_lds(L_FLV, "s52", VT, sleep=0)
            e(f"{ok}:")
            e(f"s_bitcmp1_b32 0x1ff0100, s{S_N}")
            e(f"s_cbranch_scc0 {nd}")
            e(f"v_add_u32 v{VT + 1}, s{S_DS}, v{VDUMP}")
            e("s_add_u32 s50, s50, 1")
            for s in range(3):
                for hlf in range(2):
                    r = Q + 8 * s + 4 * hlf
                    e(f"ds_write_b128 v{VT + 1}, v[{r}:{r + 3}] offset:{256 * s + 16 * hlf}")
            e(f"v_mov_b32 v{VT}, s50")
            e(f"ds_write_b32 v7, v{VT} offset:{L_FLS}")
            e(f"s_add_u32 s{S_DS}, s{S_DS}, {self.dump_bytes}")
            e(f"s_cmp_eq_u32 s{S_DS}, {3 * self.dump_bytes}")
            e(f"s_cselect_b32 s{S_DS}, 0, s{S_DS}")
            for k in range(24):
                e(f"v_mov_b32 v{Q + k}, 0")
            e(f"{nd}:")

        def vbody(cap, last=False, ctl=True):
            ctl = ctl and nlev and not last
            side = ctl_ops() if ctl else []
            for j in range(R):
                tile, jj = divmod(j, 6)
                kg, s = divmod(jj, 3)
                if last and j + L >= R:
                    e(f"s_waitcnt vmcnt({R - 1 - j})")
                elif j % B == 0:
                    e(f"s_waitcnt vmcnt({wait_count(cap, j, ctl)})")
                    for jb in range(j, j + B):
                        issue(jb + L, boundary="v" if jb == cand[0] and not last else None)
                if B > 1 and ctl and j == 17:
                    e(f"s_waitcnt vmcnt({18 - B})")
                elif B > 1 and ctl and j > 17 and j % B:
                    e("s_nop 1")
                if ctl and j == 0:
                    ctl_issue()
                if j == 0:
                    e("s_waitcnt lgkmcnt(0)")
                    if not last:
                        new_segment()
                if last and j == R - L - B:
                    e(f"v_mov_b32 v{VIT}, 64")
                    e(f"ds_write_b32 v7, v{VIT} offset:{L_FIT}")
                if j >= 17 and side:
                    e(side.pop(0))
                if jj == 0:
                    e(f"v_and_b32 v{PX}, 0xffff, v{PN + tile}")
                    e(f"v_lshlrev_b32 v{PX + 1}, 16, v{PN + tile}")
                    e(f"v_lshrrev_b32 v{PX + 2}, 16, v{PN + tile}")
                    e(f"v_and_b32 v{PX + 3}, 0xffff0000, v{PN + tile}")
                    if tile == self.tpi - 1 and not last:
                        e(f"v_add_u32 v{VIT}, 1, v{VIT}")
                        e(f"ds_write_b32 v7, v{VIT} offset:{L_FIT}")
                        e(f"ds_read_b32 v{VFV}, v{VT + 4} offset:{L_FLV}")
                        for q4 in range(self.tpi // 4):
                            e(f"ds_read_b128 v[{PN + 4 * q4}:{PN + 4 * q4 + 3}], v{VSC} offset:{16 * q4}")
                        e(f"v_add_u32 v{VSC}, {NS * 8 * tb}, v{VSC}")
                self.gemv_row(RING + 4 * j, PX + 2 * kg, Q + 8 * s)
                if j >= 17 and side:
                    e(side.pop(0))
            assert not side

        e("L_vloop:")
        dispatch("vb", vbody)
        pick_level()
        stamp_n(7)
        e(f"s_add_u32 s{S_N}, s{S_N}, 1")
        e(f"s_cmp_ge_u32 s{S_N}, 10")
        e("s_cselect_b32 s6, 1, 0")
        e(f"s_sub_i32 s52, s{S_N}, 17")
        e("s_max_i32 s52, s52, s6")
        e("s_min_i32 s52, s52, 7")
        e(f"s_cmp_lt_u32 s{S_N}, 31")
        e("s_cbranch_scc1 L_vloop")
        e(f"v_readfirstlane_b32 s54, v{A}")
        vbody(self.cap_tail, last=True)
        self.stamp(10)
        self.c("last head: reduce over lane groups, combine the two streamers, publish")
        e(f"ds_write_b32 v7, v{VPR} offset:{L_FIT}")
        for s_ in range(3):
            for k in range(4):
                e(f"v_permlane32_swap_b32 v{Q + 8 * s_ + k}, v{Q + 8 * s_ + k + 4}")
        for s_ in range(2):
            self.addn(Q + 8 * s_, Q + 8 * s_, Q + 8 * s_ + 4, 4)
        self.addn(Q + 4, Q + 16, Q + 20, 4)
        self.addn(Q + 16, Q + 16, Q + 20, 4)
        e(f"ds_read_b32 v{VT}, v{TG + 2} offset:{L_PD}")
        e(f"ds_read_b128 v[{PN}:{PN + 3}], v{TG + 1} offset:{L_PAIR}")
        for k in range(4):
            e(f"v_permlane16_swap_b32 v{Q + k}, v{Q + 8 + k}")
        for k in range(4):
            e(f"v_permlane16_swap_b32 v{Q + 16 + k}, v{Q + 4 + k}")
        self.addn(Q, Q, Q + 8, 4)
        self.addn(Q + 16, Q + 16, Q + 4, 4)
        for k in range(4):
            e(f"v_add_f32_dpp v{PX + k}, v{Q + k}, v{Q + k} row_ror:8 row_mask:0xf bank_mask:0x3")
        for k in range(4):
            e(f"v_add_f32_dpp v{PX + k}, v{Q + 16 + k}, v{Q + 16 + k} row_ror:8 row_mask:0xf bank_mask:0xc")
        e("s_waitcnt lgkmcnt(0)")
        e(f"v_readfirstlane_b32 s63, v{VT}")
        e("s_cmp_lg_u32 s63, 0")
        e("s_cbranch_scc1 L_spub")
        e(f"ds_write_b128 v{TG}, v[{PX}:{PX + 3}] offset:{L_PAIR}")
        e(f"ds_write_b32 v7, v{TG + 3} offset:{L_PD}")
        e("s_mov_b64 exec, 1")
        e(f"ds_add_rtn_u32 v{VT + 1}, v{VT + 4}, v{TG + 3} offset:{L_PCN}")
        e("s_mov_b64 exec, -1")
        e(f"ds_read_b128 v[{PN}:{PN + 3}], v{TG + 1} offset:{L_PAIR}")
        e("s_waitcnt lgkmcnt(0)")
        e(f"v_readfirstlane_b32 s63, v{VT + 1}")
        e("s_cmp_eq_u32 s63, 0")
        e("s_cbranch_scc1 L_sdone")
        e("L_spub:")
        self.addn(PX, PX, PN, 4)
        for k in range(4):
            e(f"v_min_u32 v{PX + k}, -2, v{PX + k}")
        e("s_mov_b32 exec_lo, 0xffffff")
        e("s_mov_b32 exec_hi, 0xffffff")
        e("s_cmp_eq_u32 s54, 0")
        e("s_cbranch_scc1 L_spub_far")
        e(f"buffer_store_dwordx4 v[{PX}:{PX + 3}], v{VO}, s[12:15], s57 offen")
        e("s_branch L_sdone")
        e("L_spub_far:")
        e(f"buffer_store_dwordx4 v[{PX}:{PX + 3}], v{VO}, s[12:15], s57 offen sc1")
        e("L_sdone:")
        self.stamp(11, True)
        if self.prof:
            e("s_mov_b32 s88, s92")
        self.prof_store(13)
        e("s_endpgm")
        return RING + 4 * R

    def helperA(self):
        e = self.e
        NS = self.NS
        S_RB, S_CB = 40, 41
        SX, SW, SWS, SJ = 8, 12, 44, 48
        SM = 84
        VW, VT, VQL = 3, 4, 9
        T, TGL, VP, VL16 = 10, 14, 18, 19
        XA, VW2, VXS, XC, F, XOP = 20, 25, 26, 28, 52, 68
        ACC, RES, RING, GQ = 84, 92, 96, 192
        VG0, VG1 = 66, 67
        e("L_helperA:")
        e("s_setprio 3")
        e(f"v_mul_u32_u24 v{VW}, 0x18000, v1")
        e(f"v_lshl_add_u32 v{VW}, v2, 4, v{VW}")
        e(f"v_lshlrev_b32 v{VL16}, 4, v0")
        e(f"v_lshlrev_b32 v{T}, 2, v0")
        e(f"s_mul_i32 s42, s{S_RB}, {64 * 12288}")
        e(f"s_mul_i32 s43, s{S_X}, 384")
        e("s_add_u32 s42, s42, s43")
        e(f"s_lshl_b32 s6, s{S_CB}, 7")
        e("s_add_u32 s42, s42, s6")
        e("s_waitcnt lgkmcnt(0)")
        self.srd(SX, P_X, 1280)
        self.srd(SW, P_WQ, 640 * 12288)
        e(f"buffer_load_dwordx4 v[{XA}:{XA + 3}], v{VL16}, s[{SX}:{SX + 3}], 0 offen")
        e(f"buffer_load_dword v{XA + 4}, v{T}, s[{SX}:{SX + 3}], 0 offen offset:1024")
        for i in range(8):
            e(f"buffer_load_dwordx4 v[{GQ + 4 * i}:{GQ + 4 * i + 3}], v{VW}, s[{SW}:{SW + 3}], s42 offen nt")
            if i < 7:
                e("s_add_u32 s42, s42, 12288")
        e(f"s_mov_b32 s6, {WS_EPOCH}")
        e(f"s_load_dword s{S_TAG}, s[{P_WS}:{P_WS + 1}], s6")
        e("s_barrier")
        self.srd(SWS, P_WS, WS_SIZE)
        self.c("second job: half of the rows of one 64-column block of wq (heads 1..3), gate or up")
        e(f"s_lshr_b32 s52, s{S_C}, 1")
        e(f"s_and_b32 s53, s{S_C}, 1")
        e("s_mul_i32 s54, s52, 43691")
        e("s_lshr_b32 s54, s54, 17")
        e("s_mul_i32 s55, s54, 3")
        e("s_sub_u32 s55, s52, s55")
        e("s_cmp_eq_u32 s54, 3")
        e(f"s_cselect_b32 s{SJ}, s{P_G}, s{P_U}")
        e(f"s_cselect_b32 s{SJ + 1}, s{P_G + 1}, s{P_U + 1}")
        e("s_add_u32 s6, s54, 1")
        e("s_mul_i32 s6, s6, 3072")
        e("s_movk_i32 s56, 0xc00")
        e("s_cmp_lt_u32 s54, 3")
        e(f"s_cselect_b32 s{SJ}, s{P_WQ}, s{SJ}")
        e(f"s_cselect_b32 s{SJ + 1}, s{P_WQ + 1}, s{SJ + 1}")
        e("s_cselect_b32 s56, 12288, s56")
        e("s_cselect_b32 s6, s6, 0")
        e(f"s_mul_i32 s{SJ + 2}, s56, 640")
        e(f"s_cmp_lt_u32 s54, {0 if 'a' in self.dg else 5}")
        e(f"s_cselect_b32 s{SJ + 2}, s{SJ + 2}, 0")
        e(f"s_mov_b32 s{SJ + 3}, 0x20000")
        e("s_add_u32 s42, s43, s6")
        e("s_lshl_b32 s6, s55, 7")
        e("s_add_u32 s42, s42, s6")
        e("s_mul_i32 s6, s56, 320")
        e("s_mul_i32 s6, s6, s53")
        e("s_add_u32 s42, s42, s6")
        e("s_mul_i32 s57, s56, 57")
        e("s_lshl_b32 s6, s56, 3")
        e(f"v_mul_u32_u24 v{VW2}, s6, v1")
        e(f"v_lshl_add_u32 v{VW2}, v2, 4, v{VW2}")
        e(f"v_lshrrev_b32 v{VP}, 4, v0")
        e(f"v_lshlrev_b32 v{VP}, 7, v{VP}")
        e(f"v_lshl_add_u32 v{VP}, v2, 4, v{VP}")
        e(f"v_and_b32 v{T + 1}, 3, v1")
        e(f"v_lshlrev_b32 v{VQL}, 4, v2")
        e(f"v_lshl_add_u32 v{VQL}, v{T + 1}, 2, v{VQL}")
        e(f"v_and_b32 v{T + 1}, 31, v0")
        e(f"v_lshlrev_b32 v{T + 1}, 4, v{T + 1}")
        e(f"v_lshrrev_b32 v{T + 2}, 5, v0")
        e(f"v_mul_u32_u24 v{VG0}, 1536, v{T + 2}")
        e(f"v_add_u32 v{VG0}, v{VG0}, v{T + 1}")
        e(f"v_mul_u32_u24 v{VG1}, 7680, v{T + 2}")
        e(f"v_add_u32 v{VG1}, v{VG1}, v{T + 1}")
        e(f"s_lshl_b32 s6, s{S_RB}, 7")
        e(f"v_lshl_add_u32 v{VXS}, v1, 4, s6")
        e("s_mul_i32 s6, s53, 640")
        e(f"v_lshl_add_u32 v{VXS + 1}, v1, 4, s6")
        for k in range(8):
            e(f"v_mov_b32 v{ACC + k}, 0")

        def job_load(i):
            r = RING + 4 * (i % 24)
            e(f"buffer_load_dwordx4 v[{r}:{r + 3}], v{VW2}, s[{SJ}:{SJ + 3}], s42 offen nt")
            if i < 39:
                e(f"s_add_u32 s42, s42, s{57 if i % 8 == 7 else 56}")
            if i == self.go_at:
                e(f"v_mov_b32 v{VT}, {L_FLG}")
                e(f"v_mov_b32 v{VT + 1}, 1")
                e(f"ds_write_b32 v{VT}, v{VT + 1}")

        ae = self.a_early
        e("s_waitcnt vmcnt(8)")
        self.stamp(1)
        for i in range(ae):
            job_load(i)
        self.layernorm(XA, F)
        e(f"ds_write_b128 v{VL16}, v[{XA}:{XA + 3}] offset:{L_XN}")
        e(f"ds_write_b32 v{T}, v{XA + 4} offset:{L_XN + 1024}")
        e(f"ds_read_b128 v[{XC}:{XC + 3}], v{VXS} offset:{L_XN}")
        for u in range(5):
            e(f"ds_read_b128 v[{XC + 4 + 4 * u}:{XC + 7 + 4 * u}], v{VXS + 1} offset:{L_XN + 128 * u}")
        e("s_waitcnt lgkmcnt(0)")
        e(f"s_add_u32 s{S_TAG}, s{S_TAG}, {hex(NONCE_STEP)}")
        self.expand(XC, XOP)
        self.tag_regs(RES)
        for i in range(8):
            e(f"s_waitcnt vmcnt({7 - i + ae})")
            self.gemv_row(GQ + 4 * i, XOP + 2 * i, ACC)
        self.reduce_g2(ACC, RES)
        e(f"s_mul_i32 s58, s{S_X}, 15360")
        e(f"s_lshl_b32 s6, s{S_C}, 9")
        e("s_add_u32 s6, s6, s58")
        e(f"s_cmp_lt_u32 s{S_C}, 30")
        e(f"s_cselect_b32 s6, s6, {WS_SIZE}")
        self.exec_tagged()
        e(f"buffer_store_dwordx4 v[{RES}:{RES + 3}], v{VP}, s[{SWS}:{SWS + 3}], s6 offen sc1")
        e("s_mov_b64 exec, -1")
        self.stamp(2)
        cap = self.capA
        assert ae <= cap <= 23

        def job_consume(j):
            if j % 8 == 0:
                self.expand(XC + 4 + 4 * (j // 8), XOP)
            self.gemv_row(RING + 4 * (j % 24), XOP + 2 * (j % 8), ACC)

        for i in range(ae, 40):
            if i >= cap:
                e(f"s_waitcnt vmcnt({cap - 1})")
            job_load(i)
            if i == max(ae, cap - 1):
                self.set_lds(L_TAG, f"s{S_TAG}", VT)
                self.set_lds(L_FLN, 1, VT)
                for k in range(8):
                    e(f"v_mov_b32 v{ACC + k}, 0")
            if i >= cap:
                job_consume(i - cap)
        self.stamp(3)

        def rest_of_job(extra=15):
            for j in range(40 - cap, 40):
                e(f"s_waitcnt vmcnt({39 - j + extra})")
                job_consume(j)

        def finish_q(regs, lds):
            for r in regs:
                e(f"v_mov_b32 v{r + 1}, v{r}")
                e(f"v_mov_b32 v{r + 3}, v{r + 2}")
            e("s_nop 0")
            for r in regs:
                e(f"v_permlane32_swap_b32 v{r}, v{r + 1}")
                e(f"v_permlane32_swap_b32 v{r + 2}, v{r + 3}")
            for r in regs:
                e(f"v_add_f32 v{r}, v{r}, v{r + 1}")
                e(f"v_add_f32 v{r + 2}, v{r + 2}, v{r + 3}")
            for r, off in zip(regs, lds):
                e(f"v_cvt_pk_bf16_f32 v{r}, v{r}, v{r + 2}")
                if off is not None:
                    e(f"ds_write_b32 v{VQL}, v{r} offset:{off}")

        for k in range(5):
            e(f"s_add_u32 s{SM + k}, s58, {3072 * k}")
        loads = [f"buffer_load_dwordx4 v[{GQ + 12 * k + 4 * cb}:{GQ + 12 * k + 4 * cb + 3}], v{VG0}, s[{SWS}:{SWS + 3}], "
                 f"s{SM + k} offen offset:{512 * cb} sc1" for k in range(5) for cb in range(3)]
        if self.q_late:
            rest_of_job(0)
            self.gather_tagged(loads, GQ, 15, VT, sleep=4)
        else:
            self.gather_tagged(loads, GQ, 15, VT, sleep=4, between=rest_of_job)
        self.stamp(4)
        for k in range(1, 5):
            for j in range(0, 12, 2):
                e(f"v_add_f32 v{GQ + j}, v{GQ + j}, v{GQ + 12 * k + j}")
        finish_q([GQ, GQ + 4, GQ + 8], [L_Q, L_Q + 128, L_Q + 256])
        self.set_lds(L_FLQ, 1, VT)
        self.stamp(5)
        e("s_setprio 0")
        self.reduce_g2(ACC, RES)
        e("s_mul_i32 s6, s53, 7680")
        e("s_lshl_b32 s7, s52, 9")
        e("s_add_u32 s6, s6, s7")
        e("s_add_u32 s6, s6, s58")
        e(f"s_add_u32 s6, s6, {WS_PA1}")
        e(f"s_cmp_lt_u32 s{S_C}, {0 if 's' in self.dg else 30}")
        e(f"s_cselect_b32 s6, s6, {WS_SIZE}")
        self.exec_tagged()
        e(f"buffer_store_dwordx4 v[{RES}:{RES + 3}], v{VP}, s[{SWS}:{SWS + 3}], s6 offen sc1")
        e("s_mov_b64 exec, -1")
        self.wait_lds(L_FIT, self.it_q, VT, n=NS, sleep=8)
        e(f"s_add_u32 s6, s58, {WS_PA1}")
        e("s_add_u32 s7, s6, 4096")
        loads = [f"buffer_load_dwordx4 v[{GQ + 4 * j}:{GQ + 4 * j + 3}], v{VG1}, s[{SWS}:{SWS + 3}], "
                 f"s{6 + j // 8} offen offset:{512 * (j % 8)} sc1" for j in range(9)]
        self.gather_tagged(loads, GQ, 9, VT, sleep=32)
        finish_q([GQ + 4 * j for j in range(9)], [L_Q + 384 + 128 * j for j in range(3)] + [None] * 3
                 + [L_Q + 3840 + 128 * j for j in range(3)])
        self.set_lds(L_FLQ, 2, VT)
        self.c("one workgroup per group hands the q of its shared head to everybody")
        for k in range(3):
            e(f"v_mov_b32 v{RES + k}, v{GQ + 12 + 4 * k}")
        e(f"v_mov_b32 v{RES + 3}, s{S_TAG}")
        e(f"s_lshl_b32 s6, s{S_X}, 9")
        e(f"s_add_u32 s6, s6, {WS_QF}")
        e(f"s_cmp_eq_u32 s{S_C}, 31")
        e(f"s_cselect_b32 s6, s6, {WS_SIZE}")
        e("s_mov_b32 exec_hi, 0")
        e(f"buffer_store_dwordx4 v[{RES}:{RES + 3}], v{VL16}, s[{SWS}:{SWS + 3}], s6 offen sc1")
        e("s_mov_b64 exec, -1")
        self.wait_lds(L_FIT, self.it_qf, VT, n=NS, sleep=8)
        e(f"s_mov_b32 s6, {WS_QF}")
        loads = [f"buffer_load_dwordx4 v[{GQ + 4 * k}:{GQ + 4 * k + 3}], v{VL16}, s[{SWS}:{SWS + 3}], "
                 f"s6 offen offset:{1024 * k} sc1" for k in range(4)]
        self.gather_tagged(loads, GQ, 4, VT, sleep=32, words=(3,))
        e(f"v_lshrrev_b32 v{T + 1}, 5, v0")
        e(f"v_mul_u32_u24 v{T + 1}, 384, v{T + 1}")
        e(f"v_add_u32 v{T + 1}, v{T + 1}, v{VQL}")
        for k in range(4):
            for cb in range(3):
                e(f"ds_write_b32 v{T + 1}, v{GQ + 4 * k + cb} offset:{L_Q + 768 + 768 * k + 128 * cb}")
        self.set_lds(L_FLQ, 3, VT)
        self.stamp(6)
        self.make_tags(TGL)
        SCR, ST, OPR = 128, 160, 180

        M, LS, VS32 = 20, 21, 22
        U = 24

        def unpack(r):
            for k in range(8):
                e(f"v_lshlrev_b32 v{U + 2 * k}, 16, v{SCR + 8 * r + k}")
                e(f"v_and_b32 v{U + 2 * k + 1}, 0xffff0000, v{SCR + 8 * r + k}")

        def local_stats(r):
            self.wait_lds(L_FIT, 8 * r + 8, VT, n=NS, sleep=8)
            lanes = 8 if r == 2 else 64
            e(f"v_lshlrev_b32 v{VS32}, 5, v0")
            b = SCR + 8 * r
            e(f"ds_read_b128 v[{b}:{b + 3}], v{VS32} offset:{L_SC + 2048 * r}")
            e(f"ds_read_b128 v[{b + 4}:{b + 7}], v{VS32} offset:{L_SC + 2048 * r + 16}")
            e("s_waitcnt lgkmcnt(0)")
            unpack(r)
            for k in range(16):
                e(f"v_mul_f32 v{U + k}, {hex(SCALE)}, v{U + k}")
            for k in range(8):
                e(f"v_cvt_pk_bf16_f32 v{b + k}, v{U + 2 * k}, v{U + 2 * k + 1}")
            unpack(r)
            e(f"v_max_f32 v{M}, v{U}, v{U + 1}")
            for k in range(2, 16, 2):
                e(f"v_max3_f32 v{M}, v{M}, v{U + k}, v{U + k + 1}")
            self.allreduce("v_max_f32", M, T, lanes)
            for k in range(16):
                e(f"v_sub_f32 v{U + k}, v{U + k}, v{M}")
            for k in range(16):
                e(f"v_mul_f32 v{U + k}, {hex(LOG2E)}, v{U + k}")
            for k in range(16):
                e(f"v_exp_f32 v{U + k}, v{U + k}")
            e("s_nop 0")
            e(f"v_add_f32 v{LS}, v{U}, v{U + 1}")
            for k in range(2, 16):
                e(f"v_add_f32 v{LS}, v{LS}, v{U + k}")
            self.allreduce("v_add_f32", LS, T, lanes)
            if r == 2:
                return
            e(f"v_cmp_eq_u32 vcc, {r % 3}, v0")
            e("s_nop 1")
            e(f"v_cndmask_b32 v{ST}, v{ST}, v{M}, vcc")
            e(f"v_cndmask_b32 v{ST + 2}, v{ST + 2}, v{LS}, vcc")

        def publish_stats(base, shift, lanes):
            self.tag_regs(ST)
            e(f"s_lshl_b32 s6, s{S_X}, {shift + 5}")
            e(f"s_lshl_b32 s7, s{S_C}, {shift}")
            e("s_add_u32 s6, s6, s7")
            e(f"s_add_u32 s6, s6, {base}")
            e(f"s_mov_b64 exec, {(1 << lanes) - 1}")
            e(f"buffer_store_dwordx4 v[{ST}:{ST + 3}], v{VL16}, s[{SWS}:{SWS + 3}], s6 offen sc1")
            e("s_mov_b64 exec, -1")
            e("s_nop 1")

        def gather_stats(base, shift, n):
            e(f"v_and_b32 v{T + 1}, 31, v0")
            e(f"v_lshlrev_b32 v{T + 1}, {shift}, v{T + 1}")
            e(f"s_lshl_b32 s6, s{S_X}, {shift + 5}")
            e(f"s_add_u32 s6, s6, {base}")
            self.gather_tagged([f"buffer_load_dwordx4 v[{ST + 4 + 4 * k}:{ST + 7 + 4 * k}], v{T + 1}, s[{SWS}:{SWS + 3}], "
                                f"s6 offen offset:{16 * k} sc1" for k in range(n)], ST + 4, n, VT, sleep=32)

        def publish_eight(soff):
            e(f"v_lshlrev_b32 v{T + 1}, 5, v2")
            e(f"ds_bpermute_b32 v{U}, v{T + 1}, v{M}")
            e(f"ds_bpermute_b32 v{U + 2}, v{T + 1}, v{LS}")
            self.tag_regs(U)
            e("s_waitcnt lgkmcnt(0)")
            e("s_mov_b64 exec, 0xff")
            e(f"buffer_store_dwordx4 v[{U}:{U + 3}], v{VL16}, s[{SWS}:{SWS + 3}], {soff} offen sc1")
            e("s_mov_b64 exec, -1")
            e("s_nop 1")

        def gather_eight(soff, n, first):
            e(f"v_lshlrev_b32 v{T + 1}, 4, v1")
            e(f"v_lshl_add_u32 v{T + 1}, v2, 7, v{T + 1}")
            self.gather_tagged([f"buffer_load_dwordx4 v[{first + 4 * k}:{first + 4 * k + 3}], v{T + 1}, s[{SWS}:{SWS + 3}], "
                                f"{soff} offen offset:{1024 * k} sc1" for k in range(n)], first, n, VT, sleep=32)

        def combine(G, n, lanes):
            e(f"v_mov_b32 v{M}, v{G}")
            for k in range(1, n):
                e(f"v_max_f32 v{M}, v{M}, v{G + 4 * k}")
            self.allreduce("v_max_f32", M, T, lanes)
            for k in range(n):
                e(f"v_sub_f32 v{G + 4 * k}, v{G + 4 * k}, v{M}")
                e(f"v_mul_f32 v{G + 4 * k}, {hex(LOG2E)}, v{G + 4 * k}")
                e(f"v_exp_f32 v{G + 4 * k}, v{G + 4 * k}")
            e("s_nop 0")
            e(f"v_mul_f32 v{LS}, v{G}, v{G + 2}")
            for k in range(1, n):
                e(f"v_fmac_f32 v{LS}, v{G + 4 * k}, v{G + 4 * k + 2}")
            self.allreduce("v_add_f32", LS, T, lanes)

        def finalize_p(r):
            combine(ST + 4 + 4 * (r % 3), 1, 8 if r == 2 else 64)
            if r != 2:
                e(f"v_mul_f32 v{LS}, 0.5, v{LS}")
            e(f"v_rcp_f32 v{LS}, v{LS}")
            unpack(r)
            for k in range(16):
                e(f"v_sub_f32 v{U + k}, v{U + k}, v{M}")
            for k in range(16):
                e(f"v_mul_f32 v{U + k}, {hex(LOG2E)}, v{U + k}")
            for k in range(16):
                e(f"v_exp_f32 v{U + k}, v{U + k}")
            e("s_nop 0")
            for k in range(16):
                e(f"v_mul_f32 v{U + k}, v{U + k}, v{LS}")
            b = SCR + 8 * r
            for k in range(8):
                e(f"v_cvt_pk_bf16_f32 v{b + k}, v{U + 2 * k}, v{U + 2 * k + 1}")
            e(f"ds_write_b128 v{VS32}, v[{b}:{b + 3}] offset:{L_SC + 2048 * r}")
            e(f"ds_write_b128 v{VS32}, v[{b + 4}:{b + 7}] offset:{L_SC + 2048 * r + 16}")

        e("s_getreg_b32 s59, hwreg(HW_REG_XCC_ID, 0, 4)")
        e(f"v_mov_b32 v{ST}, s59")
        e(f"v_mov_b32 v{ST + 2}, s59")
        for r in range(3):
            local_stats(r)
        publish_stats(WS_STA, 6, 3)
        e(f"s_lshl_b32 s6, s{S_X}, 12")
        e(f"s_lshl_b32 s7, s{S_C}, 7")
        e("s_add_u32 s6, s6, s7")
        e(f"s_add_u32 s6, s6, {WS_STC}")
        publish_eight("s6")
        self.wait_lds(L_FIT, 24 + self.it_st, VT, n=NS, sleep=8)
        gather_stats(WS_STA, 6, 3)
        e(f"v_cmp_ne_u32 vcc, s59, v{ST + 12}")
        e("s_nop 1")
        e("s_cmp_eq_u64 vcc, 0")
        e(f"s_cselect_b32 s59, {1 if self.local else 0}, 0")
        self.set_lds(L_LOC, "s59", VT)
        for r in range(2):
            finalize_p(r)
        self.set_lds(L_FLP, 2, VT)
        self.stamp(7)
        self.c("one workgroup per group merges the statistics of the shared heads")
        e(f"s_cmp_lg_u32 s{S_C}, 31")
        e("s_cbranch_scc1 L_ha_nomerge")
        e(f"s_lshl_b32 s6, s{S_X}, 12")
        e(f"s_add_u32 s6, s6, {WS_STC}")
        gather_eight("s6", 4, ST + 4)
        combine(ST + 4, 4, 8)
        e(f"s_lshl_b32 s6, s{S_X}, 7")
        e(f"s_add_u32 s6, s6, {WS_STG}")
        publish_eight("s6")
        e("L_ha_nomerge:")
        self.c("the last head's partial-sum slots are marked empty (all-ones words), whole lines at a time;")
        self.c("the round-3 statistics, published afterwards, order this before every real publish and poll")
        for k in range(4):
            e(f"v_mov_b32 v{U + k}, -1")
        e(f"s_mul_i32 s6, s{S_X}, {OP_X}")
        e(f"s_mul_i32 s7, s{S_C}, 768")
        e("s_add_u32 s6, s6, s7")
        e(f"s_add_u32 s6, s6, {WS_OP + 10 * 24576}")
        e("s_mov_b32 exec_hi, 0xffff")
        e("s_cmp_eq_u32 s59, 0")
        e("s_cbranch_scc1 L_ha_mark_far")
        e(f"buffer_store_dwordx4 v[{U}:{U + 3}], v{VL16}, s[{SWS}:{SWS + 3}], s6 offen")
        e("s_branch L_ha_marked")
        e("L_ha_mark_far:")
        e(f"buffer_store_dwordx4 v[{U}:{U + 3}], v{VL16}, s[{SWS}:{SWS + 3}], s6 offen sc1")
        e("L_ha_marked:")
        e("s_mov_b64 exec, -1")
        e("s_waitcnt vmcnt(0)")
        local_stats(3)
        publish_stats(WS_STB, 4, 1)
        self.wait_lds(L_FIT, 32 + self.it_st + 2, VT, n=NS, sleep=8)
        gather_stats(WS_STB, 4, 1)
        finalize_p(3)
        e(f"s_mov_b32 s6, {WS_STG}")
        gather_eight("s6", 1, ST + 12)
        finalize_p(2)
        e(f"v_lshrrev_b32 v{VQL}, 4, v0")
        e(f"v_lshlrev_b32 v{VQL}, 8, v{VQL}")
        e(f"v_lshl_add_u32 v{VQL}, v2, 5, v{VQL}")
        e(f"v_and_b32 v{T + 1}, 1, v1")
        e(f"v_lshl_add_u32 v{VQL}, v{T + 1}, 4, v{VQL}")
        e(f"v_lshrrev_b32 v{T}, 4, v0")
        e(f"v_lshlrev_b32 v{T}, 13, v{T}")
        e(f"v_and_b32 v{T + 1}, 15, v0")
        e(f"v_lshl_add_u32 v{T}, v{T + 1}, 4, v{T}")
        e(f"s_mul_i32 s52, s{S_X}, {OP_X}")
        e(f"s_lshl_b32 s7, s{S_C}, 8")
        e("s_add_u32 s52, s52, s7")
        e(f"s_add_u32 s52, s52, {WS_OP}")
        RD = self.ring
        e("s_mov_b32 s50, 1")
        e("s_mov_b32 s51, 0")
        e("s_mov_b32 s53, 0")
        e(f"s_mov_b32 s54, s{S_TAG}")
        e("s_cmp_lg_u32 s59, 0")
        e(f"s_cselect_b32 s55, {RD * 24576}, -1")
        e(f"s_cselect_b32 s57, {RD}, 64")
        e(f"s_lshl_b32 s58, s{S_X}, 8")
        e(f"s_add_u32 s58, s58, {WS_JD}")
        e(f"v_lshlrev_b32 v{T + 2}, 2, v0")
        self.c("each accumulator dump is summed over its 16 rows and published; local groups reuse a ring of")
        self.c("slots once the readers of the slot's previous contents have reported their gather as finished")
        e("L_ha_dump:")
        self.wait_lds(L_FLS, "s50", VT, n=NS, sleep=2)
        D = 40
        e(f"v_add_u32 v{T + 1}, s51, v{VQL}")
        for i in range(16):
            d = D + 4 * i
            e(f"ds_read_b128 v[{d}:{d + 3}], v{T + 1} offset:{L_DUMP + 768 * i}")
            if i == 7:
                e("s_waitcnt lgkmcnt(7)")
        for i in range(1, 16):
            e(f"s_waitcnt lgkmcnt({15 - i})")
            self.addn(OPR, D if i == 1 else OPR, D + 4 * i, 4)
        self.set_lds(L_FLV, "s50", VT)
        self.make_tags(TGL, 54)
        self.embed(OPR, TGL)
        e("s_cmp_le_u32 s50, s57")
        e("s_cbranch_scc1 L_ha_free")
        e("s_sub_u32 s6, s50, s57")
        e("s_sub_u32 s7, s6, 3")
        e("s_mul_i32 s7, s7, 3")
        e("s_lshl_b32 s84, 7, s7")
        e("s_cmp_lt_u32 s6, 3")
        e("s_cselect_b32 s84, 0x3fffffff, s84")
        e("s_min_u32 s6, s6, 3")
        e(f"s_add_u32 s85, s6, s{S_TAG}")
        e("s_sub_u32 s86, 3, s6")
        e(f"s_mov_b32 s62, {SPIN_G}")
        e("L_ha_wait:")
        e(f"buffer_load_dword v{VT}, v{T + 2}, s[{SWS}:{SWS + 3}], s58 offen sc1")
        e("s_waitcnt vmcnt(0)")
        e(f"v_subrev_u32 v{VT}, s85, v{VT}")
        e(f"v_cmp_lt_u32 vcc, s86, v{VT}")
        e("s_nop 1")
        e("s_and_b32 s6, vcc_lo, s84")
        e("s_cbranch_scc0 L_ha_free")
        e("s_sleep 4")
        e("s_sub_u32 s62, s62, 1")
        e("s_cmp_lg_u32 s62, 0")
        e("s_cbranch_scc1 L_ha_wait")
        e("s_endpgm")
        e("L_ha_free:")
        e("s_add_u32 s6, s52, s53")
        e("s_mov_b32 exec_hi, 0xffff")
        e("s_cmp_lg_u32 s59, 0")
        e("s_cbranch_scc1 L_ha_local")
        e(f"buffer_store_dwordx4 v[{OPR}:{OPR + 3}], v{T}, s[{SWS}:{SWS + 3}], s6 offen sc1")
        e("s_branch L_ha_stored")
        e("L_ha_local:")
        e(f"buffer_store_dwordx4 v[{OPR}:{OPR + 3}], v{T}, s[{SWS}:{SWS + 3}], s6 offen")
        e("L_ha_stored:")
        e("s_mov_b64 exec, -1")
        e("s_add_u32 s53, s53, 24576")
        e("s_cmp_eq_u32 s53, s55")
        e("s_cselect_b32 s53, 0, s53")
        e(f"s_add_u32 s54, s54, {hex(USE_STEP)}")
        e(f"s_add_u32 s51, s51, {self.dump_bytes}")
        e(f"s_cmp_eq_u32 s51, {3 * self.dump_bytes}")
        e("s_cselect_b32 s51, 0, s51")
        e("s_add_u32 s50, s50, 1")
        e("s_cmp_le_u32 s50, 10")
        e("s_cbranch_scc1 L_ha_dump")
        e(f"s_sub_u32 s56, s{S_C}, 29")
        e("s_lshl_b32 s56, s56, 3")
        e(f"s_add_u32 s56, s56, s{S_X}")
        e("s_sub_u32 s6, s56, 8")
        e("s_cmp_lt_u32 s6, 12")
        e("s_cbranch_scc1 L_fin_entry")
        self.stamp(8)
        self.prof_store(9)
        e("s_endpgm")
        return GQ + 60

    def marker(self, vt, sws):
        e = self.e
        if not self.xg:
            return
        lp = self.label("ct")
        e(f"s_cmp_lg_u32 s{S_X}, 7")
        e("s_cbranch_scc1 L_norank")
        e(f"v_mul_u32_u24 v{vt}, {PR_STRIDE}, v0")
        e(f"v_mov_b32 v{vt + 1}, 0")
        e(f"s_mov_b32 s6, {WS_RK}")
        e(f"buffer_store_dword v{vt + 1}, v{vt}, s[{sws}:{sws + 3}], s6 offen sc1")
        e("L_norank:")
        e("s_mov_b32 s57, 0")
        e(f"s_mov_b32 s58, {self.xfrom}")
        e(f"s_mul_i32 s55, s{S_X}, {PR_STRIDE}")
        e(f"s_add_u32 s55, s55, {WS_PR + 252}")
        e(f"{lp}:")
        self.wait_lds(L_FIT, "s58", vt, n=self.NS, sleep=1)
        e(f"s_mul_i32 s59, s58, {PR_STRIDE}")
        e(f"s_add_u32 s59, s59, {WS_RK}")
        e("s_mov_b32 s6, 1")
        e(f"s_atomic_add s6, s[{P_WS}:{P_WS + 1}], s59 glc")
        e("s_waitcnt lgkmcnt(0)")
        e("s_min_u32 s6, s6, 7")
        e("s_lshl_b32 s6, s6, 1")
        e("s_sub_u32 s6, s6, 7")
        e(f"s_mul_i32 s7, s6, {self.xi}")
        e("s_add_u32 s57, s57, s7")
        e(f"s_min_i32 s57, s57, {self.xb}")
        e(f"s_max_i32 s57, s57, {-self.xb}")
        e(f"s_cmp_lt_u32 s58, {self.xsw}")
        e(f"s_cselect_b32 s7, {self.xg0}, {self.xg}")
        e("s_mul_i32 s6, s6, s7")
        e("s_add_u32 s6, s6, s57")
        e(f"s_add_u32 s7, s{S_TAG}, 0x1080")
        e("s_add_u32 s6, s6, s7")
        e(f"v_mov_b32 v{vt}, s6")
        e("s_mov_b64 exec, 1")
        e(f"buffer_store_dword v{vt}, v{vt + 4}, s[{sws}:{sws + 3}], s55 offen")
        e("s_mov_b64 exec, -1")
        e(f"s_add_u32 s58, s58, {self.xstep}")
        e(f"s_cmp_lt_u32 s58, {self.xend}")
        e(f"s_cbranch_scc1 {lp}")

    def helperB(self):
        e = self.e
        NS = self.NS
        S_RB, S_CB = 40, 41
        SX, SA, SWS = 8, 12, 44
        SM = 84
        VA, VT = 3, 4
        G0, WK, YA = 12, 44, 76
        TGL, TGG, VP, VG = 84, 88, 92, 93
        W = 96
        e("L_helperB:")
        e(f"v_mul_u32_u24 v{VA}, 0x2800, v1")
        e(f"v_lshl_add_u32 v{VA}, v2, 4, v{VA}")
        for k in range(4):
            e(f"v_mov_b32 v{VT + k}, 0")
        for k in range(4):
            e(f"ds_write_b128 v{VT}, v[{VT}:{VT + 3}] offset:{16 * k}")
        e(f"s_mul_i32 s43, s{S_X}, {192 * 1280}")
        e(f"s_mul_i32 s6, s{S_CB}, {64 * 1280}")
        e("s_add_u32 s43, s43, s6")
        e(f"s_lshl_b32 s6, s{S_RB}, 7")
        e("s_add_u32 s43, s43, s6")
        e("s_waitcnt lgkmcnt(0)")
        self.srd(SA, P_WO, 6144 * 1280)
        e("s_barrier")
        e(f"s_cmp_ge_u32 s{S_C}, 30")
        e("s_cbranch_scc1 L_hb_tags")
        def wload(i):
            n, ii = divmod(i, 8)
            if ii % 4 == 0:
                e(f"s_add_u32 s42, s43, {(8 * 192 * 1280 * n if n < 4 else 0) + 1280 * ii}")
            r = W + 4 * i
            e(f"buffer_load_dwordx4 v[{r}:{r + 3}], v{VA}, s[{SA}:{SA + 3}], s42 offen offset:{1280 * (ii % 4)} nt")

        for cnt, i in enumerate(range(8 * self.nlate, 40)):
            if "b" in self.dg:
                continue
            if i == 32:
                self.srd(SA, P_D, 1536 * 1280)
            if cnt >= self.capB:
                e(f"s_waitcnt vmcnt({self.capB - 1})")
            wload(i)
        self.stamp(1)
        e("L_hb_tags:")
        if self.prof:
            e("s_mov_b32 s78, 0")
        self.srd(SX, P_X, 1280)
        self.srd(SWS, P_WS, WS_SIZE)
        self.wait_lds(L_FLN, 1, VT, sleep=4)
        self.read_tag(VT)
        self.make_tags(TGL)
        e(f"s_cmp_ge_u32 s{S_C}, 30")
        e("s_cbranch_scc1 L_finisher")
        e(f"v_lshrrev_b32 v{VP}, 5, v0")
        e(f"v_lshlrev_b32 v{VP}, 7, v{VP}")
        e(f"v_lshl_add_u32 v{VP}, v2, 4, v{VP}")
        e(f"s_mul_i32 s54, s{S_RB}, 24")
        e(f"s_mul_i32 s7, s{S_X}, 3")
        e("s_add_u32 s54, s54, s7")
        e(f"s_add_u32 s54, s54, s{S_CB}")
        e("s_lshl_b32 s54, s54, 8")
        e(f"s_add_u32 s54, s54, {WS_YB}")
        e("s_mov_b32 s48, 0x05040100")
        e("s_mov_b32 s49, 0x07060302")

        def permute(n):
            for pr in range(4):
                for k in range(4):
                    lo, hi = W + 32 * n + 8 * pr + k, W + 32 * n + 8 * pr + 4 + k
                    e(f"v_perm_b32 v{WK + 8 * pr + 2 * k}, v{hi}, v{lo}, s48")
                    e(f"v_perm_b32 v{WK + 8 * pr + 2 * k + 1}, v{hi}, v{lo}, s49")

        OV = G0 + 24

        def gemv():
            for pr in range(4):
                for c_ in range(8):
                    e(f"v_dot2c_f32_bf16 v{YA + c_}, v{WK + 8 * pr + c_}, v{OV + pr}")

        self.c("the attention slot is marked empty; the tagged ffn slot, published later, vouches for that")
        for k in range(4):
            e(f"v_mov_b32 v{G0 + k}, -1")
        e(f"s_sub_u32 s6, s54, {WS_YB - WS_YA}")
        e("s_mov_b32 exec_lo, 0xff")
        e("s_mov_b32 exec_hi, 0xff")
        e(f"buffer_store_dwordx4 v[{G0}:{G0 + 3}], v{VP}, s[{SWS}:{SWS + 3}], s6 offen sc1")
        e("s_mov_b64 exec, -1")
        self.c("ffn hidden slice")
        self.wait_lds(L_FLQ, 2, VT, sleep=8)
        e(f"v_lshlrev_b32 v{VG}, 4, v1")
        VF = 88
        e(f"v_and_b32 v{VF}, 1, v2")
        e(f"v_mul_u32_u24 v{VF}, 7680, v{VF}")
        e(f"v_add_u32 v{VF}, v{VF}, v{VG}")
        e(f"s_mul_i32 s6, s{S_X}, 15360")
        e(f"s_lshl_b32 s7, s{S_CB}, 9")
        e("s_add_u32 s6, s6, s7")
        e(f"s_add_u32 s6, s6, {WS_PA1 + 9 * 512}")
        loads = [f"buffer_load_dwordx4 v[{G0 + 16 * m + 4 * q}:{G0 + 16 * m + 4 * q + 3}], v{VF}, "
                 f"s[{SWS}:{SWS + 3}], s6 offen offset:{1536 * m + 128 * q} sc1" for m in range(2) for q in range(4)]
        if "r" not in self.dg:
            self.gather_tagged(loads, G0, 8, VT, sleep=32)
        else:
            e("s_waitcnt vmcnt(0)")
        GA, UA, Z = WK, WK + 8, WK + 16
        for k in range(16):
            e(f"v_add_f32_dpp v{GA + k}, v{G0 + 2 * k}, v{G0 + 2 * k} {X1}")
        for k in range(8):
            self.round_bf16(GA + k)
            self.round_bf16(UA + k)
        c2 = -2.0 * 0.7978845608028654 * 1.4426950408889634
        e(f"s_mov_b32 s6, {hex(f2u(0.044715))}")
        for k in range(8):
            e(f"v_mul_f32 v{Z + k}, v{GA + k}, v{GA + k}")
        for k in range(8):
            e(f"v_mul_f32 v{Z + k}, v{Z + k}, v{GA + k}")
        for k in range(8):
            e(f"v_fma_f32 v{Z + k}, v{Z + k}, s6, v{GA + k}")
        for k in range(8):
            e(f"v_mul_f32 v{Z + k}, {hex(f2u(c2))}, v{Z + k}")
        for k in range(8):
            e(f"v_exp_f32 v{Z + k}, v{Z + k}")
        for k in range(8):
            e(f"v_add_f32 v{Z + k}, 1.0, v{Z + k}")
        for k in range(8):
            e(f"v_rcp_f32 v{Z + k}, v{Z + k}")
        for k in range(8):
            e(f"v_mul_f32 v{Z + k}, v{Z + k}, v{GA + k}")
        for k in range(8):
            self.round_bf16(Z + k)
        for k in range(8):
            e(f"v_mul_f32 v{Z + k}, v{Z + k}, v{UA + k}")
        for k in range(4):
            e(f"v_cvt_pk_bf16_f32 v{OV + k}, v{Z + 2 * k}, v{Z + 2 * k + 1}")
        permute(4)
        for k in range(8):
            e(f"v_mov_b32 v{YA + k}, 0")
        if self.tg:
            e(f"v_lshlrev_b32 v{VG}, 4, v2")
            e(f"v_lshl_add_u32 v{VG}, v1, 8, v{VG}")
            e(f"v_lshlrev_b32 v{VF}, 3, v2")
            e(f"v_add_lshl_u32 v{VF}, v{VF}, v1, 2")
        else:
            e(f"v_lshl_add_u32 v{VG}, v2, 8, v{VG}")
        e(f"v_add_u32 v{VG + 1}, 128, v{VG}")
        e(f"s_mul_i32 s55, s{S_X}, {OP_X}")
        e(f"s_lshl_b32 s7, s{S_CB}, 13")
        e("s_add_u32 s55, s55, s7")
        e(f"s_add_u32 s55, s55, {WS_OP}")
        e("s_mov_b32 s50, -1")
        e("s_branch L_hb_gemv")

        self.c("s50 = head round; each pass gathers one 64-row slice of the attention output")
        XOP = W + 96
        nl = 8 * self.nlate
        pa = min(self.poll_at, nl)
        e("L_hb_last:")
        for i in range(nl, 24):
            self.gemv_row(W + 4 * i, XOP + 2 * i, YA)
        self.srd(SA, P_WO, 6144 * 1280)
        e(f"v_lshlrev_b32 v{VG}, {self.sh_g}, v1")
        e(f"v_lshl_add_u32 v{VG}, v2, {self.sh_p}, v{VG}")
        e(f"v_add_u32 v{VG + 1}, {1 << self.sh_q}, v{VG}")
        if self.preread:
            self.c("one early read makes the last head's slots resident before they are published")
            e("s_add_u32 s53, s52, 4096")
            for j in range(4):
                for q in range(2):
                    r = G0 + 8 * j + 4 * q
                    e(f"buffer_load_dwordx4 v[{r}:{r + 3}], v{VG + q}, s[{SWS}:{SWS + 3}], s{52 + j // 2} "
                      f"offen offset:{2048 * (j % 2)} sc1")
            e("s_waitcnt vmcnt(0)")
        self.stamp(3)
        self.wait_lds(L_FIT, 64 if nl else 65, VT, n=NS, sleep=1)
        for i in range(nl):
            wload(i)
        for i in range(nl - pa):
            e(f"s_waitcnt vmcnt({nl - 1 - i})")
            self.gemv_row(W + 4 * i, XOP + 2 * i, YA)
        self.stamp(4, True)
        hs = self.hsets
        free = [b for b in range(3) if 8 * b + 8 <= nl - pa or 8 * b >= nl]
        assert len(free) >= hs
        sets = [W + 32 * b for b in free[:hs]]

        def poll3(r0):
            for j in range(4):
                for q in range(2):
                    r = r0 + 8 * j + 4 * q
                    e(f"buffer_load_dwordx4 v[{r}:{r + 3}], v{VG + q}, s[{SWS}:{SWS + 3}], s{52 + j // 2} "
                      f"offen offset:{2048 * (j % 2)} sc1")

        def sum3(r0):
            self.addn(G0, r0, r0 + 8, 8)
            self.addn(r0 + 16, r0 + 16, r0 + 24, 8)
            self.addn(G0, G0, r0 + 16, 8)

        e("s_add_u32 s53, s52, 4096")
        e(f"s_mov_b32 s62, {SPIN_G}")
        poll3(sets[0])
        for i in range(nl - pa, nl):
            e(f"s_waitcnt vmcnt({nl - 1 - i + 8})")
            self.gemv_row(W + 4 * i, XOP + 2 * i, YA)
        for r0 in sets[1:]:
            poll3(r0)
        e("L_hb_poll:")
        for k, r0 in enumerate(sets):
            e(f"s_waitcnt vmcnt({8 * (hs - 1)})")
            regs = list(range(r0, r0 + 32)) if self.hfull else list(range(r0 + 3, r0 + 32, 4))
            e(f"v_max_u32 v{VT}, v{regs[0]}, v{regs[1]}")
            for j in range(2, len(regs), 2):
                e(f"v_max3_u32 v{VT}, v{VT}, v{regs[j]}, v{regs[j + 1]}")
            e(f"v_cmp_eq_u32 vcc, -1, v{VT}")
            sum3(r0)
            e("s_cbranch_vccz L_hb_summed")
            poll3(r0)
        e("s_sub_u32 s62, s62, 1")
        e("s_cmp_lg_u32 s62, 0")
        e("s_cbranch_scc1 L_hb_poll")
        e("s_endpgm")
        TGX = 88
        self.c("s51 = dump index")
        e("L_hb_gather:")
        e(f"ds_read_b32 v{VT}, v{VT + 4} offset:{L_LOC}")
        e(f"s_mul_i32 s6, s51, {hex(USE_STEP)}")
        e(f"s_add_u32 s6, s6, s{S_TAG}")
        self.make_tags(TGX, 6)
        e("s_waitcnt lgkmcnt(0)")
        e(f"v_readfirstlane_b32 s59, v{VT}")
        e("s_mov_b32 s6, s51")
        for _ in range(9 // self.ring):
            e(f"s_sub_u32 s7, s6, {self.ring}")
            e(f"s_cmp_ge_u32 s6, {self.ring}")
            e("s_cselect_b32 s6, s7, s6")
        e("s_cmp_lg_u32 s59, 0")
        e("s_cselect_b32 s6, s6, s51")
        e("s_mul_i32 s52, s6, 24576")
        e("s_add_u32 s52, s52, s55")
        e("s_add_u32 s53, s52, 4096")
        groups = []
        for j in range(4):
            groups.append(([f"buffer_load_dwordx4 v[{G0 + 8 * j + 4 * q}:{G0 + 8 * j + 4 * q + 3}], v{VG + q}, "
                            f"s[{SWS}:{SWS + 3}], s{52 + j // 2} offen offset:{2048 * (j % 2)} sc1"
                            for q in range(2)], G0 + 8 * j, 2))
        self.gather_emb(groups, TGX, VT, SM, sleep=16)
        e("s_min_u32 s6, s51, 2")
        e(f"s_add_u32 s6, s6, s{S_TAG}")
        e("s_add_u32 s6, s6, 1")
        e(f"v_mov_b32 v{VT}, s6")
        e(f"s_lshl_b32 s6, s{S_X}, 8")
        e(f"s_lshl_b32 s7, s{S_C}, 2")
        e("s_add_u32 s6, s6, s7")
        e(f"s_add_u32 s6, s6, {WS_JD}")
        e("s_mov_b64 exec, 1")
        e(f"buffer_store_dword v{VT}, v{VT + 4}, s[{SWS}:{SWS + 3}], s6 offen")
        e("s_mov_b64 exec, -1")
        sum3(G0)
        if self.tg:
            self.c("rounds 0..2 were read with lane group = producer: exchange the two lane coordinates")
            for k in range(8):
                e(f"ds_bpermute_b32 v{G0 + k}, v{VF}, v{G0 + k}")
            e("s_waitcnt lgkmcnt(0)")
        e("L_hb_summed:")
        self.stamp(5, True)
        for pat in (X1, X2, HM):
            for k in range(8):
                e(f"v_add_f32_dpp v{G0 + k}, v{G0 + k}, v{G0 + k} {pat}")
        for k in range(4):
            e(f"v_cvt_pk_bf16_f32 v{OV + k}, v{G0 + 2 * k}, v{G0 + 2 * k + 1}")
        e("s_cmp_lg_u32 s50, 3")
        e("s_cbranch_scc1 L_hb_keep")
        e("L_hb_gemv:")
        gemv()
        self.reduce_g(YA, G0, G0 + 4)
        e("s_cmp_eq_u32 s50, 3")
        e("s_cbranch_scc1 L_hb_plain")
        self.embed(G0, TGL)
        e("s_branch L_hb_pub")
        e("L_hb_plain:")
        for k in range(4):
            e(f"v_min_u32 v{G0 + k}, -2, v{G0 + k}")
        e("L_hb_pub:")
        e("s_mov_b32 exec_lo, 0xff")
        e("s_mov_b32 exec_hi, 0xff")
        e(f"buffer_store_dwordx4 v[{G0}:{G0 + 3}], v{VP}, s[{SWS}:{SWS + 3}], s54 offen {self.ya_fl}")
        e("s_mov_b64 exec, -1")
        e("s_cmp_eq_u32 s50, 3")
        e("s_cbranch_scc1 L_hb_done")
        self.stamp(2)
        e(f"s_sub_u32 s54, s54, {WS_YB - WS_YA}")
        for k in range(8):
            e(f"v_mov_b32 v{YA + k}, 0")
        permute(3)
        self.wait_lds(L_FIT, 40 + self.it_op, VT, n=NS, sleep=8)
        e("s_mov_b32 s50, 0")
        e("s_mov_b32 s51, 0")
        e("s_branch L_hb_gather")

        e("L_hb_keep:")
        e("s_cmp_lg_u32 s50, 0")
        e("s_cbranch_scc1 L_hb_k1")
        self.expand(OV, XOP)
        self.wait_lds(L_FIT, 48 + self.it_op, VT, n=NS, sleep=8)
        e("s_mov_b32 s50, 1")
        e("s_mov_b32 s51, 1")
        e("s_branch L_hb_gather")
        e("L_hb_k1:")
        e("s_cmp_lg_u32 s50, 1")
        e("s_cbranch_scc1 L_hb_k2")
        self.expand(OV, XOP + 16)
        e(f"s_cmp_ge_u32 s{S_C}, 24")
        e("s_cbranch_scc1 L_hb_shared")
        self.c("workgroup 3*i + b sums rows 64b.. of shared head 16 + i over its group")
        e(f"s_add_u32 s51, s{S_RB}, {49 + self.it_job}")
        self.wait_lds(L_FIT, "s51", VT, n=NS, sleep=8)
        e("s_mov_b32 s50, 4")
        e(f"s_add_u32 s51, s{S_RB}, 2")
        e("s_branch L_hb_gather")
        e("L_hb_k2:")
        e("s_cmp_lg_u32 s50, 2")
        e("s_cbranch_scc1 L_hb_k4")
        self.expand(OV, XOP + 32)
        e("s_mov_b32 s50, 3")
        e(f"s_add_u32 s52, s55, {10 * 24576}")
        e("s_branch L_hb_last")
        e("L_hb_k4:")
        e(f"v_and_b32 v{VT}, 1, v2")
        e(f"v_cmp_eq_u32 vcc, 1, v{VT}")
        e(f"v_and_b32 v{VT}, 1, v1")
        e(f"v_lshl_add_u32 v{VT}, v2, 3, v{VT}")
        e(f"v_lshlrev_b32 v{VT}, 2, v{VT}")
        for k in range(4):
            e(f"v_cndmask_b32 v{G0 + k}, v{G0 + k}, v{G0 + 4 + k}, vcc")
        for k in range(4):
            e(f"ds_bpermute_b32 v{G0 + 8 + k}, v{VT}, v{G0 + k}")
        e(f"v_lshlrev_b32 v{VT + 1}, 4, v0")
        e(f"s_lshl_b32 s6, s{S_C}, 11")
        e(f"s_lshl_b32 s7, s{S_X}, 8")
        e("s_add_u32 s6, s6, s7")
        e(f"s_add_u32 s6, s6, {WS_OPG}")
        e("s_waitcnt lgkmcnt(0)")
        self.embed(G0 + 8, TGL)
        e("s_mov_b64 exec, 0xffff")
        e(f"buffer_store_dwordx4 v[{G0 + 8}:{G0 + 11}], v{VT + 1}, s[{SWS}:{SWS + 3}], s6 offen sc1")
        e("s_mov_b64 exec, -1")
        e("L_hb_shared:")
        self.wait_lds(L_FIT, self.it_sh, VT, n=NS, sleep=8)
        e("s_mov_b32 s50, 2")
        e(f"s_mul_i32 s52, s{S_X}, 3")
        e(f"s_add_u32 s52, s52, s{S_CB}")
        e("s_lshl_b32 s52, s52, 11")
        e(f"s_add_u32 s52, s52, {WS_OPG}")
        self.gather_emb(groups[:1], TGL, VT, SM, sleep=16)
        e("s_branch L_hb_summed")
        e("L_hb_done:")
        self.stamp(6, True)
        self.prof_store(8)
        e("s_endpgm")

        e("L_finisher:")
        e(f"s_mov_b32 s56, s{S_X}")
        e(f"s_cmp_eq_u32 s{S_C}, 30")
        e("s_cbranch_scc1 L_fin_entry")
        self.marker(VT, SWS)
        e("s_endpgm")
        self.c("finisher s56 (0..19): sums the projection partials of 32 columns and writes them out")
        e("L_fin_entry:")
        XV, BV = 64, 65
        self.make_tags(TGL)
        e(f"v_lshlrev_b32 v{VA}, 4, v2")
        e(f"v_lshl_add_u32 v{VG}, v1, 8, v{VA}")
        e(f"v_lshrrev_b32 v{VT}, 4, v0")
        e(f"v_lshl_add_u32 v{VA}, v{VT}, 1, v{VA}")
        e("s_lshr_b32 s6, s56, 1")
        e("s_and_b32 s7, s56, 1")
        e("s_lshl_b32 s57, s6, 7")
        e("s_mul_i32 s52, s6, 6144")
        e("s_lshl_b32 s6, s7, 3")
        e("s_add_u32 s57, s57, s6")
        e("s_lshl_b32 s6, s7, 7")
        e("s_add_u32 s52, s52, s6")
        e(f"s_add_u32 s52, s52, {WS_YB}")
        e("s_add_u32 s53, s52, 4096")
        e(f"buffer_load_ushort v{XV}, v{VA}, s[{SX}:{SX + 3}], s57 offen")
        self.srd(SA, P_OUT, 1280)

        def yloads(r0):
            return [f"buffer_load_dwordx4 v[{r0 + 4 * i}:{r0 + 4 * i + 3}], v{VG}, s[{SWS}:{SWS + 3}], s{52 + i // 2} "
                    f"offen offset:{2048 * (i % 2)} {self.yl_fl}" for i in range(3)]

        def ysum(r0):
            self.addn(G0, r0, r0 + 4, 4)
            self.addn(G0, G0, r0 + 8, 4)
            e("s_nop 1")
            e(f"v_permlane32_swap_b32 v{G0}, v{G0 + 2}")
            e(f"v_permlane32_swap_b32 v{G0 + 1}, v{G0 + 3}")
            e("s_nop 0")
            self.addn(G0, G0, G0 + 2, 2)
            e("s_nop 1")
            e(f"v_permlane16_swap_b32 v{G0}, v{G0 + 1}")
            e("s_nop 0")
            e(f"v_add_f32 v{G0}, v{G0}, v{G0 + 1}")
            e("s_nop 1")
            e(f"v_add_f32_dpp v{G0}, v{G0}, v{G0} {R8}")
            self.round_bf16(G0)

        self.wait_lds(L_FIT, 16, VT, n=NS, sleep=8)
        self.gather_emb([(yloads(W), W, 3)], TGL, VT, SM, sleep=32, whole=True)
        ysum(W)
        e(f"v_mov_b32 v{BV}, v{G0}")
        e(f"v_lshlrev_b32 v{XV}, 16, v{XV}")
        e(f"s_sub_u32 s52, s52, {WS_YB - WS_YA}")
        e("s_add_u32 s53, s52, 4096")
        self.stamp(3)
        self.wait_lds(L_FIT, 60, VT, n=NS, sleep=8)
        self.wait_lds(L_FIT, 65, VT, n=NS, sleep=1)
        self.stamp(4, True)
        ns = self.fsets
        e(f"s_mov_b32 s62, {SPIN_G}")
        for k in range(ns):
            for s_ in yloads(W + 12 * k):
                e(s_)
        e("L_fin_poll:")
        for k in range(ns):
            r0 = W + 12 * k
            e(f"s_waitcnt vmcnt({3 * (ns - 1)})")
            e(f"v_max_u32 v{VT}, v{r0}, v{r0 + 1}")
            for j in range(2, 12, 2):
                e(f"v_max3_u32 v{VT}, v{VT}, v{r0 + j}, v{r0 + j + 1}")
            e(f"v_cmp_eq_u32 vcc, -1, v{VT}")
            ysum(r0)
            e(f"v_add_f32 v{G0}, v{G0}, v{XV}")
            self.round_bf16(G0)
            e(f"v_add_f32 v{G0}, v{G0}, v{BV}")
            e(f"v_cvt_pk_bf16_f32 v{G0}, v{G0}, v{G0}")
            e("s_cbranch_vccz L_fin_got")
            for s_ in yloads(r0):
                e(s_)
        e("s_sub_u32 s62, s62, 1")
        e("s_cmp_lg_u32 s62, 0")
        e("s_cbranch_scc1 L_fin_poll")
        e("s_endpgm")
        e("L_fin_got:")
        self.exec_tagged()
        e(f"buffer_store_short v{G0}, v{VA}, s[{SA}:{SA + 3}], s57 offen {self.out_fl}")
        self.stamp(5, True)
        e("s_cmp_lg_u32 s56, 0")
        e("s_cbranch_scc1 L_fin_done")
        self.c("the next launch derives a different tag from this word")
        e(f"v_mov_b32 v{VT}, s{S_TAG}")
        e(f"v_mov_b32 v{VT + 1}, {WS_EPOCH}")
        e("s_mov_b64 exec, 1")
        e(f"buffer_store_dword v{VT}, v{VT + 1}, s[{SWS}:{SWS + 3}], 0 offen")
        e("L_fin_done:")
        if self.diag_dbg:
            e("s_memrealtime s[66:67]")
            e("s_waitcnt lgkmcnt(0)")
            e("s_sub_u32 s66, s66, s64")
            self.srd(48, P_DBG, 256)
            e(f"v_mov_b32 v{VT}, s66")
            e("s_lshl_b32 s6, s56, 2")
            e(f"v_mov_b32 v{VT + 1}, s6")
            e("s_mov_b64 exec, 1")
            e(f"buffer_store_dword v{VT}, v{VT + 1}, s[48:51], 0 offen")
        if self.diag_hold:
            if self.diag_who is not None:
                e("s_getreg_b32 s6, hwreg(HW_REG_XCC_ID, 0, 4)")
                e(f"s_cmp_lg_u32 s6, {self.diag_who}")
                e("s_cbranch_scc1 L_exit")
            e("L_hold:")
            e("s_memrealtime s[66:67]")
            e("s_waitcnt lgkmcnt(0)")
            e("s_sub_u32 s66, s66, s64")
            e(f"s_cmp_lt_u32 s66, {self.diag_hold}")
            e("s_cbranch_scc1 L_hold")
        self.stamp(6)
        if self.prof:
            e("s_waitcnt vmcnt(0)")
        self.stamp(7)
        self.prof_store(8)
        e("L_exit:")
        e("s_endpgm")
        e("L_code_end:")
        return W + 160

    def build(self):
        self.entry()
        nv = max(self.streamer(), self.helperA(), self.helperB())
        assert nv <= 256
        body = "\n".join(l if l.endswith(":") or l.startswith(";") else "    " + l for l in self.o)
        return (HEADER.format(block=64 * (self.NS + 2), lds=self.lds, name=NAME) + body
                + FOOTER.format(name=NAME, vgpr=nv, acc=(nv + 3) // 4 * 4))


def gen(**kw):
    return Gen(**kw).build()


if __name__ == "__main__":
    out = sys.argv[1] if len(sys.argv) > 1 else f"cdna_kernels/{NAME}.s"
    kw = eval("dict(" + (sys.argv[2] if len(sys.argv) > 2 else "") + ")")
    open(out, "w").write(gen(**kw))
```
